```python
import torch

def _softmax(x, axis=-1):
    return torch.softmax(x, dim=axis)
def _gelu(x):
    return torch.nn.functional.gelu(x, approximate="tanh")
def _silu(x):
    return torch.nn.functional.silu(x)
def _sigmoid(x):
    return torch.sigmoid(x)
def _layernorm(x, axis=-1, eps=1e-5):
    m = x.mean(dim=axis, keepdim=True)
    v = x.var(dim=axis, keepdim=True, unbiased=False)
    return (x - m) / torch.sqrt(v + eps)
def _scatter_add(tgt, idx, src, axis=0):
    return tgt.clone().index_add_(axis, idx, src)
def _segment_sum(src, seg, n):
    out = torch.zeros((n,) + src.shape[1:], dtype=src.dtype)
    return out.index_add_(0, seg, src)
def _pad(x, pw):
    flat = tuple(v for pair in reversed(pw) for v in pair)
    return torch.nn.functional.pad(x, flat)

kernel_name = 'concat_heads__ssm_conv_s4__linear_attn_block__prompt'

def setup_inputs():

    _w = (lambda a: (lambda t: t.to(torch.bfloat16) if t.is_floating_point() else t)(torch.as_tensor(a)))
    def _A_setup():
        B, L, D, N = 1, 2048, 512, 128
        A_re = -(lambda _x: torch.exp(torch.as_tensor(_x)))((lambda *s: torch.randn(*s, dtype=torch.bfloat16) * 6.4)(D, N))
        A_im = torch.pi * (lambda *s: torch.randn(*s, dtype=torch.bfloat16) * 0.05)(D, N)
        B_re = (lambda *s: torch.randn(*s, dtype=torch.bfloat16) * 0.1)(D, N)
        B_im = (lambda *s: torch.randn(*s, dtype=torch.bfloat16) * 0.1)(D, N)
        C_re = (lambda *s: torch.randn(*s, dtype=torch.bfloat16) * 0.1)(D, N)
        C_im = (lambda *s: torch.randn(*s, dtype=torch.bfloat16) * 0.1)(D, N)
        log_dt = (lambda *s: torch.randn(*s, dtype=torch.bfloat16) * 0.05)(D) * 0.5 - 4.0
        Dskip = (lambda *s: torch.randn(*s, dtype=torch.bfloat16) * 0.05)(D)
        return {
            "u": _w((lambda *s: torch.randn(*s, dtype=torch.bfloat16) * 0.05)(B, L, D)),
            "A_re": _w(A_re),
            "A_im": _w(A_im),
            "B_re": _w(B_re),
            "B_im": _w(B_im),
            "C_re": _w(C_re),
            "C_im": _w(C_im),
            "log_dt": _w(log_dt),
            "Dskip": _w(Dskip),
        }
    _A_in = _A_setup()

    def _B_setup():
        B, S, D = 1, 2048, 512
        return {
            "x": _w((lambda *s: torch.randn(*s, dtype=torch.bfloat16) * 0.05)(B, S, D)),
            "wqkv": _w((lambda *s: torch.randn(*s, dtype=torch.bfloat16) * 0.4)(D, 3 * D)),
            "wo": _w((lambda *s: torch.randn(*s, dtype=torch.bfloat16) * 0.05)(D, D)),
        }
    _B_in = _B_setup()

    return {
        "A_u": _A_in["u"],
        "A_A_re": _A_in["A_re"],
        "A_A_im": _A_in["A_im"],
        "A_B_re": _A_in["B_re"],
        "A_B_im": _A_in["B_im"],
        "A_C_re": _A_in["C_re"],
        "A_C_im": _A_in["C_im"],
        "A_log_dt": _A_in["log_dt"],
        "A_Dskip": _A_in["Dskip"],
        "B_x": _B_in["x"],
        "B_wqkv": _B_in["wqkv"],
        "B_wo": _B_in["wo"],
    }

def reference(A_u, A_A_re, A_A_im, A_B_re, A_B_im, A_C_re, A_C_im, A_log_dt, A_Dskip, B_x, B_wqkv, B_wo):
    def _A_ref(u, A_re, A_im, B_re, B_im, C_re, C_im, log_dt, Dskip):
        Bsz, L, D = u.shape
        dt = torch.exp(log_dt)[:, None]
        A = A_re + 1j * A_im
        Bc = B_re + 1j * B_im
        Cc = C_re + 1j * C_im
        logdA = dt * A
        dB = dt * Bc
        l = (lambda x, dt: x.to(dt))(torch.arange(L), A_re.dtype)
        P = torch.exp(logdA[:, :, None] * l[None, None, :])
        K = torch.einsum("dn,dnl,dn->dl", Cc, P, dB).real
        L2 = 2 * L
        Kp = _pad(K, ((0, 0), (0, L)))
        up = (lambda x, *d: x.permute(*d))(u, 0, 2, 1)
        up = _pad(up, ((0, 0), (0, 0), (0, L)))
        Kf = (lambda x, axes=(-2,-1): torch.fft.rfft2(x.float(), dim=axes))(Kp[:, None, :], axes=(-2, -1))
        Uf = (lambda x, axes=(-2,-1): torch.fft.rfft2(x.float(), dim=axes))(up[:, :, None, :], axes=(-2, -1))
        Yf = Uf * Kf[None, :, :, :]
        y = (lambda x, s, axes=(-2,-1): torch.fft.irfft2(x, s=s, dim=axes).to(torch.bfloat16))(Yf, (1, L2), axes=(-2, -1))[:, :, 0, :L]
        y = (lambda x, *d: x.permute(*d))(y, 0, 2, 1) + u * Dskip[None, None, :]
        return y

    def _B_ref(x, wqkv, wo):
        B, S, D = x.shape
        H = 32; Dh = D // H
        qkv = (lambda x, *d: x.permute(*d))((x @ wqkv).reshape(B, S, 3, H, Dh), 2, 0, 3, 1, 4)
        q, k, v = qkv[0], qkv[1], qkv[2]
        phi = lambda t: torch.where(t > 0, t + 1, torch.exp(t)) + 1e-6
        pq, pk = phi(q), phi(k)
        kv = torch.einsum("bhsd,bhse->bhde", pk, v)
        z = torch.einsum("bhsd->bhd", pk)
        num = torch.einsum("bhqd,bhde->bhqe", pq, kv)
        den = torch.einsum("bhqd,bhd->bhq", pq, z)[..., None] + 1e-6
        o = num / den
        return (lambda x, *d: x.permute(*d))(o, 0, 2, 1, 3).reshape(B, S, D) @ wo

    a = _A_ref(A_u, A_A_re, A_A_im, A_B_re, A_B_im, A_C_re, A_C_im, A_log_dt, A_Dskip)
    b = _B_ref(B_x, B_wqkv, B_wo)
    return torch.concatenate([a, b], axis=-1)
```

```python
import re

TRANS = ("v_exp_f32", "v_log_f32", "v_rcp_f32", "v_rsq_f32", "v_sqrt_f32", "v_sin_f32", "v_cos_f32")


def _regs(tok):
    tok = tok.strip()
    neg = tok.lstrip("-")
    if neg.startswith("abs(") and neg.endswith(")"):
        neg = neg[4:-1]
    if neg.startswith("|") and neg.endswith("|"):
        neg = neg[1:-1]
    m = re.fullmatch(r"([vas])\[(\d+):(\d+)\]", neg)
    if m:
        return {(m.group(1), i) for i in range(int(m.group(2)), int(m.group(3)) + 1)}
    m = re.fullmatch(r"([vas])(\d+)", neg)
    if m:
        return {(m.group(1), int(m.group(2)))}
    if neg in ("vcc", "vcc_lo", "vcc_hi"):
        return {("x", "vcc")}
    if neg in ("exec", "exec_lo", "exec_hi"):
        return {("x", "exec")}
    if neg == "m0":
        return {("x", "m0")}
    return set()


def _split_ops(rest):
    ops, depth, cur = [], 0, ""
    for ch in rest:
        if ch in "[(":
            depth += 1
        elif ch in "])":
            depth -= 1
        if ch == "," and depth == 0:
            ops.append(cur.strip())
            cur = ""
        else:
            cur += ch
    if cur.strip():
        ops.append(cur.strip())
    mods = ""
    if ops:
        last = ops[-1]
        depth = 0
        for i, ch in enumerate(last):
            if ch in "[(":
                depth += 1
            elif ch in "])":
                depth -= 1
            elif ch == " " and depth == 0:
                mods = last[i + 1:]
                ops[-1] = last[:i]
                break
    return ops, mods


class Ins:
    __slots__ = ("text", "op", "ops", "mods", "kind", "wr", "rd", "srcc", "passes", "is_label", "label",
                 "target", "dpp", "trans", "wide_store_data", "lds_dma", "comment")

    def __init__(self, text):
        self.text = text
        self.is_label = False
        self.label = None
        self.target = None
        self.wr, self.rd, self.srcc = set(), set(), set()
        self.passes = 0
        self.dpp = False
        self.trans = False
        self.wide_store_data = set()
        self.lds_dma = False
        t = text.split(";")[0].strip()
        if not t:
            self.kind = "none"
            self.op = ""
            return
        if t.endswith(":"):
            self.is_label = True
            self.label = t[:-1]
            self.kind = "label"
            self.op = ""
            return
        if t.startswith("."):
            self.kind = "none"
            self.op = ""
            return
        sp = t.split(None, 1)
        self.op = op = sp[0]
        rest = sp[1] if len(sp) > 1 else ""
        self.ops, self.mods = _split_ops(rest)
        ops = self.ops
        R = _regs
        base = re.sub(r"_(e32|e64|dpp|sdwa)$", "", op)
        if op.startswith("v_mfma"):
            self.kind = "mfma"
            self.wr = R(ops[0])
            self.rd = R(ops[1]) | R(ops[2])
            self.srcc = R(ops[3])
            self.passes = 8 if "32x32" in op else 4
        elif op.startswith("v_"):
            self.kind = "valu"
            self.dpp = op.endswith("_dpp") or "quad_perm" in self.mods or "row_" in self.mods.replace("row_mask", "") or "wave_" in self.mods
            self.trans = base in TRANS
            if base.startswith("v_cmp"):
                self.wr = R(ops[0])
                for o in ops[1:]:
                    self.rd |= R(o)
            elif base in ("v_readfirstlane_b32", "v_readlane_b32"):
                self.wr = R(ops[0])
                for o in ops[1:]:
                    self.rd |= R(o)
            elif base.startswith("v_permlane32_swap") or base.startswith("v_permlane16_swap") or base == "v_swap_b32":
                self.wr = R(ops[0]) | R(ops[1])
                self.rd = R(ops[0]) | R(ops[1])
            elif base in ("v_add_co_u32", "v_addc_co_u32", "v_sub_co_u32"):
                self.wr = R(ops[0]) | R(ops[1])
                for o in ops[2:]:
                    self.rd |= R(o)
            else:
                self.wr = R(ops[0])
                for o in ops[1:]:
                    self.rd |= R(o)
                if base in ("v_fmac_f32", "v_dot2c_f32_bf16", "v_pk_fmac_f16", "v_writelane_b32") or self.dpp:
                    self.rd |= R(ops[0])
                if base == "v_cndmask_b32" and len(ops) == 3:
                    self.rd |= {("x", "vcc")}
        elif op.startswith("ds_"):
            self.kind = "ds"
            if op.startswith("ds_read") or op.startswith("ds_bpermute") or op.startswith("ds_permute") or op.startswith("ds_swizzle"):
                self.wr = R(ops[0])
                for o in ops[1:]:
                    self.rd |= R(o)
            else:
                for o in ops:
                    self.rd |= R(o)
        elif op.startswith("buffer_") or op.startswith("global_"):
            self.kind = "vmem"
            mods = " " + self.mods + " "
            if op in ("buffer_inv", "buffer_wbl2"):
                pass
            elif op.startswith("buffer_load") and " lds " in mods:
                self.lds_dma = True
                for o in ops:
                    self.rd |= R(o)
            elif op.startswith("global_load_lds"):
                self.lds_dma = True
                for o in ops:
                    self.rd |= R(o)
            elif "_load" in op:
                self.wr = R(ops[0])
                for o in ops[1:]:
                    self.rd |= R(o)
                if "d16" in op:
                    self.rd |= R(ops[0])
            elif "atomic" in op:
                for o in ops:
                    self.rd |= R(o)
                if " sc0 " in mods:
                    self.wr = R(ops[0]) if op.startswith("buffer") else R(ops[0])
            else:
                for o in ops:
                    self.rd |= R(o)
                if op.endswith("x4") or op.endswith("x3"):
                    self.wide_store_data = R(ops[0]) if op.startswith("buffer") else R(ops[1])
        elif op.startswith("s_"):
            if op in ("s_branch",) or op.startswith("s_cbranch"):
                self.kind = "branch"
                self.target = ops[0]
            elif op == "s_nop":
                self.kind = "nop"
            elif op in ("s_waitcnt", "s_barrier", "s_endpgm", "s_sleep", "s_setprio"):
                self.kind = "sctl"
            elif op.startswith("s_load") or op.startswith("s_buffer_load") or op in ("s_memtime", "s_memrealtime"):
                self.kind = "smem"
                self.wr = R(ops[0])
                for o in ops[1:]:
                    self.rd |= R(o)
            elif op.startswith("s_cmp") or op.startswith("s_bitcmp"):
                self.kind = "salu"
                for o in ops:
                    self.rd |= R(o)
            else:
                self.kind = "salu"
                self.wr = R(ops[0])
                for o in ops[1:]:
                    self.rd |= R(o)
                if "saveexec" in op:
                    self.wr |= {("x", "exec")}
        else:
            raise ValueError("unknown instruction: " + text)

    def states(self):
        if self.kind == "nop":
            return int(self.ops[0], 0) + 1
        if self.kind in ("none", "label"):
            return 0
        return 1


def _vregs(s):
    return {r for r in s if r[0] in "va"}


def _sregs(s):
    return {r for r in s if r[0] == "s" or r == ("x", "vcc")}


def required(p, c):
    n = 0
    if p.kind == "valu":
        pw = _vregs(p.wr)
        if c.kind == "mfma" and pw & (c.rd | c.srcc):
            n = max(n, 2)
        if c.kind == "valu":
            if p.trans and not c.trans and pw & c.rd:
                n = max(n, 1)
            if p.trans and c.trans and pw & c.rd:
                n = max(n, 1)
            if c.dpp and pw & c.rd:
                n = max(n, 2)
            if "permlane" in c.op and pw & c.rd:
                n = max(n, 2)
            if c.op.startswith("v_readfirstlane") or c.op.startswith("v_readlane"):
                if pw & c.rd:
                    n = max(n, 1)
        ps = _sregs(p.wr)
        if ps:
            if c.kind == "valu" and ps & c.rd:
                n = max(n, 4 if c.op.startswith("v_readlane") or c.op.startswith("v_writelane") else 2)
            if c.kind == "vmem" and ps & c.rd:
                n = max(n, 5)
            if c.kind in ("salu", "smem") and ps & c.rd:
                n = max(n, 1)
            if c.kind == "branch" and ("x", "vcc") in ps and "vcc" in c.op:
                n = max(n, 5)
    if p.kind == "mfma":
        D = p.wr
        big = p.passes == 8
        if c.kind == "mfma":
            if D & c.rd:
                n = max(n, 12 if big else 8)
            if D & c.srcc:
                if c.srcc == D and c.passes == p.passes and c.wr == D:
                    pass
                elif c.srcc == D and c.passes == p.passes:
                    pass
                else:
                    n = max(n, 10 if big else 6)
            elif D & c.wr and not (c.srcc == D):
                n = max(n, 10 if big else 6)
        elif c.kind in ("valu", "ds", "vmem"):
            if D & (c.rd | c.wr):
                n = max(n, 12 if big else 8)
        if c.kind == "valu" and p.srcc & c.wr:
            n = max(n, 7 if big else 3)
    if p.kind == "vmem" and p.wide_store_data:
        if c.kind == "valu" and p.wide_store_data & c.wr:
            n = max(n, 2)
        elif c.kind in ("ds", "vmem", "mfma") and p.wide_store_data & c.wr:
            n = max(n, 1)
    if p.kind == "salu" and ("x", "m0") in p.wr and c.kind == "vmem" and c.lds_dma:
        n = max(n, 1)
    if p.kind == "salu" and ("x", "exec") in p.wr and c.kind == "valu" and c.dpp:
        n = max(n, 1)
    return n


WINDOW = 14


def insert_nops(ins):
    incoming = {}
    for _ in range(8):
        out = []
        pend = []
        changed = False
        new_incoming = {}
        reachable = True
        for x in ins:
            if x.kind == "label":
                inc = incoming.get(x.label, []) + new_incoming.get(x.label, [])
                if not reachable:
                    pend = []
                pend = pend + inc
                reachable = True
                out.append(x)
                continue
            if x.kind == "none":
                out.append(x)
                continue
            need = 0
            for p, age in pend:
                r = required(p, x)
                if r > age:
                    need = max(need, r - age)
            while need > 0:
                k = min(need, 16)
                nop = Ins("s_nop %d" % (k - 1))
                out.append(nop)
                pend = [(p, a + k) for p, a in pend]
                need -= k
            out.append(x)
            st = x.states()
            pend = [(p, a + st) for p, a in pend if a + st < WINDOW]
            if x.kind in ("valu", "mfma", "vmem", "salu"):
                pend.append((x, 0))
            if x.kind == "branch":
                new_incoming.setdefault(x.target, []).extend(pend)
                if x.op == "s_branch":
                    reachable = False
            if x.op == "s_endpgm":
                reachable = False
                pend = []
        def key(l):
            return sorted((id(p), a) for p, a in l)
        same = all(key(incoming.get(k, [])) == key(v) for k, v in new_incoming.items()) and len(incoming) == len(new_incoming)
        incoming = new_incoming
        ins = out
        if same:
            break
    return ins


class Asm:
    def __init__(self):
        self.lines = []
        self._lbl = 0

    def __call__(self, text):
        for l in text.split("\n"):
            l = l.strip()
            if l:
                self.lines.append(l)

    def label(self, name):
        self.lines.append(name + ":")

    def newlabel(self, stem="L"):
        self._lbl += 1
        return "%s_%d" % (stem, self._lbl)

    def finish(self):
        ins = [Ins(l) for l in self.lines]
        ins = insert_nops(ins)
        out = []
        for x in ins:
            if x.kind == "label":
                out.append(x.text)
            else:
                out.append("    " + x.text)
        return "\n".join(out) + "\n"
```

```python
from asmdsl import Asm

LOG2E = 0x3fb8aa3b
INV2PI = 0x3e22f983

KREG = 17664
CB = [1, 276, 552, 828]
UBASE = 4 * KREG
UCH = 9472
UCP = 4736
A_LDS = UBASE + 4 * UCH
XROW = 272
YOFF = 32 * XROW

def row_of(hf, rho):
    return 8 * (rho >> 2) + 4 * hf + (rho & 3)
XEXP = {}
for rho, a_ in enumerate([0, 1, 2, 3, 4, 5, 6, 7, 512, 516, 520, 1024, 1032, 1536, 1544]):
    XEXP.setdefault(a_, []).append(row_of(0, rho))
for rho, a_ in enumerate([256, 256, 258, 260, 260, 260, 262, 264, 768, 772, 776, 1280, 1288, 1792, 1800]):
    XEXP.setdefault(a_, []).append(row_of(1, rho))


def cmul(a, D, A, B):
    a("v_pk_mul_f32 v[%d:%d], v[%d:%d], v[%d:%d] op_sel_hi:[0,1]" % (D, D + 1, A, A + 1, B, B + 1))
    a("v_pk_fma_f32 v[%d:%d], v[%d:%d], v[%d:%d], v[%d:%d] op_sel:[1,1,0] op_sel_hi:[1,0,1] neg_lo:[0,1,0]"
      % (D, D + 1, A, A + 1, B, B + 1, D, D + 1))


def cmul2(a, lst):
    for D, A, B in lst:
        a("v_pk_mul_f32 v[%d:%d], v[%d:%d], v[%d:%d] op_sel_hi:[0,1]" % (D, D + 1, A, A + 1, B, B + 1))
    for D, A, B in lst:
        a("v_pk_fma_f32 v[%d:%d], v[%d:%d], v[%d:%d], v[%d:%d] op_sel:[1,1,0] op_sel_hi:[1,0,1] neg_lo:[0,1,0]"
          % (D, D + 1, A, A + 1, B, B + 1, D, D + 1))


STAMP_BASE = 70
def stamp(a, S, i):
    if S.get("stamps"):
        a("s_memtime s[%d:%d]" % (STAMP_BASE + 2 * i, STAMP_BASE + 2 * i + 1))

def emit_partA(a: Asm, S, dbg=None):
    ka, s_cg = S["ka"], S["cg"]
    sP = 16
    sD = 32
    sO = 34
    sU = 36
    sOS = 40
    s_w, s_d, s_t0, s_t1, s_kreg, s_cnt = 44, 45, 46, 47, 48, 49
    s_k2, s_k4, s_k6 = 50, 51, 52
    stamp(a, S, 0)
    a("s_load_dwordx16 s[%d:%d], s[%d:%d], 0" % (sP, sP + 15, ka, ka + 1))
    a("s_load_dwordx2 s[%d:%d], s[%d:%d], 64" % (sD, sD + 1, ka, ka + 1))
    a("s_load_dwordx2 s[%d:%d], s[%d:%d], 96" % (sO, sO + 1, ka, ka + 1))
    vLane, vW, vT0, vT1, vT2, vT3 = 1, 2, 3, 4, 5, 6
    vOffN = 7
    vOffD = 8
    vU0, vU1, vU2 = 9, 10, 11
    vG = 12
    vIn = 14
    vLdt, vDsk = 26, 27
    vR = 28
    vDt, vDtL, vDtP = 46, 47, 48
    vXw = 49
    vXr = 50
    vD0 = 51
    a("v_and_b32 v%d, 63, v0" % vLane)
    a("v_lshrrev_b32 v%d, 6, v0" % vW)
    a("v_readfirstlane_b32 s%d, v%d" % (s_w, vW))
    a("s_lshl_b32 s%d, s%d, 2" % (s_d, s_cg))
    a("s_add_u32 s%d, s%d, s%d" % (s_d, s_d, s_w))
    a("s_lshl_b32 s%d, s%d, 8" % (s_t0, s_d))
    a("v_lshlrev_b32 v%d, 1, v%d" % (vOffN, vLane))
    a("v_add_u32 v%d, s%d, v%d" % (vOffN, s_t0, vOffN))
    a("s_lshl_b32 s%d, s%d, 1" % (s_t1, s_d))
    a("v_mov_b32 v%d, s%d" % (vOffD, s_t1))
    a("v_and_b32 v%d, 0xff, v0" % vG)
    a("s_lshl_b32 s%d, s%d, 3" % (s_t0, s_cg))
    a("v_lshlrev_b32 v%d, 13, v%d" % (vU1, vG))
    a("v_add_u32 v%d, s%d, v%d" % (vU1, s_t0, vU1))
    a("v_add_u32 v%d, 0xfffffc00, v%d" % (vU0, vU1))
    a("v_add_u32 v%d, 4096, v%d" % (vU2, vU1))
    a("s_waitcnt lgkmcnt(0)")
    a("s_mov_b32 s%d, s%d" % (sU, sP)); a("s_and_b32 s%d, s%d, 0xffff" % (sU + 1, sP + 1))
    a("s_mov_b32 s%d, 0x200000" % (sU + 2)); a("s_mov_b32 s%d, 0x20000" % (sU + 3))
    a("s_mov_b32 s%d, s%d" % (sOS, sO)); a("s_and_b32 s%d, s%d, 0xffff" % (sOS + 1, sO + 1))
    a("s_mov_b32 s%d, 0x400000" % (sOS + 2)); a("s_mov_b32 s%d, 0x20000" % (sOS + 3))
    a("global_load_ushort v%d, v%d, s[%d:%d]" % (vLdt, vOffD, sP + 14, sP + 15))
    a("global_load_ushort v%d, v%d, s[%d:%d]" % (vDsk, vOffD, sD, sD + 1))
    for p in range(2):
        for k in range(6):
            a("global_load_ushort v%d, v%d, s[%d:%d] offset:%d" % (vIn + 6 * p + k, vOffN, sP + 2 + 2 * k, sP + 3 + 2 * k, 128 * p))
    a("buffer_load_dwordx2 v[%d:%d], v%d, s[%d:%d], 0 offen" % (vR, vR + 1, vU0, sU, sU + 3))
    for r in range(1, 9):
        vo = vU1 if r <= 4 else vU2
        a("buffer_load_dwordx2 v[%d:%d], v%d, s[%d:%d], 0 offen offset:%d" % (vR + 2 * r, vR + 2 * r + 1, vo, sU, sU + 3, ((r - 1) % 4) * 1024))
    a("s_mul_i32 s%d, s%d, %d" % (s_kreg, s_w, KREG))
    a("v_lshlrev_b32 v%d, 2, v%d" % (vXw, vLane))
    a("v_add_u32 v%d, s%d, v%d" % (vXw, s_kreg, vXw))
    a("v_and_b32 v%d, 31, v%d" % (vT0, vLane))
    a("v_mul_u32_u24 v%d, %d, v%d" % (vXr, XROW, vT0))
    a("v_lshrrev_b32 v%d, 5, v%d" % (vT1, vLane))
    a("v_lshlrev_b32 v%d, 4, v%d" % (vT1, vT1))
    a("v_add3_u32 v%d, v%d, v%d, s%d" % (vXr, vXr, vT1, s_kreg))
    a("s_waitcnt vmcnt(%d)" % (12 + 9))
    stamp(a, S, 1)
    a("v_lshlrev_b32 v%d, 16, v%d" % (vLdt, vLdt))
    a("v_lshlrev_b32 v%d, 16, v%d" % (vDsk, vDsk))
    a("v_mul_f32 v%d, 0x%x, v%d" % (vDt, LOG2E, vLdt))
    a("v_exp_f32 v%d, v%d" % (vDt, vDt))
    a("v_cvt_pk_bf16_f32 v%d, v%d, v%d" % (vDt, vDt, vDt))
    a("v_and_b32 v%d, 0xffff0000, v%d" % (vDt, vDt))
    a("v_mul_f32 v%d, 0x%x, v%d" % (vDtL, LOG2E, vDt))
    a("v_mul_f32 v%d, 0x%x, v%d" % (vDtP, INV2PI, vDt))
    a("v_cmp_eq_u32 vcc, 0, v%d" % vLane)
    a("v_cndmask_b32 v%d, 0, v%d, vcc" % (vD0, vDsk))
    c0 = 52
    Z1, Z2, Z4, Z8, Z16, Z32, Z64, Z128, Z256, W = [c0 + 2 * i for i in range(10)]
    wk = [72 + 2 * i for i in range(12)]
    tc = [96, 97, 98, 99]
    FA, FB = 100, 132
    DK = 164
    tci = [0]

    def put(P, rows, isX):
        t = tc[tci[0] % 4]; tci[0] += 1
        if isX:
            a("v_cvt_pk_bf16_f32 v%d, v%d, -v%d" % (t, P, P + 1))
        else:
            a("v_cvt_pk_bf16_f32 v%d, v%d, v%d" % (t, P, P + 1))
        for r in rows:
            a("ds_write_b32 v%d, v%d offset:%d" % (vXw, t, r * XROW + (0 if isX else YOFF)))

    for p in range(2):
        I = vIn + 6 * p
        a("s_waitcnt vmcnt(%d)" % (9 + (6 if p == 0 else 0)))
        for k in range(6):
            a("v_lshlrev_b32 v%d, 16, v%d" % (I + k, I + k))
        Are, Aim, Bre, Cre = I, I + 1, I + 2, I + 4
        m_, ph = wk[0], wk[0] + 1
        a("v_mul_f32 v%d, v%d, v%d" % (m_, Are, vDtL))
        a("v_mul_f32 v%d, v%d, v%d" % (ph, Aim, vDtP))
        a("v_exp_f32 v%d, v%d" % (m_, m_))
        a("v_rndne_f32 v%d, v%d" % (wk[2], ph))
        a("v_sub_f32 v%d, v%d, v%d" % (ph, ph, wk[2]))
        cmul(a, wk[1], Cre, Bre)
        a("v_cos_f32 v%d, v%d" % (Z1, ph))
        a("v_sin_f32 v%d, v%d" % (Z1 + 1, ph))
        a("v_mul_f32 v%d, v%d, v%d" % (W, wk[1], vDt))
        a("v_mul_f32 v%d, v%d, v%d" % (W + 1, wk[1] + 1, vDt))
        a("v_mul_f32 v%d, v%d, v%d" % (Z1, Z1, m_))
        a("v_mul_f32 v%d, v%d, v%d" % (Z1 + 1, Z1 + 1, m_))
        if p == 1:
            a("s_waitcnt lgkmcnt(0)")
        put(W, XEXP[0], True)
        cmul2(a, [(Z2, Z1, Z1), (wk[1], W, Z1)])
        put(wk[1], XEXP[1], True)
        cmul2(a, [(Z4, Z2, Z2), (wk[2], W, Z2), (wk[3], wk[1], Z2)])
        put(wk[2], XEXP[2], True); put(wk[3], XEXP[3], True)
        cmul2(a, [(Z8, Z4, Z4), (wk[4], W, Z4), (wk[5], wk[1], Z4), (wk[6], wk[2], Z4), (wk[7], wk[3], Z4)])
        for k_, e_ in ((4, 4), (5, 5), (6, 6), (7, 7)):
            put(wk[k_], XEXP[e_], True)
        cmul(a, Z16, Z8, Z8)
        a("v_mov_b32 v%d, 0x00003f80" % tc[0])
        tci[0] = 1
        a("ds_write_b32 v%d, v%d offset:%d" % (vXw, tc[0], YOFF))
        put(Z8, [1], False)
        cmul2(a, [(Z32, Z16, Z16), (wk[3], Z8, Z16)])
        put(Z16, [2], False); put(wk[3], [3], False)
        cmul2(a, [(Z64, Z32, Z32), (wk[1], Z8, Z32), (wk[2], Z16, Z32), (wk[7], wk[3], Z32)])
        put(Z32, [4], False); put(wk[1], [5], False); put(wk[2], [6], False); put(wk[7], [7], False)
        cur = [Z32, wk[1], wk[2], wk[7]]
        setA = [wk[3], wk[4], wk[5], wk[6]]
        setB = [wk[8], wk[9], wk[10], wk[11]]
        nxt = setB
        for j0 in range(8, 32, 4):
            extra = []
            if j0 == 8:
                extra = [(Z128, Z64, Z64)]
            elif j0 == 12:
                extra = [(Z256, Z128, Z128)]
            cmul2(a, [(nxt[k], cur[k], Z32) for k in range(4)] + extra)
            for k in range(4):
                put(nxt[k], [j0 + k], False)
            cur = nxt
            nxt = setA if cur is setB else setB
        G = wk[0]; Gn = wk[1]
        cmul(a, G, W, Z256)
        put(G, XEXP[256], True)
        cmul2(a, [(wk[2], G, Z2), (wk[3], G, Z4), (wk[4], G, Z8), (Gn, G, Z256)])
        put(wk[2], XEXP[258], True); put(wk[3], XEXP[260], True); put(wk[4], XEXP[264], True)
        cmul2(a, [(wk[5], wk[2], Z4), (wk[6], Gn, Z4), (wk[7], Gn, Z8), (G, Gn, Z256)])
        put(wk[5], XEXP[262], True); put(Gn, XEXP[512], True); put(wk[6], XEXP[516], True); put(wk[7], XEXP[520], True)
        cmul2(a, [(wk[2], G, Z4), (wk[3], G, Z8), (Gn, G, Z256)])
        put(G, XEXP[768], True); put(wk[2], XEXP[772], True); put(wk[3], XEXP[776], True)
        cmul2(a, [(wk[4], Gn, Z8), (G, Gn, Z256)])
        put(Gn, XEXP[1024], True); put(wk[4], XEXP[1032], True)
        cmul2(a, [(wk[5], G, Z8), (Gn, G, Z256)])
        put(G, XEXP[1280], True); put(wk[5], XEXP[1288], True)
        cmul2(a, [(wk[6], Gn, Z8), (G, Gn, Z256)])
        put(Gn, XEXP[1536], True); put(wk[6], XEXP[1544], True)
        cmul(a, wk[7], G, Z8)
        put(G, XEXP[1792], True); put(wk[7], XEXP[1800], True)
        a("s_waitcnt lgkmcnt(0)")
        for m in range(8):
            a("ds_read_b128 v[%d:%d], v%d offset:%d" % (FA + 4 * m, FA + 4 * m + 3, vXr, 32 * m))
            a("ds_read_b128 v[%d:%d], v%d offset:%d" % (FB + 4 * m, FB + 4 * m + 3, vXr, YOFF + 32 * m))
        for m in range(8):
            a("s_waitcnt lgkmcnt(%d)" % min(15, 14 - 2 * m))
            c_ = "0" if (p == 0 and m == 0) else "v[%d:%d]" % (DK, DK + 15)
            a("v_mfma_f32_32x32x16_bf16 v[%d:%d], v[%d:%d], v[%d:%d], %s" % (DK, DK + 15, FA + 4 * m, FA + 4 * m + 3, FB + 4 * m, FB + 4 * m + 3, c_))
    stamp(a, S, 2)
    vUw = 72
    PU = 76
    a("v_lshrrev_b32 v%d, 3, v%d" % (vT0, vG))
    a("v_add_u32 v%d, v%d, v%d" % (vT0, vT0, vG))
    a("v_lshlrev_b32 v%d, 4, v%d" % (vUw, vT0))
    a("v_add_u32 v%d, %d, v%d" % (vUw, UBASE + 16, vUw))
    a("s_mov_b32 s%d, 0x05040100" % s_t0)
    a("s_mov_b32 s%d, 0x07060302" % s_t1)
    a("s_waitcnt vmcnt(0)")
    stamp(a, S, 3)
    idx = 0
    for c in range(4):
        for rho in range(2):
            P = PU + 4 * idx
            sel = s_t0 if (c & 1) == 0 else s_t1
            for j in range(4):
                r = rho + 2 * j
                a("v_perm_b32 v%d, v%d, v%d, s%d" % (P + j, vR + 2 * (r + 1) + (c >> 1), vR + 2 * r + (c >> 1), sel))
            a("ds_write_b128 v%d, v[%d:%d] offset:%d" % (vUw, P, P + 3, c * UCH + rho * UCP))
            idx += 1
    a("v_mov_b32 v108, 0"); a("v_mov_b32 v109, 0"); a("v_mov_b32 v110, 0"); a("v_mov_b32 v111, 0")
    a("v_and_b32 v%d, 7, v%d" % (vT0, vLane))
    a("v_mul_u32_u24 v%d, %d, v%d" % (vT0, UCP, vT0))
    a("v_add_u32 v%d, %d, v%d" % (vT0, UBASE, vT0))
    a("ds_write_b128 v%d, v[108:111]" % vT0)
    d = DK
    PK = 112
    vKw = 73
    vM = 74
    a("v_add_f32 v%d, v%d, v%d" % (d, d, vD0))
    a("v_and_b32 v%d, 1, v%d" % (vT1, vLane))
    a("v_cmp_eq_u32 vcc, 1, v%d" % vT1)
    cv = lambda dst, lo, hi: a("v_cvt_pk_bf16_f32 v%d, v%d, v%d" % (dst, lo, hi))
    cv(PK + 0, d + 7, d + 6); cv(PK + 1, d + 5, d + 4); cv(PK + 2, d + 3, d + 2); cv(PK + 3, d + 1, d + 0)
    cv(PK + 4, d + 10, d + 10); cv(PK + 5, d + 9, d + 9); cv(PK + 6, d + 9, d + 8); cv(PK + 7, d + 8, d + 8)
    for s_, (v0_, v1_) in ((2, (d + 11, d + 12)), (3, (d + 13, d + 14))):
        a("v_cndmask_b32 v%d, v%d, v%d, vcc" % (vM, v0_, v1_))
        cv(PK + 4 * s_ + 0, v1_, v1_); cv(PK + 4 * s_ + 1, v1_, vM); cv(PK + 4 * s_ + 2, v0_, v0_); cv(PK + 4 * s_ + 3, v0_, v0_)
    a("v_lshlrev_b32 v%d, 4, v%d" % (vKw, vLane))
    a("v_sub_u32 v%d, s%d, v%d" % (vKw, s_kreg, vKw))
    a("v_add_u32 v%d, %d, v%d" % (vKw, 4 * 1020 - 3072, vKw))
    a("s_waitcnt lgkmcnt(0)")
    for e in range(4):
        for s_ in range(4):
            off = 16 * CB[e] + 4 * e + 1024 * (3 - s_)
            P = PK + 4 * s_
            if e == 0:
                a("ds_write_b128 v%d, v[%d:%d] offset:%d" % (vKw, P, P + 3, off))
            elif e == 2:
                a("ds_write_b64 v%d, v[%d:%d] offset:%d" % (vKw, P, P + 1, off))
                a("ds_write_b64 v%d, v[%d:%d] offset:%d" % (vKw, P + 2, P + 3, off + 8))
            else:
                for j in range(4):
                    a("ds_write_b32 v%d, v%d offset:%d" % (vKw, P + j, off + 4 * j))
    a("v_lshlrev_b32 v%d, 2, v%d" % (vT0, vLane))
    a("v_add_u32 v%d, s%d, v%d" % (vT0, s_kreg, vT0))
    for e in range(4):
        a("ds_write_b32 v%d, v108 offset:%d" % (vT0, 16 * CB[e] + 4 * (1024 + e)))
    vA, vB = 75, 76
    vZ = 77
    a("v_and_b32 v%d, 31, v%d" % (vT0, vLane))
    a("v_add_u32 v%d, 1, v%d" % (vT1, vT0))
    a("v_and_b32 v%d, 3, v%d" % (vT1, vT1))
    a("v_mul_u32_u24 v%d, %d, v%d" % (vT2, 4416 + 4, vT1))
    a("v_cmp_eq_u32 vcc, 0, v%d" % vT1)
    a("v_mov_b32 v%d, 16" % vT3)
    a("v_cndmask_b32 v%d, v%d, v%d, vcc" % (vT2, vT2, vT3))
    a("v_lshlrev_b32 v%d, 2, v%d" % (vT0, vT0))
    a("v_sub_u32 v%d, v%d, v%d" % (vT2, vT2, vT0))
    a("v_lshrrev_b32 v%d, 5, v%d" % (vT1, vLane))
    a("v_lshlrev_b32 v%d, 4, v%d" % (vT1, vT1))
    a("v_add3_u32 v%d, v%d, v%d, s%d" % (vA, vT2, vT1, s_kreg))
    a("v_add_u32 v%d, %d, v%d" % (vA, 4 * 543 - 2048, vA))
    a("v_and_b32 v%d, 1, v%d" % (vT0, vLane))
    a("v_mul_u32_u24 v%d, %d, v%d" % (vT0, UCP, vT0))
    a("s_mul_i32 s%d, s%d, %d" % (s_t0, s_w, UCH))
    a("s_add_u32 s%d, s%d, %d" % (s_t0, s_t0, UBASE + 16))
    a("v_add_u32 v%d, s%d, v%d" % (vT0, s_t0, vT0))
    a("v_add_u32 v%d, -16, v%d" % (vZ, vT0))
    for j in range(1, 4):
        a("v_add_u32 v%d, %d, v%d" % (vZ + j, -16 - 32 * j, vT0))
    a("v_bfe_u32 v%d, v%d, 1, 4" % (vT2, vLane))
    a("v_mul_u32_u24 v%d, 144, v%d" % (vT2, vT2))
    a("v_add3_u32 v%d, v%d, v%d, v%d" % (vB, vT0, vT2, vT1))
    a("v_add_u32 v%d, %d, v%d" % (vB, -16 * 135, vB))
    a("s_waitcnt lgkmcnt(0)")
    a("s_barrier")
    stamp(a, S, 4)
    if dbg == "lds":
        return dict(vLane=vLane, s_w=s_w)
    FR = 112
    Y0, Y1 = 176, 192
    vBc = 81

    def reads(j, buf):
        F = FR + 16 * buf
        a("v_max_i32 v%d, v%d, v%d" % (vBc + (j & 1), vB, vZ + (j & 3)))
        extraA = 128 * (j >> 2); extraB = 144 * (j >> 2)
        jj = j & 3
        assert j < 4
        a("ds_read_b128 v[%d:%d], v%d offset:%d" % (F, F + 3, vA, 2048 + 32 * jj))
        a("ds_read_b128 v[%d:%d], v%d offset:%d" % (F + 8, F + 11, vBc + (j & 1), 32 * jj))
        a("ds_read_b128 v[%d:%d], v%d offset:%d" % (F + 12, F + 15, vB, 2304 + 32 * jj))
        a("ds_read_b128 v[%d:%d], v%d offset:%d" % (F + 4, F + 7, vA, 32 * jj))

    for i in range(16):
        a("v_mov_b32 v%d, 0" % (Y0 + i)); a("v_mov_b32 v%d, 0" % (Y1 + i))
    reads(0, 0); reads(1, 1)
    a("s_mov_b32 s%d, 0" % s_cnt)
    lp = a.newlabel("Lconv")
    a.label(lp)
    for j in range(4):
        if j < 2:
            reads(j + 2, j + 2)
        else:
            if j == 2:
                a("v_add_u32 v%d, 128, v%d" % (vA, vA))
                a("v_add_u32 v%d, 144, v%d" % (vB, vB))
            reads(j - 2, j - 2)
        a("s_waitcnt lgkmcnt(8)")
        F = FR + 16 * j
        a("v_mfma_f32_32x32x16_bf16 v[%d:%d], v[%d:%d], v[%d:%d], v[%d:%d]" % (Y0, Y0 + 15, F, F + 3, F + 8, F + 11, Y0, Y0 + 15))
        a("v_mfma_f32_32x32x16_bf16 v[%d:%d], v[%d:%d], v[%d:%d], v[%d:%d]" % (Y1, Y1 + 15, F, F + 3, F + 12, F + 15, Y1, Y1 + 15))
        a("v_mfma_f32_32x32x16_bf16 v[%d:%d], v[%d:%d], v[%d:%d], v[%d:%d]" % (Y1, Y1 + 15, F + 4, F + 7, F + 8, F + 11, Y1, Y1 + 15))
    a("s_add_u32 s%d, s%d, 1" % (s_cnt, s_cnt))
    a("s_cmp_lt_u32 s%d, 16" % s_cnt)
    a("s_cbranch_scc1 %s" % lp)
    a("s_waitcnt lgkmcnt(0)")
    stamp(a, S, 5)
    a("s_barrier")
    vYw = 75
    a("v_bfe_u32 v%d, v%d, 1, 4" % (vT0, vLane))
    a("v_mul_u32_u24 v%d, 528, v%d" % (vT0, vT0))
    a("v_and_b32 v%d, 1, v%d" % (vT1, vLane))
    a("v_lshlrev_b32 v%d, 3, v%d" % (vT1, vT1))
    a("v_lshrrev_b32 v%d, 5, v%d" % (vT2, vLane))
    a("v_lshlrev_b32 v%d, 6, v%d" % (vT2, vT2))
    a("v_add3_u32 v%d, v%d, v%d, v%d" % (vYw, vT0, vT1, vT2))
    a("s_lshl_b32 s%d, s%d, 1" % (s_t0, s_w))
    a("v_add_u32 v%d, s%d, v%d" % (vYw, s_t0, vYw))
    tq = [112, 113, 114, 115]
    k = 0
    for blk, Y in ((0, Y0), (1, Y1)):
        for q in range(4):
            for i in (0, 2):
                t = tq[k % 4]; k += 1
                a("v_cvt_pk_bf16_f32 v%d, v%d, v%d" % (t, Y + 4 * q + i, Y + 4 * q + i + 1))
                off = 8448 * blk + 128 * q + 16 * i
                a("ds_write_b16 v%d, v%d offset:%d" % (vYw, t, off))
                a("ds_write_b16_d16_hi v%d, v%d offset:%d" % (vYw, t, off + 16))
    a("s_waitcnt lgkmcnt(0)")
    a("s_barrier")
    stamp(a, S, 6)
    O = 120
    a("v_lshrrev_b32 v%d, 3, v%d" % (vT0, vG))
    a("v_lshlrev_b32 v%d, 4, v%d" % (vT0, vT0))
    a("v_lshlrev_b32 v%d, 6, v%d" % (vT1, vG))
    a("v_add_u32 v%d, v%d, v%d" % (vT0, vT0, vT1))
    for j in range(4):
        a("ds_read_b128 v[%d:%d], v%d offset:%d" % (O + 4 * j, O + 4 * j + 3, vT0, 16 * j))
    a("v_lshlrev_b32 v%d, 14, v%d" % (vT1, vG))
    a("s_lshl_b32 s%d, s%d, 3" % (s_t0, s_cg))
    a("v_add_u32 v%d, s%d, v%d" % (vT1, s_t0, vT1))
    a("s_mov_b32 s%d, 4096" % s_k2); a("s_mov_b32 s%d, 8192" % s_k4); a("s_mov_b32 s%d, 12288" % s_k6)
    for kk in range(8):
        if kk % 2 == 0:
            a("s_waitcnt lgkmcnt(%d)" % (3 - kk // 2))
        so = ["0", "s%d" % s_k2, "s%d" % s_k4, "s%d" % s_k6][kk // 2]
        a("buffer_store_dwordx2 v[%d:%d], v%d, s[%d:%d], %s offen offset:%d" % (O + 2 * kk, O + 2 * kk + 1, vT1, sOS, sOS + 3, so, 2048 * (kk & 1)))
    return dict(vLane=vLane, s_w=s_w)
```

```python
from asmdsl import Asm

LOG2E = 0x3fb8aa3b
EPS = 0x358637bd

WS_KVZ = 0
KVZ_BYTES = 32 * 1088
WS_PQ = 1 << 20
PQ_BYTES = 32 * 64 * 1024

SLOT = 32768
STAMP_BASE = 70


def stamp(a, S, i):
    if S.get("stamps"):
        a("s_memtime s[%d:%d]" % (STAMP_BASE + 2 * i, STAMP_BASE + 2 * i + 1))


def srd(a, d, lo, hi, nbytes):
    a("s_mov_b32 s%d, s%d" % (d, lo))
    a("s_and_b32 s%d, s%d, 0xffff" % (d + 1, hi))
    a("s_mov_b32 s%d, 0x%x" % (d + 2, nbytes))
    a("s_mov_b32 s%d, 0x20000" % (d + 3))


def phi(a, src, n, tmp, dst=None):
    for i in range(0, n, 4):
        regs = [src + i + k for k in range(4)]
        for k, r in enumerate(regs):
            a("v_mul_f32 v%d, 0x%x, v%d" % (tmp + k, LOG2E, r))
        for k, r in enumerate(regs):
            a("v_min_f32 v%d, 0, v%d" % (tmp + k, tmp + k))
        for k, r in enumerate(regs):
            a("v_exp_f32 v%d, v%d" % (tmp + k, tmp + k))
        for k, r in enumerate(regs):
            a("v_max_f32 v%d, 0, v%d" % (r, r))
        for k, r in enumerate(regs):
            a("v_add_f32 v%d, 0x%x, v%d" % (r, EPS, r))
        for k, r in enumerate(regs):
            a("v_add_f32 v%d, v%d, v%d" % (r, r, tmp + k))


def common_prologue(a, S):
    ka = S["ka"]
    a("s_load_dwordx8 s[16:23], s[%d:%d], 72" % (ka, ka + 1))
    a("s_load_dwordx4 s[24:27], s[%d:%d], 104" % (ka, ka + 1))
    a("v_and_b32 v1, 63, v0")
    a("v_lshrrev_b32 v2, 6, v0")
    a("v_readfirstlane_b32 s44, v2")
    a("s_and_b32 s45, s44, 3")
    a("s_lshr_b32 s46, s44, 2")


def emit_B1(a: Asm, S):
    s_rb, s_hq = S["rb"], S["hq"]
    s_w, s_rg, s_ch = 44, 45, 46
    sX, sW, sWS = 28, 32, 36
    s_t0, s_t1, s_m0x, s_m0w, s_off = 47, 48, 49, 50, 51
    vLane = 1
    vT0, vT1, vT2, vT3 = 3, 4, 5, 6
    vXs0, vXs1, vWs = 7, 8, 9
    vXr = 10
    vWr = 14
    vXc = 15
    vWc = 19
    WF = 20
    AK, AV, AQ = 52, 68, 84
    TMP = 100
    XF = 128
    stamp(a, S, 0)
    common_prologue(a, S)
    a("v_lshrrev_b32 v%d, 3, v%d" % (vT0, vLane))
    a("v_and_b32 v%d, 7, v%d" % (vT1, vLane))
    a("v_lshrrev_b32 v%d, 1, v%d" % (vT2, vT0))
    a("v_xor_b32 v%d, v%d, v%d" % (vT2, vT2, vT1))
    a("s_lshl_b32 s%d, s%d, 7" % (s_t0, s_rb))
    a("s_lshl_b32 s%d, s%d, 4" % (s_t1, s_w))
    a("s_add_u32 s%d, s%d, s%d" % (s_t0, s_t0, s_t1))
    a("v_add_u32 v%d, s%d, v%d" % (vT3, s_t0, vT0))
    a("v_lshlrev_b32 v%d, 10, v%d" % (vT3, vT3))
    a("v_lshlrev_b32 v%d, 4, v%d" % (vXs0, vT2))
    a("v_add_u32 v%d, v%d, v%d" % (vXs0, vXs0, vT3))
    a("v_xor_b32 v%d, 4, v%d" % (vT2, vT2))
    a("v_lshlrev_b32 v%d, 4, v%d" % (vXs1, vT2))
    a("v_add_u32 v%d, v%d, v%d" % (vXs1, vXs1, vT3))
    a("v_add_u32 v%d, 8192, v%d" % (vXs1, vXs1))
    a("v_bfe_u32 v%d, v%d, 1, 1" % (vT2, vT0))
    a("v_lshlrev_b32 v%d, 2, v%d" % (vT2, vT2))
    a("v_xor_b32 v%d, v%d, v%d" % (vT2, vT2, vT1))
    a("v_lshlrev_b32 v%d, 4, v%d" % (vT2, vT2))
    a("s_lshl_b32 s%d, s%d, 3" % (s_t1, s_w))
    a("v_add_u32 v%d, s%d, v%d" % (vT3, s_t1, vT0))
    a("v_mul_u32_u24 v%d, 3072, v%d" % (vT3, vT3))
    a("s_lshl_b32 s%d, s%d, 7" % (s_t1, s_hq))
    a("v_add3_u32 v%d, v%d, v%d, s%d" % (vWs, vT3, vT2, s_t1))
    a("s_lshl_b32 s%d, s%d, 11" % (s_m0x, s_w))
    a("s_lshl_b32 s%d, s%d, 10" % (s_m0w, s_w))
    a("s_waitcnt lgkmcnt(0)")
    srd(a, sX, 16, 17, 2048 * 512 * 2)
    srd(a, sW, 18, 19, 512 * 1536 * 2)
    srd(a, sWS, 26, 27, 1 << 28)

    def dma(m0expr_base_s, m0off, vaddr, srdreg, soff):
        a("s_add_u32 m0, s%d, %d" % (m0expr_base_s, m0off))
        if soff == 0:
            so = "0"
        else:
            a("s_mov_b32 s%d, %d" % (s_off, soff))
            so = "s%d" % s_off
        a("buffer_load_dwordx4 v%d, s[%d:%d], %s offen lds" % (vaddr, srdreg, srdreg + 3, so))

    def fill_kv(c, slot):
        b = slot * SLOT
        dma(s_m0x, b, vXs0, sX, 128 * c)
        dma(s_m0x, b + 1024, vXs1, sX, 128 * c)
        dma(s_m0w, b + 16384, vWs, sW, c * 64 * 3072 + 1024)
        dma(s_m0w, b + 24576, vWs, sW, c * 64 * 3072 + 2048)

    def fill_q(half, slot):
        b = slot * SLOT
        for j in range(4):
            dma(s_m0w, b + 8192 * j, vWs, sW, (4 * half + j) * 64 * 3072)

    for c in range(5):
        fill_kv(c, c)
    a("v_and_b32 v%d, 31, v%d" % (vT0, vLane))
    a("v_lshrrev_b32 v%d, 5, v%d" % (vT1, vLane))
    a("v_bfe_u32 v%d, v%d, 1, 3" % (vT2, vLane))
    a("s_lshl_b32 s%d, s%d, 5" % (s_t0, s_rg))
    a("v_add_u32 v%d, s%d, v%d" % (vT3, s_t0, vT0))
    a("v_lshlrev_b32 v%d, 7, v%d" % (vT3, vT3))
    for i in range(4):
        a("v_add_u32 v%d, %d, v%d" % (vXr + i, 2 * i, vT1))
        a("v_xor_b32 v%d, v%d, v%d" % (vXr + i, vXr + i, vT2))
        a("v_lshlrev_b32 v%d, 4, v%d" % (vXr + i, vXr + i))
        a("v_add_u32 v%d, v%d, v%d" % (vXr + i, vXr + i, vT3))
    a("v_bfe_u32 v%d, v%d, 2, 2" % (vT0, vLane))
    a("v_lshlrev_b32 v%d, 3, v%d" % (vT2, vT1))
    a("v_add_u32 v%d, v%d, v%d" % (vT2, vT2, vT0))
    a("v_lshlrev_b32 v%d, 7, v%d" % (vWr, vT2))
    a("v_lshrrev_b32 v%d, 1, v%d" % (vT0, vT0))
    a("v_xor_b32 v%d, s%d, v%d" % (vT0, s_ch, vT0))
    a("v_lshlrev_b32 v%d, 6, v%d" % (vT0, vT0))
    a("v_add_u32 v%d, v%d, v%d" % (vWr, vWr, vT0))
    a("v_bfe_u32 v%d, v%d, 4, 1" % (vT0, vLane))
    a("v_lshlrev_b32 v%d, 5, v%d" % (vT0, vT0))
    a("v_and_b32 v%d, 3, v%d" % (vT2, vLane))
    a("v_lshlrev_b32 v%d, 3, v%d" % (vT2, vT2))
    a("v_add3_u32 v%d, v%d, v%d, v%d" % (vWr, vWr, vT0, vT2))
    for i in range(16):
        a("v_mov_b32 v%d, 0" % (AK + i)); a("v_mov_b32 v%d, 0" % (AV + i)); a("v_mov_b32 v%d, 0" % (AQ + i))

    def mf(D, A_, B_):
        a("v_mfma_f32_32x32x16_bf16 v[%d:%d], v[%d:%d], v[%d:%d], v[%d:%d]" % (D, D + 15, A_, A_ + 3, B_, B_ + 3, D, D + 15))

    waits = [16, 12, 12, 12, 12, 12, 12, 8]
    for c in range(8):
        slot = c % 5
        a("s_waitcnt vmcnt(%d)" % waits[c])
        a("s_barrier")
        if c == 0:
            stamp(a, S, 1)
        if 1 <= c <= 3:
            fill_kv(c + 4, c - 1)
        elif c == 4:
            fill_q(0, 3)
        elif c == 5:
            fill_q(1, 4)
        for i in range(4):
            a("v_add_u32 v%d, %d, v%d" % (vXc + i, slot * SLOT, vXr + i))
        a("v_add_u32 v%d, %d, v%d" % (vWc, slot * SLOT, vWr))

        def rd(i):
            X = XF + 16 * c + 4 * i
            F = WF + 8 * i
            a("ds_read_b128 v[%d:%d], v%d" % (X, X + 3, vXc + i))
            for mat, base in ((0, 16384), (1, 24576)):
                for j in range(2):
                    a("ds_read_b64_tr_b16 v[%d:%d], v%d offset:%d" % (F + 4 * mat + 2 * j, F + 4 * mat + 2 * j + 1, vWc, base + (16 * i + 4 * j) * 128))

        rd(0); rd(1)
        for i in range(4):
            if i + 2 < 4:
                a("s_waitcnt lgkmcnt(5)")
            elif i == 2:
                a("s_waitcnt lgkmcnt(5)")
            else:
                a("s_waitcnt lgkmcnt(0)")
            X = XF + 16 * c + 4 * i
            F = WF + 8 * i
            mf(AK, X, F)
            mf(AV, X, F + 4)
            if i + 2 < 4:
                rd(i + 2)
    stamp(a, S, 2)
    PKp, PVp = TMP, TMP + 8
    t4 = TMP + 16
    phi(a, AK, 16, t4)
    for i in range(8):
        a("v_cvt_pk_bf16_f32 v%d, v%d, v%d" % (PKp + i, AK + 2 * i, AK + 2 * i + 1))
        a("v_cvt_pk_bf16_f32 v%d, v%d, v%d" % (PVp + i, AV + 2 * i, AV + 2 * i + 1))
    vZ = TMP + 20
    a("v_mov_b32 v%d, 0" % vZ)
    a("v_mov_b32 v%d, 0x3f803f80" % (TMP + 21))
    for i in range(8):
        a("v_dot2c_f32_bf16 v%d, v%d, v%d" % (vZ, PKp + i, TMP + 21))
    DKV = AK
    a("v_mfma_f32_32x32x16_bf16 v[%d:%d], v[%d:%d], v[%d:%d], 0" % (DKV, DKV + 15, PKp, PKp + 3, PVp, PVp + 3))
    a("v_mfma_f32_32x32x16_bf16 v[%d:%d], v[%d:%d], v[%d:%d], v[%d:%d]" % (DKV, DKV + 15, PKp + 4, PKp + 7, PVp + 4, PVp + 7, DKV, DKV + 15))
    for half in range(2):
        a("s_waitcnt vmcnt(%d)" % (4 if half == 0 else 0))
        a("s_barrier")
        slot = 3 + half
        a("v_add_u32 v%d, %d, v%d" % (vWc, slot * SLOT, vWr))

        def rdq(st):
            F = WF + 4 * (st % 8)
            j4, i = st >> 2, st & 3
            for j in range(2):
                a("ds_read_b64_tr_b16 v[%d:%d], v%d offset:%d" % (F + 2 * j, F + 2 * j + 1, vWc, 8192 * j4 + (16 * i + 4 * j) * 128))
        for st in range(4):
            rdq(st)
        for st in range(16):
            a("s_waitcnt lgkmcnt(%d)" % (min(6, 2 * (15 - st))))
            F = WF + 4 * (st % 8)
            X = XF + 64 * half + 4 * st
            mf(AQ, F, X)
            if st + 4 < 16:
                rdq(st + 4)
    stamp(a, S, 3)
    RED = 0
    ZRED = 16384
    s_msk = 52
    a("v_bfe_u32 v%d, v%d, 4, 1" % (vT0, vLane))
    a("v_cmp_eq_u32 s[%d:%d], 1, v%d" % (s_msk, s_msk + 1, vT0))
    SEL = PKp
    for i in range(8):
        a("v_cndmask_b32 v%d, v%d, v%d, s[%d:%d]" % (SEL + i, DKV + i, DKV + 8 + i, s_msk, s_msk + 1))
    a("s_lshl_b32 s%d, s%d, 11" % (s_t0, s_w))
    a("v_lshlrev_b32 v%d, 5, v%d" % (vT0, vLane))
    a("v_add_u32 v%d, s%d, v%d" % (vT0, s_t0, vT0))
    a("ds_write_b128 v%d, v[%d:%d] offset:%d" % (vT0, SEL, SEL + 3, RED))
    a("ds_write_b128 v%d, v[%d:%d] offset:%d" % (vT0, SEL + 4, SEL + 7, RED + 16))
    a("s_lshl_b32 s%d, s%d, 8" % (s_t0, s_w))
    a("v_lshlrev_b32 v%d, 2, v%d" % (vT1, vLane))
    a("v_add_u32 v%d, s%d, v%d" % (vT1, s_t0, vT1))
    a("ds_write_b32 v%d, v%d offset:%d" % (vT1, vZ, ZRED))
    phi(a, AQ, 16, t4)
    PQ = PVp
    for i in range(8):
        a("v_cvt_pk_bf16_f32 v%d, v%d, v%d" % (PQ + i, AQ + 2 * i, AQ + 2 * i + 1))
    a("s_lshl_b32 s%d, s%d, 2" % (s_t0, s_hq))
    a("s_lshl_b32 s%d, s%d, 1" % (s_t1, s_ch))
    a("s_add_u32 s%d, s%d, s%d" % (s_t0, s_t0, s_t1))
    a("s_lshl_b32 s%d, s%d, 6" % (s_t0, s_t0))
    a("s_lshl_b32 s%d, s%d, 2" % (s_t1, s_rb))
    a("s_add_u32 s%d, s%d, s%d" % (s_t0, s_t0, s_t1))
    a("s_add_u32 s%d, s%d, s%d" % (s_t0, s_t0, s_rg))
    a("s_lshl_b32 s%d, s%d, 10" % (s_t0, s_t0))
    a("s_add_u32 s%d, s%d, %d" % (s_t0, s_t0, WS_PQ))
    a("v_lshlrev_b32 v%d, 4, v%d" % (vT2, vLane))
    a("v_add_u32 v%d, s%d, v%d" % (vT2, s_t0, vT2))
    sc = S.get("sc", "")
    a("buffer_store_dwordx4 v[%d:%d], v%d, s[%d:%d], 0 offen %s" % (PQ, PQ + 3, vT2, sWS, sWS + 3, sc))
    a("s_mov_b32 s%d, 65536" % s_off)
    a("buffer_store_dwordx4 v[%d:%d], v%d, s[%d:%d], s%d offen %s" % (PQ + 4, PQ + 7, vT2, sWS, sWS + 3, s_off, sc))
    a("s_waitcnt lgkmcnt(0)")
    a("s_barrier")
    s_hp, s_hf = 54, 55
    a("s_bfe_u32 s%d, s%d, 0x10001" % (s_hp, s_w))
    a("s_and_b32 s%d, s%d, 1" % (s_hf, s_w))
    a("s_lshl_b32 s%d, s%d, 5" % (s_t0, s_hf))
    a("s_lshl_b32 s%d, s%d, 4" % (s_t1, s_hp))
    a("s_add_u32 s%d, s%d, s%d" % (s_t0, s_t0, s_t1))
    a("s_lshl_b32 s%d, s%d, 5" % (s_t0, s_t0))
    a("s_lshl_b32 s%d, s%d, 13" % (s_t1, s_ch))
    a("s_add_u32 s%d, s%d, s%d" % (s_t0, s_t0, s_t1))
    a("v_lshlrev_b32 v%d, 2, v%d" % (vT0, vLane))
    a("v_add_u32 v%d, s%d, v%d" % (vT0, s_t0, vT0))
    R_ = TMP
    for row in range(2):
        for g in range(4):
            a("ds_read_b32 v%d, v%d offset:%d" % (R_ + 4 * row + g, vT0, RED + 2048 * g + 256 * row))
    a("v_and_b32 v%d, 31, v%d" % (vT1, vLane))
    a("v_lshlrev_b32 v%d, 2, v%d" % (vT1, vT1))
    a("s_lshl_b32 s%d, s%d, 10" % (s_t1, s_ch))
    a("v_add_u32 v%d, s%d, v%d" % (vT1, s_t1, vT1))
    for g in range(4):
        for hf in range(2):
            a("ds_read_b32 v%d, v%d offset:%d" % (R_ + 8 + 2 * g + hf, vT1, ZRED + 256 * g + 128 * hf))
    a("s_lshl_b32 s%d, s%d, 2" % (s_t0, s_hq))
    a("s_lshl_b32 s%d, s%d, 1" % (s_t1, s_ch))
    a("s_add_u32 s%d, s%d, s%d" % (s_t0, s_t0, s_t1))
    a("s_add_u32 s%d, s%d, s%d" % (s_t1, s_t0, s_hp))
    a("s_mul_i32 s%d, s%d, 1088" % (s_t1, s_t1))
    a("s_mul_i32 s%d, s%d, 544" % (s_off, s_hf))
    a("s_add_u32 s%d, s%d, s%d" % (s_t1, s_t1, s_off))
    a("s_add_u32 s%d, s%d, %d" % (s_t1, s_t1, WS_KVZ))
    a("v_lshlrev_b32 v%d, 2, v%d" % (vT2, vLane))
    a("v_add_u32 v%d, s%d, v%d" % (vT2, s_t1, vT2))
    a("v_bfe_u32 v%d, v%d, 4, 1" % (vT3, vLane))
    a("v_add_u32 v%d, s%d, v%d" % (vT3, s_t0, vT3))
    a("v_mul_u32_u24 v%d, 1088, v%d" % (vT3, vT3))
    a("v_bfe_u32 v%d, v%d, 2, 1" % (R_ + 16, vLane))
    a("v_mul_u32_u24 v%d, 544, v%d" % (R_ + 16, R_ + 16))
    a("v_add_u32 v%d, v%d, v%d" % (vT3, vT3, R_ + 16))
    a("v_and_b32 v%d, 3, v%d" % (R_ + 16, vLane))
    a("v_bfe_u32 v%d, v%d, 3, 1" % (R_ + 17, vLane))
    a("v_lshlrev_b32 v%d, 2, v%d" % (R_ + 17, R_ + 17))
    a("v_add_u32 v%d, v%d, v%d" % (R_ + 16, R_ + 16, R_ + 17))
    a("v_lshlrev_b32 v%d, 2, v%d" % (R_ + 16, R_ + 16))
    a("v_add3_u32 v%d, v%d, v%d, %d" % (vT3, vT3, R_ + 16, 0))
    a("v_add_u32 v%d, %d, v%d" % (vT3, WS_KVZ + 512, vT3))
    a("s_waitcnt lgkmcnt(8)")
    for row in range(2):
        b = R_ + 4 * row
        a("v_add_f32 v%d, v%d, v%d" % (b, b, b + 1))
        a("v_add_f32 v%d, v%d, v%d" % (b + 2, b + 2, b + 3))
        a("v_add_f32 v%d, v%d, v%d" % (b, b, b + 2))
    if S.get("pre_atomic"):
        S["pre_atomic"](a)
    for row in range(2):
        a("buffer_atomic_add_f32 v%d, v%d, s[%d:%d], 0 offen offset:%d" % (R_ + 4 * row, vT2, sWS, sWS + 3, 256 * row))
    a("s_waitcnt lgkmcnt(0)")
    b = R_ + 8
    for st in (1, 2, 4):
        for k in range(0, 8, 2 * st):
            a("v_add_f32 v%d, v%d, v%d" % (b + k, b + k, b + k + st))
    lz = a.newlabel("Lz")
    a("s_and_b32 s%d, s%d, 3" % (s_t0, s_w))
    a("s_cmp_eq_u32 s%d, 0" % s_t0)
    a("s_cbranch_scc0 %s" % lz)
    a("s_mov_b64 s[56:57], exec")
    a("s_mov_b32 exec_lo, -1")
    a("s_mov_b32 exec_hi, 0")
    a("buffer_atomic_add_f32 v%d, v%d, s[%d:%d], 0 offen" % (b, vT3, sWS, sWS + 3))
    a("s_mov_b64 exec, s[56:57]")
    a.label(lz)
    stamp(a, S, 4)


def emit_B2(a: Asm, S, first=True):
    s_rb, s_jb = S["rb"], S["jb"]
    s_w, s_rg, s_hh = 44, 45, 46
    sWO, sOUT, sWS = 28, 32, 36
    s_t0, s_t1, s_m0w, s_off = 47, 48, 50, 51
    vLane = 1
    vT0, vT1, vT2, vT3 = 3, 4, 5, 6
    WO = 0
    KVF = 65536
    OST = 98304
    sc = S.get("sc", "")
    if first:
        stamp(a, S, 0)
        common_prologue(a, S)
        a("s_waitcnt lgkmcnt(0)")
        srd(a, sWS, 26, 27, 1 << 28)
    srd(a, sWO, 20, 21, 512 * 512 * 2)
    srd(a, sOUT, 22, 23, 2048 * 1024 * 2)
    vWs = 7
    a("v_lshrrev_b32 v%d, 3, v%d" % (vT0, vLane))
    a("v_and_b32 v%d, 7, v%d" % (vT1, vLane))
    a("v_bfe_u32 v%d, v%d, 1, 1" % (vT2, vT0))
    a("v_lshlrev_b32 v%d, 2, v%d" % (vT2, vT2))
    a("v_xor_b32 v%d, v%d, v%d" % (vT2, vT2, vT1))
    a("v_lshlrev_b32 v%d, 4, v%d" % (vT2, vT2))
    a("s_lshl_b32 s%d, s%d, 3" % (s_t1, s_w))
    a("v_add_u32 v%d, s%d, v%d" % (vT3, s_t1, vT0))
    a("v_lshlrev_b32 v%d, 10, v%d" % (vT3, vT3))
    a("s_lshl_b32 s%d, s%d, 7" % (s_t1, s_jb))
    a("v_add3_u32 v%d, v%d, v%d, s%d" % (vWs, vT3, vT2, s_t1))
    a("s_lshl_b32 s%d, s%d, 10" % (s_m0w, s_w))
    for j in range(8):
        a("s_add_u32 m0, s%d, %d" % (s_m0w, WO + 8192 * j))
        if j == 0:
            so = "0"
        else:
            a("s_mov_b32 s%d, %d" % (s_off, j * 65536)); so = "s%d" % s_off
        a("buffer_load_dwordx4 v%d, s[%d:%d], %s offen lds" % (vWs, sWO, sWO + 3, so))
    if S.get("pre_pq"):
        S["pre_pq"](a)
    PQF = 128
    a("s_lshl_b32 s%d, s%d, 10" % (s_t0, s_hh))
    a("s_lshl_b32 s%d, s%d, 2" % (s_t1, s_rb))
    a("s_add_u32 s%d, s%d, s%d" % (s_t0, s_t0, s_t1))
    a("s_add_u32 s%d, s%d, s%d" % (s_t0, s_t0, s_rg))
    a("s_lshl_b32 s%d, s%d, 10" % (s_t0, s_t0))
    a("s_add_u32 s%d, s%d, %d" % (s_t0, s_t0, WS_PQ))
    a("v_lshlrev_b32 v%d, 4, v%d" % (vT0, vLane))
    a("v_add_u32 v%d, s%d, v%d" % (vT0, s_t0, vT0))
    for i in range(16):
        if i == 0:
            so = "0"
        else:
            a("s_mov_b32 s%d, %d" % (s_off, i * 65536)); so = "s%d" % s_off
        a("buffer_load_dwordx4 v[%d:%d], v%d, s[%d:%d], %s offen %s" % (PQF + 4 * i, PQF + 4 * i + 3, vT0, sWS, sWS + 3, so, sc))
    if S.get("pre_kv"):
        S["pre_kv"](a)
    KL = 64
    a("v_and_b32 v%d, 31, v%d" % (vT0, vLane))
    a("v_min_u32 v%d, 16, v%d" % (vT0, vT0))
    a("v_lshlrev_b32 v%d, 5, v%d" % (vT0, vT0))
    a("v_lshrrev_b32 v%d, 5, v%d" % (vT1, vLane))
    a("v_mul_u32_u24 v%d, 544, v%d" % (vT1, vT1))
    a("s_mul_i32 s%d, s%d, %d" % (s_t0, s_w, 4 * 1088))
    a("s_add_u32 s%d, s%d, %d" % (s_t0, s_t0, WS_KVZ))
    a("v_add3_u32 v%d, v%d, v%d, s%d" % (vT0, vT0, vT1, s_t0))
    for i in range(4):
        for j in range(2):
            a("buffer_load_dwordx4 v[%d:%d], v%d, s[%d:%d], 0 offen offset:%d %s" % (KL + 8 * i + 4 * j, KL + 8 * i + 4 * j + 3, vT0, sWS, sWS + 3, 1088 * i + 16 * j, sc))
    a("s_lshl_b32 s%d, s%d, 12" % (s_t0, s_w))
    a("s_add_u32 s%d, s%d, %d" % (s_t0, s_t0, KVF))
    a("v_lshlrev_b32 v%d, 4, v%d" % (vT1, vLane))
    a("v_add_u32 v%d, s%d, v%d" % (vT1, s_t0, vT1))
    for i in range(4):
        a("s_waitcnt vmcnt(%d)" % (6 - 2 * i))
        P = 96 + 4 * i
        for k in range(4):
            a("v_cvt_pk_bf16_f32 v%d, v%d, v%d" % (P + k, KL + 8 * i + 2 * k, KL + 8 * i + 2 * k + 1))
        a("ds_write_b128 v%d, v[%d:%d] offset:%d" % (vT1, P, P + 3, 1024 * i))
    vKr, vWr = 8, 9
    a("v_lshlrev_b32 v%d, 4, v%d" % (vKr, vLane))
    a("s_lshl_b32 s%d, s%d, 14" % (s_t0, s_hh))
    a("s_add_u32 s%d, s%d, %d" % (s_t0, s_t0, KVF))
    a("v_add_u32 v%d, s%d, v%d" % (vKr, s_t0, vKr))
    vWr1 = 10
    a("v_lshrrev_b32 v%d, 5, v%d" % (vT1, vLane))
    a("v_bfe_u32 v%d, v%d, 2, 2" % (vT0, vLane))
    a("v_lshlrev_b32 v%d, 2, v%d" % (vT2, vT1))
    a("v_add_u32 v%d, v%d, v%d" % (vT2, vT2, vT0))
    a("v_lshlrev_b32 v%d, 7, v%d" % (vWr, vT2))
    a("v_lshrrev_b32 v%d, 1, v%d" % (vT0, vT0))
    a("v_lshlrev_b32 v%d, 6, v%d" % (vT3, vT0))
    a("v_bfe_u32 v%d, v%d, 4, 1" % (vT2, vLane))
    a("v_lshlrev_b32 v%d, 5, v%d" % (vT2, vT2))
    a("v_add_u32 v%d, v%d, v%d" % (vWr, vWr, vT2))
    a("v_and_b32 v%d, 3, v%d" % (vT2, vLane))
    a("v_lshlrev_b32 v%d, 3, v%d" % (vT2, vT2))
    a("v_add_u32 v%d, v%d, v%d" % (vWr, vWr, vT2))
    a("s_lshl_b32 s%d, s%d, 15" % (s_t0, s_hh))
    a("v_add_u32 v%d, s%d, v%d" % (vWr, s_t0, vWr))
    a("v_xor_b32 v%d, 64, v%d" % (vWr1, vT3))
    a("v_add_u32 v%d, v%d, v%d" % (vWr1, vWr1, vWr))
    a("v_add_u32 v%d, v%d, v%d" % (vWr, vWr, vT3))
    O0, O1 = 12, 28
    D1 = [44, 96]
    KA = [60, 112]
    WA = [64, 72]
    OB = [80, 84]
    vR = 88
    for i in range(16):
        a("v_mov_b32 v%d, 0" % (O0 + i)); a("v_mov_b32 v%d, 0" % (O1 + i))
    a("s_waitcnt vmcnt(0) lgkmcnt(0)")
    a("s_barrier")
    stamp(a, S, 1 if first else 5)

    def rd_kv(h):
        a("ds_read_b128 v[%d:%d], v%d offset:%d" % (KA[h & 1], KA[h & 1] + 3, vKr, 1024 * h))

    def rd_wo(h):
        W_ = WA[h & 1]
        for jt, vb in ((0, vWr), (1, vWr1)):
            for j in range(2):
                a("ds_read_b64_tr_b16 v[%d:%d], v%d offset:%d" % (W_ + 4 * jt + 2 * j, W_ + 4 * jt + 2 * j + 1, vb, WO + (16 * h + 8 * j) * 128))

    def num(h):
        a("v_mfma_f32_32x32x16_bf16 v[%d:%d], v[%d:%d], v[%d:%d], 0" % (D1[h & 1], D1[h & 1] + 15, KA[h & 1], KA[h & 1] + 3, PQF + 4 * h, PQF + 4 * h + 3))

    rd_kv(0)
    a("s_waitcnt lgkmcnt(0)")
    num(0)
    rd_kv(1); rd_wo(0)
    for h in range(16):
        if h + 1 < 16:
            a("s_waitcnt lgkmcnt(4)")
            num(h + 1)
        D = D1[h & 1]
        a("v_add_f32 v%d, 0x%x, v%d" % (vR, EPS, D + 8))
        a("v_rcp_f32 v%d, v%d" % (vR, vR))
        for i in range(8):
            a("v_mul_f32 v%d, v%d, v%d" % (D + i, D + i, vR))
        B_ = OB[h & 1]
        for i in range(4):
            a("v_cvt_pk_bf16_f32 v%d, v%d, v%d" % (B_ + i, D + 2 * i, D + 2 * i + 1))
        a("s_waitcnt lgkmcnt(0)")
        if h + 2 < 16:
            rd_kv(h + 2)
        W_ = WA[h & 1]
        a("v_mfma_f32_32x32x16_bf16 v[%d:%d], v[%d:%d], v[%d:%d], v[%d:%d]" % (O0, O0 + 15, W_, W_ + 3, B_, B_ + 3, O0, O0 + 15))
        a("v_mfma_f32_32x32x16_bf16 v[%d:%d], v[%d:%d], v[%d:%d], v[%d:%d]" % (O1, O1 + 15, W_ + 4, W_ + 7, B_, B_ + 3, O1, O1 + 15))
        if h + 1 < 16:
            rd_wo(h + 1)
    stamp(a, S, 2 if first else 6)
    a("s_lshl_b32 s%d, s%d, 12" % (s_t0, s_w))
    a("s_add_u32 s%d, s%d, %d" % (s_t0, s_t0, OST))
    a("v_lshlrev_b32 v%d, 4, v%d" % (vT0, vLane))
    a("v_add_u32 v%d, s%d, v%d" % (vT0, s_t0, vT0))
    lA, lB = a.newlabel("Lx"), a.newlabel("Lx")
    a("s_cmp_eq_u32 s%d, 0" % s_hh)
    a("s_cbranch_scc0 %s" % lA)
    for q in range(4):
        a("ds_write_b128 v%d, v[%d:%d] offset:%d" % (vT0, O1 + 4 * q, O1 + 4 * q + 3, 1024 * q))
    a("s_branch %s" % lB)
    a.label(lA)
    for q in range(4):
        a("ds_write_b128 v%d, v[%d:%d] offset:%d" % (vT0, O0 + 4 * q, O0 + 4 * q + 3, 1024 * q))
    a("s_waitcnt lgkmcnt(0)")
    for i in range(16):
        a("v_mov_b32 v%d, v%d" % (O0 + i, O1 + i))
    a.label(lB)
    a("s_waitcnt lgkmcnt(0)")
    a("s_barrier")
    a("s_xor_b32 s%d, s%d, 4" % (s_t0, s_w))
    a("s_lshl_b32 s%d, s%d, 12" % (s_t0, s_t0))
    a("s_add_u32 s%d, s%d, %d" % (s_t0, s_t0, OST))
    a("v_lshlrev_b32 v%d, 4, v%d" % (vT0, vLane))
    a("v_add_u32 v%d, s%d, v%d" % (vT0, s_t0, vT0))
    for q in range(4):
        a("ds_read_b128 v[%d:%d], v%d offset:%d" % (O1 + 4 * q, O1 + 4 * q + 3, vT0, 1024 * q))
    a("s_waitcnt lgkmcnt(0)")
    for i in range(16):
        a("v_add_f32 v%d, v%d, v%d" % (O0 + i, O0 + i, O1 + i))
    ST = 0
    for q in range(4):
        a("v_cvt_pk_bf16_f32 v%d, v%d, v%d" % (O1 + 2 * q, O0 + 4 * q, O0 + 4 * q + 1))
        a("v_cvt_pk_bf16_f32 v%d, v%d, v%d" % (O1 + 2 * q + 1, O0 + 4 * q + 2, O0 + 4 * q + 3))
    a("v_and_b32 v%d, 31, v%d" % (vT0, vLane))
    a("s_lshl_b32 s%d, s%d, 5" % (s_t0, s_rg))
    a("v_add_u32 v%d, s%d, v%d" % (vT0, s_t0, vT0))
    a("v_mul_u32_u24 v%d, 144, v%d" % (vT0, vT0))
    a("v_lshrrev_b32 v%d, 5, v%d" % (vT1, vLane))
    a("v_lshlrev_b32 v%d, 3, v%d" % (vT1, vT1))
    a("s_lshl_b32 s%d, s%d, 6" % (s_t0, s_hh))
    a("v_add3_u32 v%d, v%d, v%d, s%d" % (vT0, vT0, vT1, s_t0))
    for q in range(4):
        a("ds_write_b64 v%d, v[%d:%d] offset:%d" % (vT0, O1 + 2 * q, O1 + 2 * q + 1, ST + 16 * q))
    a("s_waitcnt lgkmcnt(0)")
    a("s_barrier")
    a("v_lshrrev_b32 v%d, 3, v%d" % (vT0, vLane))
    a("s_lshl_b32 s%d, s%d, 4" % (s_t0, s_w))
    a("v_add_u32 v%d, s%d, v%d" % (vT0, s_t0, vT0))
    a("v_and_b32 v%d, 7, v%d" % (vT1, vLane))
    a("v_lshlrev_b32 v%d, 4, v%d" % (vT1, vT1))
    a("v_mul_u32_u24 v%d, 144, v%d" % (vT2, vT0))
    a("v_add_u32 v%d, v%d, v%d" % (vT2, vT2, vT1))
    a("ds_read_b128 v[44:47], v%d offset:%d" % (vT2, ST))
    a("ds_read_b128 v[48:51], v%d offset:%d" % (vT2, ST + 8 * 144))
    a("s_lshl_b32 s%d, s%d, 7" % (s_t0, s_rb))
    a("v_add_u32 v%d, s%d, v%d" % (vT0, s_t0, vT0))
    a("v_lshlrev_b32 v%d, 11, v%d" % (vT0, vT0))
    a("s_lshl_b32 s%d, s%d, 7" % (s_t0, s_jb))
    a("s_add_u32 s%d, s%d, 1024" % (s_t0, s_t0))
    a("v_add3_u32 v%d, v%d, v%d, s%d" % (vT0, vT0, vT1, s_t0))
    a("s_mov_b32 s%d, 16384" % s_off)
    a("s_waitcnt lgkmcnt(1)")
    a("buffer_store_dwordx4 v[44:47], v%d, s[%d:%d], 0 offen" % (vT0, sOUT, sOUT + 3))
    a("s_waitcnt lgkmcnt(0)")
    a("buffer_store_dwordx4 v[48:51], v%d, s[%d:%d], s%d offen" % (vT0, sOUT, sOUT + 3, s_off))
    stamp(a, S, 3 if first else 7)
```

```python
import sys
from asmdsl import Asm
import partA, partB

NAME = "concat_heads__ssm_conv_s4__linear_attn_block__prompt_kernel"

HEADER = """; Kernarg layout (120 bytes): d_in[0..11], d_out (96), d_debug (104), d_ws (112)
"""

def kernel_text(name, body, nvgpr, accum, nsgpr=102):
    return """.globl {n}
.p2align 8
.type {n},@function
{n}:
{body}""".format(n=name, body=body), """.amdhsa_kernel {n}
  .amdhsa_next_free_vgpr {v}
  .amdhsa_next_free_sgpr {s}
  .amdhsa_accum_offset {acc}
  .amdhsa_group_segment_fixed_size 0
  .amdhsa_kernarg_size 120
  .amdhsa_user_sgpr_count 2
  .amdhsa_user_sgpr_kernarg_segment_ptr 1
  .amdhsa_system_sgpr_workgroup_id_x 1
.end_amdhsa_kernel
""".format(n=name, v=nvgpr, s=nsgpr, acc=accum)

def assemble(launches, kernels):
    out = [HEADER.rstrip()]
    if len(launches) == 1 and launches[0][0] == NAME:
        k, g, b, l = launches[0]
        out.append("; @launch grid=(%d,1,1) block=(%d,1,1) lds=%d" % (g, b, l))
    else:
        for k, g, b, l in launches:
            out.append("; @launch kernel=%s grid=(%d,1,1) block=(%d,1,1) lds=%d" % (k, g, b, l))
    out.append('.amdgcn_target "amdgcn-amd-amdhsa--gfx950"')
    out.append(".text")
    desc = []
    for name, body, nv, acc in kernels:
        t, d = kernel_text(name, body, nv, acc)
        out.append(t)
        desc.append(d)
    out.append('.section .rodata,"a"')
    for d in desc:
        out.append(".p2align 6")
        out.append(d.rstrip())
    return "\n".join(out) + "\n"

def emit_stamps(a, n, s_wg, s_w, nw=4):
    a("s_waitcnt vmcnt(0)")
    a("s_memtime s[%d:%d]" % (70 + 2 * n, 71 + 2 * n))
    a("s_load_dwordx2 s[60:61], s[0:1], 112")
    a("s_waitcnt lgkmcnt(0)")
    a("s_mov_b32 s62, 0x10000000"); a("s_mov_b32 s63, 0x20000"); a("s_and_b32 s61, s61, 0xffff")
    a("s_mul_i32 s64, s%d, %d" % (s_wg, nw)); a("s_add_u32 s64, s64, s%d" % s_w); a("s_lshl_b32 s64, s64, 6")
    a("s_add_u32 s64, s64, 0x8000000")
    a("v_mov_b32 v5, s64")
    for i in range(n + 1):
        a("s_sub_u32 s65, s%d, s70" % (70 + 2 * i))
        a("v_mov_b32 v4, s65")
        a("buffer_store_dword v4, v5, s[60:63], 0 offen offset:%d" % (4 * i))
    a("s_getreg_b32 s65, hwreg(HW_REG_XCC_ID)")
    a("v_mov_b32 v4, s65")
    a("buffer_store_dword v4, v5, s[60:63], 0 offen offset:60")

def kernelA(dbg=None, stamps=False, zero=False):
    a = Asm()
    a("s_cmp_ge_u32 s2, 128")
    a("s_cbranch_scc1 LA_end")
    if zero:
        zero_kvz(a)
    a("s_and_b32 s3, s2, 7")
    a("s_lshl_b32 s3, s3, 4")
    a("s_lshr_b32 s4, s2, 3")
    a("s_add_u32 s3, s3, s4")
    r = partA.emit_partA(a, dict(ka=0, cg=3, stamps=stamps), dbg)
    if stamps:
        emit_stamps(a, 7, 2, r["s_w"])
    if dbg == "lds":
        a("s_load_dwordx2 s[60:61], s[0:1], 112")
        a("s_waitcnt lgkmcnt(0)")
        a("s_mov_b32 s62, 0x10000000"); a("s_mov_b32 s63, 0x20000"); a("s_and_b32 s61, s61, 0xffff")
        a("s_mul_i32 s64, s3, %d" % 131072)
        a("v_lshlrev_b32 v3, 2, v0")
        a("s_mov_b32 s65, 0")
        a.label("Ldump")
        a("ds_read_b32 v4, v3")
        a("v_add_u32 v5, s64, v3")
        a("s_waitcnt lgkmcnt(0)")
        a("buffer_store_dword v4, v5, s[60:63], 0 offen")
        a("v_add_u32 v3, 1024, v3")
        a("s_add_u32 s65, s65, 1024")
        a("s_cmp_lt_u32 s65, %d" % partA.A_LDS)
        a("s_cbranch_scc1 Ldump")
    a("s_waitcnt vmcnt(0)")
    a.label("LA_end")
    a("s_endpgm")
    return a.finish()

def map_B(a):
    a("s_and_b32 s3, s2, 3"); a("s_lshl_b32 s3, s3, 2")
    a("s_bfe_u32 s4, s2, 0x20003"); a("s_add_u32 s3, s3, s4")
    a("s_bfe_u32 s4, s2, 0x10002"); a("s_lshl_b32 s4, s4, 2")
    a("s_bfe_u32 s5, s2, 0x20005"); a("s_add_u32 s4, s4, s5")

def kernelB1(stamps=False):
    a = Asm()
    a("s_cmp_ge_u32 s2, 128")
    a("s_cbranch_scc1 LB1_end")
    map_B(a)
    partB.emit_B1(a, dict(ka=0, rb=3, hq=4, stamps=stamps))
    if stamps:
        emit_stamps(a, 5, 2, 44, 8)
    a("s_waitcnt vmcnt(0)")
    a.label("LB1_end")
    a("s_endpgm")
    return a.finish()

def kernelB2(stamps=False):
    a = Asm()
    a("s_cmp_ge_u32 s2, 128")
    a("s_cbranch_scc1 LB2_end")
    map_B(a)
    partB.emit_B2(a, dict(ka=0, rb=3, jb=4, stamps=stamps))
    if stamps:
        emit_stamps(a, 4, 2, 44, 8)
    a("s_waitcnt vmcnt(0)")
    a.label("LB2_end")
    a("s_endpgm")
    return a.finish()

def zero_kvz(a):
    a("s_load_dwordx2 s[60:61], s[0:1], 112")
    a("s_waitcnt lgkmcnt(0)")
    a("s_mov_b32 s62, %d" % partB.KVZ_BYTES); a("s_mov_b32 s63, 0x20000"); a("s_and_b32 s61, s61, 0xffff")
    a("s_mul_i32 s64, s2, 272")
    a("v_lshlrev_b32 v3, 2, v0")
    a("v_add_u32 v3, s64, v3")
    a("v_mov_b32 v4, 0")
    a("v_cmp_gt_u32 vcc, 68, v0")
    a("s_and_saveexec_b64 s[66:67], vcc")
    a("s_cbranch_execz Lzk")
    a("buffer_store_dword v4, v3, s[60:63], 0 offen")
    a.label("Lzk")
    a("s_mov_b64 exec, s[66:67]")

if __name__ == "__main__":
    mode = sys.argv[1]
    if mode == "A":
        txt = assemble([(NAME, 128, 256, partA.A_LDS)], [(NAME, kernelA(), 256, 256)])
    elif mode == "Astamp":
        txt = assemble([(NAME, 128, 256, partA.A_LDS)], [(NAME, kernelA(stamps=True), 256, 256)])
    elif mode == "v1" or mode == "v1st":
        st = mode == "v1st"
        txt = assemble([("ka_kernel", 128, 256, partA.A_LDS), ("kb1_kernel", 128, 512, 163840), ("kb2_kernel", 128, 512, 131072)],
                       [("ka_kernel", kernelA(zero=True), 256, 256), ("kb1_kernel", kernelB1(st), 256, 256), ("kb2_kernel", kernelB2(), 256, 256)])
    elif mode == "Adbg":
        txt = assemble([(NAME, 128, 256, partA.A_LDS)], [(NAME, kernelA("lds"), 256, 256)])
    open(sys.argv[2], "w").write(txt)
```

```python
from asmdsl import Asm

LOG2E = 0x3fb8aa3b
EPS = 0x358637bd

WS_KVZ = 0
KVZ_BYTES = 32 * 1088
WS_PQ = 1 << 20
PQ_BYTES = 32 * 64 * 1024

SLOT = 32768
STAMP_BASE = 70


def stamp(a, S, i):
    if S.get("stamps"):
        a("s_memtime s[%d:%d]" % (STAMP_BASE + 2 * i, STAMP_BASE + 2 * i + 1))


def srd(a, d, lo, hi, nbytes):
    a("s_mov_b32 s%d, s%d" % (d, lo))
    a("s_and_b32 s%d, s%d, 0xffff" % (d + 1, hi))
    a("s_mov_b32 s%d, 0x%x" % (d + 2, nbytes))
    a("s_mov_b32 s%d, 0x20000" % (d + 3))


def phi(a, src, n, tmp, dst=None):
    for i in range(0, n, 4):
        regs = [src + i + k for k in range(4)]
        for k, r in enumerate(regs):
            a("v_mul_f32 v%d, 0x%x, v%d" % (tmp + k, LOG2E, r))
        for k, r in enumerate(regs):
            a("v_min_f32 v%d, 0, v%d" % (tmp + k, tmp + k))
        for k, r in enumerate(regs):
            a("v_exp_f32 v%d, v%d" % (tmp + k, tmp + k))
        for k, r in enumerate(regs):
            a("v_max_f32 v%d, 0, v%d" % (r, r))
        for k, r in enumerate(regs):
            a("v_add_f32 v%d, 0x%x, v%d" % (r, EPS, r))
        for k, r in enumerate(regs):
            a("v_add_f32 v%d, v%d, v%d" % (r, r, tmp + k))


def common_prologue(a, S):
    ka = S["ka"]
    a("s_load_dwordx8 s[16:23], s[%d:%d], 72" % (ka, ka + 1))
    a("s_load_dwordx4 s[24:27], s[%d:%d], 104" % (ka, ka + 1))
    a("v_and_b32 v1, 63, v0")
    a("v_lshrrev_b32 v2, 6, v0")
    a("v_readfirstlane_b32 s44, v2")
    a("s_and_b32 s45, s44, 3")
    a("s_lshr_b32 s46, s44, 2")


def emit_B1(a: Asm, S):
    s_rb, s_hq = S["rb"], S["hq"]
    s_w, s_rg, s_ch = 44, 45, 46
    sX, sW, sWS = 28, 32, 36
    s_t0, s_t1, s_m0x, s_m0w, s_off = 47, 48, 49, 50, 51
    vLane = 1
    vT0, vT1, vT2, vT3 = 3, 4, 5, 6
    vXs0, vXs1, vWs = 7, 8, 9
    vXr = 10
    vWr = 14
    vXc = 15
    vWc = 19
    WF = 20
    AK, AV, AQ = 52, 68, 84
    TMP = 100
    XF = 128
    stamp(a, S, 0)
    common_prologue(a, S)
    a("v_lshrrev_b32 v%d, 3, v%d" % (vT0, vLane))
    a("v_and_b32 v%d, 7, v%d" % (vT1, vLane))
    a("v_lshrrev_b32 v%d, 1, v%d" % (vT2, vT0))
    a("v_xor_b32 v%d, v%d, v%d" % (vT2, vT2, vT1))
    a("s_lshl_b32 s%d, s%d, 7" % (s_t0, s_rb))
    a("s_lshl_b32 s%d, s%d, 4" % (s_t1, s_w))
    a("s_add_u32 s%d, s%d, s%d" % (s_t0, s_t0, s_t1))
    a("v_add_u32 v%d, s%d, v%d" % (vT3, s_t0, vT0))
    a("v_lshlrev_b32 v%d, 10, v%d" % (vT3, vT3))
    a("v_lshlrev_b32 v%d, 4, v%d" % (vXs0, vT2))
    a("v_add_u32 v%d, v%d, v%d" % (vXs0, vXs0, vT3))
    a("v_xor_b32 v%d, 4, v%d" % (vT2, vT2))
    a("v_lshlrev_b32 v%d, 4, v%d" % (vXs1, vT2))
    a("v_add_u32 v%d, v%d, v%d" % (vXs1, vXs1, vT3))
    a("v_add_u32 v%d, 8192, v%d" % (vXs1, vXs1))
    a("v_bfe_u32 v%d, v%d, 1, 1" % (vT2, vT0))
    a("v_lshlrev_b32 v%d, 2, v%d" % (vT2, vT2))
    a("v_xor_b32 v%d, v%d, v%d" % (vT2, vT2, vT1))
    a("v_lshlrev_b32 v%d, 4, v%d" % (vT2, vT2))
    a("s_lshl_b32 s%d, s%d, 3" % (s_t1, s_w))
    a("v_add_u32 v%d, s%d, v%d" % (vT3, s_t1, vT0))
    a("v_mul_u32_u24 v%d, 3072, v%d" % (vT3, vT3))
    a("s_lshl_b32 s%d, s%d, 7" % (s_t1, s_hq))
    a("v_add3_u32 v%d, v%d, v%d, s%d" % (vWs, vT3, vT2, s_t1))
    a("s_lshl_b32 s%d, s%d, 11" % (s_m0x, s_w))
    a("s_lshl_b32 s%d, s%d, 10" % (s_m0w, s_w))
    a("s_waitcnt lgkmcnt(0)")
    srd(a, sX, 16, 17, 2048 * 512 * 2)
    srd(a, sW, 18, 19, 512 * 1536 * 2)
    srd(a, sWS, 26, 27, 1 << 28)

    if S.get("touch"):
        vTo = 100
        a("s_and_b32 s%d, s%d, 3" % (s_t0, s_hq))
        a("s_lshl_b32 s%d, s%d, 15" % (s_t0, s_t0))
        a("s_lshl_b32 s%d, s%d, 17" % (s_t1, s_rb))
        a("s_add_u32 s%d, s%d, s%d" % (s_t0, s_t0, s_t1))
        a("s_and_b32 s%d, s%d, 3" % (s_t1, s_w))
        a("s_lshl_b32 s%d, s%d, 13" % (s_t1, s_t1))
        a("s_add_u32 s%d, s%d, s%d" % (s_t0, s_t0, s_t1))
        a("v_lshlrev_b32 v%d, 7, v%d" % (vTo, vLane))
        a("v_add_u32 v%d, s%d, v%d" % (vTo, s_t0, vTo))
        lt = a.newlabel("Lt")
        a("s_cmp_lt_u32 s%d, 4" % s_w)
        a("s_cbranch_scc0 %s" % lt)
        a("buffer_load_dword v%d, v%d, s[%d:%d], 0 offen" % (vTo + 1, vTo, sX, sX + 3))
        a.label(lt)
        for i in range(3):
            a("s_and_b32 s%d, s%d, 3" % (s_t0, s_rb))
            a("s_mul_i32 s%d, s%d, 1536" % (s_t0, s_t0))
            a("s_mul_i32 s%d, s%d, 192" % (s_t1, s_w))
            a("s_add_u32 s%d, s%d, s%d" % (s_t0, s_t0, s_t1))
            a("s_add_u32 s%d, s%d, %d" % (s_t0, s_t0, 64 * i))
            a("v_add_u32 v%d, s%d, v%d" % (vTo + 2, s_t0, vLane))
            a("v_mul_u32_u24 v%d, 43691, v%d" % (vTo + 3, vTo + 2))
            a("v_lshrrev_b32 v%d, 19, v%d" % (vTo + 3, vTo + 3))
            a("v_mul_u32_u24 v%d, 12, v%d" % (vTo + 4, vTo + 3))
            a("v_sub_u32 v%d, v%d, v%d" % (vTo + 4, vTo + 2, vTo + 4))
            a("v_mul_u32_u24 v%d, 3072, v%d" % (vTo + 3, vTo + 3))
            a("v_lshrrev_b32 v%d, 2, v%d" % (vTo + 5, vTo + 4))
            a("v_lshlrev_b32 v%d, 10, v%d" % (vTo + 5, vTo + 5))
            a("v_and_b32 v%d, 3, v%d" % (vTo + 4, vTo + 4))
            a("v_lshlrev_b32 v%d, 7, v%d" % (vTo + 4, vTo + 4))
            a("s_and_b32 s%d, s%d, 4" % (s_t1, s_hq))
            a("s_lshl_b32 s%d, s%d, 7" % (s_t1, s_t1))
            a("v_add3_u32 v%d, v%d, v%d, v%d" % (vTo + 3, vTo + 3, vTo + 4, vTo + 5))
            a("v_add_u32 v%d, s%d, v%d" % (vTo + 3, s_t1, vTo + 3))
            a("buffer_load_dword v%d, v%d, s[%d:%d], 0 offen" % (vTo + 6 + i, vTo + 3, sW, sW + 3))

    def dma(m0expr_base_s, m0off, vaddr, srdreg, soff):
        a("s_add_u32 m0, s%d, %d" % (m0expr_base_s, m0off))
        if soff == 0:
            so = "0"
        else:
            a("s_mov_b32 s%d, %d" % (s_off, soff))
            so = "s%d" % s_off
        a("buffer_load_dwordx4 v%d, s[%d:%d], %s offen lds" % (vaddr, srdreg, srdreg + 3, so))

    def fill_kv(c, slot):
        b = slot * SLOT
        dma(s_m0x, b, vXs0, sX, 128 * c)
        dma(s_m0x, b + 1024, vXs1, sX, 128 * c)
        dma(s_m0w, b + 16384, vWs, sW, c * 64 * 3072 + 1024)
        dma(s_m0w, b + 24576, vWs, sW, c * 64 * 3072 + 2048)

    def fill_q(half, slot):
        b = slot * SLOT
        for j in range(4):
            dma(s_m0w, b + 8192 * j, vWs, sW, (4 * half + j) * 64 * 3072)

    for c in range(5):
        fill_kv(c, c)
    a("v_and_b32 v%d, 31, v%d" % (vT0, vLane))
    a("v_lshrrev_b32 v%d, 5, v%d" % (vT1, vLane))
    a("v_bfe_u32 v%d, v%d, 1, 3" % (vT2, vLane))
    a("s_lshl_b32 s%d, s%d, 5" % (s_t0, s_rg))
    a("v_add_u32 v%d, s%d, v%d" % (vT3, s_t0, vT0))
    a("v_lshlrev_b32 v%d, 7, v%d" % (vT3, vT3))
    for i in range(4):
        a("v_add_u32 v%d, %d, v%d" % (vXr + i, 2 * i, vT1))
        a("v_xor_b32 v%d, v%d, v%d" % (vXr + i, vXr + i, vT2))
        a("v_lshlrev_b32 v%d, 4, v%d" % (vXr + i, vXr + i))
        a("v_add_u32 v%d, v%d, v%d" % (vXr + i, vXr + i, vT3))
    a("v_bfe_u32 v%d, v%d, 2, 2" % (vT0, vLane))
    a("v_lshlrev_b32 v%d, 3, v%d" % (vT2, vT1))
    a("v_add_u32 v%d, v%d, v%d" % (vT2, vT2, vT0))
    a("v_lshlrev_b32 v%d, 7, v%d" % (vWr, vT2))
    a("v_lshrrev_b32 v%d, 1, v%d" % (vT0, vT0))
    a("v_xor_b32 v%d, s%d, v%d" % (vT0, s_ch, vT0))
    a("v_lshlrev_b32 v%d, 6, v%d" % (vT0, vT0))
    a("v_add_u32 v%d, v%d, v%d" % (vWr, vWr, vT0))
    a("v_bfe_u32 v%d, v%d, 4, 1" % (vT0, vLane))
    a("v_lshlrev_b32 v%d, 5, v%d" % (vT0, vT0))
    a("v_and_b32 v%d, 3, v%d" % (vT2, vLane))
    a("v_lshlrev_b32 v%d, 3, v%d" % (vT2, vT2))
    a("v_add3_u32 v%d, v%d, v%d, v%d" % (vWr, vWr, vT0, vT2))
    for i in range(16):
        a("v_mov_b32 v%d, 0" % (AK + i)); a("v_mov_b32 v%d, 0" % (AV + i)); a("v_mov_b32 v%d, 0" % (AQ + i))

    def mf(D, A_, B_):
        a("v_mfma_f32_32x32x16_bf16 v[%d:%d], v[%d:%d], v[%d:%d], v[%d:%d]" % (D, D + 15, A_, A_ + 3, B_, B_ + 3, D, D + 15))

    waits = [16, 12, 12, 12, 12, 12, 12, 8]
    for c in range(8):
        slot = c % 5
        a("s_waitcnt vmcnt(%d)" % waits[c])
        a("s_barrier")
        if c == 0:
            stamp(a, S, 1)
        if 1 <= c <= 3:
            fill_kv(c + 4, c - 1)
        elif c == 4:
            fill_q(0, 3)
        elif c == 5:
            fill_q(1, 4)
        for i in range(4):
            a("v_add_u32 v%d, %d, v%d" % (vXc + i, slot * SLOT, vXr + i))
        a("v_add_u32 v%d, %d, v%d" % (vWc, slot * SLOT, vWr))

        def rd(i):
            X = XF + 16 * c + 4 * i
            F = WF + 8 * i
            a("ds_read_b128 v[%d:%d], v%d" % (X, X + 3, vXc + i))
            for mat, base in ((0, 16384), (1, 24576)):
                for j in range(2):
                    a("ds_read_b64_tr_b16 v[%d:%d], v%d offset:%d" % (F + 4 * mat + 2 * j, F + 4 * mat + 2 * j + 1, vWc, base + (16 * i + 4 * j) * 128))

        rd(0); rd(1)
        for i in range(4):
            if i + 2 < 4:
                a("s_waitcnt lgkmcnt(5)")
            elif i == 2:
                a("s_waitcnt lgkmcnt(5)")
            else:
                a("s_waitcnt lgkmcnt(0)")
            X = XF + 16 * c + 4 * i
            F = WF + 8 * i
            mf(AK, X, F)
            mf(AV, X, F + 4)
            if i + 2 < 4:
                rd(i + 2)
    stamp(a, S, 2)
    PKp, PVp = TMP, TMP + 8
    t4 = TMP + 16
    phi(a, AK, 16, t4)
    for i in range(8):
        a("v_cvt_pk_bf16_f32 v%d, v%d, v%d" % (PKp + i, AK + 2 * i, AK + 2 * i + 1))
        a("v_cvt_pk_bf16_f32 v%d, v%d, v%d" % (PVp + i, AV + 2 * i, AV + 2 * i + 1))
    vZ = TMP + 20
    a("v_mov_b32 v%d, 0" % vZ)
    a("v_mov_b32 v%d, 0x3f803f80" % (TMP + 21))
    for i in range(8):
        a("v_dot2c_f32_bf16 v%d, v%d, v%d" % (vZ, PKp + i, TMP + 21))
    DKV = AK
    a("v_mfma_f32_32x32x16_bf16 v[%d:%d], v[%d:%d], v[%d:%d], 0" % (DKV, DKV + 15, PKp, PKp + 3, PVp, PVp + 3))
    a("v_mfma_f32_32x32x16_bf16 v[%d:%d], v[%d:%d], v[%d:%d], v[%d:%d]" % (DKV, DKV + 15, PKp + 4, PKp + 7, PVp + 4, PVp + 7, DKV, DKV + 15))
    for half in range(2):
        a("s_waitcnt vmcnt(%d)" % (4 if half == 0 else 0))
        a("s_barrier")
        slot = 3 + half
        a("v_add_u32 v%d, %d, v%d" % (vWc, slot * SLOT, vWr))

        def rdq(st):
            F = WF + 4 * (st % 8)
            j4, i = st >> 2, st & 3
            for j in range(2):
                a("ds_read_b64_tr_b16 v[%d:%d], v%d offset:%d" % (F + 2 * j, F + 2 * j + 1, vWc, 8192 * j4 + (16 * i + 4 * j) * 128))
        for st in range(4):
            rdq(st)
        for st in range(16):
            a("s_waitcnt lgkmcnt(%d)" % (min(6, 2 * (15 - st))))
            F = WF + 4 * (st % 8)
            X = XF + 64 * half + 4 * st
            mf(AQ, F, X)
            if st + 4 < 16:
                rdq(st + 4)
    stamp(a, S, 3)
    RED = 0
    ZRED = 16384
    s_msk = 52
    a("v_bfe_u32 v%d, v%d, 4, 1" % (vT0, vLane))
    a("v_cmp_eq_u32 s[%d:%d], 1, v%d" % (s_msk, s_msk + 1, vT0))
    SEL = PKp
    for i in range(8):
        a("v_cndmask_b32 v%d, v%d, v%d, s[%d:%d]" % (SEL + i, DKV + i, DKV + 8 + i, s_msk, s_msk + 1))
    a("s_lshl_b32 s%d, s%d, 11" % (s_t0, s_w))
    a("v_lshlrev_b32 v%d, 5, v%d" % (vT0, vLane))
    a("v_add_u32 v%d, s%d, v%d" % (vT0, s_t0, vT0))
    a("ds_write_b128 v%d, v[%d:%d] offset:%d" % (vT0, SEL, SEL + 3, RED))
    a("ds_write_b128 v%d, v[%d:%d] offset:%d" % (vT0, SEL + 4, SEL + 7, RED + 16))
    a("s_lshl_b32 s%d, s%d, 8" % (s_t0, s_w))
    a("v_lshlrev_b32 v%d, 2, v%d" % (vT1, vLane))
    a("v_add_u32 v%d, s%d, v%d" % (vT1, s_t0, vT1))
    a("ds_write_b32 v%d, v%d offset:%d" % (vT1, vZ, ZRED))
    phi(a, AQ, 16, t4)
    PQ = PVp
    for i in range(8):
        a("v_cvt_pk_bf16_f32 v%d, v%d, v%d" % (PQ + i, AQ + 2 * i, AQ + 2 * i + 1))
    a("s_lshl_b32 s%d, s%d, 2" % (s_t0, s_hq))
    a("s_lshl_b32 s%d, s%d, 1" % (s_t1, s_ch))
    a("s_add_u32 s%d, s%d, s%d" % (s_t0, s_t0, s_t1))
    a("s_lshl_b32 s%d, s%d, 6" % (s_t0, s_t0))
    a("s_lshl_b32 s%d, s%d, 2" % (s_t1, s_rb))
    a("s_add_u32 s%d, s%d, s%d" % (s_t0, s_t0, s_t1))
    a("s_add_u32 s%d, s%d, s%d" % (s_t0, s_t0, s_rg))
    a("s_lshl_b32 s%d, s%d, 10" % (s_t0, s_t0))
    a("s_add_u32 s%d, s%d, %d" % (s_t0, s_t0, WS_PQ))
    a("v_lshlrev_b32 v%d, 4, v%d" % (vT2, vLane))
    a("v_add_u32 v%d, s%d, v%d" % (vT2, s_t0, vT2))
    sc = S.get("sc", "")
    a("buffer_store_dwordx4 v[%d:%d], v%d, s[%d:%d], 0 offen %s" % (PQ, PQ + 3, vT2, sWS, sWS + 3, sc))
    a("s_mov_b32 s%d, 65536" % s_off)
    a("buffer_store_dwordx4 v[%d:%d], v%d, s[%d:%d], s%d offen %s" % (PQ + 4, PQ + 7, vT2, sWS, sWS + 3, s_off, sc))
    a("s_waitcnt lgkmcnt(0)")
    a("s_barrier")
    s_hp, s_hf = 54, 55
    a("s_bfe_u32 s%d, s%d, 0x10001" % (s_hp, s_w))
    a("s_and_b32 s%d, s%d, 1" % (s_hf, s_w))
    a("s_lshl_b32 s%d, s%d, 5" % (s_t0, s_hf))
    a("s_lshl_b32 s%d, s%d, 4" % (s_t1, s_hp))
    a("s_add_u32 s%d, s%d, s%d" % (s_t0, s_t0, s_t1))
    a("s_lshl_b32 s%d, s%d, 5" % (s_t0, s_t0))
    a("s_lshl_b32 s%d, s%d, 13" % (s_t1, s_ch))
    a("s_add_u32 s%d, s%d, s%d" % (s_t0, s_t0, s_t1))
    a("v_lshlrev_b32 v%d, 2, v%d" % (vT0, vLane))
    a("v_add_u32 v%d, s%d, v%d" % (vT0, s_t0, vT0))
    R_ = TMP
    for row in range(2):
        for g in range(4):
            a("ds_read_b32 v%d, v%d offset:%d" % (R_ + 4 * row + g, vT0, RED + 2048 * g + 256 * row))
    a("v_and_b32 v%d, 31, v%d" % (vT1, vLane))
    a("v_lshlrev_b32 v%d, 2, v%d" % (vT1, vT1))
    a("s_lshl_b32 s%d, s%d, 10" % (s_t1, s_ch))
    a("v_add_u32 v%d, s%d, v%d" % (vT1, s_t1, vT1))
    for g in range(4):
        for hf in range(2):
            a("ds_read_b32 v%d, v%d offset:%d" % (R_ + 8 + 2 * g + hf, vT1, ZRED + 256 * g + 128 * hf))
    a("s_lshl_b32 s%d, s%d, 2" % (s_t0, s_hq))
    a("s_lshl_b32 s%d, s%d, 1" % (s_t1, s_ch))
    a("s_add_u32 s%d, s%d, s%d" % (s_t0, s_t0, s_t1))
    a("s_add_u32 s%d, s%d, s%d" % (s_t1, s_t0, s_hp))
    a("s_mul_i32 s%d, s%d, 1088" % (s_t1, s_t1))
    a("s_mul_i32 s%d, s%d, 544" % (s_off, s_hf))
    a("s_add_u32 s%d, s%d, s%d" % (s_t1, s_t1, s_off))
    a("s_add_u32 s%d, s%d, %d" % (s_t1, s_t1, WS_KVZ))
    a("v_lshlrev_b32 v%d, 2, v%d" % (vT2, vLane))
    a("v_add_u32 v%d, s%d, v%d" % (vT2, s_t1, vT2))
    a("v_bfe_u32 v%d, v%d, 4, 1" % (vT3, vLane))
    a("v_add_u32 v%d, s%d, v%d" % (vT3, s_t0, vT3))
    a("v_mul_u32_u24 v%d, 1088, v%d" % (vT3, vT3))
    a("v_bfe_u32 v%d, v%d, 2, 1" % (R_ + 16, vLane))
    a("v_mul_u32_u24 v%d, 544, v%d" % (R_ + 16, R_ + 16))
    a("v_add_u32 v%d, v%d, v%d" % (vT3, vT3, R_ + 16))
    a("v_and_b32 v%d, 3, v%d" % (R_ + 16, vLane))
    a("v_bfe_u32 v%d, v%d, 3, 1" % (R_ + 17, vLane))
    a("v_lshlrev_b32 v%d, 2, v%d" % (R_ + 17, R_ + 17))
    a("v_add_u32 v%d, v%d, v%d" % (R_ + 16, R_ + 16, R_ + 17))
    a("v_lshlrev_b32 v%d, 2, v%d" % (R_ + 16, R_ + 16))
    a("v_add3_u32 v%d, v%d, v%d, %d" % (vT3, vT3, R_ + 16, 0))
    a("v_add_u32 v%d, %d, v%d" % (vT3, WS_KVZ + 512, vT3))
    a("s_waitcnt lgkmcnt(8)")
    for row in range(2):
        b = R_ + 4 * row
        a("v_add_f32 v%d, v%d, v%d" % (b, b, b + 1))
        a("v_add_f32 v%d, v%d, v%d" % (b + 2, b + 2, b + 3))
        a("v_add_f32 v%d, v%d, v%d" % (b, b, b + 2))
    if S.get("pre_atomic"):
        S["pre_atomic"](a)
    for row in range(2):
        a("buffer_atomic_add_f32 v%d, v%d, s[%d:%d], 0 offen offset:%d" % (R_ + 4 * row, vT2, sWS, sWS + 3, 256 * row))
    a("s_waitcnt lgkmcnt(0)")
    b = R_ + 8
    for st in (1, 2, 4):
        for k in range(0, 8, 2 * st):
            a("v_add_f32 v%d, v%d, v%d" % (b + k, b + k, b + k + st))
    lz = a.newlabel("Lz")
    a("s_and_b32 s%d, s%d, 3" % (s_t0, s_w))
    a("s_cmp_eq_u32 s%d, 0" % s_t0)
    a("s_cbranch_scc0 %s" % lz)
    a("s_mov_b64 s[56:57], exec")
    a("s_mov_b32 exec_lo, -1")
    a("s_mov_b32 exec_hi, 0")
    a("buffer_atomic_add_f32 v%d, v%d, s[%d:%d], 0 offen" % (b, vT3, sWS, sWS + 3))
    a("s_mov_b64 exec, s[56:57]")
    a.label(lz)
    stamp(a, S, 4)


def emit_B2(a: Asm, S, first=True):
    s_rb, s_jb = S["rb"], S["jb"]
    s_w, s_rg, s_hh = 44, 45, 46
    sWO, sOUT, sWS = 28, 32, 36
    s_t0, s_t1, s_m0w, s_off = 47, 48, 50, 51
    vLane = 1
    vT0, vT1, vT2, vT3 = 3, 4, 5, 6
    WO = 0
    KVF = 65536
    OST = 98304
    sc = S.get("sc", "")
    if first:
        stamp(a, S, 0)
        common_prologue(a, S)
        a("s_waitcnt lgkmcnt(0)")
        srd(a, sWS, 26, 27, 1 << 28)
    srd(a, sWO, 20, 21, 512 * 512 * 2)
    srd(a, sOUT, 22, 23, 2048 * 1024 * 2)
    vWs = 7
    a("v_lshrrev_b32 v%d, 3, v%d" % (vT0, vLane))
    a("v_and_b32 v%d, 7, v%d" % (vT1, vLane))
    a("v_bfe_u32 v%d, v%d, 1, 1" % (vT2, vT0))
    a("v_lshlrev_b32 v%d, 2, v%d" % (vT2, vT2))
    a("v_xor_b32 v%d, v%d, v%d" % (vT2, vT2, vT1))
    a("v_lshlrev_b32 v%d, 4, v%d" % (vT2, vT2))
    a("s_lshl_b32 s%d, s%d, 3" % (s_t1, s_w))
    a("v_add_u32 v%d, s%d, v%d" % (vT3, s_t1, vT0))
    a("v_lshlrev_b32 v%d, 10, v%d" % (vT3, vT3))
    a("s_lshl_b32 s%d, s%d, 7" % (s_t1, s_jb))
    a("v_add3_u32 v%d, v%d, v%d, s%d" % (vWs, vT3, vT2, s_t1))
    a("s_lshl_b32 s%d, s%d, 10" % (s_m0w, s_w))
    for j in range(8):
        a("s_add_u32 m0, s%d, %d" % (s_m0w, WO + 8192 * j))
        if j == 0:
            so = "0"
        else:
            a("s_mov_b32 s%d, %d" % (s_off, j * 65536)); so = "s%d" % s_off
        a("buffer_load_dwordx4 v%d, s[%d:%d], %s offen lds" % (vWs, sWO, sWO + 3, so))
    if S.get("pre_pq"):
        S["pre_pq"](a)
    PQF = 128
    a("s_lshl_b32 s%d, s%d, 10" % (s_t0, s_hh))
    a("s_lshl_b32 s%d, s%d, 2" % (s_t1, s_rb))
    a("s_add_u32 s%d, s%d, s%d" % (s_t0, s_t0, s_t1))
    a("s_add_u32 s%d, s%d, s%d" % (s_t0, s_t0, s_rg))
    a("s_lshl_b32 s%d, s%d, 10" % (s_t0, s_t0))
    a("s_add_u32 s%d, s%d, %d" % (s_t0, s_t0, WS_PQ))
    a("v_lshlrev_b32 v%d, 4, v%d" % (vT0, vLane))
    a("v_add_u32 v%d, s%d, v%d" % (vT0, s_t0, vT0))
    for i in range(16):
        if i == 0:
            so = "0"
        else:
            a("s_mov_b32 s%d, %d" % (s_off, i * 65536)); so = "s%d" % s_off
        a("buffer_load_dwordx4 v[%d:%d], v%d, s[%d:%d], %s offen %s" % (PQF + 4 * i, PQF + 4 * i + 3, vT0, sWS, sWS + 3, so, sc))
    if S.get("pre_kv"):
        S["pre_kv"](a)
    KL = 64
    a("v_and_b32 v%d, 31, v%d" % (vT0, vLane))
    a("v_min_u32 v%d, 16, v%d" % (vT0, vT0))
    a("v_lshlrev_b32 v%d, 5, v%d" % (vT0, vT0))
    a("v_lshrrev_b32 v%d, 5, v%d" % (vT1, vLane))
    a("v_mul_u32_u24 v%d, 544, v%d" % (vT1, vT1))
    a("s_mul_i32 s%d, s%d, %d" % (s_t0, s_w, 4 * 1088))
    a("s_add_u32 s%d, s%d, %d" % (s_t0, s_t0, WS_KVZ))
    a("v_add3_u32 v%d, v%d, v%d, s%d" % (vT0, vT0, vT1, s_t0))
    for i in range(4):
        for j in range(2):
            a("buffer_load_dwordx4 v[%d:%d], v%d, s[%d:%d], 0 offen offset:%d %s" % (KL + 8 * i + 4 * j, KL + 8 * i + 4 * j + 3, vT0, sWS, sWS + 3, 1088 * i + 16 * j, sc))
    a("s_lshl_b32 s%d, s%d, 12" % (s_t0, s_w))
    a("s_add_u32 s%d, s%d, %d" % (s_t0, s_t0, KVF))
    a("v_lshlrev_b32 v%d, 4, v%d" % (vT1, vLane))
    a("v_add_u32 v%d, s%d, v%d" % (vT1, s_t0, vT1))
    for i in range(4):
        a("s_waitcnt vmcnt(%d)" % (6 - 2 * i))
        P = 96 + 4 * i
        for k in range(4):
            a("v_cvt_pk_bf16_f32 v%d, v%d, v%d" % (P + k, KL + 8 * i + 2 * k, KL + 8 * i + 2 * k + 1))
        a("ds_write_b128 v%d, v[%d:%d] offset:%d" % (vT1, P, P + 3, 1024 * i))
    vKr, vWr = 8, 9
    a("v_lshlrev_b32 v%d, 4, v%d" % (vKr, vLane))
    a("s_lshl_b32 s%d, s%d, 14" % (s_t0, s_hh))
    a("s_add_u32 s%d, s%d, %d" % (s_t0, s_t0, KVF))
    a("v_add_u32 v%d, s%d, v%d" % (vKr, s_t0, vKr))
    vWr1 = 10
    a("v_lshrrev_b32 v%d, 5, v%d" % (vT1, vLane))
    a("v_bfe_u32 v%d, v%d, 2, 2" % (vT0, vLane))
    a("v_lshlrev_b32 v%d, 2, v%d" % (vT2, vT1))
    a("v_add_u32 v%d, v%d, v%d" % (vT2, vT2, vT0))
    a("v_lshlrev_b32 v%d, 7, v%d" % (vWr, vT2))
    a("v_lshrrev_b32 v%d, 1, v%d" % (vT0, vT0))
    a("v_lshlrev_b32 v%d, 6, v%d" % (vT3, vT0))
    a("v_bfe_u32 v%d, v%d, 4, 1" % (vT2, vLane))
    a("v_lshlrev_b32 v%d, 5, v%d" % (vT2, vT2))
    a("v_add_u32 v%d, v%d, v%d" % (vWr, vWr, vT2))
    a("v_and_b32 v%d, 3, v%d" % (vT2, vLane))
    a("v_lshlrev_b32 v%d, 3, v%d" % (vT2, vT2))
    a("v_add_u32 v%d, v%d, v%d" % (vWr, vWr, vT2))
    a("s_lshl_b32 s%d, s%d, 15" % (s_t0, s_hh))
    a("v_add_u32 v%d, s%d, v%d" % (vWr, s_t0, vWr))
    a("v_xor_b32 v%d, 64, v%d" % (vWr1, vT3))
    a("v_add_u32 v%d, v%d, v%d" % (vWr1, vWr1, vWr))
    a("v_add_u32 v%d, v%d, v%d" % (vWr, vWr, vT3))
    O0, O1 = 12, 28
    D1 = [44, 96]
    KA = [60, 112]
    WA = [64, 72]
    OB = [80, 84]
    vR = 88
    for i in range(16):
        a("v_mov_b32 v%d, 0" % (O0 + i)); a("v_mov_b32 v%d, 0" % (O1 + i))
    a("s_waitcnt vmcnt(0) lgkmcnt(0)")
    a("s_barrier")
    stamp(a, S, 1 if first else 5)

    def rd_kv(h):
        a("ds_read_b128 v[%d:%d], v%d offset:%d" % (KA[h & 1], KA[h & 1] + 3, vKr, 1024 * h))

    def rd_wo(h):
        W_ = WA[h & 1]
        for jt, vb in ((0, vWr), (1, vWr1)):
            for j in range(2):
                a("ds_read_b64_tr_b16 v[%d:%d], v%d offset:%d" % (W_ + 4 * jt + 2 * j, W_ + 4 * jt + 2 * j + 1, vb, WO + (16 * h + 8 * j) * 128))

    def num(h):
        a("v_mfma_f32_32x32x16_bf16 v[%d:%d], v[%d:%d], v[%d:%d], 0" % (D1[h & 1], D1[h & 1] + 15, KA[h & 1], KA[h & 1] + 3, PQF + 4 * h, PQF + 4 * h + 3))

    rd_kv(0)
    a("s_waitcnt lgkmcnt(0)")
    num(0)
    rd_kv(1); rd_wo(0)
    for h in range(16):
        if h + 1 < 16:
            a("s_waitcnt lgkmcnt(4)")
            num(h + 1)
        D = D1[h & 1]
        a("v_add_f32 v%d, 0x%x, v%d" % (vR, EPS, D + 8))
        a("v_rcp_f32 v%d, v%d" % (vR, vR))
        for i in range(8):
            a("v_mul_f32 v%d, v%d, v%d" % (D + i, D + i, vR))
        B_ = OB[h & 1]
        for i in range(4):
            a("v_cvt_pk_bf16_f32 v%d, v%d, v%d" % (B_ + i, D + 2 * i, D + 2 * i + 1))
        a("s_waitcnt lgkmcnt(0)")
        if h + 2 < 16:
            rd_kv(h + 2)
        W_ = WA[h & 1]
        a("v_mfma_f32_32x32x16_bf16 v[%d:%d], v[%d:%d], v[%d:%d], v[%d:%d]" % (O0, O0 + 15, W_, W_ + 3, B_, B_ + 3, O0, O0 + 15))
        a("v_mfma_f32_32x32x16_bf16 v[%d:%d], v[%d:%d], v[%d:%d], v[%d:%d]" % (O1, O1 + 15, W_ + 4, W_ + 7, B_, B_ + 3, O1, O1 + 15))
        if h + 1 < 16:
            rd_wo(h + 1)
    stamp(a, S, 2 if first else 6)
    a("s_lshl_b32 s%d, s%d, 12" % (s_t0, s_w))
    a("s_add_u32 s%d, s%d, %d" % (s_t0, s_t0, OST))
    a("v_lshlrev_b32 v%d, 4, v%d" % (vT0, vLane))
    a("v_add_u32 v%d, s%d, v%d" % (vT0, s_t0, vT0))
    lA, lB = a.newlabel("Lx"), a.newlabel("Lx")
    a("s_cmp_eq_u32 s%d, 0" % s_hh)
    a("s_cbranch_scc0 %s" % lA)
    for q in range(4):
        a("ds_write_b128 v%d, v[%d:%d] offset:%d" % (vT0, O1 + 4 * q, O1 + 4 * q + 3, 1024 * q))
    a("s_branch %s" % lB)
    a.label(lA)
    for q in range(4):
        a("ds_write_b128 v%d, v[%d:%d] offset:%d" % (vT0, O0 + 4 * q, O0 + 4 * q + 3, 1024 * q))
    a("s_waitcnt lgkmcnt(0)")
    for i in range(16):
        a("v_mov_b32 v%d, v%d" % (O0 + i, O1 + i))
    a.label(lB)
    a("s_waitcnt lgkmcnt(0)")
    a("s_barrier")
    a("s_xor_b32 s%d, s%d, 4" % (s_t0, s_w))
    a("s_lshl_b32 s%d, s%d, 12" % (s_t0, s_t0))
    a("s_add_u32 s%d, s%d, %d" % (s_t0, s_t0, OST))
    a("v_lshlrev_b32 v%d, 4, v%d" % (vT0, vLane))
    a("v_add_u32 v%d, s%d, v%d" % (vT0, s_t0, vT0))
    for q in range(4):
        a("ds_read_b128 v[%d:%d], v%d offset:%d" % (O1 + 4 * q, O1 + 4 * q + 3, vT0, 1024 * q))
    a("s_waitcnt lgkmcnt(0)")
    for i in range(16):
        a("v_add_f32 v%d, v%d, v%d" % (O0 + i, O0 + i, O1 + i))
    ST = 0
    for q in range(4):
        a("v_cvt_pk_bf16_f32 v%d, v%d, v%d" % (O1 + 2 * q, O0 + 4 * q, O0 + 4 * q + 1))
        a("v_cvt_pk_bf16_f32 v%d, v%d, v%d" % (O1 + 2 * q + 1, O0 + 4 * q + 2, O0 + 4 * q + 3))
    a("v_and_b32 v%d, 31, v%d" % (vT0, vLane))
    a("s_lshl_b32 s%d, s%d, 5" % (s_t0, s_rg))
    a("v_add_u32 v%d, s%d, v%d" % (vT0, s_t0, vT0))
    a("v_mul_u32_u24 v%d, 144, v%d" % (vT0, vT0))
    a("v_lshrrev_b32 v%d, 5, v%d" % (vT1, vLane))
    a("v_lshlrev_b32 v%d, 3, v%d" % (vT1, vT1))
    a("s_lshl_b32 s%d, s%d, 6" % (s_t0, s_hh))
    a("v_add3_u32 v%d, v%d, v%d, s%d" % (vT0, vT0, vT1, s_t0))
    for q in range(4):
        a("ds_write_b64 v%d, v[%d:%d] offset:%d" % (vT0, O1 + 2 * q, O1 + 2 * q + 1, ST + 16 * q))
    a("s_waitcnt lgkmcnt(0)")
    a("s_barrier")
    a("v_lshrrev_b32 v%d, 3, v%d" % (vT0, vLane))
    a("s_lshl_b32 s%d, s%d, 4" % (s_t0, s_w))
    a("v_add_u32 v%d, s%d, v%d" % (vT0, s_t0, vT0))
    a("v_and_b32 v%d, 7, v%d" % (vT1, vLane))
    a("v_lshlrev_b32 v%d, 4, v%d" % (vT1, vT1))
    a("v_mul_u32_u24 v%d, 144, v%d" % (vT2, vT0))
    a("v_add_u32 v%d, v%d, v%d" % (vT2, vT2, vT1))
    a("ds_read_b128 v[44:47], v%d offset:%d" % (vT2, ST))
    a("ds_read_b128 v[48:51], v%d offset:%d" % (vT2, ST + 8 * 144))
    a("s_lshl_b32 s%d, s%d, 7" % (s_t0, s_rb))
    a("v_add_u32 v%d, s%d, v%d" % (vT0, s_t0, vT0))
    a("v_lshlrev_b32 v%d, 11, v%d" % (vT0, vT0))
    a("s_lshl_b32 s%d, s%d, 7" % (s_t0, s_jb))
    a("s_add_u32 s%d, s%d, 1024" % (s_t0, s_t0))
    a("v_add3_u32 v%d, v%d, v%d, s%d" % (vT0, vT0, vT1, s_t0))
    a("s_mov_b32 s%d, 16384" % s_off)
    a("s_waitcnt lgkmcnt(1)")
    a("buffer_store_dwordx4 v[44:47], v%d, s[%d:%d], 0 offen" % (vT0, sOUT, sOUT + 3))
    a("s_waitcnt lgkmcnt(0)")
    a("buffer_store_dwordx4 v[48:51], v%d, s[%d:%d], s%d offen" % (vT0, sOUT, sOUT + 3, s_off))
    stamp(a, S, 3 if first else 7)
```

```python
from asmdsl import Asm
from partB import srd, phi, LOG2E, EPS

WS_KV = 0
WS_Z = 32768
KVZ_BYTES = 32768 + 2048
WS_FLAG = 65536
WS_PQ = 1 << 20
SLOT = 32768
STAMP_BASE = 70
MAGIC = 0x5a17c0de


def stamp(a, S, i):
    if S.get("stamps"):
        a("s_memtime s[%d:%d]" % (STAMP_BASE + 2 * i, STAMP_BASE + 2 * i + 1))


def emit_B(a: Asm, S):
    ka, s_rb, s_hq, s_idx = S["ka"], S["rb"], S["hq"], S["idx"]
    s_w, s_rg, s_ch = 44, 45, 46
    sX, sW, sWS, sDBG = 28, 32, 36, 40
    s_t0, s_t1, s_m0x, s_m0w, s_off, s_rot = 47, 48, 49, 50, 51, 58
    sWO, sOUT = 60, 64
    vLane = 1
    vT0, vT1, vT2, vT3 = 3, 4, 5, 6
    vXs0, vXs1, vWs, vWOs = 7, 8, 9, 2
    vXr = 10
    vWr = 14
    vXc = 15
    vWc = 19
    WF = 20
    AK, AV, AQ = 52, 68, 84
    TMP = 100
    XF = 128
    stamp(a, S, 0)
    a("s_load_dwordx8 s[16:23], s[%d:%d], 72" % (ka, ka + 1))
    a("s_load_dwordx4 s[24:27], s[%d:%d], 104" % (ka, ka + 1))
    a("v_and_b32 v1, 63, v0")
    a("v_lshrrev_b32 v2, 6, v0")
    a("v_readfirstlane_b32 s44, v2")
    a("s_and_b32 s45, s44, 3")
    a("s_lshr_b32 s46, s44, 2")
    a("s_add_u32 s%d, s%d, s%d" % (s_rot, s_hq, s_rb))
    a("s_and_b32 s%d, s%d, 3" % (s_rot, s_rot))
    a("s_lshl_b32 s%d, s%d, 1" % (s_rot, s_rot))
    a("v_lshrrev_b32 v%d, 3, v%d" % (vT0, vLane))
    a("v_and_b32 v%d, 7, v%d" % (vT1, vLane))
    a("v_lshrrev_b32 v%d, 1, v%d" % (vT2, vT0))
    a("v_xor_b32 v%d, v%d, v%d" % (vT2, vT2, vT1))
    a("s_lshl_b32 s%d, s%d, 7" % (s_t0, s_rb))
    a("s_lshl_b32 s%d, s%d, 4" % (s_t1, s_w))
    a("s_add_u32 s%d, s%d, s%d" % (s_t0, s_t0, s_t1))
    a("v_add_u32 v%d, s%d, v%d" % (vT3, s_t0, vT0))
    a("v_lshlrev_b32 v%d, 10, v%d" % (vT3, vT3))
    a("v_lshlrev_b32 v%d, 4, v%d" % (vXs0, vT2))
    a("v_add_u32 v%d, v%d, v%d" % (vXs0, vXs0, vT3))
    a("v_xor_b32 v%d, 4, v%d" % (vT2, vT2))
    a("v_lshlrev_b32 v%d, 4, v%d" % (vXs1, vT2))
    a("v_add_u32 v%d, v%d, v%d" % (vXs1, vXs1, vT3))
    a("v_add_u32 v%d, 8192, v%d" % (vXs1, vXs1))
    a("v_bfe_u32 v%d, v%d, 1, 1" % (vT2, vT0))
    a("v_lshlrev_b32 v%d, 2, v%d" % (vT2, vT2))
    a("v_xor_b32 v%d, v%d, v%d" % (vT2, vT2, vT1))
    a("v_lshlrev_b32 v%d, 4, v%d" % (vT2, vT2))
    a("s_lshl_b32 s%d, s%d, 3" % (s_t1, s_w))
    a("v_add_u32 v%d, s%d, v%d" % (vT3, s_t1, vT0))
    a("v_lshlrev_b32 v%d, 10, v%d" % (vWOs, vT3))
    a("v_mul_u32_u24 v%d, 3072, v%d" % (vT3, vT3))
    a("s_lshl_b32 s%d, s%d, 7" % (s_t1, s_hq))
    a("v_add3_u32 v%d, v%d, v%d, s%d" % (vWs, vT3, vT2, s_t1))
    a("v_add3_u32 v%d, v%d, v%d, s%d" % (vWOs, vWOs, vT2, s_t1))
    a("s_lshl_b32 s%d, s%d, 11" % (s_m0x, s_w))
    a("s_lshl_b32 s%d, s%d, 10" % (s_m0w, s_w))
    a("s_waitcnt lgkmcnt(0)")
    srd(a, sX, 16, 17, 2048 * 512 * 2)
    srd(a, sW, 18, 19, 512 * 1536 * 2)
    srd(a, sWS, 26, 27, 1 << 28)
    srd(a, sDBG, 24, 25, 256)
    srd(a, sWO, 20, 21, 512 * 512 * 2)
    srd(a, sOUT, 22, 23, 2048 * 1024 * 2)

    s_cc, s_xo, s_wo = 59, 68, 69

    def chunk_offsets(c):
        a("s_add_u32 s%d, s%d, %d" % (s_cc, s_rot, c))
        a("s_and_b32 s%d, s%d, 7" % (s_cc, s_cc))
        a("s_lshl_b32 s%d, s%d, 7" % (s_xo, s_cc))
        a("s_mul_i32 s%d, s%d, 196608" % (s_wo, s_cc))

    def dma(m0base, m0off, vaddr, srdreg, so):
        a("s_add_u32 m0, s%d, %d" % (m0base, m0off))
        a("buffer_load_dwordx4 v%d, s[%d:%d], %s offen lds" % (vaddr, srdreg, srdreg + 3, so))

    def fill_ops(i):
        b = (i % 5) * SLOT if i < 11 else 2 * SLOT
        ops = []
        if i < 8:
            def o0(): chunk_offsets(i); dma(s_m0x, b, vXs0, sX, "s%d" % s_xo)
            def o1(): dma(s_m0x, b + 1024, vXs1, sX, "s%d" % s_xo)
            def o2():
                a("s_add_u32 s%d, s%d, 1024" % (s_off, s_wo)); dma(s_m0w, b + 16384, vWs, sW, "s%d" % s_off)
            def o3():
                a("s_add_u32 s%d, s%d, 2048" % (s_off, s_wo)); dma(s_m0w, b + 24576, vWs, sW, "s%d" % s_off)
            ops = [o0, o1, o2, o3]
        elif i < 10:
            half = i - 8
            for j in range(4):
                def oq(j=j):
                    chunk_offsets(4 * half + j); dma(s_m0w, b + 8192 * j, vWs, sW, "s%d" % s_wo)
                ops.append(oq)
        else:
            half = i - 10
            for j in range(4):
                def ow(j=j):
                    a("s_mov_b32 s%d, %d" % (s_off, (4 * half + j) * 65536)); dma(s_m0w, b + 8192 * j, vWOs, sWO, "s%d" % s_off)
                ops.append(ow)
        return ops

    for i in range(3):
        for o in fill_ops(i):
            o()
    a("v_and_b32 v%d, 31, v%d" % (vT0, vLane))
    a("v_lshrrev_b32 v%d, 5, v%d" % (vT1, vLane))
    a("v_bfe_u32 v%d, v%d, 1, 3" % (vT2, vLane))
    a("s_lshl_b32 s%d, s%d, 5" % (s_t0, 45))
    a("v_add_u32 v%d, s%d, v%d" % (vT3, s_t0, vT0))
    a("v_lshlrev_b32 v%d, 7, v%d" % (vT3, vT3))
    for i in range(4):
        a("v_add_u32 v%d, %d, v%d" % (vXr + i, 2 * i, vT1))
        a("v_xor_b32 v%d, v%d, v%d" % (vXr + i, vXr + i, vT2))
        a("v_lshlrev_b32 v%d, 4, v%d" % (vXr + i, vXr + i))
        a("v_add_u32 v%d, v%d, v%d" % (vXr + i, vXr + i, vT3))
    a("v_bfe_u32 v%d, v%d, 2, 2" % (vT0, vLane))
    a("v_lshlrev_b32 v%d, 3, v%d" % (vT2, vT1))
    a("v_add_u32 v%d, v%d, v%d" % (vT2, vT2, vT0))
    a("v_lshlrev_b32 v%d, 7, v%d" % (vWr, vT2))
    a("v_lshrrev_b32 v%d, 1, v%d" % (vT0, vT0))
    a("v_xor_b32 v%d, s%d, v%d" % (vT0, s_ch, vT0))
    a("v_lshlrev_b32 v%d, 6, v%d" % (vT0, vT0))
    a("v_add_u32 v%d, v%d, v%d" % (vWr, vWr, vT0))
    a("v_bfe_u32 v%d, v%d, 4, 1" % (vT0, vLane))
    a("v_lshlrev_b32 v%d, 5, v%d" % (vT0, vT0))
    a("v_and_b32 v%d, 3, v%d" % (vT2, vLane))
    a("v_lshlrev_b32 v%d, 3, v%d" % (vT2, vT2))
    a("v_add3_u32 v%d, v%d, v%d, v%d" % (vWr, vWr, vT0, vT2))
    for i in range(16):
        a("v_mov_b32 v%d, 0" % (AK + i)); a("v_mov_b32 v%d, 0" % (AV + i)); a("v_mov_b32 v%d, 0" % (AQ + i))

    def mf(D, A_, B_):
        a("v_mfma_f32_32x32x16_bf16 v[%d:%d], v[%d:%d], v[%d:%d], v[%d:%d]" % (D, D + 15, A_, A_ + 3, B_, B_ + 3, D, D + 15))

    for c in range(8):
        slot = c % 5
        a("s_waitcnt vmcnt(8)")
        a("s_barrier")
        if c == 0:
            stamp(a, S, 1)
        for i in range(4):
            a("v_add_u32 v%d, %d, v%d" % (vXc + i, slot * SLOT, vXr + i))
        a("v_add_u32 v%d, %d, v%d" % (vWc, slot * SLOT, vWr))
        fo = fill_ops(c + 3)

        def rd(i):
            X = XF + 16 * c + 4 * i
            F = WF + 8 * i
            a("ds_read_b128 v[%d:%d], v%d" % (X, X + 3, vXc + i))
            for mat, base in ((0, 16384), (1, 24576)):
                for j in range(2):
                    a("ds_read_b64_tr_b16 v[%d:%d], v%d offset:%d" % (F + 4 * mat + 2 * j, F + 4 * mat + 2 * j + 1, vWc, base + (16 * i + 4 * j) * 128))

        rd(0); rd(1)
        for i in range(4):
            a("s_waitcnt lgkmcnt(%d)" % (5 if i < 3 else 0))
            X = XF + 16 * c + 4 * i
            F = WF + 8 * i
            mf(AK, X, F)
            mf(AV, X, F + 4)
            if i + 2 < 4:
                rd(i + 2)
            fo[i]()
    stamp(a, S, 2)
    PKp, PVp = TMP, TMP + 8
    t4 = TMP + 16
    phi(a, AK, 16, t4)
    for i in range(8):
        a("v_cvt_pk_bf16_f32 v%d, v%d, v%d" % (PKp + i, AK + 2 * i, AK + 2 * i + 1))
        a("v_cvt_pk_bf16_f32 v%d, v%d, v%d" % (PVp + i, AV + 2 * i, AV + 2 * i + 1))
    vZ = TMP + 20
    a("v_mov_b32 v%d, 0" % vZ)
    a("v_mov_b32 v%d, 0x3f803f80" % (TMP + 21))
    DKV = AK
    a("v_mfma_f32_32x32x16_bf16 v[%d:%d], v[%d:%d], v[%d:%d], 0" % (DKV, DKV + 15, PKp, PKp + 3, PVp, PVp + 3))
    a("v_mfma_f32_32x32x16_bf16 v[%d:%d], v[%d:%d], v[%d:%d], v[%d:%d]" % (DKV, DKV + 15, PKp + 4, PKp + 7, PVp + 4, PVp + 7, DKV, DKV + 15))
    for i in range(8):
        a("v_dot2c_f32_bf16 v%d, v%d, v%d" % (vZ, PKp + i, TMP + 21))
    RED = 1 * SLOT
    ZRED = RED + 16384
    s_msk = 52
    a("v_bfe_u32 v%d, v%d, 4, 1" % (vT0, vLane))
    a("v_cmp_eq_u32 s[%d:%d], 1, v%d" % (s_msk, s_msk + 1, vT0))
    SEL = PVp
    a("s_lshl_b32 s%d, s%d, 8" % (s_t0, s_w))
    a("s_add_u32 s%d, s%d, %d" % (s_t0, s_t0, ZRED))
    a("v_lshlrev_b32 v%d, 2, v%d" % (vT1, vLane))
    a("v_add_u32 v%d, s%d, v%d" % (vT1, s_t0, vT1))
    a("ds_write_b32 v%d, v%d" % (vT1, vZ))
    a("s_lshl_b32 s%d, s%d, 11" % (s_t0, s_w))
    a("s_add_u32 s%d, s%d, %d" % (s_t0, s_t0, RED))
    a("v_lshlrev_b32 v%d, 5, v%d" % (vT0, vLane))
    a("v_add_u32 v%d, s%d, v%d" % (vT0, s_t0, vT0))
    for i in range(8):
        a("v_cndmask_b32 v%d, v%d, v%d, s[%d:%d]" % (SEL + i, DKV + i, DKV + 8 + i, s_msk, s_msk + 1))
    a("ds_write_b128 v%d, v[%d:%d]" % (vT0, SEL, SEL + 3))
    a("ds_write_b128 v%d, v[%d:%d] offset:16" % (vT0, SEL + 4, SEL + 7))
    vG = TMP + 22
    a("v_and_b32 v%d, 7, v%d" % (vT2, vLane))
    a("v_lshlrev_b32 v%d, 2, v%d" % (vT2, vT2))
    lg = a.newlabel("Lg")
    a.label(lg)
    a("buffer_load_dword v%d, v%d, s[%d:%d], 0 offen sc1" % (vG, vT2, sDBG, sDBG + 3))
    a("s_waitcnt vmcnt(0)")
    a("v_cmp_ne_u32 vcc, 1, v%d" % vG)
    a("s_cbranch_vccnz %s" % lg)
    a("s_waitcnt lgkmcnt(0)")
    a("s_barrier")
    for o in fill_ops(11):
        o()
    s_hp, s_hf = 54, 55
    a("s_bfe_u32 s%d, s%d, 0x10001" % (s_hp, s_w))
    a("s_and_b32 s%d, s%d, 1" % (s_hf, s_w))
    a("s_lshl_b32 s%d, s%d, 5" % (s_t0, s_hf))
    a("s_lshl_b32 s%d, s%d, 4" % (s_t1, s_hp))
    a("s_add_u32 s%d, s%d, s%d" % (s_t0, s_t0, s_t1))
    a("s_lshl_b32 s%d, s%d, 5" % (s_t0, s_t0))
    a("s_lshl_b32 s%d, s%d, 13" % (s_t1, s_ch))
    a("s_add_u32 s%d, s%d, s%d" % (s_t0, s_t0, s_t1))
    a("s_add_u32 s%d, s%d, %d" % (s_t0, s_t0, RED))
    a("v_lshlrev_b32 v%d, 2, v%d" % (vT0, vLane))
    a("v_add_u32 v%d, s%d, v%d" % (vT0, s_t0, vT0))
    R_ = TMP
    for row in range(2):
        for g in range(4):
            a("ds_read_b32 v%d, v%d offset:%d" % (R_ + 4 * row + g, vT0, 2048 * g + 256 * row))
    a("v_and_b32 v%d, 31, v%d" % (vT1, vLane))
    a("v_lshlrev_b32 v%d, 2, v%d" % (vT1, vT1))
    a("s_lshl_b32 s%d, s%d, 10" % (s_t1, s_ch))
    a("s_add_u32 s%d, s%d, %d" % (s_t1, s_t1, ZRED))
    a("v_add_u32 v%d, s%d, v%d" % (vT1, s_t1, vT1))
    for g in range(4):
        for hf in range(2):
            a("ds_read_b32 v%d, v%d offset:%d" % (R_ + 8 + 2 * g + hf, vT1, 256 * g + 128 * hf))
    a("s_lshl_b32 s%d, s%d, 2" % (s_t0, s_hq))
    a("s_lshl_b32 s%d, s%d, 1" % (s_t1, s_ch))
    a("s_add_u32 s%d, s%d, s%d" % (s_t0, s_t0, s_t1))
    a("s_add_u32 s%d, s%d, s%d" % (s_t1, s_t0, s_hp))
    a("s_lshl_b32 s%d, s%d, 10" % (s_t1, s_t1))
    a("s_lshl_b32 s%d, s%d, 9" % (s_off, s_hf))
    a("s_add_u32 s%d, s%d, s%d" % (s_t1, s_t1, s_off))
    a("v_lshlrev_b32 v%d, 2, v%d" % (vT2, vLane))
    a("v_add_u32 v%d, s%d, v%d" % (vT2, s_t1, vT2))
    a("v_bfe_u32 v%d, v%d, 4, 1" % (vT3, vLane))
    a("v_add_u32 v%d, s%d, v%d" % (vT3, s_t0, vT3))
    a("v_lshlrev_b32 v%d, 6, v%d" % (vT3, vT3))
    a("v_bfe_u32 v%d, v%d, 2, 1" % (R_ + 16, vLane))
    a("v_lshlrev_b32 v%d, 5, v%d" % (R_ + 16, R_ + 16))
    a("v_add_u32 v%d, v%d, v%d" % (vT3, vT3, R_ + 16))
    a("v_and_b32 v%d, 3, v%d" % (R_ + 16, vLane))
    a("v_bfe_u32 v%d, v%d, 3, 1" % (R_ + 17, vLane))
    a("v_lshlrev_b32 v%d, 2, v%d" % (R_ + 17, R_ + 17))
    a("v_add_u32 v%d, v%d, v%d" % (R_ + 16, R_ + 16, R_ + 17))
    a("v_lshlrev_b32 v%d, 2, v%d" % (R_ + 16, R_ + 16))
    a("v_add_u32 v%d, v%d, v%d" % (vT3, vT3, R_ + 16))
    a("v_add_u32 v%d, %d, v%d" % (vT3, WS_Z, vT3))
    a("s_waitcnt lgkmcnt(8)")
    for row in range(2):
        b = R_ + 4 * row
        a("v_add_f32 v%d, v%d, v%d" % (b, b, b + 1))
        a("v_add_f32 v%d, v%d, v%d" % (b + 2, b + 2, b + 3))
        a("v_add_f32 v%d, v%d, v%d" % (b, b, b + 2))
    for row in range(2):
        a("buffer_atomic_add_f32 v%d, v%d, s[%d:%d], 0 offen offset:%d" % (R_ + 4 * row, vT2, sWS, sWS + 3, WS_KV + 256 * row))
    a("s_waitcnt lgkmcnt(0)")
    b = R_ + 8
    for st in (1, 2, 4):
        for k in range(0, 8, 2 * st):
            a("v_add_f32 v%d, v%d, v%d" % (b + k, b + k, b + k + st))
    lz = a.newlabel("Lz")
    a("s_and_b32 s%d, s%d, 3" % (s_t0, s_w))
    a("s_cmp_eq_u32 s%d, 0" % s_t0)
    a("s_cbranch_scc0 %s" % lz)
    a("s_mov_b64 s[56:57], exec")
    a("s_mov_b32 exec_lo, -1")
    a("s_mov_b32 exec_hi, 0")
    a("buffer_atomic_add_f32 v%d, v%d, s[%d:%d], 0 offen" % (b, vT3, sWS, sWS + 3))
    a("s_mov_b64 exec, s[56:57]")
    a.label(lz)
    stamp(a, S, 3)
    for half in range(2):
        slot = 3 + half
        a("v_add_u32 v%d, %d, v%d" % (vWc, slot * SLOT, vWr))

        def rdq(st):
            F = WF + 4 * (st % 8)
            j4, i = st >> 2, st & 3
            for j in range(2):
                a("ds_read_b64_tr_b16 v[%d:%d], v%d offset:%d" % (F + 2 * j, F + 2 * j + 1, vWc, 8192 * j4 + (16 * i + 4 * j) * 128))
        for st in range(4):
            rdq(st)
        for st in range(16):
            a("s_waitcnt lgkmcnt(%d)" % (min(6, 2 * (15 - st))))
            F = WF + 4 * (st % 8)
            X = XF + 64 * half + 4 * st
            mf(AQ, F, X)
            if st + 4 < 16:
                rdq(st + 4)
    phi(a, AQ, 16, t4)
    PQ = TMP
    for i in range(8):
        a("v_cvt_pk_bf16_f32 v%d, v%d, v%d" % (PQ + i, AQ + 2 * i, AQ + 2 * i + 1))
    a("s_lshl_b32 s%d, s%d, 2" % (s_t0, s_hq))
    a("s_lshl_b32 s%d, s%d, 1" % (s_t1, s_ch))
    a("s_add_u32 s%d, s%d, s%d" % (s_t0, s_t0, s_t1))
    a("s_lshl_b32 s%d, s%d, 6" % (s_t0, s_t0))
    a("s_lshl_b32 s%d, s%d, 2" % (s_t1, s_rb))
    a("s_add_u32 s%d, s%d, s%d" % (s_t0, s_t0, s_t1))
    a("s_add_u32 s%d, s%d, s%d" % (s_t0, s_t0, 45))
    a("s_lshl_b32 s%d, s%d, 10" % (s_t0, s_t0))
    a("s_add_u32 s%d, s%d, %d" % (s_t0, s_t0, WS_PQ))
    a("v_lshlrev_b32 v%d, 4, v%d" % (vT2, vLane))
    a("v_add_u32 v%d, s%d, v%d" % (vT2, s_t0, vT2))
    a("buffer_store_dwordx4 v[%d:%d], v%d, s[%d:%d], 0 offen sc1" % (PQ, PQ + 3, vT2, sWS, sWS + 3))
    a("s_mov_b32 s%d, 65536" % s_off)
    a("buffer_store_dwordx4 v[%d:%d], v%d, s[%d:%d], s%d offen sc1" % (PQ + 4, PQ + 7, vT2, sWS, sWS + 3, s_off))
    stamp(a, S, 4)
    a("s_waitcnt vmcnt(0)")
    a("s_barrier")
    lw = a.newlabel("Lw")
    a("s_cmp_eq_u32 s%d, 0" % s_w)
    a("s_cbranch_scc0 %s" % lw)
    a("s_lshl_b32 s%d, s%d, 3" % (s_t0, s_rb))
    a("s_add_u32 s%d, s%d, s%d" % (s_t0, s_t0, s_hq))
    a("s_lshl_b32 s%d, s%d, 6" % (s_t0, s_t0))
    a("s_add_u32 s%d, s%d, %d" % (s_t0, s_t0, WS_FLAG))
    a("v_mov_b32 v%d, s%d" % (vT0, s_t0))
    a("v_mov_b32 v%d, 0x%x" % (vT1, MAGIC))
    a("s_mov_b64 s[56:57], exec")
    a("s_mov_b64 exec, 1")
    a("buffer_store_dword v%d, v%d, s[%d:%d], 0 offen sc1" % (vT1, vT0, sWS, sWS + 3))
    a("s_mov_b64 exec, s[56:57]")
    a("v_lshlrev_b32 v%d, 6, v%d" % (vT0, vLane))
    a("v_add_u32 v%d, %d, v%d" % (vT0, WS_FLAG, vT0))
    a("s_mov_b32 s%d, 4096" % s_off)
    a("s_mov_b32 s%d, 0x%x" % (s_t0, MAGIC))
    lp = a.newlabel("Lp")
    a.label(lp)
    a("buffer_load_dword v%d, v%d, s[%d:%d], 0 offen sc1" % (vT2, vT0, sWS, sWS + 3))
    a("buffer_load_dword v%d, v%d, s[%d:%d], s%d offen sc1" % (vT3, vT0, sWS, sWS + 3, s_off))
    a("s_waitcnt vmcnt(0)")
    a("v_cmp_ne_u32 vcc, s%d, v%d" % (s_t0, vT2))
    a("v_cmp_ne_u32 s[56:57], s%d, v%d" % (s_t0, vT3))
    a("s_or_b64 vcc, vcc, s[56:57]")
    a("s_cbranch_vccnz %s" % lp)
    a.label(lw)
    a("s_barrier")
    stamp(a, S, 5)

    s_hh = 46
    WO = 0
    KVF = 3 * SLOT
    OST = 4 * SLOT
    PQF = 128
    a("s_lshl_b32 s%d, s%d, 10" % (s_t0, s_hh))
    a("s_lshl_b32 s%d, s%d, 2" % (s_t1, s_rb))
    a("s_add_u32 s%d, s%d, s%d" % (s_t0, s_t0, s_t1))
    a("s_add_u32 s%d, s%d, s%d" % (s_t0, s_t0, 45))
    a("s_lshl_b32 s%d, s%d, 10" % (s_t0, s_t0))
    a("s_add_u32 s%d, s%d, %d" % (s_t0, s_t0, WS_PQ))
    KL = 64
    a("v_lshlrev_b32 v%d, 4, v%d" % (vT0, vLane))
    a("s_lshl_b32 s%d, s%d, 12" % (s_t1, s_w))
    a("v_add_u32 v%d, s%d, v%d" % (vT1, s_t1, vT0))
    for i in range(4):
        a("buffer_load_dwordx4 v[%d:%d], v%d, s[%d:%d], 0 offen offset:%d sc1" % (KL + 4 * i, KL + 4 * i + 3, vT1, sWS, sWS + 3, WS_KV + 1024 * i))
    ZL = 80
    a("s_and_b32 s%d, s%d, 1" % (s_t1, s_w))
    a("s_lshl_b32 s%d, s%d, 10" % (s_t1, s_t1))
    a("s_add_u32 s%d, s%d, %d" % (s_t1, s_t1, WS_Z))
    a("v_add_u32 v%d, s%d, v%d" % (vT2, s_t1, vT0))
    a("buffer_load_dwordx4 v[%d:%d], v%d, s[%d:%d], 0 offen sc1" % (ZL, ZL + 3, vT2, sWS, sWS + 3))
    a("v_add_u32 v%d, s%d, v%d" % (vT0, s_t0, vT0))
    for i in range(16):
        if i == 0:
            so = "0"
        else:
            a("s_mov_b32 s%d, %d" % (s_off, i * 65536)); so = "s%d" % s_off
        a("buffer_load_dwordx4 v[%d:%d], v%d, s[%d:%d], %s offen sc1" % (PQF + 4 * i, PQF + 4 * i + 3, vT0, sWS, sWS + 3, so))
    a("v_lshrrev_b32 v%d, 5, v%d" % (vT1, vLane))
    a("v_lshlrev_b32 v%d, 9, v%d" % (vT1, vT1))
    a("v_bfe_u32 v%d, v%d, 1, 4" % (vT2, vLane))
    a("v_lshlrev_b32 v%d, 4, v%d" % (vT2, vT2))
    a("v_and_b32 v%d, 1, v%d" % (vT3, vLane))
    a("v_lshlrev_b32 v%d, 3, v%d" % (vT3, vT3))
    a("v_add3_u32 v%d, v%d, v%d, v%d" % (vT1, vT1, vT2, vT3))
    a("s_lshl_b32 s%d, s%d, 12" % (s_t1, s_w))
    a("s_add_u32 s%d, s%d, %d" % (s_t1, s_t1, KVF))
    a("v_add_u32 v%d, s%d, v%d" % (vT1, s_t1, vT1))
    for i in range(4):
        a("s_waitcnt vmcnt(%d)" % (20 - i))
        a("v_cvt_pk_bf16_f32 v%d, v%d, v%d" % (96 + 2 * i, KL + 4 * i, KL + 4 * i + 1))
        a("v_cvt_pk_bf16_f32 v%d, v%d, v%d" % (97 + 2 * i, KL + 4 * i + 2, KL + 4 * i + 3))
        a("ds_write_b64 v%d, v[%d:%d] offset:%d" % (vT1, 96 + 2 * i, 97 + 2 * i, 1024 * i))
    a("s_and_b32 s%d, s%d, 1" % (s_t1, s_w))
    a("s_lshl_b32 s%d, s%d, 14" % (s_t1, s_t1))
    a("s_add_u32 s%d, s%d, %d" % (s_t1, s_t1, KVF + 256))
    a("v_lshrrev_b32 v%d, 2, v%d" % (vT2, vLane))
    a("v_lshlrev_b32 v%d, 10, v%d" % (vT2, vT2))
    a("v_bfe_u32 v%d, v%d, 1, 1" % (vT3, vLane))
    a("v_lshlrev_b32 v%d, 9, v%d" % (vT3, vT3))
    a("v_add3_u32 v%d, v%d, v%d, s%d" % (vT2, vT2, vT3, s_t1))
    a("v_and_b32 v%d, 1, v%d" % (vT3, vLane))
    a("v_lshlrev_b32 v%d, 3, v%d" % (vT3, vT3))
    a("v_add_u32 v%d, v%d, v%d" % (vT2, vT2, vT3))
    a("s_waitcnt vmcnt(16)")
    a("v_cvt_pk_bf16_f32 v104, v%d, v%d" % (ZL, ZL + 1))
    a("v_cvt_pk_bf16_f32 v105, v%d, v%d" % (ZL + 2, ZL + 3))
    lzz = a.newlabel("Lzz")
    a("s_cmp_lt_u32 s%d, 2" % s_w)
    a("s_cbranch_scc0 %s" % lzz)
    a("ds_write_b64 v%d, v[104:105]" % vT2)
    a("ds_write_b64 v%d, v[104:105] offset:64" % vT2)
    a.label(lzz)
    vKr, vWr2, vWr1 = 8, 9, 10
    a("v_lshlrev_b32 v%d, 4, v%d" % (vKr, vLane))
    a("s_lshl_b32 s%d, s%d, 14" % (s_t0, s_hh))
    a("s_add_u32 s%d, s%d, %d" % (s_t0, s_t0, KVF))
    a("v_add_u32 v%d, s%d, v%d" % (vKr, s_t0, vKr))
    a("v_lshrrev_b32 v%d, 5, v%d" % (vT1, vLane))
    a("v_bfe_u32 v%d, v%d, 2, 2" % (vT0, vLane))
    a("v_lshlrev_b32 v%d, 2, v%d" % (vT2, vT1))
    a("v_add_u32 v%d, v%d, v%d" % (vT2, vT2, vT0))
    a("v_lshlrev_b32 v%d, 7, v%d" % (vWr2, vT2))
    a("v_lshrrev_b32 v%d, 1, v%d" % (vT0, vT0))
    a("v_lshlrev_b32 v%d, 6, v%d" % (vT3, vT0))
    a("v_bfe_u32 v%d, v%d, 4, 1" % (vT2, vLane))
    a("v_lshlrev_b32 v%d, 5, v%d" % (vT2, vT2))
    a("v_add_u32 v%d, v%d, v%d" % (vWr2, vWr2, vT2))
    a("v_and_b32 v%d, 3, v%d" % (vT2, vLane))
    a("v_lshlrev_b32 v%d, 3, v%d" % (vT2, vT2))
    a("v_add_u32 v%d, v%d, v%d" % (vWr2, vWr2, vT2))
    a("s_lshl_b32 s%d, s%d, 16" % (s_t0, s_hh))
    a("v_add_u32 v%d, s%d, v%d" % (vWr2, s_t0, vWr2))
    a("v_xor_b32 v%d, 64, v%d" % (vWr1, vT3))
    a("v_add_u32 v%d, v%d, v%d" % (vWr1, vWr1, vWr2))
    a("v_add_u32 v%d, v%d, v%d" % (vWr2, vWr2, vT3))
    O0, O1 = 12, 28
    D1 = [44, 96]
    KA = [60, 112]
    WA = [64, 72]
    OB = [80, 84]
    vR = 88
    for i in range(16):
        a("v_mov_b32 v%d, 0" % (O0 + i)); a("v_mov_b32 v%d, 0" % (O1 + i))
    a("s_waitcnt lgkmcnt(0)")
    a("s_barrier")
    stamp(a, S, 6)

    def rd_kv(h):
        a("ds_read_b128 v[%d:%d], v%d offset:%d" % (KA[h & 1], KA[h & 1] + 3, vKr, 1024 * h))

    def rd_wo(h):
        W_ = WA[h & 1]
        for jt, vb in ((0, vWr2), (1, vWr1)):
            for j in range(2):
                a("ds_read_b64_tr_b16 v[%d:%d], v%d offset:%d" % (W_ + 4 * jt + 2 * j, W_ + 4 * jt + 2 * j + 1, vb, WO + (16 * h + 8 * j) * 128))

    def num(h):
        a("s_waitcnt vmcnt(%d)" % (15 - h))
        a("v_mfma_f32_32x32x16_bf16 v[%d:%d], v[%d:%d], v[%d:%d], 0" % (D1[h & 1], D1[h & 1] + 15, KA[h & 1], KA[h & 1] + 3, PQF + 4 * h, PQF + 4 * h + 3))

    rd_kv(0)
    a("s_waitcnt lgkmcnt(0)")
    num(0)
    rd_kv(1); rd_wo(0)
    for h in range(16):
        if h + 1 < 16:
            a("s_waitcnt lgkmcnt(4)")
            num(h + 1)
        D = D1[h & 1]
        a("v_add_f32 v%d, 0x%x, v%d" % (vR, EPS, D + 8))
        a("v_rcp_f32 v%d, v%d" % (vR, vR))
        for i in range(8):
            a("v_mul_f32 v%d, v%d, v%d" % (D + i, D + i, vR))
        B_ = OB[h & 1]
        for i in range(4):
            a("v_cvt_pk_bf16_f32 v%d, v%d, v%d" % (B_ + i, D + 2 * i, D + 2 * i + 1))
        a("s_waitcnt lgkmcnt(0)")
        if h + 2 < 16:
            rd_kv(h + 2)
        W_ = WA[h & 1]
        a("v_mfma_f32_32x32x16_bf16 v[%d:%d], v[%d:%d], v[%d:%d], v[%d:%d]" % (O0, O0 + 15, W_, W_ + 3, B_, B_ + 3, O0, O0 + 15))
        a("v_mfma_f32_32x32x16_bf16 v[%d:%d], v[%d:%d], v[%d:%d], v[%d:%d]" % (O1, O1 + 15, W_ + 4, W_ + 7, B_, B_ + 3, O1, O1 + 15))
        if h + 1 < 16:
            rd_wo(h + 1)
    stamp(a, S, 7)
    a("s_lshl_b32 s%d, s%d, 12" % (s_t0, s_w))
    a("s_add_u32 s%d, s%d, %d" % (s_t0, s_t0, OST))
    a("v_lshlrev_b32 v%d, 4, v%d" % (vT0, vLane))
    a("v_add_u32 v%d, s%d, v%d" % (vT0, s_t0, vT0))
    lA, lB = a.newlabel("Lx"), a.newlabel("Lx")
    a("s_cmp_eq_u32 s%d, 0" % s_hh)
    a("s_cbranch_scc0 %s" % lA)
    for q in range(4):
        a("ds_write_b128 v%d, v[%d:%d] offset:%d" % (vT0, O1 + 4 * q, O1 + 4 * q + 3, 1024 * q))
    a("s_branch %s" % lB)
    a.label(lA)
    for q in range(4):
        a("ds_write_b128 v%d, v[%d:%d] offset:%d" % (vT0, O0 + 4 * q, O0 + 4 * q + 3, 1024 * q))
    a("s_waitcnt lgkmcnt(0)")
    for i in range(16):
        a("v_mov_b32 v%d, v%d" % (O0 + i, O1 + i))
    a.label(lB)
    a("s_waitcnt lgkmcnt(0)")
    a("s_barrier")
    a("s_xor_b32 s%d, s%d, 4" % (s_t0, s_w))
    a("s_lshl_b32 s%d, s%d, 12" % (s_t0, s_t0))
    a("s_add_u32 s%d, s%d, %d" % (s_t0, s_t0, OST))
    a("v_lshlrev_b32 v%d, 4, v%d" % (vT0, vLane))
    a("v_add_u32 v%d, s%d, v%d" % (vT0, s_t0, vT0))
    for q in range(4):
        a("ds_read_b128 v[%d:%d], v%d offset:%d" % (O1 + 4 * q, O1 + 4 * q + 3, vT0, 1024 * q))
    a("s_waitcnt lgkmcnt(0)")
    for i in range(16):
        a("v_add_f32 v%d, v%d, v%d" % (O0 + i, O0 + i, O1 + i))
    ST = 0
    for q in range(4):
        a("v_cvt_pk_bf16_f32 v%d, v%d, v%d" % (O1 + 2 * q, O0 + 4 * q, O0 + 4 * q + 1))
        a("v_cvt_pk_bf16_f32 v%d, v%d, v%d" % (O1 + 2 * q + 1, O0 + 4 * q + 2, O0 + 4 * q + 3))
    a("v_and_b32 v%d, 31, v%d" % (vT0, vLane))
    a("s_lshl_b32 s%d, s%d, 5" % (s_t0, 45))
    a("v_add_u32 v%d, s%d, v%d" % (vT0, s_t0, vT0))
    a("v_mul_u32_u24 v%d, 144, v%d" % (vT0, vT0))
    a("v_lshrrev_b32 v%d, 5, v%d" % (vT1, vLane))
    a("v_lshlrev_b32 v%d, 3, v%d" % (vT1, vT1))
    a("s_lshl_b32 s%d, s%d, 6" % (s_t0, s_hh))
    a("v_add3_u32 v%d, v%d, v%d, s%d" % (vT0, vT0, vT1, s_t0))
    for q in range(4):
        a("ds_write_b64 v%d, v[%d:%d] offset:%d" % (vT0, O1 + 2 * q, O1 + 2 * q + 1, ST + 16 * q))
    a("s_waitcnt lgkmcnt(0)")
    a("s_barrier")
    a("v_lshrrev_b32 v%d, 3, v%d" % (vT0, vLane))
    a("s_lshl_b32 s%d, s%d, 4" % (s_t0, s_w))
    a("v_add_u32 v%d, s%d, v%d" % (vT0, s_t0, vT0))
    a("v_and_b32 v%d, 7, v%d" % (vT1, vLane))
    a("v_lshlrev_b32 v%d, 4, v%d" % (vT1, vT1))
    a("v_mul_u32_u24 v%d, 144, v%d" % (vT2, vT0))
    a("v_add_u32 v%d, v%d, v%d" % (vT2, vT2, vT1))
    a("ds_read_b128 v[44:47], v%d offset:%d" % (vT2, ST))
    a("ds_read_b128 v[48:51], v%d offset:%d" % (vT2, ST + 8 * 144))
    a("s_lshl_b32 s%d, s%d, 7" % (s_t0, s_rb))
    a("v_add_u32 v%d, s%d, v%d" % (vT0, s_t0, vT0))
    a("v_lshlrev_b32 v%d, 11, v%d" % (vT0, vT0))
    a("s_lshl_b32 s%d, s%d, 7" % (s_t0, s_hq))
    a("s_add_u32 s%d, s%d, 1024" % (s_t0, s_t0))
    a("v_add3_u32 v%d, v%d, v%d, s%d" % (vT0, vT0, vT1, s_t0))
    a("s_mov_b32 s%d, 16384" % s_off)
    a("s_waitcnt lgkmcnt(1)")
    a("buffer_store_dwordx4 v[44:47], v%d, s[%d:%d], 0 offen" % (vT0, sOUT, sOUT + 3))
    a("s_waitcnt lgkmcnt(0)")
    a("buffer_store_dwordx4 v[48:51], v%d, s[%d:%d], s%d offen" % (vT0, sOUT, sOUT + 3, s_off))
    stamp(a, S, 8)


def emit_zero_init(a: Asm, ka, s_hq):
    a("s_load_dwordx4 s[24:27], s[%d:%d], 104" % (ka, ka + 1))
    a("v_and_b32 v1, 63, v0")
    for r in range(4):
        a("v_mov_b32 v%d, 0" % (8 + r))
    a("s_waitcnt lgkmcnt(0)")
    srd(a, 36, 26, 27, 1 << 28)
    srd(a, 40, 24, 25, 256)
    a("v_lshlrev_b32 v3, 4, v1")
    a("s_lshl_b32 s47, s%d, 12" % s_hq)
    a("v_add_u32 v4, s47, v3")
    for r in range(4):
        a("buffer_store_dwordx4 v[8:11], v4, s[36:39], 0 offen offset:%d sc1" % (WS_KV + 1024 * r))
    a("s_lshl_b32 s47, s%d, 8" % s_hq)
    a("s_add_u32 s47, s47, %d" % WS_Z)
    a("v_and_b32 v4, 15, v1")
    a("v_lshlrev_b32 v5, 4, v4")
    a("v_add_u32 v5, s47, v5")
    a("buffer_store_dwordx4 v[8:11], v5, s[36:39], 0 offen sc1")
    a("v_lshlrev_b32 v4, 9, v4")
    a("s_lshl_b32 s47, s%d, 6" % s_hq)
    a("s_add_u32 s47, s47, %d" % WS_FLAG)
    a("v_add_u32 v4, s47, v4")
    a("buffer_store_dword v8, v4, s[36:39], 0 offen sc1")
    a("s_waitcnt vmcnt(0)")
    a("s_lshl_b32 s47, s%d, 2" % s_hq)
    a("v_mov_b32 v4, s47")
    a("v_mov_b32 v8, 1")
    a("s_mov_b64 exec, 1")
    a("buffer_store_dword v8, v4, s[40:43], 0 offen sc1")
    a("s_waitcnt vmcnt(0)")
```

```python
import sys
from asmdsl import Asm
import partA, partB, partB2

NAME = "concat_heads__ssm_conv_s4__linear_attn_block__prompt_kernel"

HEADER = """; Kernarg layout (120 bytes): d_in[0..11], d_out (96), d_debug (104), d_ws (112)
"""

def kernel_text(name, body, nvgpr, accum, nsgpr=102):
    return """.globl {n}
.p2align 8
.type {n},@function
{n}:
{body}""".format(n=name, body=body), """.amdhsa_kernel {n}
  .amdhsa_next_free_vgpr {v}
  .amdhsa_next_free_sgpr {s}
  .amdhsa_accum_offset {acc}
  .amdhsa_group_segment_fixed_size 0
  .amdhsa_kernarg_size 120
  .amdhsa_user_sgpr_count 2
  .amdhsa_user_sgpr_kernarg_segment_ptr 1
  .amdhsa_system_sgpr_workgroup_id_x 1
.end_amdhsa_kernel
""".format(n=name, v=nvgpr, s=nsgpr, acc=accum)

def assemble(launches, kernels):
    out = [HEADER.rstrip()]
    if len(launches) == 1 and launches[0][0] == NAME:
        k, g, b, l = launches[0]
        out.append("; @launch grid=(%d,1,1) block=(%d,1,1) lds=%d" % (g, b, l))
    else:
        for k, g, b, l in launches:
            out.append("; @launch kernel=%s grid=(%d,1,1) block=(%d,1,1) lds=%d" % (k, g, b, l))
    out.append('.amdgcn_target "amdgcn-amd-amdhsa--gfx950"')
    out.append(".text")
    desc = []
    for name, body, nv, acc in kernels:
        t, d = kernel_text(name, body, nv, acc)
        out.append(t)
        desc.append(d)
    out.append('.section .rodata,"a"')
    for d in desc:
        out.append(".p2align 6")
        out.append(d.rstrip())
    return "\n".join(out) + "\n"

def emit_stamps(a, n, s_wg, s_w, nw=4):
    a("s_waitcnt vmcnt(0)")
    a("s_memtime s[%d:%d]" % (70 + 2 * n, 71 + 2 * n))
    a("s_load_dwordx2 s[60:61], s[0:1], 112")
    a("s_waitcnt lgkmcnt(0)")
    a("s_mov_b32 s62, 0x10000000"); a("s_mov_b32 s63, 0x20000"); a("s_and_b32 s61, s61, 0xffff")
    a("s_mul_i32 s64, s%d, %d" % (s_wg, nw)); a("s_add_u32 s64, s64, s%d" % s_w); a("s_lshl_b32 s64, s64, 6")
    a("s_add_u32 s64, s64, 0x8000000")
    a("v_mov_b32 v5, s64")
    for i in range(n + 1):
        a("s_sub_u32 s65, s%d, s70" % (70 + 2 * i))
        a("v_mov_b32 v4, s65")
        a("buffer_store_dword v4, v5, s[60:63], 0 offen offset:%d" % (4 * i))
    a("s_getreg_b32 s65, hwreg(HW_REG_XCC_ID)")
    a("v_mov_b32 v4, s65")
    a("buffer_store_dword v4, v5, s[60:63], 0 offen offset:60")

def kernelA(dbg=None, stamps=False, zero=False):
    a = Asm()
    a("s_cmp_ge_u32 s2, 128")
    a("s_cbranch_scc1 LA_end")
    if zero:
        zero_kvz(a)
    a("s_and_b32 s3, s2, 7")
    a("s_lshl_b32 s3, s3, 4")
    a("s_lshr_b32 s4, s2, 3")
    a("s_add_u32 s3, s3, s4")
    r = partA.emit_partA(a, dict(ka=0, cg=3, stamps=stamps), dbg)
    if stamps:
        emit_stamps(a, 7, 2, r["s_w"])
    if dbg == "lds":
        a("s_load_dwordx2 s[60:61], s[0:1], 112")
        a("s_waitcnt lgkmcnt(0)")
        a("s_mov_b32 s62, 0x10000000"); a("s_mov_b32 s63, 0x20000"); a("s_and_b32 s61, s61, 0xffff")
        a("s_mul_i32 s64, s3, %d" % 131072)
        a("v_lshlrev_b32 v3, 2, v0")
        a("s_mov_b32 s65, 0")
        a.label("Ldump")
        a("ds_read_b32 v4, v3")
        a("v_add_u32 v5, s64, v3")
        a("s_waitcnt lgkmcnt(0)")
        a("buffer_store_dword v4, v5, s[60:63], 0 offen")
        a("v_add_u32 v3, 1024, v3")
        a("s_add_u32 s65, s65, 1024")
        a("s_cmp_lt_u32 s65, %d" % partA.A_LDS)
        a("s_cbranch_scc1 Ldump")
    a("s_waitcnt vmcnt(0)")
    a.label("LA_end")
    a("s_endpgm")
    return a.finish()

def map_B(a):
    a("s_and_b32 s3, s2, 3"); a("s_lshl_b32 s3, s3, 2")
    a("s_bfe_u32 s4, s2, 0x20003"); a("s_add_u32 s3, s3, s4")
    a("s_bfe_u32 s4, s2, 0x10002"); a("s_lshl_b32 s4, s4, 2")
    a("s_bfe_u32 s5, s2, 0x20005"); a("s_add_u32 s4, s4, s5")

def kernelB1(stamps=False, touch=False):
    a = Asm()
    a("s_cmp_ge_u32 s2, 128")
    a("s_cbranch_scc1 LB1_end")
    map_B(a)
    partB.emit_B1(a, dict(ka=0, rb=3, hq=4, stamps=stamps, touch=touch))
    if stamps:
        emit_stamps(a, 5, 2, 44, 8)
    a("s_waitcnt vmcnt(0)")
    a.label("LB1_end")
    a("s_endpgm")
    return a.finish()

def kernelB2(stamps=False):
    a = Asm()
    a("s_cmp_ge_u32 s2, 128")
    a("s_cbranch_scc1 LB2_end")
    map_B(a)
    partB.emit_B2(a, dict(ka=0, rb=3, jb=4, stamps=stamps))
    if stamps:
        emit_stamps(a, 4, 2, 44, 8)
    a("s_waitcnt vmcnt(0)")
    a.label("LB2_end")
    a("s_endpgm")
    return a.finish()

def zero_kvz(a):
    a("s_load_dwordx2 s[60:61], s[0:1], 112")
    a("s_waitcnt lgkmcnt(0)")
    a("s_mov_b32 s62, %d" % partB.KVZ_BYTES); a("s_mov_b32 s63, 0x20000"); a("s_and_b32 s61, s61, 0xffff")
    a("s_mul_i32 s64, s2, 272")
    a("v_lshlrev_b32 v3, 2, v0")
    a("v_add_u32 v3, s64, v3")
    a("v_mov_b32 v4, 0")
    a("v_cmp_gt_u32 vcc, 68, v0")
    a("s_and_saveexec_b64 s[66:67], vcc")
    a("s_cbranch_execz Lzk")
    a("buffer_store_dword v4, v3, s[60:63], 0 offen")
    a.label("Lzk")
    a("s_mov_b64 exec, s[66:67]")

def kernelF(stamps=False):
    a = Asm()
    a("s_cmp_ge_u32 s2, 256")
    a("s_cbranch_scc1 LF_end")
    a("s_lshr_b32 s6, s2, 4"); a("s_lshl_b32 s6, s6, 3"); a("s_and_b32 s7, s2, 7"); a("s_add_u32 s6, s6, s7")
    a("s_bitcmp1_b32 s2, 3")
    a("s_cbranch_scc1 LF_B")
    a("v_lshrrev_b32 v2, 6, v0")
    a("v_readfirstlane_b32 s7, v2")
    a("s_cmp_ge_u32 s7, 4")
    a("s_cbranch_scc0 LF_A")
    a("s_cmp_eq_u32 s7, 4")
    a("s_cbranch_scc0 LF_end")
    a("s_cmp_lt_u32 s6, 8")
    a("s_cbranch_scc0 LF_end")
    partB2.emit_zero_init(a, 0, 6)
    a("s_endpgm")
    a.label("LF_A")
    a("s_and_b32 s3, s6, 7"); a("s_lshl_b32 s3, s3, 4"); a("s_lshr_b32 s4, s6, 3"); a("s_add_u32 s3, s3, s4")
    r = partA.emit_partA(a, dict(ka=0, cg=3, stamps=stamps))
    if stamps:
        emit_stamps(a, 7, 2, r["s_w"], 8)
    a("s_waitcnt vmcnt(0)")
    a("s_endpgm")
    a.label("LF_B")
    a("s_and_b32 s3, s6, 3"); a("s_lshl_b32 s3, s3, 2")
    a("s_bfe_u32 s4, s6, 0x20003"); a("s_add_u32 s3, s3, s4")
    a("s_bfe_u32 s4, s6, 0x10002"); a("s_lshl_b32 s4, s4, 2")
    a("s_bfe_u32 s5, s6, 0x20005"); a("s_add_u32 s4, s4, s5")
    partB2.emit_B(a, dict(ka=0, rb=3, hq=4, idx=6, stamps=stamps))
    if stamps:
        emit_stamps2(a, 9, 2, 44, 8)
    a("s_waitcnt vmcnt(0)")
    a.label("LF_end")
    a("s_endpgm")
    return a.finish()

def emit_stamps2(a, n, s_wg, s_w, nw):
    emit_stamps(a, n, s_wg, s_w, nw)

if __name__ == "__main__":
    mode = sys.argv[1]
    if mode == "A":
        txt = assemble([(NAME, 128, 256, partA.A_LDS)], [(NAME, kernelA(), 256, 256)])
    elif mode == "Astamp":
        txt = assemble([(NAME, 128, 256, partA.A_LDS)], [(NAME, kernelA(stamps=True), 256, 256)])
    elif mode == "v1" or mode == "v1st":
        st = mode == "v1st"
        txt = assemble([("ka_kernel", 128, 256, partA.A_LDS), ("kb1_kernel", 128, 512, 163840), ("kb2_kernel", 128, 512, 131072)],
                       [("ka_kernel", kernelA(zero=True), 256, 256), ("kb1_kernel", kernelB1(st), 256, 256), ("kb2_kernel", kernelB2(), 256, 256)])
    elif mode == "B1st":
        txt = assemble([(NAME, 128, 512, 163840)], [(NAME, kernelB1(True), 256, 256)])
    elif mode == "B1stT":
        txt = assemble([(NAME, 128, 512, 163840)], [(NAME, kernelB1(True, True), 256, 256)])
    elif mode == "B2st":
        txt = assemble([(NAME, 128, 512, 131072)], [(NAME, kernelB2(True), 256, 256)])
    elif mode == "v2" or mode == "v2st":
        txt = assemble([(NAME, 256, 512, 163840)], [(NAME, kernelF(mode == "v2st"), 256, 256)])
    elif mode == "Adbg":
        txt = assemble([(NAME, 128, 256, partA.A_LDS)], [(NAME, kernelA("lds"), 256, 256)])
    open(sys.argv[2], "w").write(txt)
```

```python
from asmdsl import Asm
from partA import cmul, cmul2, XEXP, KREG, CB, UBASE, UCH, UCP, XROW, YOFF, LOG2E, INV2PI

SCR = 17408
DX = UBASE + 4 * UCH
YX = DX
YST = DX + 32768
STAMP_BASE = 70


def stamp(a, S, i):
    if S.get("stamps"):
        a("s_memtime s[%d:%d]" % (STAMP_BASE + 2 * i, STAMP_BASE + 2 * i + 1))


def emit_partA(a: Asm, S):
    ka, s_cg, s_i = S["ka"], S["cg"], S["i16"]
    sP = 16
    sD, sO, sU, sOS = 32, 34, 36, 40
    s_w, s_d, s_t0, s_t1, s_kreg, s_cnt = 44, 45, 46, 47, 48, 49
    s_k2, s_k4, s_c, s_h = 50, 51, 52, 53
    s_m0, s_m1 = 54, 56
    stamp(a, S, 0)
    a("s_load_dwordx16 s[%d:%d], s[%d:%d], 0" % (sP, sP + 15, ka, ka + 1))
    a("s_load_dwordx2 s[%d:%d], s[%d:%d], 64" % (sD, sD + 1, ka, ka + 1))
    a("s_load_dwordx2 s[%d:%d], s[%d:%d], 96" % (sO, sO + 1, ka, ka + 1))
    vLane, vT0, vT1, vT2, vT3 = 1, 3, 4, 5, 6
    vOffN, vOffD = 7, 8
    vU0, vU1, vU2 = 9, 10, 11
    vG = 12
    vIn = 14
    vLdt, vDsk = 26, 27
    vR = 28
    vDt, vDtL, vDtP = 46, 47, 48
    vXw, vXr, vD0 = 49, 50, 51
    vTouch = 20
    a("v_and_b32 v%d, 63, v0" % vLane)
    a("v_lshrrev_b32 v2, 6, v0")
    a("v_readfirstlane_b32 s%d, v2" % s_w)
    a("s_and_b32 s%d, s%d, 3" % (s_c, s_w))
    a("s_lshr_b32 s%d, s%d, 2" % (s_h, s_w))
    a("s_lshl_b32 s%d, s%d, 2" % (s_d, s_cg))
    a("s_add_u32 s%d, s%d, s%d" % (s_d, s_d, s_c))
    a("s_lshl_b32 s%d, s%d, 8" % (s_t0, s_d))
    a("s_lshl_b32 s%d, s%d, 7" % (s_t1, s_h))
    a("s_add_u32 s%d, s%d, s%d" % (s_t0, s_t0, s_t1))
    a("v_lshlrev_b32 v%d, 1, v%d" % (vOffN, vLane))
    a("v_add_u32 v%d, s%d, v%d" % (vOffN, s_t0, vOffN))
    a("s_lshl_b32 s%d, s%d, 1" % (s_t1, s_d))
    a("v_mov_b32 v%d, s%d" % (vOffD, s_t1))
    a("s_lshl_b32 s%d, s%d, 5" % (s_t0, s_w))
    a("v_lshrrev_b32 v%d, 1, v%d" % (vG, vLane))
    a("v_add_u32 v%d, s%d, v%d" % (vG, s_t0, vG))
    a("s_lshl_b32 s%d, s%d, 3" % (s_t0, s_cg))
    a("v_lshlrev_b32 v%d, 13, v%d" % (vU1, vG))
    a("v_and_b32 v%d, 1, v%d" % (vU2, vLane))
    a("v_lshlrev_b32 v%d, 12, v%d" % (vU2, vU2))
    a("v_add3_u32 v%d, v%d, v%d, s%d" % (vU1, vU1, vU2, s_t0))
    a("v_add_u32 v%d, 0xfffffc00, v%d" % (vU0, vU1))
    a("s_lshl_b32 s%d, s%d, 7" % (s_t1, s_i))
    a("s_and_b32 s%d, s%d, 1" % (s_cnt, s_c))
    a("s_lshl_b32 s%d, s%d, 6" % (s_cnt, s_cnt))
    a("s_add_u32 s%d, s%d, s%d" % (s_t1, s_t1, s_cnt))
    a("v_add_u32 v%d, s%d, v%d" % (vTouch, s_t1, vLane))
    a("v_lshlrev_b32 v%d, 10, v%d" % (vTouch, vTouch))
    a("v_add_u32 v%d, s%d, v%d" % (vTouch, s_t0, vTouch))
    a("s_waitcnt lgkmcnt(0)")
    if S.get("zero_pre"):
        S["zero_pre"](a, s_w)
    a("global_load_ushort v%d, v%d, s[%d:%d]" % (vLdt, vOffD, sP + 14, sP + 15))
    a("global_load_ushort v%d, v%d, s[%d:%d]" % (vDsk, vOffD, sD, sD + 1))
    for k in range(6):
        a("global_load_ushort v%d, v%d, s[%d:%d]" % (vIn + k, vOffN, sP + 2 + 2 * k, sP + 3 + 2 * k))
    a("s_mov_b32 s%d, s%d" % (sU, sP)); a("s_and_b32 s%d, s%d, 0xffff" % (sU + 1, sP + 1))
    a("s_mov_b32 s%d, 0x200000" % (sU + 2)); a("s_mov_b32 s%d, 0x20000" % (sU + 3))
    a("s_mov_b32 s%d, s%d" % (sOS, sO)); a("s_and_b32 s%d, s%d, 0xffff" % (sOS + 1, sO + 1))
    a("s_mov_b32 s%d, 0x400000" % (sOS + 2)); a("s_mov_b32 s%d, 0x20000" % (sOS + 3))

    def u_loads():
        a("buffer_load_dwordx2 v[%d:%d], v%d, s[%d:%d], 0 offen" % (vR, vR + 1, vU0, sU, sU + 3))
        for r in range(1, 5):
            a("buffer_load_dwordx2 v[%d:%d], v%d, s[%d:%d], 0 offen offset:%d" % (vR + 2 * r, vR + 2 * r + 1, vU1, sU, sU + 3, (r - 1) * 1024))

    if S.get("btouch"):
        s_x = S["xcd"]
        sBX, sBW = 60, 64
        vBT = 22
        lb = a.newlabel("Lbt")
        a("s_load_dwordx4 s[88:91], s[%d:%d], 72" % (ka, ka + 1))
        a("s_cmp_lt_u32 s%d, 4" % s_w)
        a("s_cbranch_scc0 %s" % lb)
        a("s_and_b32 s%d, s%d, 3" % (s_t0, s_x))
        a("s_lshl_b32 s%d, s%d, 9" % (s_t0, s_t0))
        a("s_lshl_b32 s%d, s%d, 5" % (s_t1, s_i))
        a("s_add_u32 s%d, s%d, s%d" % (s_t0, s_t0, s_t1))
        a("v_and_b32 v%d, 31, v%d" % (vBT, vLane))
        a("v_add_u32 v%d, s%d, v%d" % (vBT, s_t0, vBT))
        a("v_lshlrev_b32 v%d, 10, v%d" % (vBT, vBT))
        a("v_lshrrev_b32 v%d, 5, v%d" % (vT0, vLane))
        a("s_and_b32 s%d, s%d, 1" % (s_t1, s_w))
        a("s_lshl_b32 s%d, s%d, 1" % (s_t1, s_t1))
        a("v_add_u32 v%d, s%d, v%d" % (vT0, s_t1, vT0))
        a("v_lshlrev_b32 v%d, 8, v%d" % (vT0, vT0))
        a("v_add3_u32 v%d, v%d, v%d, %d" % (vBT, vBT, vT0, 0))
        a("v_add_u32 v%d, 128, v%d" % (vBT, vBT))
        a("s_lshr_b32 s%d, s%d, 2" % (s_t0, s_i))
        a("s_lshl_b32 s%d, s%d, 1" % (s_t0, s_t0))
        a("s_add_u32 s%d, s%d, 1" % (s_t0, s_t0))
        a("s_lshl_b32 s%d, s%d, 6" % (s_t0, s_t0))
        a("v_add_u32 v%d, s%d, v%d" % (vT1, s_t0, vLane))
        a("v_mul_u32_u24 v%d, 3072, v%d" % (vT1, vT1))
        a("s_lshr_b32 s%d, s%d, 2" % (s_t0, s_x))
        a("s_lshl_b32 s%d, s%d, 2" % (s_t0, s_t0))
        a("s_and_b32 s%d, s%d, 3" % (s_t1, s_i))
        a("s_add_u32 s%d, s%d, s%d" % (s_t0, s_t0, s_t1))
        a("s_lshl_b32 s%d, s%d, 7" % (s_t0, s_t0))
        a("s_and_b32 s%d, s%d, 1" % (s_t1, s_w))
        a("s_add_u32 s%d, s%d, 1" % (s_t1, s_t1))
        a("s_lshl_b32 s%d, s%d, 10" % (s_t1, s_t1))
        a("s_add_u32 s%d, s%d, s%d" % (s_t0, s_t0, s_t1))
        a("v_add_u32 v%d, s%d, v%d" % (vT1, s_t0, vT1))
        a("s_waitcnt lgkmcnt(0)")
        a("s_mov_b32 s%d, s88" % sBX); a("s_and_b32 s%d, s89, 0xffff" % (sBX + 1)); a("s_mov_b32 s%d, 0x200000" % (sBX + 2)); a("s_mov_b32 s%d, 0x20000" % (sBX + 3))
        a("s_mov_b32 s%d, s90" % sBW); a("s_and_b32 s%d, s91, 0xffff" % (sBW + 1)); a("s_mov_b32 s%d, 0x180000" % (sBW + 2)); a("s_mov_b32 s%d, 0x20000" % (sBW + 3))
        lb2 = a.newlabel("Lbt")
        a("s_cmp_lt_u32 s%d, 2" % s_w)
        a("s_cbranch_scc0 %s" % lb2)
        a("buffer_load_dword v%d, v%d, s[%d:%d], 0 offen" % (vBT + 1, vBT, sBX, sBX + 3))
        a("s_branch %s" % lb)
        a.label(lb2)
        a("buffer_load_dword v%d, v%d, s[%d:%d], 0 offen" % (vBT + 1, vT1, sBW, sBW + 3))
        a.label(lb)

    def touch():
        lt = a.newlabel("Lt")
        a("s_cmp_lt_u32 s%d, 2" % s_w)
        a("s_cbranch_scc0 %s" % lt)
        a("buffer_load_dword v%d, v%d, s[%d:%d], 0 offen" % (vTouch + 1, vTouch, sU, sU + 3))
        a.label(lt)
    if not S.get("touch_late"):
        touch()
    if not S.get("u_spread"):
        a("s_barrier")
        u_loads()
    a("s_mul_i32 s%d, s%d, %d" % (s_kreg, s_w, SCR))
    a("v_lshlrev_b32 v%d, 2, v%d" % (vXw, vLane))
    a("v_add_u32 v%d, s%d, v%d" % (vXw, s_kreg, vXw))
    a("v_and_b32 v%d, 31, v%d" % (vT0, vLane))
    a("v_mul_u32_u24 v%d, %d, v%d" % (vXr, XROW, vT0))
    a("v_lshrrev_b32 v%d, 5, v%d" % (vT1, vLane))
    a("v_lshlrev_b32 v%d, 4, v%d" % (vT1, vT1))
    a("v_add3_u32 v%d, v%d, v%d, s%d" % (vXr, vXr, vT1, s_kreg))
    lw1, lw2 = a.newlabel("Lw"), a.newlabel("Lw")
    if S.get("btouch"):
        assert S.get("u_spread") and S.get("touch_late")
        a("s_cmp_lt_u32 s%d, 4" % s_w)
        a("s_cbranch_scc0 %s" % lw1)
        a("s_waitcnt vmcnt(1)")
        a("s_branch %s" % lw2)
        a.label(lw1)
        a("s_waitcnt vmcnt(0)")
        a.label(lw2)
    else:
        a("s_cmp_lt_u32 s%d, 2" % s_w)
        a("s_cbranch_scc0 %s" % lw1)
        a("s_waitcnt vmcnt(%d)" % ((0 if S.get("touch_late") else 1) if S.get("u_spread") else 6))
        a("s_branch %s" % lw2)
        a.label(lw1)
        a("s_waitcnt vmcnt(%d)" % (0 if S.get("u_spread") else 5))
        a.label(lw2)
    if S.get("touch_late"):
        touch()
    if S.get("zero_post"):
        S["zero_post"](a, s_w)
    stamp(a, S, 1)
    a("v_lshlrev_b32 v%d, 16, v%d" % (vLdt, vLdt))
    a("v_lshlrev_b32 v%d, 16, v%d" % (vDsk, vDsk))
    a("v_mul_f32 v%d, 0x%x, v%d" % (vDt, LOG2E, vLdt))
    a("v_exp_f32 v%d, v%d" % (vDt, vDt))
    for k in range(6):
        a("v_lshlrev_b32 v%d, 16, v%d" % (vIn + k, vIn + k))
    a("v_cvt_pk_bf16_f32 v%d, v%d, v%d" % (vDt, vDt, vDt))
    a("v_and_b32 v%d, 0xffff0000, v%d" % (vDt, vDt))
    a("v_mul_f32 v%d, 0x%x, v%d" % (vDtL, LOG2E, vDt))
    a("v_mul_f32 v%d, 0x%x, v%d" % (vDtP, INV2PI, vDt))
    a("v_cmp_eq_u32 vcc, 0, v%d" % vLane)
    a("v_cndmask_b32 v%d, 0, v%d, vcc" % (vD0, vDsk))
    real_a = a
    class _L:
        def __init__(self): self.l = []
        def __call__(self, t):
            for x in t.split("\n"):
                x = x.strip()
                if x: self.l.append(x)
    a = _L()
    c0 = 52
    Z1, Z2, Z4, Z8, Z16, Z32, Z64, Z128, Z256, W = [c0 + 2 * i for i in range(10)]
    wk = [72 + 2 * i for i in range(12)]
    tc = [96, 97, 98, 99]
    FA, FB = 100, 132
    DK = 164
    tci = [0]

    def put(P, rows, isX):
        t = tc[tci[0] % 4]; tci[0] += 1
        if isX:
            a("v_cvt_pk_bf16_f32 v%d, v%d, -v%d" % (t, P, P + 1))
        else:
            a("v_cvt_pk_bf16_f32 v%d, v%d, v%d" % (t, P, P + 1))
        for r in rows:
            a("ds_write_b32 v%d, v%d offset:%d" % (vXw, t, r * XROW + (0 if isX else YOFF)))

    I = vIn
    Are, Aim, Bre, Cre = I, I + 1, I + 2, I + 4
    m_, ph = wk[0], wk[0] + 1
    a("v_mul_f32 v%d, v%d, v%d" % (m_, Are, vDtL))
    a("v_mul_f32 v%d, v%d, v%d" % (ph, Aim, vDtP))
    a("v_exp_f32 v%d, v%d" % (m_, m_))
    a("v_rndne_f32 v%d, v%d" % (wk[2], ph))
    a("v_sub_f32 v%d, v%d, v%d" % (ph, ph, wk[2]))
    cmul(a, wk[1], Cre, Bre)
    a("v_cos_f32 v%d, v%d" % (Z1, ph))
    a("v_sin_f32 v%d, v%d" % (Z1 + 1, ph))
    a("v_mul_f32 v%d, v%d, v%d" % (W, wk[1], vDt))
    a("v_mul_f32 v%d, v%d, v%d" % (W + 1, wk[1] + 1, vDt))
    a("v_mul_f32 v%d, v%d, v%d" % (Z1, Z1, m_))
    a("v_mul_f32 v%d, v%d, v%d" % (Z1 + 1, Z1 + 1, m_))
    put(W, XEXP[0], True)
    cmul2(a, [(Z2, Z1, Z1), (wk[1], W, Z1)])
    put(wk[1], XEXP[1], True)
    cmul2(a, [(Z4, Z2, Z2), (wk[2], W, Z2), (wk[3], wk[1], Z2)])
    put(wk[2], XEXP[2], True); put(wk[3], XEXP[3], True)
    cmul2(a, [(Z8, Z4, Z4), (wk[4], W, Z4), (wk[5], wk[1], Z4), (wk[6], wk[2], Z4), (wk[7], wk[3], Z4)])
    for k_, e_ in ((4, 4), (5, 5), (6, 6), (7, 7)):
        put(wk[k_], XEXP[e_], True)
    cmul(a, Z16, Z8, Z8)
    a("v_mov_b32 v%d, 0x00003f80" % tc[0])
    tci[0] = 1
    a("ds_write_b32 v%d, v%d offset:%d" % (vXw, tc[0], YOFF))
    put(Z8, [1], False)
    cmul2(a, [(Z32, Z16, Z16), (wk[3], Z8, Z16)])
    put(Z16, [2], False); put(wk[3], [3], False)
    cmul2(a, [(Z64, Z32, Z32), (wk[1], Z8, Z32), (wk[2], Z16, Z32), (wk[7], wk[3], Z32)])
    put(Z32, [4], False); put(wk[1], [5], False); put(wk[2], [6], False); put(wk[7], [7], False)
    cur = [Z32, wk[1], wk[2], wk[7]]
    setA = [wk[3], wk[4], wk[5], wk[6]]
    setB = [wk[8], wk[9], wk[10], wk[11]]
    nxt = setB
    for j0 in range(8, 32, 4):
        extra = []
        if j0 == 8:
            extra = [(Z128, Z64, Z64)]
        elif j0 == 12:
            extra = [(Z256, Z128, Z128)]
        cmul2(a, [(nxt[k], cur[k], Z32) for k in range(4)] + extra)
        for k in range(4):
            put(nxt[k], [j0 + k], False)
        cur = nxt
        nxt = setA if cur is setB else setB
    G = wk[0]; Gn = wk[1]
    cmul(a, G, W, Z256)
    put(G, XEXP[256], True)
    cmul2(a, [(wk[2], G, Z2), (wk[3], G, Z4), (wk[4], G, Z8), (Gn, G, Z256)])
    put(wk[2], XEXP[258], True); put(wk[3], XEXP[260], True); put(wk[4], XEXP[264], True)
    cmul2(a, [(wk[5], wk[2], Z4), (wk[6], Gn, Z4), (wk[7], Gn, Z8), (G, Gn, Z256)])
    put(wk[5], XEXP[262], True); put(Gn, XEXP[512], True); put(wk[6], XEXP[516], True); put(wk[7], XEXP[520], True)
    cmul2(a, [(wk[2], G, Z4), (wk[3], G, Z8), (Gn, G, Z256)])
    put(G, XEXP[768], True); put(wk[2], XEXP[772], True); put(wk[3], XEXP[776], True)
    cmul2(a, [(wk[4], Gn, Z8), (G, Gn, Z256)])
    put(Gn, XEXP[1024], True); put(wk[4], XEXP[1032], True)
    cmul2(a, [(wk[5], G, Z8), (Gn, G, Z256)])
    put(G, XEXP[1280], True); put(wk[5], XEXP[1288], True)
    cmul2(a, [(wk[6], Gn, Z8), (G, Gn, Z256)])
    put(Gn, XEXP[1536], True); put(wk[6], XEXP[1544], True)
    cmul(a, wk[7], G, Z8)
    put(G, XEXP[1792], True); put(wk[7], XEXP[1800], True)
    kg_lines = a.l
    a = real_a
    if S.get("u_spread"):
        nh = 40
        step = len(kg_lines) / float(nh + 1)
        nxt_pos = step
        hk = 0
        for li, x in enumerate(kg_lines):
            a(x)
            if hk < nh and li + 1 >= nxt_pos:
                ww, r = hk % 8, hk // 8
                l = a.newlabel("Lh")
                a("s_cmp_eq_u32 s%d, %d" % (s_w, ww))
                a("s_cbranch_scc0 %s" % l)
                if r == 0:
                    a("buffer_load_dwordx2 v[%d:%d], v%d, s[%d:%d], 0 offen" % (vR, vR + 1, vU0, sU, sU + 3))
                else:
                    a("buffer_load_dwordx2 v[%d:%d], v%d, s[%d:%d], 0 offen offset:%d" % (vR + 2 * r, vR + 2 * r + 1, vU1, sU, sU + 3, (r - 1) * 1024))
                a.label(l)
                hk += 1
                nxt_pos += step
        assert hk == nh
    else:
        for x in kg_lines:
            a(x)
    a("s_waitcnt lgkmcnt(0)")
    for m in range(7):
        a("ds_read_b128 v[%d:%d], v%d offset:%d" % (FA + 4 * m, FA + 4 * m + 3, vXr, 32 * m))
        a("ds_read_b128 v[%d:%d], v%d offset:%d" % (FB + 4 * m, FB + 4 * m + 3, vXr, YOFF + 32 * m))
    for m in range(8):
        if m == 1:
            a("ds_read_b128 v[%d:%d], v%d offset:%d" % (FA + 28, FA + 31, vXr, 32 * 7))
            a("ds_read_b128 v[%d:%d], v%d offset:%d" % (FB + 28, FB + 31, vXr, YOFF + 32 * 7))
        a("s_waitcnt lgkmcnt(%d)" % (12 if m == 0 else 14 - 2 * m))
        c_ = "0" if m == 0 else "v[%d:%d]" % (DK, DK + 15)
        a("v_mfma_f32_32x32x16_bf16 v[%d:%d], v[%d:%d], v[%d:%d], %s" % (DK, DK + 15, FA + 4 * m, FA + 4 * m + 3, FB + 4 * m, FB + 4 * m + 3, c_))
    stamp(a, S, 2)
    vDX, vKw, vKr_, vUw = 72, 73, 74, 78
    vA, vB, vZ = 80, 81, 82
    vBc = 86
    Y0, Y1 = 192, 208
    a("s_lshl_b32 s%d, s%d, 13" % (s_t0, s_c))
    a("s_add_u32 s%d, s%d, %d" % (s_t0, s_t0, DX))
    a("v_lshlrev_b32 v%d, 4, v%d" % (vDX, vLane))
    a("v_add_u32 v%d, s%d, v%d" % (vDX, s_t0, vDX))
    a("s_mul_i32 s%d, s%d, %d" % (s_kreg, s_c, KREG))
    a("v_lshlrev_b32 v%d, 4, v%d" % (vKw, vLane))
    a("v_sub_u32 v%d, s%d, v%d" % (vKw, s_kreg, vKw))
    a("v_add_u32 v%d, %d, v%d" % (vKw, 4 * 1020 - 3072, vKw))
    a("v_bfe_u32 v%d, v%d, 3, 2" % (vT1, vLane))
    for k in range(4):
        a("v_add_u32 v%d, %d, v%d" % (vT2, k, vT1))
        a("v_and_b32 v%d, 3, v%d" % (vT2, vT2))
        a("v_lshlrev_b32 v%d, 2, v%d" % (vT2, vT2))
        a("v_add_u32 v%d, v%d, v%d" % (vKr_ + k, vKw, vT2))
    a("v_bfe_u32 v%d, v%d, 3, 1" % (vT2, vLane))
    a("v_cmp_eq_u32 s[%d:%d], 1, v%d" % (s_m0, s_m0 + 1, vT2))
    a("v_bfe_u32 v%d, v%d, 4, 1" % (vT2, vLane))
    a("v_cmp_eq_u32 s[%d:%d], 1, v%d" % (s_m1, s_m1 + 1, vT2))
    a("v_and_b32 v%d, 1, v%d" % (vT1, vLane))
    a("v_cmp_eq_u32 s[58:59], 1, v%d" % vT1)
    a("v_lshrrev_b32 v%d, 3, v%d" % (vT0, vG))
    a("v_add_u32 v%d, v%d, v%d" % (vT0, vT0, vG))
    a("v_lshlrev_b32 v%d, 4, v%d" % (vUw, vT0))
    a("v_lshlrev_b32 v%d, 3, v%d" % (vT1, vT1))
    a("v_add3_u32 v%d, v%d, v%d, %d" % (vUw, vUw, vT1, 0))
    a("v_add_u32 v%d, %d, v%d" % (vUw, UBASE + 16, vUw))
    a("v_and_b32 v%d, 31, v%d" % (vT0, vLane))
    a("v_add_u32 v%d, 1, v%d" % (vT1, vT0))
    a("v_and_b32 v%d, 3, v%d" % (vT1, vT1))
    a("v_mul_u32_u24 v%d, %d, v%d" % (vT2, 4416 + 4, vT1))
    a("v_cmp_eq_u32 vcc, 0, v%d" % vT1)
    a("v_mov_b32 v%d, 16" % vT3)
    a("v_cndmask_b32 v%d, v%d, v%d, vcc" % (vT2, vT2, vT3))
    a("v_lshlrev_b32 v%d, 2, v%d" % (vT0, vT0))
    a("v_sub_u32 v%d, v%d, v%d" % (vT2, vT2, vT0))
    a("v_lshrrev_b32 v%d, 5, v%d" % (vT1, vLane))
    a("v_lshlrev_b32 v%d, 4, v%d" % (vT1, vT1))
    a("s_lshl_b32 s%d, s%d, 10" % (s_t0, s_h))
    a("s_add_u32 s%d, s%d, s%d" % (s_t0, s_t0, s_kreg))
    a("v_add3_u32 v%d, v%d, v%d, s%d" % (vA, vT2, vT1, s_t0))
    a("v_add_u32 v%d, %d, v%d" % (vA, 4 * 543 - 2048, vA))
    a("v_and_b32 v%d, 1, v%d" % (vT0, vLane))
    a("v_mul_u32_u24 v%d, %d, v%d" % (vT0, UCP, vT0))
    a("s_mul_i32 s%d, s%d, %d" % (s_t0, s_c, UCH))
    a("s_add_u32 s%d, s%d, %d" % (s_t0, s_t0, UBASE + 16))
    a("v_add_u32 v%d, s%d, v%d" % (vT0, s_t0, vT0))
    a("v_add_u32 v%d, -16, v%d" % (vZ, vT0))
    for j in range(1, 4):
        a("v_add_u32 v%d, %d, v%d" % (vZ + j, -16 - 32 * j, vT0))
    a("v_bfe_u32 v%d, v%d, 1, 4" % (vT2, vLane))
    a("v_mul_u32_u24 v%d, 144, v%d" % (vT2, vT2))
    a("v_add3_u32 v%d, v%d, v%d, v%d" % (vB, vT0, vT2, vT1))
    a("s_mul_i32 s%d, s%d, %d" % (s_t0, s_h, 8 * 144))
    a("s_add_u32 s%d, s%d, %d" % (s_t0, s_t0, -16 * 135))
    a("v_add_u32 v%d, s%d, v%d" % (vB, s_t0, vB))
    for i in range(16):
        a("v_mov_b32 v%d, 0" % (Y0 + i)); a("v_mov_b32 v%d, 0" % (Y1 + i))
    Z0 = 108
    for r in range(4):
        a("v_mov_b32 v%d, 0" % (Z0 + r))
    PU = 88
    a("s_mov_b32 s%d, 0x05040100" % s_t0)
    a("s_mov_b32 s%d, 0x07060302" % s_t1)
    a("s_waitcnt vmcnt(0)")
    for c in range(4):
        for rho in range(2):
            P = PU + 2 * (2 * c + rho)
            sel = s_t0 if (c & 1) == 0 else s_t1
            for j in range(2):
                r = rho + 2 * j
                a("v_perm_b32 v%d, v%d, v%d, s%d" % (P + j, vR + 2 * (r + 1) + (c >> 1), vR + 2 * r + (c >> 1), sel))
    a("s_barrier")
    stamp(a, S, 3)
    lH1, lH1b, lJ, lJb = [a.newlabel("LAh") for _ in range(4)]
    d = DK
    a("s_cmp_eq_u32 s%d, 1" % s_h)
    a("s_cbranch_scc1 %s" % lH1)
    for q in range(2):
        a("ds_write_b128 v%d, v[%d:%d] offset:%d" % (vDX, d + 8 + 4 * q, d + 8 + 4 * q + 3, 3072 + 1024 * q))
    a("s_branch %s" % lJ)
    a.label(lH1)
    for q in range(3):
        a("ds_write_b128 v%d, v[%d:%d] offset:%d" % (vDX, d + 4 * q, d + 4 * q + 3, 1024 * q))
    a.label(lJ)
    for c in range(4):
        for rho in range(2):
            P = PU + 2 * (2 * c + rho)
            a("ds_write_b64 v%d, v[%d:%d] offset:%d" % (vUw, P, P + 1, c * UCH + rho * UCP))
    a("v_lshlrev_b32 v%d, 2, v%d" % (vT0, vLane))
    a("s_mul_i32 s%d, s%d, %d" % (s_t0, s_h, 16 * (CB[2] - CB[0]) + 8))
    a("s_add_u32 s%d, s%d, s%d" % (s_t0, s_t0, s_kreg))
    a("v_add_u32 v%d, s%d, v%d" % (vT0, s_t0, vT0))
    a("ds_write_b32 v%d, v%d offset:%d" % (vT0, Z0, 16 * CB[0] + 4 * 1024))
    a("s_mul_i32 s%d, s%d, %d" % (s_t0, s_h, 16 * (CB[3] - CB[1]) + 8))
    a("s_add_u32 s%d, s%d, s%d" % (s_t0, s_t0, s_kreg))
    a("v_lshlrev_b32 v%d, 2, v%d" % (vT1, vLane))
    a("v_add_u32 v%d, s%d, v%d" % (vT1, s_t0, vT1))
    a("ds_write_b32 v%d, v%d offset:%d" % (vT1, Z0, 16 * CB[1] + 4 * 1025))
    lzc = a.newlabel("Lzc")
    a("s_cmp_eq_u32 s%d, 0" % s_w)
    a("s_cbranch_scc0 %s" % lzc)
    a("v_and_b32 v%d, 7, v%d" % (vT0, vLane))
    a("v_mul_u32_u24 v%d, %d, v%d" % (vT0, UCP, vT0))
    a("v_add_u32 v%d, %d, v%d" % (vT0, UBASE, vT0))
    a("ds_write_b128 v%d, v[108:111]" % vT0)
    a.label(lzc)
    a("s_waitcnt lgkmcnt(0)")
    a("s_barrier")
    stamp(a, S, 4)
    E = 112
    PK = 112
    TT, RR, vM = 128, 132, 144
    cv = lambda dst, lo, hi: a("v_cvt_pk_bf16_f32 v%d, v%d, v%d" % (dst, lo, hi))

    def kwrite(s_, P):
        a("ds_write_b128 v%d, v[%d:%d] offset:%d" % (vKw, P, P + 3, 16 * CB[0] + 1024 * (3 - s_)))
        for k in range(4):
            a("v_cndmask_b32 v%d, v%d, v%d, s[%d:%d]" % (TT + k, P + k, P + ((k + 1) & 3), s_m0, s_m0 + 1))
        R = RR + 4 * (s_ & 1)
        for k in range(4):
            a("v_cndmask_b32 v%d, v%d, v%d, s[%d:%d]" % (R + k, TT + k, TT + ((k + 2) & 3), s_m1, s_m1 + 1))
        for e in range(1, 4):
            for k in range(4):
                a("ds_write_b32 v%d, v%d offset:%d" % (vKr_ + k, R + k, 16 * CB[e] + 4 * e + 1024 * (3 - s_)))

    a("s_cmp_eq_u32 s%d, 1" % s_h)
    a("s_cbranch_scc1 %s" % lH1b)
    for q in range(3):
        a("ds_read_b128 v[%d:%d], v%d offset:%d" % (E + 4 * q, E + 4 * q + 3, vDX, 1024 * q))
    a("s_waitcnt lgkmcnt(0)")
    for i in range(11):
        a("v_add_f32 v%d, v%d, v%d" % (d + i, d + i, E + i))
    a("v_add_f32 v%d, v%d, v%d" % (d, d, vD0))
    cv(PK + 0, d + 7, d + 6); cv(PK + 1, d + 5, d + 4); cv(PK + 2, d + 3, d + 2); cv(PK + 3, d + 1, d + 0)
    cv(PK + 4, d + 10, d + 10); cv(PK + 5, d + 9, d + 9); cv(PK + 6, d + 9, d + 8); cv(PK + 7, d + 8, d + 8)
    kwrite(0, PK); kwrite(1, PK + 4)
    a("s_branch %s" % lJb)
    a.label(lH1b)
    for q in range(2):
        a("ds_read_b128 v[%d:%d], v%d offset:%d" % (E + 4 * q, E + 4 * q + 3, vDX, 3072 + 1024 * q))
    a("s_waitcnt lgkmcnt(0)")
    for i in range(11, 15):
        a("v_add_f32 v%d, v%d, v%d" % (d + i, d + i, E + i - 8))
    for s_, (v0_, v1_) in ((2, (d + 11, d + 12)), (3, (d + 13, d + 14))):
        P = PK + 8 + 4 * (s_ - 2)
        a("v_cndmask_b32 v%d, v%d, v%d, s[58:59]" % (vM, v0_, v1_))
        cv(P + 0, v1_, v1_); cv(P + 1, v1_, vM); cv(P + 2, v0_, v0_); cv(P + 3, v0_, v0_)
    kwrite(2, PK + 8); kwrite(3, PK + 12)
    a.label(lJb)
    stamp(a, S, 5)
    FR = 112
    a("s_waitcnt lgkmcnt(0)")
    a("s_barrier")
    stamp(a, S, 6)

    def reads(j, buf):
        F = FR + 16 * buf
        a("v_max_i32 v%d, v%d, v%d" % (vBc + (j & 1), vB, vZ + j))
        a("ds_read_b128 v[%d:%d], v%d offset:%d" % (F, F + 3, vA, 2048 + 32 * j))
        a("ds_read_b128 v[%d:%d], v%d offset:%d" % (F + 8, F + 11, vBc + (j & 1), 32 * j))
        a("ds_read_b128 v[%d:%d], v%d offset:%d" % (F + 12, F + 15, vB, 2304 + 32 * j))
        a("ds_read_b128 v[%d:%d], v%d offset:%d" % (F + 4, F + 7, vA, 32 * j))

    reads(0, 0); reads(1, 1)
    a("s_mov_b32 s%d, 0" % s_cnt)
    lp = a.newlabel("Lconv")
    a.label(lp)
    for j in range(4):
        if j < 2:
            reads(j + 2, j + 2)
        else:
            if j == 2:
                a("v_add_u32 v%d, 128, v%d" % (vA, vA))
                a("v_add_u32 v%d, 144, v%d" % (vB, vB))
            reads(j - 2, j - 2)
        a("s_waitcnt lgkmcnt(8)")
        F = FR + 16 * j
        a("v_mfma_f32_32x32x16_bf16 v[%d:%d], v[%d:%d], v[%d:%d], v[%d:%d]" % (Y0, Y0 + 15, F, F + 3, F + 8, F + 11, Y0, Y0 + 15))
        a("v_mfma_f32_32x32x16_bf16 v[%d:%d], v[%d:%d], v[%d:%d], v[%d:%d]" % (Y1, Y1 + 15, F, F + 3, F + 12, F + 15, Y1, Y1 + 15))
        a("v_mfma_f32_32x32x16_bf16 v[%d:%d], v[%d:%d], v[%d:%d], v[%d:%d]" % (Y1, Y1 + 15, F + 4, F + 7, F + 8, F + 11, Y1, Y1 + 15))
    a("s_add_u32 s%d, s%d, 1" % (s_cnt, s_cnt))
    a("s_cmp_lt_u32 s%d, 8" % s_cnt)
    a("s_cbranch_scc1 %s" % lp)
    vE0, vE1, vYw = 72, 73, 74
    a("s_lshl_b32 s%d, s%d, 12" % (s_t0, s_w))
    a("v_lshlrev_b32 v%d, 4, v%d" % (vE0, vLane))
    a("v_add_u32 v%d, s%d, v%d" % (vE0, s_t0, vE0))
    a("v_xor_b32 v%d, 0x4000, v%d" % (vE1, vE0))
    a("v_add_u32 v%d, %d, v%d" % (vE0, YX, vE0))
    a("v_add_u32 v%d, %d, v%d" % (vE1, YX, vE1))
    a("v_bfe_u32 v%d, v%d, 1, 4" % (vT0, vLane))
    a("v_mul_u32_u24 v%d, 528, v%d" % (vT0, vT0))
    a("v_and_b32 v%d, 1, v%d" % (vT1, vLane))
    a("v_lshlrev_b32 v%d, 3, v%d" % (vT1, vT1))
    a("v_lshrrev_b32 v%d, 5, v%d" % (vT2, vLane))
    a("v_lshlrev_b32 v%d, 6, v%d" % (vT2, vT2))
    a("v_add3_u32 v%d, v%d, v%d, v%d" % (vYw, vT0, vT1, vT2))
    a("s_lshl_b32 s%d, s%d, 1" % (s_t0, s_c))
    a("s_mul_i32 s%d, s%d, 8448" % (s_t1, s_h))
    a("s_add_u32 s%d, s%d, s%d" % (s_t0, s_t0, s_t1))
    a("s_add_u32 s%d, s%d, %d" % (s_t0, s_t0, YST))
    a("v_add_u32 v%d, s%d, v%d" % (vYw, s_t0, vYw))
    a("s_waitcnt lgkmcnt(0)")
    stamp(a, S, 7)
    lX1, lX2, lX3, lX4 = [a.newlabel("LAx") for _ in range(4)]
    a("s_cmp_eq_u32 s%d, 0" % s_h)
    a("s_cbranch_scc0 %s" % lX1)
    for q in range(4):
        a("ds_write_b128 v%d, v[%d:%d] offset:%d" % (vE0, Y1 + 4 * q, Y1 + 4 * q + 3, 1024 * q))
    a("s_branch %s" % lX2)
    a.label(lX1)
    for q in range(4):
        a("ds_write_b128 v%d, v[%d:%d] offset:%d" % (vE0, Y0 + 4 * q, Y0 + 4 * q + 3, 1024 * q))
    a.label(lX2)
    a("s_waitcnt lgkmcnt(0)")
    a("s_barrier")
    E = 112
    for q in range(4):
        a("ds_read_b128 v[%d:%d], v%d offset:%d" % (E + 4 * q, E + 4 * q + 3, vE1, 1024 * q))
    vRd, vOa = 75, 76
    a("v_lshrrev_b32 v%d, 4, v0" % vT0)
    a("v_lshlrev_b32 v%d, 4, v%d" % (vT0, vT0))
    a("v_lshlrev_b32 v%d, 5, v0" % vT1)
    a("v_add3_u32 v%d, v%d, v%d, %d" % (vRd, vT0, vT1, 0))
    a("v_add_u32 v%d, %d, v%d" % (vRd, YST, vRd))
    a("v_lshlrev_b32 v%d, 13, v0" % vOa)
    a("s_lshl_b32 s%d, s%d, 3" % (s_t0, s_cg))
    a("v_add_u32 v%d, s%d, v%d" % (vOa, s_t0, vOa))
    a("s_cmp_eq_u32 s%d, 0" % s_h)
    a("s_cbranch_scc0 %s" % lX3)
    a("s_waitcnt lgkmcnt(0)")
    for i in range(16):
        a("v_add_f32 v%d, v%d, v%d" % (E + i, E + i, Y0 + i))
    a("s_branch %s" % lX4)
    a.label(lX3)
    a("s_waitcnt lgkmcnt(0)")
    for i in range(16):
        a("v_add_f32 v%d, v%d, v%d" % (E + i, E + i, Y1 + i))
    a.label(lX4)
    tq = [128, 129, 130, 131]
    k = 0
    for q in range(4):
        for i in (0, 2):
            t = tq[k % 4]; k += 1
            a("v_cvt_pk_bf16_f32 v%d, v%d, v%d" % (t, E + 4 * q + i, E + 4 * q + i + 1))
            off = 128 * q + 16 * i
            a("ds_write_b16 v%d, v%d offset:%d" % (vYw, t, off))
            a("ds_write_b16_d16_hi v%d, v%d offset:%d" % (vYw, t, off + 16))
    a("s_waitcnt lgkmcnt(0)")
    a("s_barrier")
    stamp(a, S, 8)
    O = 132
    a("ds_read_b128 v[%d:%d], v%d" % (O, O + 3, vRd))
    a("ds_read_b128 v[%d:%d], v%d offset:16" % (O + 4, O + 7, vRd))
    a("s_mov_b32 s%d, 4096" % s_k2)
    for kk in range(4):
        if kk % 2 == 0:
            a("s_waitcnt lgkmcnt(%d)" % (1 - kk // 2))
        so = ["0", "s%d" % s_k2][kk // 2]
        a("buffer_store_dwordx2 v[%d:%d], v%d, s[%d:%d], %s offen offset:%d" % (O + 2 * kk, O + 2 * kk + 1, vOa, sOS, sOS + 3, so, 2048 * (kk & 1)))
    return dict(s_w=s_w)
```

```python
from asmdsl import Asm
from partB import srd, phi, LOG2E, EPS

WS_KV = 0
WS_Z = 32768
KVZ_BYTES = 32768 + 2048
WS_FLAG = 65536
WS_PQ = 1 << 20
SLOT = 32768
STAMP_BASE = 70
MAGIC = 0x5a17c0de


def stamp(a, S, i):
    if S.get("stamps"):
        a("s_memtime s[%d:%d]" % (STAMP_BASE + 2 * i, STAMP_BASE + 2 * i + 1))


def emit_B(a: Asm, S):
    ka, s_rb, s_hq, s_idx = S["ka"], S["rb"], S["hq"], S["idx"]
    s_w, s_rg, s_ch = 44, 45, 46
    sX, sW, sWS, sDBG = 28, 32, 36, 40
    s_t0, s_t1, s_m0x, s_m0w, s_off, s_rot = 47, 48, 49, 50, 51, 58
    sWO, sOUT = 60, 64
    vLane = 1
    vT0, vT1, vT2, vT3 = 3, 4, 5, 6
    vXs0, vXs1, vWs, vWOs = 7, 8, 9, 2
    vXr = 10
    vWr = 14
    vXc = 15
    vWc = 19
    WF = 20
    AK, AV, AQ = 52, 68, 84
    TMP = 100
    XF = 128
    stamp(a, S, 0)
    a("s_load_dwordx8 s[16:23], s[%d:%d], 72" % (ka, ka + 1))
    a("s_load_dwordx4 s[24:27], s[%d:%d], 104" % (ka, ka + 1))
    a("v_and_b32 v1, 63, v0")
    a("v_lshrrev_b32 v2, 6, v0")
    a("v_readfirstlane_b32 s44, v2")
    a("s_and_b32 s45, s44, 3")
    a("s_lshr_b32 s46, s44, 2")
    a("s_add_u32 s%d, s%d, s%d" % (s_rot, s_hq, s_rb))
    a("s_and_b32 s%d, s%d, 3" % (s_rot, s_rot))
    a("s_lshl_b32 s%d, s%d, 1" % (s_rot, s_rot))
    a("v_lshrrev_b32 v%d, 3, v%d" % (vT0, vLane))
    a("v_and_b32 v%d, 7, v%d" % (vT1, vLane))
    a("v_lshrrev_b32 v%d, 1, v%d" % (vT2, vT0))
    a("v_xor_b32 v%d, v%d, v%d" % (vT2, vT2, vT1))
    a("s_lshl_b32 s%d, s%d, 7" % (s_t0, s_rb))
    a("s_lshl_b32 s%d, s%d, 4" % (s_t1, s_w))
    a("s_add_u32 s%d, s%d, s%d" % (s_t0, s_t0, s_t1))
    a("v_add_u32 v%d, s%d, v%d" % (vT3, s_t0, vT0))
    a("v_lshlrev_b32 v%d, 10, v%d" % (vT3, vT3))
    a("v_lshlrev_b32 v%d, 4, v%d" % (vXs0, vT2))
    a("v_add_u32 v%d, v%d, v%d" % (vXs0, vXs0, vT3))
    a("v_xor_b32 v%d, 4, v%d" % (vT2, vT2))
    a("v_lshlrev_b32 v%d, 4, v%d" % (vXs1, vT2))
    a("v_add_u32 v%d, v%d, v%d" % (vXs1, vXs1, vT3))
    a("v_add_u32 v%d, 8192, v%d" % (vXs1, vXs1))
    a("v_bfe_u32 v%d, v%d, 1, 1" % (vT2, vT0))
    a("v_lshlrev_b32 v%d, 2, v%d" % (vT2, vT2))
    a("v_xor_b32 v%d, v%d, v%d" % (vT2, vT2, vT1))
    a("v_lshlrev_b32 v%d, 4, v%d" % (vT2, vT2))
    a("s_lshl_b32 s%d, s%d, 3" % (s_t1, s_w))
    a("v_add_u32 v%d, s%d, v%d" % (vT3, s_t1, vT0))
    a("v_lshlrev_b32 v%d, 10, v%d" % (vWOs, vT3))
    a("v_mul_u32_u24 v%d, 3072, v%d" % (vT3, vT3))
    a("s_lshl_b32 s%d, s%d, 7" % (s_t1, s_hq))
    a("v_add3_u32 v%d, v%d, v%d, s%d" % (vWs, vT3, vT2, s_t1))
    a("v_add3_u32 v%d, v%d, v%d, s%d" % (vWOs, vWOs, vT2, s_t1))
    a("s_lshl_b32 s%d, s%d, 11" % (s_m0x, s_w))
    a("s_lshl_b32 s%d, s%d, 10" % (s_m0w, s_w))
    a("s_waitcnt lgkmcnt(0)")
    srd(a, sX, 16, 17, 2048 * 512 * 2)
    srd(a, sW, 18, 19, 512 * 1536 * 2)
    srd(a, sWS, 26, 27, 1 << 28)
    srd(a, sDBG, 24, 25, 256)
    srd(a, sWO, 20, 21, 512 * 512 * 2)
    srd(a, sOUT, 22, 23, 2048 * 1024 * 2)

    s_cc, s_xo, s_wo = 59, 68, 69

    def chunk_offsets(c):
        a("s_add_u32 s%d, s%d, %d" % (s_cc, s_rot, c))
        a("s_and_b32 s%d, s%d, 7" % (s_cc, s_cc))
        a("s_lshl_b32 s%d, s%d, 7" % (s_xo, s_cc))
        a("s_mul_i32 s%d, s%d, 196608" % (s_wo, s_cc))

    def dma(m0base, m0off, vaddr, srdreg, so):
        a("s_add_u32 m0, s%d, %d" % (m0base, m0off))
        a("buffer_load_dwordx4 v%d, s[%d:%d], %s offen lds" % (vaddr, srdreg, srdreg + 3, so))

    def fill_ops(i):
        b = (i % 5) * SLOT if i < 11 else 2 * SLOT
        ops = []
        if i < 8:
            def o0(): chunk_offsets(i); dma(s_m0x, b, vXs0, sX, "s%d" % s_xo)
            def o1(): dma(s_m0x, b + 1024, vXs1, sX, "s%d" % s_xo)
            def o2():
                a("s_add_u32 s%d, s%d, 1024" % (s_off, s_wo)); dma(s_m0w, b + 16384, vWs, sW, "s%d" % s_off)
            def o3():
                a("s_add_u32 s%d, s%d, 2048" % (s_off, s_wo)); dma(s_m0w, b + 24576, vWs, sW, "s%d" % s_off)
            ops = [o0, o1, o2, o3]
        elif i < 10:
            half = i - 8
            for j in range(4):
                def oq(j=j):
                    chunk_offsets(4 * half + j); dma(s_m0w, b + 8192 * j, vWs, sW, "s%d" % s_wo)
                ops.append(oq)
        else:
            half = i - 10
            for j in range(4):
                def ow(j=j):
                    a("s_mov_b32 s%d, %d" % (s_off, (4 * half + j) * 65536)); dma(s_m0w, b + 8192 * j, vWOs, sWO, "s%d" % s_off)
                ops.append(ow)
        return ops

    for i in range(3):
        for o in fill_ops(i):
            o()
    a("v_and_b32 v%d, 31, v%d" % (vT0, vLane))
    a("v_lshrrev_b32 v%d, 5, v%d" % (vT1, vLane))
    a("v_bfe_u32 v%d, v%d, 1, 3" % (vT2, vLane))
    a("s_lshl_b32 s%d, s%d, 5" % (s_t0, 45))
    a("v_add_u32 v%d, s%d, v%d" % (vT3, s_t0, vT0))
    a("v_lshlrev_b32 v%d, 7, v%d" % (vT3, vT3))
    for i in range(4):
        a("v_add_u32 v%d, %d, v%d" % (vXr + i, 2 * i, vT1))
        a("v_xor_b32 v%d, v%d, v%d" % (vXr + i, vXr + i, vT2))
        a("v_lshlrev_b32 v%d, 4, v%d" % (vXr + i, vXr + i))
        a("v_add_u32 v%d, v%d, v%d" % (vXr + i, vXr + i, vT3))
    a("v_bfe_u32 v%d, v%d, 2, 2" % (vT0, vLane))
    a("v_lshlrev_b32 v%d, 3, v%d" % (vT2, vT1))
    a("v_add_u32 v%d, v%d, v%d" % (vT2, vT2, vT0))
    a("v_lshlrev_b32 v%d, 7, v%d" % (vWr, vT2))
    a("v_lshrrev_b32 v%d, 1, v%d" % (vT0, vT0))
    a("v_xor_b32 v%d, s%d, v%d" % (vT0, s_ch, vT0))
    a("v_lshlrev_b32 v%d, 6, v%d" % (vT0, vT0))
    a("v_add_u32 v%d, v%d, v%d" % (vWr, vWr, vT0))
    a("v_bfe_u32 v%d, v%d, 4, 1" % (vT0, vLane))
    a("v_lshlrev_b32 v%d, 5, v%d" % (vT0, vT0))
    a("v_and_b32 v%d, 3, v%d" % (vT2, vLane))
    a("v_lshlrev_b32 v%d, 3, v%d" % (vT2, vT2))
    a("v_add3_u32 v%d, v%d, v%d, v%d" % (vWr, vWr, vT0, vT2))
    for i in range(16):
        a("v_mov_b32 v%d, 0" % (AK + i)); a("v_mov_b32 v%d, 0" % (AV + i)); a("v_mov_b32 v%d, 0" % (AQ + i))

    def mf(D, A_, B_):
        a("v_mfma_f32_32x32x16_bf16 v[%d:%d], v[%d:%d], v[%d:%d], v[%d:%d]" % (D, D + 15, A_, A_ + 3, B_, B_ + 3, D, D + 15))

    for c in range(8):
        slot = c % 5
        a("s_waitcnt vmcnt(8)")
        if not (S.get("x_nobar") and c > 0):
            a("s_barrier")
        if c == 0:
            stamp(a, S, 1)
        for i in range(4):
            a("v_add_u32 v%d, %d, v%d" % (vXc + i, slot * SLOT, vXr + i))
        a("v_add_u32 v%d, %d, v%d" % (vWc, slot * SLOT, vWr))
        fo = fill_ops(c + 3)

        def rd(i):
            X = XF + 16 * c + 4 * i
            F = WF + 8 * i
            if S.get("x_noread"):
                for _ in range(5):
                    a("ds_read_b32 v%d, v%d" % (X, vXc + i))
                return
            a("ds_read_b128 v[%d:%d], v%d" % (X, X + 3, vXc + i))
            for mat, base in ((0, 16384), (1, 24576)):
                for j in range(2):
                    a("ds_read_b64_tr_b16 v[%d:%d], v%d offset:%d" % (F + 4 * mat + 2 * j, F + 4 * mat + 2 * j + 1, vWc, base + (16 * i + 4 * j) * 128))

        rd(0); rd(1)
        for i in range(4):
            a("s_waitcnt lgkmcnt(%d)" % (5 if i < 3 else 0))
            X = XF + 16 * c + 4 * i
            F = WF + 8 * i
            mf(AK, X, F)
            mf(AV, X, F + 4)
            if i + 2 < 4:
                rd(i + 2)
            if not S.get("x_nofill"):
                fo[i]()
    stamp(a, S, 2)
    if S.get("x_stop"):
        return
    PKp, PVp = TMP, TMP + 8
    t4 = TMP + 16
    phi(a, AK, 16, t4)
    for i in range(8):
        a("v_cvt_pk_bf16_f32 v%d, v%d, v%d" % (PKp + i, AK + 2 * i, AK + 2 * i + 1))
        a("v_cvt_pk_bf16_f32 v%d, v%d, v%d" % (PVp + i, AV + 2 * i, AV + 2 * i + 1))
    vZ = TMP + 20
    a("v_mov_b32 v%d, 0" % vZ)
    a("v_mov_b32 v%d, 0x3f803f80" % (TMP + 21))
    DKV = AK
    a("v_mfma_f32_32x32x16_bf16 v[%d:%d], v[%d:%d], v[%d:%d], 0" % (DKV, DKV + 15, PKp, PKp + 3, PVp, PVp + 3))
    a("v_mfma_f32_32x32x16_bf16 v[%d:%d], v[%d:%d], v[%d:%d], v[%d:%d]" % (DKV, DKV + 15, PKp + 4, PKp + 7, PVp + 4, PVp + 7, DKV, DKV + 15))
    for i in range(8):
        a("v_dot2c_f32_bf16 v%d, v%d, v%d" % (vZ, PKp + i, TMP + 21))
    RED = 1 * SLOT
    ZRED = RED + 16384
    s_msk = 52
    a("v_bfe_u32 v%d, v%d, 4, 1" % (vT0, vLane))
    a("v_cmp_eq_u32 s[%d:%d], 1, v%d" % (s_msk, s_msk + 1, vT0))
    SEL = PVp
    a("s_lshl_b32 s%d, s%d, 8" % (s_t0, s_w))
    a("s_add_u32 s%d, s%d, %d" % (s_t0, s_t0, ZRED))
    a("v_lshlrev_b32 v%d, 2, v%d" % (vT1, vLane))
    a("v_add_u32 v%d, s%d, v%d" % (vT1, s_t0, vT1))
    a("ds_write_b32 v%d, v%d" % (vT1, vZ))
    a("s_lshl_b32 s%d, s%d, 11" % (s_t0, s_w))
    a("s_add_u32 s%d, s%d, %d" % (s_t0, s_t0, RED))
    a("v_lshlrev_b32 v%d, 5, v%d" % (vT0, vLane))
    a("v_add_u32 v%d, s%d, v%d" % (vT0, s_t0, vT0))
    for i in range(8):
        a("v_cndmask_b32 v%d, v%d, v%d, s[%d:%d]" % (SEL + i, DKV + i, DKV + 8 + i, s_msk, s_msk + 1))
    a("ds_write_b128 v%d, v[%d:%d]" % (vT0, SEL, SEL + 3))
    a("ds_write_b128 v%d, v[%d:%d] offset:16" % (vT0, SEL + 4, SEL + 7))
    vG = TMP + 22
    a("v_and_b32 v%d, 7, v%d" % (vT2, vLane))
    a("v_lshlrev_b32 v%d, 2, v%d" % (vT2, vT2))
    lg = a.newlabel("Lg")
    a.label(lg)
    a("buffer_load_dword v%d, v%d, s[%d:%d], 0 offen sc1" % (vG, vT2, sDBG, sDBG + 3))
    a("s_waitcnt vmcnt(0)")
    a("v_cmp_ne_u32 vcc, 1, v%d" % vG)
    a("s_cbranch_vccnz %s" % lg)
    a("s_waitcnt lgkmcnt(0)")
    a("s_barrier")
    for o in fill_ops(11):
        o()
    s_hp, s_hf = 54, 55
    a("s_bfe_u32 s%d, s%d, 0x10001" % (s_hp, s_w))
    a("s_and_b32 s%d, s%d, 1" % (s_hf, s_w))
    a("s_lshl_b32 s%d, s%d, 5" % (s_t0, s_hf))
    a("s_lshl_b32 s%d, s%d, 4" % (s_t1, s_hp))
    a("s_add_u32 s%d, s%d, s%d" % (s_t0, s_t0, s_t1))
    a("s_lshl_b32 s%d, s%d, 5" % (s_t0, s_t0))
    a("s_lshl_b32 s%d, s%d, 13" % (s_t1, s_ch))
    a("s_add_u32 s%d, s%d, s%d" % (s_t0, s_t0, s_t1))
    a("s_add_u32 s%d, s%d, %d" % (s_t0, s_t0, RED))
    a("v_lshlrev_b32 v%d, 2, v%d" % (vT0, vLane))
    a("v_add_u32 v%d, s%d, v%d" % (vT0, s_t0, vT0))
    R_ = TMP
    for row in range(2):
        for g in range(4):
            a("ds_read_b32 v%d, v%d offset:%d" % (R_ + 4 * row + g, vT0, 2048 * g + 256 * row))
    a("v_and_b32 v%d, 31, v%d" % (vT1, vLane))
    a("v_lshlrev_b32 v%d, 2, v%d" % (vT1, vT1))
    a("s_lshl_b32 s%d, s%d, 10" % (s_t1, s_ch))
    a("s_add_u32 s%d, s%d, %d" % (s_t1, s_t1, ZRED))
    a("v_add_u32 v%d, s%d, v%d" % (vT1, s_t1, vT1))
    for g in range(4):
        for hf in range(2):
            a("ds_read_b32 v%d, v%d offset:%d" % (R_ + 8 + 2 * g + hf, vT1, 256 * g + 128 * hf))
    a("s_lshl_b32 s%d, s%d, 2" % (s_t0, s_hq))
    a("s_lshl_b32 s%d, s%d, 1" % (s_t1, s_ch))
    a("s_add_u32 s%d, s%d, s%d" % (s_t0, s_t0, s_t1))
    a("s_add_u32 s%d, s%d, s%d" % (s_t1, s_t0, s_hp))
    a("s_lshl_b32 s%d, s%d, 10" % (s_t1, s_t1))
    a("s_lshl_b32 s%d, s%d, 9" % (s_off, s_hf))
    a("s_add_u32 s%d, s%d, s%d" % (s_t1, s_t1, s_off))
    a("v_lshlrev_b32 v%d, 2, v%d" % (vT2, vLane))
    a("v_add_u32 v%d, s%d, v%d" % (vT2, s_t1, vT2))
    a("v_bfe_u32 v%d, v%d, 4, 1" % (vT3, vLane))
    a("v_add_u32 v%d, s%d, v%d" % (vT3, s_t0, vT3))
    a("v_lshlrev_b32 v%d, 6, v%d" % (vT3, vT3))
    a("v_bfe_u32 v%d, v%d, 2, 1" % (R_ + 16, vLane))
    a("v_lshlrev_b32 v%d, 5, v%d" % (R_ + 16, R_ + 16))
    a("v_add_u32 v%d, v%d, v%d" % (vT3, vT3, R_ + 16))
    a("v_and_b32 v%d, 3, v%d" % (R_ + 16, vLane))
    a("v_bfe_u32 v%d, v%d, 3, 1" % (R_ + 17, vLane))
    a("v_lshlrev_b32 v%d, 2, v%d" % (R_ + 17, R_ + 17))
    a("v_add_u32 v%d, v%d, v%d" % (R_ + 16, R_ + 16, R_ + 17))
    a("v_lshlrev_b32 v%d, 2, v%d" % (R_ + 16, R_ + 16))
    a("v_add_u32 v%d, v%d, v%d" % (vT3, vT3, R_ + 16))
    a("v_add_u32 v%d, %d, v%d" % (vT3, WS_Z, vT3))
    a("s_waitcnt lgkmcnt(8)")
    for row in range(2):
        b = R_ + 4 * row
        a("v_add_f32 v%d, v%d, v%d" % (b, b, b + 1))
        a("v_add_f32 v%d, v%d, v%d" % (b + 2, b + 2, b + 3))
        a("v_add_f32 v%d, v%d, v%d" % (b, b, b + 2))
    for row in range(2):
        a("buffer_atomic_add_f32 v%d, v%d, s[%d:%d], 0 offen offset:%d" % (R_ + 4 * row, vT2, sWS, sWS + 3, WS_KV + 256 * row))
    a("s_waitcnt lgkmcnt(0)")
    b = R_ + 8
    for st in (1, 2, 4):
        for k in range(0, 8, 2 * st):
            a("v_add_f32 v%d, v%d, v%d" % (b + k, b + k, b + k + st))
    lz = a.newlabel("Lz")
    a("s_and_b32 s%d, s%d, 3" % (s_t0, s_w))
    a("s_cmp_eq_u32 s%d, 0" % s_t0)
    a("s_cbranch_scc0 %s" % lz)
    a("s_mov_b64 s[56:57], exec")
    a("s_mov_b32 exec_lo, -1")
    a("s_mov_b32 exec_hi, 0")
    a("buffer_atomic_add_f32 v%d, v%d, s[%d:%d], 0 offen" % (b, vT3, sWS, sWS + 3))
    a("s_mov_b64 exec, s[56:57]")
    a.label(lz)
    stamp(a, S, 3)
    for half in range(2):
        slot = 3 + half
        a("v_add_u32 v%d, %d, v%d" % (vWc, slot * SLOT, vWr))

        def rdq(st):
            F = WF + 4 * (st % 8)
            j4, i = st >> 2, st & 3
            for j in range(2):
                a("ds_read_b64_tr_b16 v[%d:%d], v%d offset:%d" % (F + 2 * j, F + 2 * j + 1, vWc, 8192 * j4 + (16 * i + 4 * j) * 128))
        for st in range(4):
            rdq(st)
        for st in range(16):
            a("s_waitcnt lgkmcnt(%d)" % (min(6, 2 * (15 - st))))
            F = WF + 4 * (st % 8)
            X = XF + 64 * half + 4 * st
            mf(AQ, F, X)
            if st + 4 < 16:
                rdq(st + 4)
    phi(a, AQ, 16, t4)
    PQ = TMP
    for i in range(8):
        a("v_cvt_pk_bf16_f32 v%d, v%d, v%d" % (PQ + i, AQ + 2 * i, AQ + 2 * i + 1))
    a("s_lshl_b32 s%d, s%d, 2" % (s_t0, s_hq))
    a("s_lshl_b32 s%d, s%d, 1" % (s_t1, s_ch))
    a("s_add_u32 s%d, s%d, s%d" % (s_t0, s_t0, s_t1))
    a("s_lshl_b32 s%d, s%d, 6" % (s_t0, s_t0))
    a("s_lshl_b32 s%d, s%d, 2" % (s_t1, s_rb))
    a("s_add_u32 s%d, s%d, s%d" % (s_t0, s_t0, s_t1))
    a("s_add_u32 s%d, s%d, s%d" % (s_t0, s_t0, 45))
    a("s_lshl_b32 s%d, s%d, 10" % (s_t0, s_t0))
    a("s_add_u32 s%d, s%d, %d" % (s_t0, s_t0, WS_PQ))
    a("v_lshlrev_b32 v%d, 4, v%d" % (vT2, vLane))
    a("v_add_u32 v%d, s%d, v%d" % (vT2, s_t0, vT2))
    a("buffer_store_dwordx4 v[%d:%d], v%d, s[%d:%d], 0 offen sc1" % (PQ, PQ + 3, vT2, sWS, sWS + 3))
    a("s_mov_b32 s%d, 65536" % s_off)
    a("buffer_store_dwordx4 v[%d:%d], v%d, s[%d:%d], s%d offen sc1" % (PQ + 4, PQ + 7, vT2, sWS, sWS + 3, s_off))
    stamp(a, S, 4)
    a("s_waitcnt vmcnt(0)")
    a("s_barrier")
    lw = a.newlabel("Lw")
    a("s_cmp_eq_u32 s%d, 0" % s_w)
    a("s_cbranch_scc0 %s" % lw)
    a("s_lshl_b32 s%d, s%d, 3" % (s_t0, s_rb))
    a("s_add_u32 s%d, s%d, s%d" % (s_t0, s_t0, s_hq))
    a("s_lshl_b32 s%d, s%d, 6" % (s_t0, s_t0))
    a("s_add_u32 s%d, s%d, %d" % (s_t0, s_t0, WS_FLAG))
    a("v_mov_b32 v%d, s%d" % (vT0, s_t0))
    a("v_mov_b32 v%d, 0x%x" % (vT1, MAGIC))
    a("s_mov_b64 s[56:57], exec")
    a("s_mov_b64 exec, 1")
    a("buffer_store_dword v%d, v%d, s[%d:%d], 0 offen sc1" % (vT1, vT0, sWS, sWS + 3))
    a("s_mov_b64 exec, s[56:57]")
    a("v_lshlrev_b32 v%d, 6, v%d" % (vT0, vLane))
    a("v_add_u32 v%d, %d, v%d" % (vT0, WS_FLAG, vT0))
    a("s_mov_b32 s%d, 4096" % s_off)
    a("s_mov_b32 s%d, 0x%x" % (s_t0, MAGIC))
    lp = a.newlabel("Lp")
    a.label(lp)
    a("buffer_load_dword v%d, v%d, s[%d:%d], 0 offen sc1" % (vT2, vT0, sWS, sWS + 3))
    a("buffer_load_dword v%d, v%d, s[%d:%d], s%d offen sc1" % (vT3, vT0, sWS, sWS + 3, s_off))
    a("s_waitcnt vmcnt(0)")
    a("v_cmp_ne_u32 vcc, s%d, v%d" % (s_t0, vT2))
    a("v_cmp_ne_u32 s[56:57], s%d, v%d" % (s_t0, vT3))
    a("s_or_b64 vcc, vcc, s[56:57]")
    a("s_cbranch_vccnz %s" % lp)
    a.label(lw)
    a("s_barrier")
    stamp(a, S, 5)

    s_hh = 46
    WO = 0
    KVF = 3 * SLOT
    OST = 4 * SLOT
    PQF = 128
    a("s_lshl_b32 s%d, s%d, 10" % (s_t0, s_hh))
    a("s_lshl_b32 s%d, s%d, 2" % (s_t1, s_rb))
    a("s_add_u32 s%d, s%d, s%d" % (s_t0, s_t0, s_t1))
    a("s_add_u32 s%d, s%d, s%d" % (s_t0, s_t0, 45))
    a("s_lshl_b32 s%d, s%d, 10" % (s_t0, s_t0))
    a("s_add_u32 s%d, s%d, %d" % (s_t0, s_t0, WS_PQ))
    KL = 64
    a("v_lshlrev_b32 v%d, 4, v%d" % (vT0, vLane))
    a("s_lshl_b32 s%d, s%d, 12" % (s_t1, s_w))
    a("v_add_u32 v%d, s%d, v%d" % (vT1, s_t1, vT0))
    for i in range(4):
        a("buffer_load_dwordx4 v[%d:%d], v%d, s[%d:%d], 0 offen offset:%d sc1" % (KL + 4 * i, KL + 4 * i + 3, vT1, sWS, sWS + 3, WS_KV + 1024 * i))
    ZL = 80
    a("s_and_b32 s%d, s%d, 1" % (s_t1, s_w))
    a("s_lshl_b32 s%d, s%d, 10" % (s_t1, s_t1))
    a("s_add_u32 s%d, s%d, %d" % (s_t1, s_t1, WS_Z))
    a("v_add_u32 v%d, s%d, v%d" % (vT2, s_t1, vT0))
    a("buffer_load_dwordx4 v[%d:%d], v%d, s[%d:%d], 0 offen sc1" % (ZL, ZL + 3, vT2, sWS, sWS + 3))
    a("v_add_u32 v%d, s%d, v%d" % (vT0, s_t0, vT0))
    for i in range(16):
        if i == 0:
            so = "0"
        else:
            a("s_mov_b32 s%d, %d" % (s_off, i * 65536)); so = "s%d" % s_off
        a("buffer_load_dwordx4 v[%d:%d], v%d, s[%d:%d], %s offen sc1" % (PQF + 4 * i, PQF + 4 * i + 3, vT0, sWS, sWS + 3, so))
    a("v_lshrrev_b32 v%d, 5, v%d" % (vT1, vLane))
    a("v_lshlrev_b32 v%d, 9, v%d" % (vT1, vT1))
    a("v_bfe_u32 v%d, v%d, 1, 4" % (vT2, vLane))
    a("v_lshlrev_b32 v%d, 4, v%d" % (vT2, vT2))
    a("v_and_b32 v%d, 1, v%d" % (vT3, vLane))
    a("v_lshlrev_b32 v%d, 3, v%d" % (vT3, vT3))
    a("v_add3_u32 v%d, v%d, v%d, v%d" % (vT1, vT1, vT2, vT3))
    a("s_lshl_b32 s%d, s%d, 12" % (s_t1, s_w))
    a("s_add_u32 s%d, s%d, %d" % (s_t1, s_t1, KVF))
    a("v_add_u32 v%d, s%d, v%d" % (vT1, s_t1, vT1))
    for i in range(4):
        a("s_waitcnt vmcnt(%d)" % (20 - i))
        a("v_cvt_pk_bf16_f32 v%d, v%d, v%d" % (96 + 2 * i, KL + 4 * i, KL + 4 * i + 1))
        a("v_cvt_pk_bf16_f32 v%d, v%d, v%d" % (97 + 2 * i, KL + 4 * i + 2, KL + 4 * i + 3))
        a("ds_write_b64 v%d, v[%d:%d] offset:%d" % (vT1, 96 + 2 * i, 97 + 2 * i, 1024 * i))
    a("s_and_b32 s%d, s%d, 1" % (s_t1, s_w))
    a("s_lshl_b32 s%d, s%d, 14" % (s_t1, s_t1))
    a("s_add_u32 s%d, s%d, %d" % (s_t1, s_t1, KVF + 256))
    a("v_lshrrev_b32 v%d, 2, v%d" % (vT2, vLane))
    a("v_lshlrev_b32 v%d, 10, v%d" % (vT2, vT2))
    a("v_bfe_u32 v%d, v%d, 1, 1" % (vT3, vLane))
    a("v_lshlrev_b32 v%d, 9, v%d" % (vT3, vT3))
    a("v_add3_u32 v%d, v%d, v%d, s%d" % (vT2, vT2, vT3, s_t1))
    a("v_and_b32 v%d, 1, v%d" % (vT3, vLane))
    a("v_lshlrev_b32 v%d, 3, v%d" % (vT3, vT3))
    a("v_add_u32 v%d, v%d, v%d" % (vT2, vT2, vT3))
    a("s_waitcnt vmcnt(16)")
    a("v_cvt_pk_bf16_f32 v104, v%d, v%d" % (ZL, ZL + 1))
    a("v_cvt_pk_bf16_f32 v105, v%d, v%d" % (ZL + 2, ZL + 3))
    lzz = a.newlabel("Lzz")
    a("s_cmp_lt_u32 s%d, 2" % s_w)
    a("s_cbranch_scc0 %s" % lzz)
    a("ds_write_b64 v%d, v[104:105]" % vT2)
    a("ds_write_b64 v%d, v[104:105] offset:64" % vT2)
    a.label(lzz)
    vKr, vWr2, vWr1 = 8, 9, 10
    a("v_lshlrev_b32 v%d, 4, v%d" % (vKr, vLane))
    a("s_lshl_b32 s%d, s%d, 14" % (s_t0, s_hh))
    a("s_add_u32 s%d, s%d, %d" % (s_t0, s_t0, KVF))
    a("v_add_u32 v%d, s%d, v%d" % (vKr, s_t0, vKr))
    a("v_lshrrev_b32 v%d, 5, v%d" % (vT1, vLane))
    a("v_bfe_u32 v%d, v%d, 2, 2" % (vT0, vLane))
    a("v_lshlrev_b32 v%d, 2, v%d" % (vT2, vT1))
    a("v_add_u32 v%d, v%d, v%d" % (vT2, vT2, vT0))
    a("v_lshlrev_b32 v%d, 7, v%d" % (vWr2, vT2))
    a("v_lshrrev_b32 v%d, 1, v%d" % (vT0, vT0))
    a("v_lshlrev_b32 v%d, 6, v%d" % (vT3, vT0))
    a("v_bfe_u32 v%d, v%d, 4, 1" % (vT2, vLane))
    a("v_lshlrev_b32 v%d, 5, v%d" % (vT2, vT2))
    a("v_add_u32 v%d, v%d, v%d" % (vWr2, vWr2, vT2))
    a("v_and_b32 v%d, 3, v%d" % (vT2, vLane))
    a("v_lshlrev_b32 v%d, 3, v%d" % (vT2, vT2))
    a("v_add_u32 v%d, v%d, v%d" % (vWr2, vWr2, vT2))
    a("s_lshl_b32 s%d, s%d, 16" % (s_t0, s_hh))
    a("v_add_u32 v%d, s%d, v%d" % (vWr2, s_t0, vWr2))
    a("v_xor_b32 v%d, 64, v%d" % (vWr1, vT3))
    a("v_add_u32 v%d, v%d, v%d" % (vWr1, vWr1, vWr2))
    a("v_add_u32 v%d, v%d, v%d" % (vWr2, vWr2, vT3))
    O0, O1 = 12, 28
    D1 = [44, 96]
    KA = [60, 112]
    WA = [64, 72]
    OB = [80, 84]
    vR = 88
    for i in range(16):
        a("v_mov_b32 v%d, 0" % (O0 + i)); a("v_mov_b32 v%d, 0" % (O1 + i))
    a("s_waitcnt lgkmcnt(0)")
    a("s_barrier")
    stamp(a, S, 6)

    def rd_kv(h):
        a("ds_read_b128 v[%d:%d], v%d offset:%d" % (KA[h & 1], KA[h & 1] + 3, vKr, 1024 * h))

    def rd_wo(h):
        W_ = WA[h & 1]
        for jt, vb in ((0, vWr2), (1, vWr1)):
            for j in range(2):
                a("ds_read_b64_tr_b16 v[%d:%d], v%d offset:%d" % (W_ + 4 * jt + 2 * j, W_ + 4 * jt + 2 * j + 1, vb, WO + (16 * h + 8 * j) * 128))

    def num(h):
        a("s_waitcnt vmcnt(%d)" % (15 - h))
        a("v_mfma_f32_32x32x16_bf16 v[%d:%d], v[%d:%d], v[%d:%d], 0" % (D1[h & 1], D1[h & 1] + 15, KA[h & 1], KA[h & 1] + 3, PQF + 4 * h, PQF + 4 * h + 3))

    rd_kv(0)
    a("s_waitcnt lgkmcnt(0)")
    num(0)
    rd_kv(1); rd_wo(0)
    for h in range(16):
        if h + 1 < 16:
            a("s_waitcnt lgkmcnt(4)")
            num(h + 1)
        D = D1[h & 1]
        a("v_add_f32 v%d, 0x%x, v%d" % (vR, EPS, D + 8))
        a("v_rcp_f32 v%d, v%d" % (vR, vR))
        for i in range(8):
            a("v_mul_f32 v%d, v%d, v%d" % (D + i, D + i, vR))
        B_ = OB[h & 1]
        for i in range(4):
            a("v_cvt_pk_bf16_f32 v%d, v%d, v%d" % (B_ + i, D + 2 * i, D + 2 * i + 1))
        a("s_waitcnt lgkmcnt(0)")
        if h + 2 < 16:
            rd_kv(h + 2)
        W_ = WA[h & 1]
        a("v_mfma_f32_32x32x16_bf16 v[%d:%d], v[%d:%d], v[%d:%d], v[%d:%d]" % (O0, O0 + 15, W_, W_ + 3, B_, B_ + 3, O0, O0 + 15))
        a("v_mfma_f32_32x32x16_bf16 v[%d:%d], v[%d:%d], v[%d:%d], v[%d:%d]" % (O1, O1 + 15, W_ + 4, W_ + 7, B_, B_ + 3, O1, O1 + 15))
        if h + 1 < 16:
            rd_wo(h + 1)
    stamp(a, S, 7)
    a("s_lshl_b32 s%d, s%d, 12" % (s_t0, s_w))
    a("s_add_u32 s%d, s%d, %d" % (s_t0, s_t0, OST))
    a("v_lshlrev_b32 v%d, 4, v%d" % (vT0, vLane))
    a("v_add_u32 v%d, s%d, v%d" % (vT0, s_t0, vT0))
    lA, lB = a.newlabel("Lx"), a.newlabel("Lx")
    a("s_cmp_eq_u32 s%d, 0" % s_hh)
    a("s_cbranch_scc0 %s" % lA)
    for q in range(4):
        a("ds_write_b128 v%d, v[%d:%d] offset:%d" % (vT0, O1 + 4 * q, O1 + 4 * q + 3, 1024 * q))
    a("s_branch %s" % lB)
    a.label(lA)
    for q in range(4):
        a("ds_write_b128 v%d, v[%d:%d] offset:%d" % (vT0, O0 + 4 * q, O0 + 4 * q + 3, 1024 * q))
    a("s_waitcnt lgkmcnt(0)")
    for i in range(16):
        a("v_mov_b32 v%d, v%d" % (O0 + i, O1 + i))
    a.label(lB)
    a("s_waitcnt lgkmcnt(0)")
    a("s_barrier")
    a("s_xor_b32 s%d, s%d, 4" % (s_t0, s_w))
    a("s_lshl_b32 s%d, s%d, 12" % (s_t0, s_t0))
    a("s_add_u32 s%d, s%d, %d" % (s_t0, s_t0, OST))
    a("v_lshlrev_b32 v%d, 4, v%d" % (vT0, vLane))
    a("v_add_u32 v%d, s%d, v%d" % (vT0, s_t0, vT0))
    for q in range(4):
        a("ds_read_b128 v[%d:%d], v%d offset:%d" % (O1 + 4 * q, O1 + 4 * q + 3, vT0, 1024 * q))
    a("s_waitcnt lgkmcnt(0)")
    for i in range(16):
        a("v_add_f32 v%d, v%d, v%d" % (O0 + i, O0 + i, O1 + i))
    ST = 0
    for q in range(4):
        a("v_cvt_pk_bf16_f32 v%d, v%d, v%d" % (O1 + 2 * q, O0 + 4 * q, O0 + 4 * q + 1))
        a("v_cvt_pk_bf16_f32 v%d, v%d, v%d" % (O1 + 2 * q + 1, O0 + 4 * q + 2, O0 + 4 * q + 3))
    a("v_and_b32 v%d, 31, v%d" % (vT0, vLane))
    a("s_lshl_b32 s%d, s%d, 5" % (s_t0, 45))
    a("v_add_u32 v%d, s%d, v%d" % (vT0, s_t0, vT0))
    a("v_mul_u32_u24 v%d, 144, v%d" % (vT0, vT0))
    a("v_lshrrev_b32 v%d, 5, v%d" % (vT1, vLane))
    a("v_lshlrev_b32 v%d, 3, v%d" % (vT1, vT1))
    a("s_lshl_b32 s%d, s%d, 6" % (s_t0, s_hh))
    a("v_add3_u32 v%d, v%d, v%d, s%d" % (vT0, vT0, vT1, s_t0))
    for q in range(4):
        a("ds_write_b64 v%d, v[%d:%d] offset:%d" % (vT0, O1 + 2 * q, O1 + 2 * q + 1, ST + 16 * q))
    a("s_waitcnt lgkmcnt(0)")
    a("s_barrier")
    a("v_lshrrev_b32 v%d, 3, v%d" % (vT0, vLane))
    a("s_lshl_b32 s%d, s%d, 4" % (s_t0, s_w))
    a("v_add_u32 v%d, s%d, v%d" % (vT0, s_t0, vT0))
    a("v_and_b32 v%d, 7, v%d" % (vT1, vLane))
    a("v_lshlrev_b32 v%d, 4, v%d" % (vT1, vT1))
    a("v_mul_u32_u24 v%d, 144, v%d" % (vT2, vT0))
    a("v_add_u32 v%d, v%d, v%d" % (vT2, vT2, vT1))
    a("ds_read_b128 v[44:47], v%d offset:%d" % (vT2, ST))
    a("ds_read_b128 v[48:51], v%d offset:%d" % (vT2, ST + 8 * 144))
    a("s_lshl_b32 s%d, s%d, 7" % (s_t0, s_rb))
    a("v_add_u32 v%d, s%d, v%d" % (vT0, s_t0, vT0))
    a("v_lshlrev_b32 v%d, 11, v%d" % (vT0, vT0))
    a("s_lshl_b32 s%d, s%d, 7" % (s_t0, s_hq))
    a("s_add_u32 s%d, s%d, 1024" % (s_t0, s_t0))
    a("v_add3_u32 v%d, v%d, v%d, s%d" % (vT0, vT0, vT1, s_t0))
    a("s_mov_b32 s%d, 16384" % s_off)
    a("s_waitcnt lgkmcnt(1)")
    a("buffer_store_dwordx4 v[44:47], v%d, s[%d:%d], 0 offen" % (vT0, sOUT, sOUT + 3))
    a("s_waitcnt lgkmcnt(0)")
    a("buffer_store_dwordx4 v[48:51], v%d, s[%d:%d], s%d offen" % (vT0, sOUT, sOUT + 3, s_off))
    stamp(a, S, 8)


def emit_zero_init(a: Asm, ka, s_hq):
    a("s_load_dwordx4 s[24:27], s[%d:%d], 104" % (ka, ka + 1))
    a("v_and_b32 v1, 63, v0")
    for r in range(4):
        a("v_mov_b32 v%d, 0" % (8 + r))
    a("s_waitcnt lgkmcnt(0)")
    srd(a, 36, 26, 27, 1 << 28)
    srd(a, 40, 24, 25, 256)
    a("v_lshlrev_b32 v3, 4, v1")
    a("s_lshl_b32 s47, s%d, 12" % s_hq)
    a("v_add_u32 v4, s47, v3")
    for r in range(4):
        a("buffer_store_dwordx4 v[8:11], v4, s[36:39], 0 offen offset:%d sc1" % (WS_KV + 1024 * r))
    a("s_lshl_b32 s47, s%d, 8" % s_hq)
    a("s_add_u32 s47, s47, %d" % WS_Z)
    a("v_and_b32 v4, 15, v1")
    a("v_lshlrev_b32 v5, 4, v4")
    a("v_add_u32 v5, s47, v5")
    a("buffer_store_dwordx4 v[8:11], v5, s[36:39], 0 offen sc1")
    a("v_lshlrev_b32 v4, 9, v4")
    a("s_lshl_b32 s47, s%d, 6" % s_hq)
    a("s_add_u32 s47, s47, %d" % WS_FLAG)
    a("v_add_u32 v4, s47, v4")
    a("buffer_store_dword v8, v4, s[36:39], 0 offen sc1")
    a("s_waitcnt vmcnt(0)")
    a("s_lshl_b32 s47, s%d, 2" % s_hq)
    a("v_mov_b32 v4, s47")
    a("v_mov_b32 v8, 1")
    a("s_mov_b64 exec, 1")
    a("buffer_store_dword v8, v4, s[40:43], 0 offen sc1")
    a("s_waitcnt vmcnt(0)")
```

```python
from asmdsl import Asm
from partB import srd

LOG2E = 0x3fb8aa3b
EPS = 0x358637bd
WS_KV = 0
WS_Z = 32768
WS_FLAG = 65536
WS_PQ = 1 << 20
SLOT = 32768
STAMP_BASE = 70
MAGIC = 0x5a17c0de
FLAG_OFFS = [0]


def stamp(a, S, i):
    if S.get("stamps"):
        a("s_memtime s[%d:%d]" % (STAMP_BASE + 2 * i, STAMP_BASE + 2 * i + 1))


class Lines:
    def __init__(self):
        self.l = []
    def __call__(self, t):
        for x in t.split("\n"):
            x = x.strip()
            if x:
                self.l.append(x)


class LTrack:
    def __init__(self, a):
        self.a = a
        self.q = []
    def issue(self, line, tag):
        if len(self.q) >= 15:
            self.a("s_waitcnt lgkmcnt(14)")
            self.q = self.q[-14:]
        self.a(line)
        self.q.append(tag)
    def need(self, tag):
        idx = [i for i, t in enumerate(self.q) if t == tag]
        if not idx:
            return
        n = len(self.q) - 1 - idx[-1]
        self.a("s_waitcnt lgkmcnt(%d)" % n)
        self.q = self.q[idx[-1] + 1:]


def phi4(a, regs, tmp):
    for k, r in enumerate(regs):
        a("v_mul_f32 v%d, 0x%x, v%d" % (tmp + k, LOG2E, r))
    for k, r in enumerate(regs):
        a("v_exp_f32 v%d, v%d clamp" % (tmp + k, tmp + k))
    for k, r in enumerate(regs):
        a("v_max_f32 v%d, 0x%x, v%d" % (r, EPS, r))
    for k, r in enumerate(regs):
        a("v_add_f32 v%d, v%d, v%d" % (r, r, tmp + k))


def interleave(a, prim, fill, per):
    fi = 0
    for p in prim:
        for x in p:
            a(x)
        for _ in range(per):
            if fi < len(fill):
                a(fill[fi]); fi += 1
    while fi < len(fill):
        a(fill[fi]); fi += 1


def emit_B(a: Asm, S):
    ka, s_rb, s_hq = S["ka"], S["rb"], S["hq"]
    s_w, s_rg, s_ch = 44, 45, 46
    sX, sW, sWS, sDBG = 28, 32, 36, 40
    s_t0, s_t1, s_m0x, s_m0w, s_off, s_rot = 47, 48, 49, 50, 51, 58
    sWO, sOUT = 60, 64
    s_cc, s_xo, s_wo = 59, 68, 69
    vLane = 1
    vT0, vT1, vT2, vT3 = 3, 4, 5, 6
    vXs0, vXs1, vWs, vWOs = 7, 8, 9, 2
    vXr = 10
    vWr = 14
    vXc = 15
    vWc = 19
    WF = 20
    AK, AV, AQ = 52, 68, 84
    TMP = 100
    XF = 128
    stamp(a, S, 0)
    a("s_load_dwordx8 s[16:23], s[%d:%d], 72" % (ka, ka + 1))
    a("s_load_dwordx4 s[24:27], s[%d:%d], 104" % (ka, ka + 1))
    a("v_and_b32 v1, 63, v0")
    a("v_lshrrev_b32 v2, 6, v0")
    a("v_readfirstlane_b32 s44, v2")
    a("s_and_b32 s45, s44, 3")
    a("s_lshr_b32 s46, s44, 2")
    a("s_add_u32 s%d, s%d, s%d" % (s_rot, s_hq, s_rb))
    a("s_and_b32 s%d, s%d, 3" % (s_rot, s_rot))
    a("s_lshl_b32 s%d, s%d, 1" % (s_rot, s_rot))
    a("v_lshrrev_b32 v%d, 3, v%d" % (vT0, vLane))
    a("v_and_b32 v%d, 7, v%d" % (vT1, vLane))
    a("v_lshrrev_b32 v%d, 1, v%d" % (vT2, vT0))
    a("v_xor_b32 v%d, v%d, v%d" % (vT2, vT2, vT1))
    a("s_lshl_b32 s%d, s%d, 7" % (s_t0, s_rb))
    a("s_lshl_b32 s%d, s%d, 4" % (s_t1, s_w))
    a("s_add_u32 s%d, s%d, s%d" % (s_t0, s_t0, s_t1))
    a("v_add_u32 v%d, s%d, v%d" % (vT3, s_t0, vT0))
    a("v_lshlrev_b32 v%d, 10, v%d" % (vT3, vT3))
    a("v_lshlrev_b32 v%d, 4, v%d" % (vXs0, vT2))
    a("v_add_u32 v%d, v%d, v%d" % (vXs0, vXs0, vT3))
    a("v_xor_b32 v%d, 4, v%d" % (vT2, vT2))
    a("v_lshlrev_b32 v%d, 4, v%d" % (vXs1, vT2))
    a("v_add_u32 v%d, v%d, v%d" % (vXs1, vXs1, vT3))
    a("v_add_u32 v%d, 8192, v%d" % (vXs1, vXs1))
    a("v_bfe_u32 v%d, v%d, 1, 1" % (vT2, vT0))
    a("v_lshlrev_b32 v%d, 2, v%d" % (vT2, vT2))
    a("v_xor_b32 v%d, v%d, v%d" % (vT2, vT2, vT1))
    a("v_lshlrev_b32 v%d, 4, v%d" % (vT2, vT2))
    a("s_lshl_b32 s%d, s%d, 3" % (s_t1, s_w))
    a("v_add_u32 v%d, s%d, v%d" % (vT3, s_t1, vT0))
    a("v_lshlrev_b32 v%d, 10, v%d" % (vWOs, vT3))
    a("v_mul_u32_u24 v%d, 3072, v%d" % (vT3, vT3))
    a("s_lshl_b32 s%d, s%d, 7" % (s_t1, s_hq))
    a("v_add3_u32 v%d, v%d, v%d, s%d" % (vWs, vT3, vT2, s_t1))
    a("v_add3_u32 v%d, v%d, v%d, s%d" % (vWOs, vWOs, vT2, s_t1))
    a("s_lshl_b32 s%d, s%d, 11" % (s_m0x, s_w))
    a("s_lshl_b32 s%d, s%d, 10" % (s_m0w, s_w))
    a("s_waitcnt lgkmcnt(0)")
    srd(a, sX, 16, 17, 2048 * 512 * 2)
    srd(a, sW, 18, 19, 512 * 1536 * 2)

    def chunk_offsets(e, c):
        e("s_add_u32 s%d, s%d, %d" % (s_cc, s_rot, c))
        e("s_and_b32 s%d, s%d, 7" % (s_cc, s_cc))
        e("s_lshl_b32 s%d, s%d, 7" % (s_xo, s_cc))
        e("s_mul_i32 s%d, s%d, 196608" % (s_wo, s_cc))

    def dma(e, m0base, m0off, vaddr, srdreg, so):
        e("s_add_u32 m0, s%d, %d" % (m0base, m0off))
        e("buffer_load_dwordx4 v%d, s[%d:%d], %s offen lds" % (vaddr, srdreg, srdreg + 3, so))

    def fill_op(e, i, j):
        b = (i % 5) * SLOT if i < 11 else 2 * SLOT
        if i < 8:
            if j == 0:
                chunk_offsets(e, i); dma(e, s_m0x, b, vXs0, sX, "s%d" % s_xo)
            elif j == 1:
                dma(e, s_m0x, b + 1024, vXs1, sX, "s%d" % s_xo)
            elif j == 2:
                e("s_add_u32 s%d, s%d, 1024" % (s_off, s_wo)); dma(e, s_m0w, b + 16384, vWs, sW, "s%d" % s_off)
            else:
                e("s_add_u32 s%d, s%d, 2048" % (s_off, s_wo)); dma(e, s_m0w, b + 24576, vWs, sW, "s%d" % s_off)
        elif i < 10:
            chunk_offsets(e, 4 * (i - 8) + j); dma(e, s_m0w, b + 8192 * j, vWs, sW, "s%d" % s_wo)
        else:
            e("s_mov_b32 s%d, %d" % (s_off, (4 * (i - 10) + j) * 65536)); dma(e, s_m0w, b + 8192 * j, vWOs, sWO, "s%d" % s_off)

    NPRO = S.get("npro", 2)
    for i in range(NPRO):
        for j in range(4):
            fill_op(a, i, j)
    srd(a, sWS, 26, 27, 1 << 28)
    srd(a, sDBG, 24, 25, 256)
    srd(a, sWO, 20, 21, 512 * 512 * 2)
    srd(a, sOUT, 22, 23, 2048 * 1024 * 2)
    a("v_and_b32 v%d, 31, v%d" % (vT0, vLane))
    a("v_lshrrev_b32 v%d, 5, v%d" % (vT1, vLane))
    a("v_bfe_u32 v%d, v%d, 1, 3" % (vT2, vLane))
    a("s_lshl_b32 s%d, s%d, 5" % (s_t0, s_rg))
    a("v_add_u32 v%d, s%d, v%d" % (vT3, s_t0, vT0))
    a("v_lshlrev_b32 v%d, 7, v%d" % (vT3, vT3))
    for i in range(4):
        a("v_add_u32 v%d, %d, v%d" % (vXr + i, 2 * i, vT1))
        a("v_xor_b32 v%d, v%d, v%d" % (vXr + i, vXr + i, vT2))
        a("v_lshlrev_b32 v%d, 4, v%d" % (vXr + i, vXr + i))
        a("v_add_u32 v%d, v%d, v%d" % (vXr + i, vXr + i, vT3))
    a("v_bfe_u32 v%d, v%d, 2, 2" % (vT0, vLane))
    a("v_lshlrev_b32 v%d, 3, v%d" % (vT2, vT1))
    a("v_add_u32 v%d, v%d, v%d" % (vT2, vT2, vT0))
    a("v_lshlrev_b32 v%d, 7, v%d" % (vWr, vT2))
    a("v_lshrrev_b32 v%d, 1, v%d" % (vT0, vT0))
    a("v_xor_b32 v%d, s%d, v%d" % (vT0, s_ch, vT0))
    a("v_lshlrev_b32 v%d, 6, v%d" % (vT0, vT0))
    a("v_add_u32 v%d, v%d, v%d" % (vWr, vWr, vT0))
    a("v_bfe_u32 v%d, v%d, 4, 1" % (vT0, vLane))
    a("v_lshlrev_b32 v%d, 5, v%d" % (vT0, vT0))
    a("v_and_b32 v%d, 3, v%d" % (vT2, vLane))
    a("v_lshlrev_b32 v%d, 3, v%d" % (vT2, vT2))
    a("v_add3_u32 v%d, v%d, v%d, v%d" % (vWr, vWr, vT0, vT2))
    for i in range(16):
        a("v_mov_b32 v%d, 0" % (AK + i)); a("v_mov_b32 v%d, 0" % (AV + i)); a("v_mov_b32 v%d, 0" % (AQ + i))

    def mf(e, D, A_, B_):
        e("v_mfma_f32_32x32x16_bf16 v[%d:%d], v[%d:%d], v[%d:%d], v[%d:%d]" % (D, D + 15, A_, A_ + 3, B_, B_ + 3, D, D + 15))

    def set_slot(slot):
        for i in range(4):
            a("v_add_u32 v%d, %d, v%d" % (vXc + i, slot * SLOT, vXr + i))
        a("v_add_u32 v%d, %d, v%d" % (vWc, slot * SLOT, vWr))

    def rd(c, i):
        X = XF + 16 * c + 4 * i
        F = WF + 8 * i
        a("ds_read_b128 v[%d:%d], v%d" % (X, X + 3, vXc + i))
        for mat, base in ((0, 16384), (1, 24576)):
            for j in range(2):
                a("ds_read_b64_tr_b16 v[%d:%d], v%d offset:%d" % (F + 4 * mat + 2 * j, F + 4 * mat + 2 * j + 1, vWc, base + (16 * i + 4 * j) * 128))

    def rdq(st):
        F = WF + 4 * (st % 8)
        j4, i = (st % 16) >> 2, st & 3
        for j in range(2):
            a("ds_read_b64_tr_b16 v[%d:%d], v%d offset:%d" % (F + 2 * j, F + 2 * j + 1, vWc, 8192 * j4 + (16 * i + 4 * j) * 128))

    def kvstep(c, i):
        X = XF + 16 * c + 4 * i
        F = WF + 8 * i
        mf(a, AK, X, F)
        mf(a, AV, X, F + 4)

    a("s_waitcnt vmcnt(%d)" % (4 * (NPRO - 1)))
    a("s_barrier")
    stamp(a, S, 1)
    for i in range(NPRO, 3):
        for j in range(4):
            fill_op(a, i, j)
    set_slot(0)
    rd(0, 0); rd(0, 1)
    mode = S.get("fillmode", "spread")
    if S.get("x_pre"): mode = "pre"
    if S.get("x_post"): mode = "post"
    if S.get("x_nofill"): mode = "none"
    waits = {"spread": 6, "pre": 8, "post": 4, "none": 63}

    def fills(i, where):
        if mode == "spread":
            fill_op(a, i, where)
        elif mode == "pre" and where == 1:
            for j in range(4):
                fill_op(a, i, j)
        elif mode == "post" and where == 2:
            for j in range(4):
                fill_op(a, i, j)

    for c in range(8):
        a("s_waitcnt lgkmcnt(5)")
        kvstep(c, 0); rd(c, 2); fills(c + 3, 0)
        a("s_waitcnt lgkmcnt(5)")
        mf(a, AK, XF + 16 * c + 4, WF + 8)
        rd(c, 3); fills(c + 3, 1)
        a("s_waitcnt vmcnt(%d) lgkmcnt(5)" % waits[mode])
        mf(a, AV, XF + 16 * c + 4, WF + 8 + 4)
        if not S.get("x_nobar"):
            a("s_barrier")
        kvstep(c, 2)
        if c < 7:
            set_slot((c + 1) % 5)
            rd(c + 1, 0)
            fills(c + 3, 2)
            a("s_waitcnt lgkmcnt(5)")
            kvstep(c, 3)
            rd(c + 1, 1)
            fills(c + 3, 3)
        else:
            a("v_add_u32 v%d, %d, v%d" % (vWc, 3 * SLOT, vWr))
            rdq(0); rdq(1)
            fills(c + 3, 2)
            a("s_waitcnt lgkmcnt(4)")
            kvstep(c, 3)
            rdq(2); rdq(3)
            fills(c + 3, 3)
    stamp(a, S, 2)
    if S.get("x_stop"):
        return
    vG = 127
    a("v_and_b32 v%d, 7, v%d" % (vT2, vLane))
    a("v_lshlrev_b32 v%d, 2, v%d" % (vT2, vT2))
    a("buffer_load_dword v%d, v%d, s[%d:%d], 0 offen sc1" % (vG, vT2, sDBG, sDBG + 3))
    PKp, PVp = TMP, TMP + 8
    t4 = TMP + 16
    vZ = TMP + 20
    vOne = TMP + 21
    f = Lines()
    f("v_mov_b32 v%d, 0" % vZ)
    f("v_mov_b32 v%d, 0x3f803f80" % vOne)
    for i in range(8):
        f("v_cvt_pk_bf16_f32 v%d, v%d, v%d" % (PVp + i, AV + 2 * i, AV + 2 * i + 1))
    for g in range(4):
        phi4(f, [AK + 4 * g + k for k in range(4)], t4)
        for i in (2 * g, 2 * g + 1):
            f("v_cvt_pk_bf16_f32 v%d, v%d, v%d" % (PKp + i, AK + 2 * i, AK + 2 * i + 1))
    for i in range(8):
        f("v_dot2c_f32_bf16 v%d, v%d, v%d" % (vZ, PKp + i, vOne))

    def qprim(st0, st1, hook=None):
        prim = []
        for st in range(st0, st1):
            p = Lines()
            return_lines = p
            prim.append((st,))
        return prim

    def q_seq(st0, st1, fill, per):
        fi = 0
        for st in range(st0, st1):
            pend = min(3, 15 - (st % 16)) if (st % 16) > 12 else 3
            a("s_waitcnt lgkmcnt(%d)" % (2 * pend + S.get("_extra_lgkm", 0)))
            mf(a, AQ, WF + 4 * (st % 8), XF + 4 * st)
            if (st % 16) + 4 < 16:
                rdq(st + 4)
            for _ in range(per):
                if fi < len(fill):
                    a(fill[fi]); fi += 1
        while fi < len(fill):
            a(fill[fi]); fi += 1

    q_seq(0, 16, f.l, 6)
    DKV = AK
    a("v_mfma_f32_32x32x16_bf16 v[%d:%d], v[%d:%d], v[%d:%d], 0" % (DKV, DKV + 15, PKp, PKp + 3, PVp, PVp + 3))
    a("v_mfma_f32_32x32x16_bf16 v[%d:%d], v[%d:%d], v[%d:%d], v[%d:%d]" % (DKV, DKV + 15, PKp + 4, PKp + 7, PVp + 4, PVp + 7, DKV, DKV + 15))
    RED = 1 * SLOT
    ZRED = RED + 16384
    s_msk = 52
    a("v_bfe_u32 v%d, v%d, 4, 1" % (vT0, vLane))
    a("v_cmp_eq_u32 s[%d:%d], 1, v%d" % (s_msk, s_msk + 1, vT0))
    a("s_lshl_b32 s%d, s%d, 8" % (s_t0, s_w))
    a("s_add_u32 s%d, s%d, %d" % (s_t0, s_t0, ZRED))
    a("v_lshlrev_b32 v%d, 2, v%d" % (vT1, vLane))
    a("v_add_u32 v%d, s%d, v%d" % (vT1, s_t0, vT1))
    a("ds_write_b32 v%d, v%d" % (vT1, vZ))
    a("s_lshl_b32 s%d, s%d, 11" % (s_t0, s_w))
    a("s_add_u32 s%d, s%d, %d" % (s_t0, s_t0, RED))
    a("v_lshlrev_b32 v%d, 5, v%d" % (vT0, vLane))
    a("v_add_u32 v%d, s%d, v%d" % (vT0, s_t0, vT0))
    a("v_add_u32 v%d, %d, v%d" % (vWc, 4 * SLOT, vWr))
    SEL = PVp
    for i in range(8):
        a("v_cndmask_b32 v%d, v%d, v%d, s[%d:%d]" % (SEL + i, DKV + i, DKV + 8 + i, s_msk, s_msk + 1))
    a("ds_write_b128 v%d, v[%d:%d]" % (vT0, SEL, SEL + 3))
    a("ds_write_b128 v%d, v[%d:%d] offset:16" % (vT0, SEL + 4, SEL + 7))
    a("s_waitcnt vmcnt(0) lgkmcnt(0)")
    a("s_barrier")
    stamp(a, S, 3)
    T = LTrack(a)

    def rdqT(st):
        F = WF + 4 * (st % 8)
        j4, i = (st % 16) >> 2, st & 3
        for j in range(2):
            T.issue("ds_read_b64_tr_b16 v[%d:%d], v%d offset:%d" % (F + 2 * j, F + 2 * j + 1, vWc, 8192 * j4 + (16 * i + 4 * j) * 128), ("q", st))
    for st in range(16, 20):
        rdqT(st)
    for j in range(4):
        fill_op(a, 11, j)
    lg, lgo = a.newlabel("Lg"), a.newlabel("Lgo")
    a("v_cmp_ne_u32 vcc, 1, v%d" % vG)
    a("s_cbranch_vccz %s" % lgo)
    a.label(lg)
    a("buffer_load_dword v%d, v%d, s[%d:%d], 0 offen sc1" % (vG, vT2, sDBG, sDBG + 3))
    a("s_waitcnt vmcnt(0)")
    a("v_cmp_ne_u32 vcc, 1, v%d" % vG)
    a("s_cbranch_vccnz %s" % lg)
    a.label(lgo)
    s_hp, s_hf = 54, 55
    R_ = TMP
    a("s_bfe_u32 s%d, s%d, 0x10001" % (s_hp, s_w))
    a("s_and_b32 s%d, s%d, 1" % (s_hf, s_w))
    a("s_lshl_b32 s%d, s%d, 5" % (s_t0, s_hf))
    a("s_lshl_b32 s%d, s%d, 4" % (s_t1, s_hp))
    a("s_add_u32 s%d, s%d, s%d" % (s_t0, s_t0, s_t1))
    a("s_lshl_b32 s%d, s%d, 5" % (s_t0, s_t0))
    a("s_lshl_b32 s%d, s%d, 13" % (s_t1, s_ch))
    a("s_add_u32 s%d, s%d, s%d" % (s_t0, s_t0, s_t1))
    a("s_add_u32 s%d, s%d, %d" % (s_t0, s_t0, RED))
    a("v_lshlrev_b32 v%d, 2, v%d" % (vT0, vLane))
    a("v_add_u32 v%d, s%d, v%d" % (vT0, s_t0, vT0))
    a("v_and_b32 v%d, 31, v%d" % (vT1, vLane))
    a("v_lshlrev_b32 v%d, 2, v%d" % (vT1, vT1))
    a("s_lshl_b32 s%d, s%d, 10" % (s_t1, s_ch))
    a("s_add_u32 s%d, s%d, %d" % (s_t1, s_t1, ZRED))
    a("v_add_u32 v%d, s%d, v%d" % (vT1, s_t1, vT1))
    f = Lines()
    f("s_lshl_b32 s%d, s%d, 2" % (s_t0, s_hq))
    f("s_lshl_b32 s%d, s%d, 1" % (s_t1, s_ch))
    f("s_add_u32 s%d, s%d, s%d" % (s_t0, s_t0, s_t1))
    f("s_add_u32 s%d, s%d, s%d" % (s_t1, s_t0, s_hp))
    f("s_lshl_b32 s%d, s%d, 10" % (s_t1, s_t1))
    f("s_lshl_b32 s%d, s%d, 9" % (s_off, s_hf))
    f("s_add_u32 s%d, s%d, s%d" % (s_t1, s_t1, s_off))
    f("v_lshlrev_b32 v%d, 2, v%d" % (vT2, vLane))
    f("v_add_u32 v%d, s%d, v%d" % (vT2, s_t1, vT2))
    f("v_bfe_u32 v%d, v%d, 4, 1" % (vT3, vLane))
    f("v_add_u32 v%d, s%d, v%d" % (vT3, s_t0, vT3))
    f("v_lshlrev_b32 v%d, 6, v%d" % (vT3, vT3))
    f("v_bfe_u32 v%d, v%d, 2, 1" % (R_ + 16, vLane))
    f("v_lshlrev_b32 v%d, 5, v%d" % (R_ + 16, R_ + 16))
    f("v_add_u32 v%d, v%d, v%d" % (vT3, vT3, R_ + 16))
    f("v_and_b32 v%d, 3, v%d" % (R_ + 16, vLane))
    f("v_bfe_u32 v%d, v%d, 3, 1" % (R_ + 17, vLane))
    f("v_lshlrev_b32 v%d, 2, v%d" % (R_ + 17, R_ + 17))
    f("v_add_u32 v%d, v%d, v%d" % (R_ + 16, R_ + 16, R_ + 17))
    f("v_lshlrev_b32 v%d, 2, v%d" % (R_ + 16, R_ + 16))
    f("v_add_u32 v%d, v%d, v%d" % (vT3, vT3, R_ + 16))
    f("v_add_u32 v%d, %d, v%d" % (vT3, WS_Z, vT3))
    addr_lines = f.l
    red_reads = []
    for row in range(2):
        for g in range(4):
            red_reads.append(("ds_read_b32 v%d, v%d offset:%d" % (R_ + 4 * row + g, vT0, 2048 * g + 256 * row), "kvr"))
    for g in range(4):
        for hf in range(2):
            red_reads.append(("ds_read_b32 v%d, v%d offset:%d" % (R_ + 8 + 2 * g + hf, vT1, 256 * g + 128 * hf), "zr"))
    fi = 0
    ri = 0
    for st in range(16, 24):
        T.need(("q", st))
        mf(a, AQ, WF + 4 * (st % 8), XF + 4 * st)
        rdqT(st + 4)
        for _ in range(4):
            if st < 20 and ri < len(red_reads):
                T.issue(*red_reads[ri]); ri += 1
        if st >= 16:
            for _ in range(3):
                if fi < len(addr_lines):
                    a(addr_lines[fi]); fi += 1
    while fi < len(addr_lines):
        a(addr_lines[fi]); fi += 1
    T.need("kvr")
    for row in range(2):
        b = R_ + 4 * row
        a("v_add_f32 v%d, v%d, v%d" % (b, b, b + 1))
        a("v_add_f32 v%d, v%d, v%d" % (b + 2, b + 2, b + 3))
        a("v_add_f32 v%d, v%d, v%d" % (b, b, b + 2))
    for row in range(2):
        a("buffer_atomic_add_f32 v%d, v%d, s[%d:%d], 0 offen offset:%d" % (R_ + 4 * row, vT2, sWS, sWS + 3, WS_KV + 256 * row))
    T.need("zr")
    b = R_ + 8
    for st in (1, 2, 4):
        for k in range(0, 8, 2 * st):
            a("v_add_f32 v%d, v%d, v%d" % (b + k, b + k, b + k + st))
    lz = a.newlabel("Lz")
    a("s_and_b32 s%d, s%d, 3" % (s_t0, s_w))
    a("s_cmp_eq_u32 s%d, 0" % s_t0)
    a("s_cbranch_scc0 %s" % lz)
    a("s_mov_b64 s[56:57], exec")
    a("s_mov_b32 exec_lo, -1")
    a("s_mov_b32 exec_hi, 0")
    a("buffer_atomic_add_f32 v%d, v%d, s[%d:%d], 0 offen" % (b, vT3, sWS, sWS + 3))
    a("s_mov_b64 exec, s[56:57]")
    a.label(lz)
    f = Lines()
    vPQa = TMP + 24
    f("s_lshl_b32 s%d, s%d, 2" % (s_t0, s_hq))
    f("s_lshl_b32 s%d, s%d, 1" % (s_t1, s_ch))
    f("s_add_u32 s%d, s%d, s%d" % (s_t0, s_t0, s_t1))
    f("s_lshl_b32 s%d, s%d, 6" % (s_t0, s_t0))
    f("s_lshl_b32 s%d, s%d, 2" % (s_t1, s_rb))
    f("s_add_u32 s%d, s%d, s%d" % (s_t0, s_t0, s_t1))
    f("s_add_u32 s%d, s%d, s%d" % (s_t0, s_t0, s_rg))
    f("s_lshl_b32 s%d, s%d, 10" % (s_t0, s_t0))
    f("s_add_u32 s%d, s%d, %d" % (s_t0, s_t0, WS_PQ))
    f("v_lshlrev_b32 v%d, 4, v%d" % (vPQa, vLane))
    f("v_add_u32 v%d, s%d, v%d" % (vPQa, s_t0, vPQa))
    fi = 0
    for st in range(24, 32):
        T.need(("q", st))
        mf(a, AQ, WF + 4 * (st % 8), XF + 4 * st)
        if st + 4 < 32:
            rdqT(st + 4)
        for _ in range(2):
            if fi < len(f.l):
                a(f.l[fi]); fi += 1
    while fi < len(f.l):
        a(f.l[fi]); fi += 1
    PQ = TMP
    for g in range(4):
        phi4(a, [AQ + 4 * g + k for k in range(4)], t4)
        for i in (2 * g, 2 * g + 1):
            a("v_cvt_pk_bf16_f32 v%d, v%d, v%d" % (PQ + i, AQ + 2 * i, AQ + 2 * i + 1))
        if g == 1:
            a("buffer_store_dwordx4 v[%d:%d], v%d, s[%d:%d], 0 offen sc1" % (PQ, PQ + 3, vPQa, sWS, sWS + 3))
    a("s_mov_b32 s%d, 65536" % s_off)
    a("buffer_store_dwordx4 v[%d:%d], v%d, s[%d:%d], s%d offen sc1" % (PQ + 4, PQ + 7, vPQa, sWS, sWS + 3, s_off))
    stamp(a, S, 4)
    s_hh = 46
    WO = 0
    KVF = 3 * SLOT
    OST = 4 * SLOT
    PQF = 128
    vKVa, vZa, vPQl, vKFw, vZFw = 11, 12, 13, 14, 15
    vKr, vWr2, vWr1 = 8, 9, 10
    a("v_lshlrev_b32 v%d, 4, v%d" % (vT0, vLane))
    a("s_lshl_b32 s%d, s%d, 12" % (s_t1, s_w))
    a("v_add_u32 v%d, s%d, v%d" % (vKVa, s_t1, vT0))
    a("s_and_b32 s%d, s%d, 1" % (s_t1, s_w))
    a("s_lshl_b32 s%d, s%d, 10" % (s_t1, s_t1))
    a("s_add_u32 s%d, s%d, %d" % (s_t1, s_t1, WS_Z))
    a("v_add_u32 v%d, s%d, v%d" % (vZa, s_t1, vT0))
    a("s_lshl_b32 s%d, s%d, 10" % (s_t0, s_hh))
    a("s_lshl_b32 s%d, s%d, 2" % (s_t1, s_rb))
    a("s_add_u32 s%d, s%d, s%d" % (s_t0, s_t0, s_t1))
    a("s_add_u32 s%d, s%d, s%d" % (s_t0, s_t0, s_rg))
    a("s_lshl_b32 s%d, s%d, 10" % (s_t0, s_t0))
    a("s_add_u32 s%d, s%d, %d" % (s_t0, s_t0, WS_PQ))
    a("v_add_u32 v%d, s%d, v%d" % (vPQl, s_t0, vT0))
    a("v_lshrrev_b32 v%d, 5, v%d" % (vT1, vLane))
    a("v_lshlrev_b32 v%d, 9, v%d" % (vT1, vT1))
    a("v_bfe_u32 v%d, v%d, 1, 4" % (vT2, vLane))
    a("v_lshlrev_b32 v%d, 4, v%d" % (vT2, vT2))
    a("v_and_b32 v%d, 1, v%d" % (vT3, vLane))
    a("v_lshlrev_b32 v%d, 3, v%d" % (vT3, vT3))
    a("v_add3_u32 v%d, v%d, v%d, v%d" % (vKFw, vT1, vT2, vT3))
    a("s_lshl_b32 s%d, s%d, 12" % (s_t1, s_w))
    a("s_add_u32 s%d, s%d, %d" % (s_t1, s_t1, KVF))
    a("v_add_u32 v%d, s%d, v%d" % (vKFw, s_t1, vKFw))
    a("s_and_b32 s%d, s%d, 1" % (s_t1, s_w))
    a("s_lshl_b32 s%d, s%d, 14" % (s_t1, s_t1))
    a("s_add_u32 s%d, s%d, %d" % (s_t1, s_t1, KVF + 256))
    a("v_lshrrev_b32 v%d, 2, v%d" % (vT2, vLane))
    a("v_lshlrev_b32 v%d, 10, v%d" % (vT2, vT2))
    a("v_bfe_u32 v%d, v%d, 1, 1" % (vT3, vLane))
    a("v_lshlrev_b32 v%d, 9, v%d" % (vT3, vT3))
    a("v_add3_u32 v%d, v%d, v%d, s%d" % (vZFw, vT2, vT3, s_t1))
    a("v_and_b32 v%d, 1, v%d" % (vT3, vLane))
    a("v_lshlrev_b32 v%d, 3, v%d" % (vT3, vT3))
    a("v_add_u32 v%d, v%d, v%d" % (vZFw, vZFw, vT3))
    a("v_lshlrev_b32 v%d, 4, v%d" % (vKr, vLane))
    a("s_lshl_b32 s%d, s%d, 14" % (s_t0, s_hh))
    a("s_add_u32 s%d, s%d, %d" % (s_t0, s_t0, KVF))
    a("v_add_u32 v%d, s%d, v%d" % (vKr, s_t0, vKr))
    a("v_lshrrev_b32 v%d, 5, v%d" % (vT1, vLane))
    a("v_bfe_u32 v%d, v%d, 2, 2" % (vT0, vLane))
    a("v_lshlrev_b32 v%d, 2, v%d" % (vT2, vT1))
    a("v_add_u32 v%d, v%d, v%d" % (vT2, vT2, vT0))
    a("v_lshlrev_b32 v%d, 7, v%d" % (vWr2, vT2))
    a("v_lshrrev_b32 v%d, 1, v%d" % (vT0, vT0))
    a("v_lshlrev_b32 v%d, 6, v%d" % (vT3, vT0))
    a("v_bfe_u32 v%d, v%d, 4, 1" % (vT2, vLane))
    a("v_lshlrev_b32 v%d, 5, v%d" % (vT2, vT2))
    a("v_add_u32 v%d, v%d, v%d" % (vWr2, vWr2, vT2))
    a("v_and_b32 v%d, 3, v%d" % (vT2, vLane))
    a("v_lshlrev_b32 v%d, 3, v%d" % (vT2, vT2))
    a("v_add_u32 v%d, v%d, v%d" % (vWr2, vWr2, vT2))
    a("s_lshl_b32 s%d, s%d, 16" % (s_t0, s_hh))
    a("v_add_u32 v%d, s%d, v%d" % (vWr2, s_t0, vWr2))
    a("v_xor_b32 v%d, 64, v%d" % (vWr1, vT3))
    a("v_add_u32 v%d, v%d, v%d" % (vWr1, vWr1, vWr2))
    a("v_add_u32 v%d, v%d, v%d" % (vWr2, vWr2, vT3))
    O0, O1 = 16, 32
    D1 = [48, 96]
    KA = [64, 112]
    WA = [68, 76]
    OB = [84, 88]
    vR = 92
    KL, ZL = 96, 116
    for i in range(16):
        a("v_mov_b32 v%d, 0" % (O0 + i)); a("v_mov_b32 v%d, 0" % (O1 + i))
    stamp(a, S, 9)
    a("s_waitcnt vmcnt(0)")
    stamp(a, S, 10)
    a("s_barrier")
    stamp(a, S, 11)
    lw = a.newlabel("Lw")
    a("s_cmp_eq_u32 s%d, 0" % s_w)
    a("s_cbranch_scc0 %s" % lw)
    a("s_lshl_b32 s%d, s%d, 3" % (s_t0, s_rb))
    a("s_add_u32 s%d, s%d, s%d" % (s_t0, s_t0, s_hq))
    a("s_lshl_b32 s%d, s%d, 6" % (s_t0, s_t0))
    a("s_add_u32 s%d, s%d, %d" % (s_t0, s_t0, WS_FLAG))
    a("v_mov_b32 v%d, s%d" % (vT0, s_t0))
    a("v_mov_b32 v%d, 0x%x" % (vT1, MAGIC))
    a("s_mov_b64 s[56:57], exec")
    a("s_mov_b64 exec, 1")
    a("buffer_store_dword v%d, v%d, s[%d:%d], 0 offen sc1" % (vT1, vT0, sWS, sWS + 3))
    a("s_mov_b64 exec, s[56:57]")
    a("v_lshlrev_b32 v%d, 6, v%d" % (vT0, vLane))
    a("v_add_u32 v%d, %d, v%d" % (vT0, WS_FLAG, vT0))
    a("s_mov_b32 s%d, 4096" % s_off)
    a("s_mov_b32 s%d, 0x%x" % (s_t0, MAGIC))
    lp = a.newlabel("Lp")
    a.label(lp)
    a("buffer_load_dword v%d, v%d, s[%d:%d], 0 offen sc1" % (vT2, vT0, sWS, sWS + 3))
    a("buffer_load_dword v%d, v%d, s[%d:%d], s%d offen sc1" % (vT3, vT0, sWS, sWS + 3, s_off))
    a("s_waitcnt vmcnt(0)")
    a("v_cmp_ne_u32 vcc, s%d, v%d" % (s_t0, vT2))
    a("v_cmp_ne_u32 s[56:57], s%d, v%d" % (s_t0, vT3))
    a("s_or_b64 vcc, vcc, s[56:57]")
    a("s_cbranch_vccnz %s" % lp)
    a.label(lw)
    a("s_barrier")
    stamp(a, S, 5)
    for i in range(4):
        a("buffer_load_dwordx4 v[%d:%d], v%d, s[%d:%d], 0 offen offset:%d sc1" % (KL + 4 * i, KL + 4 * i + 3, vKVa, sWS, sWS + 3, WS_KV + 1024 * i))
    a("buffer_load_dwordx4 v[%d:%d], v%d, s[%d:%d], 0 offen sc1" % (ZL, ZL + 3, vZa, sWS, sWS + 3))

    def ld_pq(i):
        if i == 0:
            so = "0"
        else:
            a("s_mov_b32 s%d, %d" % (s_off, i * 65536)); so = "s%d" % s_off
        a("buffer_load_dwordx4 v[%d:%d], v%d, s[%d:%d], %s offen sc1" % (PQF + 4 * i, PQF + 4 * i + 3, vPQl, sWS, sWS + 3, so))
    NPRE = 4
    for i in range(NPRE):
        ld_pq(i)
    C_ = 120
    for i in range(4):
        a("s_waitcnt vmcnt(%d)" % (NPRE + 4 - i))
        a("v_cvt_pk_bf16_f32 v%d, v%d, v%d" % (C_ + 2 * i, KL + 4 * i, KL + 4 * i + 1))
        a("v_cvt_pk_bf16_f32 v%d, v%d, v%d" % (C_ + 2 * i + 1, KL + 4 * i + 2, KL + 4 * i + 3))
        a("ds_write_b64 v%d, v[%d:%d] offset:%d" % (vKFw, C_ + 2 * i, C_ + 2 * i + 1, 1024 * i))
    a("s_waitcnt vmcnt(%d)" % NPRE)
    lzz = a.newlabel("Lzz")
    a("s_cmp_lt_u32 s%d, 2" % s_w)
    a("s_cbranch_scc0 %s" % lzz)
    a("v_cvt_pk_bf16_f32 v94, v%d, v%d" % (ZL, ZL + 1))
    a("v_cvt_pk_bf16_f32 v95, v%d, v%d" % (ZL + 2, ZL + 3))
    a("ds_write_b64 v%d, v[94:95]" % vZFw)
    a("ds_write_b64 v%d, v[94:95] offset:64" % vZFw)
    a.label(lzz)
    for i in range(NPRE, NPRE + 4):
        ld_pq(i)
    a("s_waitcnt lgkmcnt(0)")
    a("s_barrier")
    stamp(a, S, 6)

    def rd_kv(h):
        a("ds_read_b128 v[%d:%d], v%d offset:%d" % (KA[h & 1], KA[h & 1] + 3, vKr, 1024 * h))

    def rd_wo(h):
        W_ = WA[h & 1]
        for jt, vb in ((0, vWr2), (1, vWr1)):
            for j in range(2):
                a("ds_read_b64_tr_b16 v[%d:%d], v%d offset:%d" % (W_ + 4 * jt + 2 * j, W_ + 4 * jt + 2 * j + 1, vb, WO + (16 * h + 8 * j) * 128))

    issued = [2 * 4]

    def num(h):
        a("s_waitcnt vmcnt(%d)" % (issued[0] - 1 - h))
        a("v_mfma_f32_32x32x16_bf16 v[%d:%d], v[%d:%d], v[%d:%d], 0" % (D1[h & 1], D1[h & 1] + 15, KA[h & 1], KA[h & 1] + 3, PQF + 4 * h, PQF + 4 * h + 3))
        if issued[0] < 16:
            ld_pq(issued[0]); issued[0] += 1

    rd_kv(0)
    a("s_waitcnt lgkmcnt(0)")
    num(0)
    rd_kv(1); rd_wo(0)
    for h in range(16):
        if h + 1 < 16:
            a("s_waitcnt lgkmcnt(4)")
            num(h + 1)
        D = D1[h & 1]
        a("v_add_f32 v%d, 0x%x, v%d" % (vR, EPS, D + 8))
        a("v_rcp_f32 v%d, v%d" % (vR, vR))
        for i in range(8):
            a("v_mul_f32 v%d, v%d, v%d" % (D + i, D + i, vR))
        B_ = OB[h & 1]
        for i in range(4):
            a("v_cvt_pk_bf16_f32 v%d, v%d, v%d" % (B_ + i, D + 2 * i, D + 2 * i + 1))
        a("s_waitcnt lgkmcnt(0)")
        if h + 2 < 16:
            rd_kv(h + 2)
        W_ = WA[h & 1]
        a("v_mfma_f32_32x32x16_bf16 v[%d:%d], v[%d:%d], v[%d:%d], v[%d:%d]" % (O0, O0 + 15, W_, W_ + 3, B_, B_ + 3, O0, O0 + 15))
        a("v_mfma_f32_32x32x16_bf16 v[%d:%d], v[%d:%d], v[%d:%d], v[%d:%d]" % (O1, O1 + 15, W_ + 4, W_ + 7, B_, B_ + 3, O1, O1 + 15))
        if h + 1 < 16:
            rd_wo(h + 1)
    stamp(a, S, 7)
    a("s_lshl_b32 s%d, s%d, 12" % (s_t0, s_w))
    a("s_add_u32 s%d, s%d, %d" % (s_t0, s_t0, OST))
    a("v_lshlrev_b32 v%d, 4, v%d" % (vT0, vLane))
    a("v_add_u32 v%d, s%d, v%d" % (vT0, s_t0, vT0))
    a("s_xor_b32 s%d, s%d, 4" % (s_t0, s_w))
    a("s_lshl_b32 s%d, s%d, 12" % (s_t0, s_t0))
    a("s_add_u32 s%d, s%d, %d" % (s_t0, s_t0, OST))
    a("v_lshlrev_b32 v%d, 4, v%d" % (vT1, vLane))
    a("v_add_u32 v%d, s%d, v%d" % (vT1, s_t0, vT1))
    a("v_and_b32 v%d, 31, v%d" % (vT2, vLane))
    a("s_lshl_b32 s%d, s%d, 5" % (s_t0, s_rg))
    a("v_add_u32 v%d, s%d, v%d" % (vT2, s_t0, vT2))
    a("v_mul_u32_u24 v%d, 144, v%d" % (vT2, vT2))
    a("v_lshrrev_b32 v%d, 5, v%d" % (vT3, vLane))
    a("v_lshlrev_b32 v%d, 3, v%d" % (vT3, vT3))
    a("s_lshl_b32 s%d, s%d, 6" % (s_t0, s_hh))
    a("v_add3_u32 v%d, v%d, v%d, s%d" % (vT2, vT2, vT3, s_t0))
    lA, lB, lC, lD = [a.newlabel("Lx") for _ in range(4)]
    a("s_cmp_eq_u32 s%d, 0" % s_hh)
    a("s_cbranch_scc0 %s" % lA)
    for q in range(4):
        a("ds_write_b128 v%d, v[%d:%d] offset:%d" % (vT0, O1 + 4 * q, O1 + 4 * q + 3, 1024 * q))
    a("s_branch %s" % lB)
    a.label(lA)
    for q in range(4):
        a("ds_write_b128 v%d, v[%d:%d] offset:%d" % (vT0, O0 + 4 * q, O0 + 4 * q + 3, 1024 * q))
    a.label(lB)
    a("s_waitcnt lgkmcnt(0)")
    a("s_barrier")
    E = 48
    for q in range(4):
        a("ds_read_b128 v[%d:%d], v%d offset:%d" % (E + 4 * q, E + 4 * q + 3, vT1, 1024 * q))
    vRow, vPc, vRd, vOa = 72, 73, 74, 75
    a("v_lshrrev_b32 v%d, 3, v%d" % (vRow, vLane))
    a("s_lshl_b32 s%d, s%d, 4" % (s_t0, s_w))
    a("v_add_u32 v%d, s%d, v%d" % (vRow, s_t0, vRow))
    a("v_and_b32 v%d, 7, v%d" % (vPc, vLane))
    a("v_lshlrev_b32 v%d, 4, v%d" % (vPc, vPc))
    a("v_mul_u32_u24 v%d, 144, v%d" % (vRd, vRow))
    a("v_add_u32 v%d, v%d, v%d" % (vRd, vRd, vPc))
    a("s_lshl_b32 s%d, s%d, 7" % (s_t0, s_rb))
    a("v_add_u32 v%d, s%d, v%d" % (vOa, s_t0, vRow))
    a("v_lshlrev_b32 v%d, 11, v%d" % (vOa, vOa))
    a("s_lshl_b32 s%d, s%d, 7" % (s_t0, s_hq))
    a("s_add_u32 s%d, s%d, 1024" % (s_t0, s_t0))
    a("v_add3_u32 v%d, v%d, v%d, s%d" % (vOa, vOa, vPc, s_t0))
    a("s_cmp_eq_u32 s%d, 0" % s_hh)
    a("s_cbranch_scc0 %s" % lC)
    a("s_waitcnt lgkmcnt(0)")
    for i in range(16):
        a("v_add_f32 v%d, v%d, v%d" % (E + i, E + i, O0 + i))
    a("s_branch %s" % lD)
    a.label(lC)
    a("s_waitcnt lgkmcnt(0)")
    for i in range(16):
        a("v_add_f32 v%d, v%d, v%d" % (E + i, E + i, O1 + i))
    a.label(lD)
    for q in range(4):
        a("v_cvt_pk_bf16_f32 v%d, v%d, v%d" % (64 + 2 * q, E + 4 * q, E + 4 * q + 1))
        a("v_cvt_pk_bf16_f32 v%d, v%d, v%d" % (65 + 2 * q, E + 4 * q + 2, E + 4 * q + 3))
        a("ds_write_b64 v%d, v[%d:%d] offset:%d" % (vT2, 64 + 2 * q, 65 + 2 * q, 16 * q))
    a("s_waitcnt lgkmcnt(0)")
    a("s_barrier")
    a("ds_read_b128 v[76:79], v%d" % vRd)
    a("ds_read_b128 v[80:83], v%d offset:%d" % (vRd, 8 * 144))
    a("s_mov_b32 s%d, 16384" % s_off)
    a("s_waitcnt lgkmcnt(1)")
    a("buffer_store_dwordx4 v[76:79], v%d, s[%d:%d], 0 offen" % (vOa, sOUT, sOUT + 3))
    a("s_waitcnt lgkmcnt(0)")
    a("buffer_store_dwordx4 v[80:83], v%d, s[%d:%d], s%d offen" % (vOa, sOUT, sOUT + 3, s_off))
    stamp(a, S, 8)


def zero_pre(s_idx):
    def f(a, s_w):
        l = a.newlabel("Lzp")
        a("s_cmp_lt_u32 s%d, 8" % s_idx)
        a("s_cbranch_scc0 %s" % l)
        a("s_cmp_eq_u32 s%d, 3" % s_w)
        a("s_cbranch_scc0 %s" % l)
        a("s_load_dwordx4 s[88:91], s[0:1], 104")
        for r in range(4):
            a("v_mov_b32 v%d, 0" % (200 + r))
        a("s_waitcnt lgkmcnt(0)")
        srd(a, 92, 90, 91, 1 << 28)
        a("v_lshlrev_b32 v204, 4, v1")
        a("s_lshl_b32 s64, s%d, 12" % s_idx)
        a("v_add_u32 v205, s64, v204")
        for r in range(4):
            a("buffer_store_dwordx4 v[200:203], v205, s[92:95], 0 offen offset:%d sc1" % (WS_KV + 1024 * r))
        a("s_lshl_b32 s64, s%d, 8" % s_idx)
        a("s_add_u32 s64, s64, %d" % WS_Z)
        a("v_and_b32 v206, 15, v1")
        a("v_lshlrev_b32 v205, 4, v206")
        a("v_add_u32 v205, s64, v205")
        a("buffer_store_dwordx4 v[200:203], v205, s[92:95], 0 offen sc1")
        a("v_lshlrev_b32 v206, 9, v206")
        a("s_lshl_b32 s64, s%d, 6" % s_idx)
        a("s_add_u32 s64, s64, %d" % WS_FLAG)
        a("v_add_u32 v206, s64, v206")
        for o in FLAG_OFFS:
            a("buffer_store_dword v200, v206, s[92:95], 0 offen offset:%d sc1" % o)
        a.label(l)
    return f


def zero_post(s_idx):
    def f(a, s_w):
        l = a.newlabel("Lzq")
        a("s_cmp_lt_u32 s%d, 8" % s_idx)
        a("s_cbranch_scc0 %s" % l)
        a("s_cmp_eq_u32 s%d, 3" % s_w)
        a("s_cbranch_scc0 %s" % l)
        a("s_waitcnt vmcnt(0)")
        a("s_load_dwordx2 s[88:89], s[0:1], 104")
        a("s_waitcnt lgkmcnt(0)")
        srd(a, 60, 88, 89, 256)
        a("s_lshl_b32 s64, s%d, 2" % s_idx)
        a("v_mov_b32 v205, s64")
        a("v_mov_b32 v200, 1")
        a("s_mov_b64 s[66:67], exec")
        a("s_mov_b64 exec, 1")
        a("buffer_store_dword v200, v205, s[60:63], 0 offen sc1")
        a("s_mov_b64 exec, s[66:67]")
        a.label(l)
    return f
```

```python
import sys
from asmdsl import Asm
import partA, partB, partB2, partB3, partA2

NAME = "concat_heads__ssm_conv_s4__linear_attn_block__prompt_kernel"

HEADER = """; Kernarg layout (120 bytes): d_in[0..11], d_out (96), d_debug (104), d_ws (112)
"""

def kernel_text(name, body, nvgpr, accum, nsgpr=102):
    return """.globl {n}
.p2align 8
.type {n},@function
{n}:
{body}""".format(n=name, body=body), """.amdhsa_kernel {n}
  .amdhsa_next_free_vgpr {v}
  .amdhsa_next_free_sgpr {s}
  .amdhsa_accum_offset {acc}
  .amdhsa_group_segment_fixed_size 0
  .amdhsa_kernarg_size 120
  .amdhsa_user_sgpr_count 2
  .amdhsa_user_sgpr_kernarg_segment_ptr 1
  .amdhsa_system_sgpr_workgroup_id_x 1
.end_amdhsa_kernel
""".format(n=name, v=nvgpr, s=nsgpr, acc=accum)

def assemble(launches, kernels):
    out = [HEADER.rstrip()]
    if len(launches) == 1 and launches[0][0] == NAME:
        k, g, b, l = launches[0]
        out.append("; @launch grid=(%d,1,1) block=(%d,1,1) lds=%d" % (g, b, l))
    else:
        for k, g, b, l in launches:
            out.append("; @launch kernel=%s grid=(%d,1,1) block=(%d,1,1) lds=%d" % (k, g, b, l))
    out.append('.amdgcn_target "amdgcn-amd-amdhsa--gfx950"')
    out.append(".text")
    desc = []
    for name, body, nv, acc in kernels:
        t, d = kernel_text(name, body, nv, acc)
        out.append(t)
        desc.append(d)
    out.append('.section .rodata,"a"')
    for d in desc:
        out.append(".p2align 6")
        out.append(d.rstrip())
    return "\n".join(out) + "\n"

def emit_stamps(a, n, s_wg, s_w, nw=4):
    a("s_waitcnt vmcnt(0)")
    a("s_memtime s[%d:%d]" % (70 + 2 * n, 71 + 2 * n))
    a("s_load_dwordx2 s[60:61], s[0:1], 112")
    a("s_waitcnt lgkmcnt(0)")
    a("s_mov_b32 s62, 0x10000000"); a("s_mov_b32 s63, 0x20000"); a("s_and_b32 s61, s61, 0xffff")
    a("s_mul_i32 s64, s%d, %d" % (s_wg, nw)); a("s_add_u32 s64, s64, s%d" % s_w); a("s_lshl_b32 s64, s64, 6")
    a("s_add_u32 s64, s64, 0x8000000")
    a("v_mov_b32 v5, s64")
    for i in range(n + 1):
        a("s_sub_u32 s65, s%d, s70" % (70 + 2 * i))
        a("v_mov_b32 v4, s65")
        a("buffer_store_dword v4, v5, s[60:63], 0 offen offset:%d" % (4 * i))
    a("s_getreg_b32 s65, hwreg(HW_REG_XCC_ID)")
    a("v_mov_b32 v4, s65")
    a("buffer_store_dword v4, v5, s[60:63], 0 offen offset:60")
    a("s_memrealtime s[66:67]")
    a("s_waitcnt lgkmcnt(0)")
    a("v_mov_b32 v4, s66")
    a("buffer_store_dword v4, v5, s[60:63], 0 offen offset:56")
    a("v_mov_b32 v4, s98")
    a("buffer_store_dword v4, v5, s[60:63], 0 offen offset:52")

def kernelA(dbg=None, stamps=False, zero=False):
    a = Asm()
    a("s_cmp_ge_u32 s2, 128")
    a("s_cbranch_scc1 LA_end")
    if zero:
        zero_kvz(a)
    a("s_and_b32 s3, s2, 7")
    a("s_lshl_b32 s3, s3, 4")
    a("s_lshr_b32 s4, s2, 3")
    a("s_add_u32 s3, s3, s4")
    r = partA.emit_partA(a, dict(ka=0, cg=3, stamps=stamps), dbg)
    if stamps:
        emit_stamps(a, 7, 2, r["s_w"])
    if dbg == "lds":
        a("s_load_dwordx2 s[60:61], s[0:1], 112")
        a("s_waitcnt lgkmcnt(0)")
        a("s_mov_b32 s62, 0x10000000"); a("s_mov_b32 s63, 0x20000"); a("s_and_b32 s61, s61, 0xffff")
        a("s_mul_i32 s64, s3, %d" % 131072)
        a("v_lshlrev_b32 v3, 2, v0")
        a("s_mov_b32 s65, 0")
        a.label("Ldump")
        a("ds_read_b32 v4, v3")
        a("v_add_u32 v5, s64, v3")
        a("s_waitcnt lgkmcnt(0)")
        a("buffer_store_dword v4, v5, s[60:63], 0 offen")
        a("v_add_u32 v3, 1024, v3")
        a("s_add_u32 s65, s65, 1024")
        a("s_cmp_lt_u32 s65, %d" % partA.A_LDS)
        a("s_cbranch_scc1 Ldump")
    a("s_waitcnt vmcnt(0)")
    a.label("LA_end")
    a("s_endpgm")
    return a.finish()

def map_B(a):
    a("s_and_b32 s3, s2, 3"); a("s_lshl_b32 s3, s3, 2")
    a("s_bfe_u32 s4, s2, 0x20003"); a("s_add_u32 s3, s3, s4")
    a("s_bfe_u32 s4, s2, 0x10002"); a("s_lshl_b32 s4, s4, 2")
    a("s_bfe_u32 s5, s2, 0x20005"); a("s_add_u32 s4, s4, s5")

def kernelB1(stamps=False, touch=False):
    a = Asm()
    a("s_cmp_ge_u32 s2, 128")
    a("s_cbranch_scc1 LB1_end")
    map_B(a)
    partB.emit_B1(a, dict(ka=0, rb=3, hq=4, stamps=stamps, touch=touch))
    if stamps:
        emit_stamps(a, 5, 2, 44, 8)
    a("s_waitcnt vmcnt(0)")
    a.label("LB1_end")
    a("s_endpgm")
    return a.finish()

def kernelB2(stamps=False):
    a = Asm()
    a("s_cmp_ge_u32 s2, 128")
    a("s_cbranch_scc1 LB2_end")
    map_B(a)
    partB.emit_B2(a, dict(ka=0, rb=3, jb=4, stamps=stamps))
    if stamps:
        emit_stamps(a, 4, 2, 44, 8)
    a("s_waitcnt vmcnt(0)")
    a.label("LB2_end")
    a("s_endpgm")
    return a.finish()

def zero_kvz(a):
    a("s_load_dwordx2 s[60:61], s[0:1], 112")
    a("s_waitcnt lgkmcnt(0)")
    a("s_mov_b32 s62, %d" % partB.KVZ_BYTES); a("s_mov_b32 s63, 0x20000"); a("s_and_b32 s61, s61, 0xffff")
    a("s_mul_i32 s64, s2, 272")
    a("v_lshlrev_b32 v3, 2, v0")
    a("v_add_u32 v3, s64, v3")
    a("v_mov_b32 v4, 0")
    a("v_cmp_gt_u32 vcc, 68, v0")
    a("s_and_saveexec_b64 s[66:67], vcc")
    a("s_cbranch_execz Lzk")
    a("buffer_store_dword v4, v3, s[60:63], 0 offen")
    a.label("Lzk")
    a("s_mov_b64 exec, s[66:67]")

def kernelF(stamps=False, Bmod=None, Amod=None):
    Bmod = Bmod or partB2
    a = Asm()
    if stamps:
        a("s_memrealtime s[98:99]")
    a("s_cmp_ge_u32 s2, 256")
    a("s_cbranch_scc1 LF_end")
    a("s_lshr_b32 s6, s2, 4"); a("s_lshl_b32 s6, s6, 3"); a("s_and_b32 s7, s2, 7"); a("s_add_u32 s6, s6, s7")
    a("s_bitcmp1_b32 s2, 3")
    a("s_cbranch_scc1 LF_B")
    a("v_lshrrev_b32 v2, 6, v0")
    a("v_readfirstlane_b32 s7, v2")
    a("s_cmp_ge_u32 s7, 4")
    a("s_cbranch_scc0 LF_A")
    a("s_cmp_eq_u32 s7, 4")
    a("s_cbranch_scc0 LF_end")
    a("s_cmp_lt_u32 s6, 8")
    a("s_cbranch_scc0 LF_end")
    partB2.emit_zero_init(a, 0, 6)
    a("s_endpgm")
    a.label("LF_A")
    a("s_and_b32 s3, s6, 7"); a("s_lshl_b32 s3, s3, 4"); a("s_lshr_b32 s4, s6, 3"); a("s_add_u32 s3, s3, s4")
    r = partA.emit_partA(a, dict(ka=0, cg=3, stamps=stamps))
    if stamps:
        emit_stamps(a, 7, 2, r["s_w"], 8)
    a("s_waitcnt vmcnt(0)")
    a("s_endpgm")
    a.label("LF_B")
    a("s_and_b32 s3, s6, 3"); a("s_lshl_b32 s3, s3, 2")
    a("s_bfe_u32 s4, s6, 0x20003"); a("s_add_u32 s3, s3, s4")
    a("s_bfe_u32 s4, s6, 0x10002"); a("s_lshl_b32 s4, s4, 2")
    a("s_bfe_u32 s5, s6, 0x20005"); a("s_add_u32 s4, s4, s5")
    Bmod.emit_B(a, dict(ka=0, rb=3, hq=4, idx=6, stamps=stamps))
    if stamps:
        emit_stamps2(a, 9, 2, 44, 8)
    a("s_waitcnt vmcnt(0)")
    a.label("LF_end")
    a("s_endpgm")
    return a.finish()

def kernelG(stamps=False, Bmod=None, Aopts=None, Bopts=None):
    a = Asm()
    if stamps:
        a("s_memrealtime s[98:99]")
    a("s_cmp_ge_u32 s2, 256")
    a("s_cbranch_scc1 LF_end")
    a("s_lshr_b32 s6, s2, 4"); a("s_lshl_b32 s6, s6, 3"); a("s_and_b32 s7, s2, 7"); a("s_add_u32 s6, s6, s7")
    a("s_bitcmp1_b32 s2, 3")
    a("s_cbranch_scc1 LF_B")
    a("s_and_b32 s3, s6, 7"); a("s_lshl_b32 s3, s3, 4"); a("s_lshr_b32 s4, s6, 3"); a("s_add_u32 s3, s3, s4")
    S = dict(ka=0, cg=3, i16=4, stamps=stamps, zero_pre=Bmod.zero_pre(6), zero_post=Bmod.zero_post(6))
    S.update(Aopts or {})
    r = partA2.emit_partA(a, S)
    if stamps:
        emit_stamps(a, 9, 2, r["s_w"], 8)
    a("s_waitcnt vmcnt(0)")
    a("s_endpgm")
    a.label("LF_B")
    a("s_and_b32 s3, s6, 3"); a("s_lshl_b32 s3, s3, 2")
    a("s_bfe_u32 s4, s6, 0x20003"); a("s_add_u32 s3, s3, s4")
    a("s_bfe_u32 s4, s6, 0x10002"); a("s_lshl_b32 s4, s4, 2")
    a("s_bfe_u32 s5, s6, 0x20005"); a("s_add_u32 s4, s4, s5")
    SB = dict(ka=0, rb=3, hq=4, idx=6, stamps=stamps)
    SB.update(Bopts or {})
    Bmod.emit_B(a, SB)
    if stamps:
        emit_stamps(a, 12, 2, 44, 8)
    a("s_waitcnt vmcnt(0)")
    a.label("LF_end")
    a("s_endpgm")
    return a.finish()

def emit_stamps2(a, n, s_wg, s_w, nw):
    emit_stamps(a, n, s_wg, s_w, nw)

def kernelBx(Bmod=None, **kw):
    Bmod = Bmod or partB2
    a = Asm()
    a("s_memrealtime s[98:99]")
    a("s_cmp_ge_u32 s2, 128")
    a("s_cbranch_scc1 LF_end")
    a("s_mov_b32 s6, s2")
    a("s_and_b32 s3, s6, 3"); a("s_lshl_b32 s3, s3, 2")
    a("s_bfe_u32 s4, s6, 0x20003"); a("s_add_u32 s3, s3, s4")
    a("s_bfe_u32 s4, s6, 0x10002"); a("s_lshl_b32 s4, s4, 2")
    a("s_bfe_u32 s5, s6, 0x20005"); a("s_add_u32 s4, s4, s5")
    Bmod.emit_B(a, dict(ka=0, rb=3, hq=4, idx=6, stamps=True, x_stop=True, **kw))
    emit_stamps(a, 3, 2, 44, 8)
    a("s_waitcnt vmcnt(0)")
    a.label("LF_end")
    a("s_endpgm")
    return a.finish()

if __name__ == "__main__":
    mode = sys.argv[1]
    if mode == "A":
        txt = assemble([(NAME, 128, 256, partA.A_LDS)], [(NAME, kernelA(), 256, 256)])
    elif mode == "Astamp":
        txt = assemble([(NAME, 128, 256, partA.A_LDS)], [(NAME, kernelA(stamps=True), 256, 256)])
    elif mode == "v1" or mode == "v1st":
        st = mode == "v1st"
        txt = assemble([("ka_kernel", 128, 256, partA.A_LDS), ("kb1_kernel", 128, 512, 163840), ("kb2_kernel", 128, 512, 131072)],
                       [("ka_kernel", kernelA(zero=True), 256, 256), ("kb1_kernel", kernelB1(st), 256, 256), ("kb2_kernel", kernelB2(), 256, 256)])
    elif mode == "B1st":
        txt = assemble([(NAME, 128, 512, 163840)], [(NAME, kernelB1(True), 256, 256)])
    elif mode == "B1stT":
        txt = assemble([(NAME, 128, 512, 163840)], [(NAME, kernelB1(True, True), 256, 256)])
    elif mode == "B2st":
        txt = assemble([(NAME, 128, 512, 131072)], [(NAME, kernelB2(True), 256, 256)])
    elif mode == "v2" or mode == "v2st":
        txt = assemble([(NAME, 256, 512, 163840)], [(NAME, kernelF(mode == "v2st"), 256, 256)])
    elif mode.startswith("By"):
        kw = {}
        for f in mode.split("_")[1:]:
            if f.startswith("np"): kw["npro"] = int(f[2:])
            else: kw["x_" + f] = True
        txt = assemble([(NAME, 128, 512, 163840)], [(NAME, kernelBx(partB3, **kw), 256, 256)])
    elif mode.startswith("Bx"):
        kw = {}
        for f in mode.split("_")[1:]:
            kw["x_" + f] = True
        txt = assemble([(NAME, 128, 512, 163840)], [(NAME, kernelBx(**kw), 256, 256)])
    elif mode == "v3" or mode == "v3st":
        txt = assemble([(NAME, 256, 512, 163840)], [(NAME, kernelF(mode == "v3st", partB3), 256, 256)])
    elif mode.startswith("v4"):
        st = "st" in mode
        ao = {}
        if "late" in mode: ao["u_late"] = True
        if "spread" in mode: ao["u_spread"] = True
        if "tl" in mode: ao["touch_late"] = True
        if "bt" in mode: ao["btouch"] = True; ao["xcd"] = 7
        bo = {}
        import re as _re
        m_ = _re.search(r"np(\d)", mode)
        if m_: bo["npro"] = int(m_.group(1))
        txt = assemble([(NAME, 256, 512, 163840)], [(NAME, kernelG(st, partB3, ao, bo), 256, 256)])
    elif mode == "Adbg":
        txt = assemble([(NAME, 128, 256, partA.A_LDS)], [(NAME, kernelA("lds"), 256, 256)])
    open(sys.argv[2], "w").write(txt)
```

```python
import sys
from asmdsl import Asm
import partA, partB, partB2, partB3, partA2

NAME = "concat_heads__ssm_conv_s4__linear_attn_block__prompt_kernel"

HEADER = """; Kernarg layout (120 bytes): d_in[0..11], d_out (96), d_debug (104), d_ws (112)
"""

def kernel_text(name, body, nvgpr, accum, nsgpr=102):
    return """.globl {n}
.p2align 8
.type {n},@function
{n}:
{body}""".format(n=name, body=body), """.amdhsa_kernel {n}
  .amdhsa_next_free_vgpr {v}
  .amdhsa_next_free_sgpr {s}
  .amdhsa_accum_offset {acc}
  .amdhsa_group_segment_fixed_size 0
  .amdhsa_kernarg_size 120
  .amdhsa_user_sgpr_count 2
  .amdhsa_user_sgpr_kernarg_segment_ptr 1
  .amdhsa_system_sgpr_workgroup_id_x 1
.end_amdhsa_kernel
""".format(n=name, v=nvgpr, s=nsgpr, acc=accum)

def assemble(launches, kernels):
    out = [HEADER.rstrip()]
    if len(launches) == 1 and launches[0][0] == NAME:
        k, g, b, l = launches[0]
        out.append("; @launch grid=(%d,1,1) block=(%d,1,1) lds=%d" % (g, b, l))
    else:
        for k, g, b, l in launches:
            out.append("; @launch kernel=%s grid=(%d,1,1) block=(%d,1,1) lds=%d" % (k, g, b, l))
    out.append('.amdgcn_target "amdgcn-amd-amdhsa--gfx950"')
    out.append(".text")
    desc = []
    for name, body, nv, acc in kernels:
        t, d = kernel_text(name, body, nv, acc)
        out.append(t)
        desc.append(d)
    out.append('.section .rodata,"a"')
    for d in desc:
        out.append(".p2align 6")
        out.append(d.rstrip())
    return "\n".join(out) + "\n"

def emit_stamps(a, n, s_wg, s_w, nw=4):
    a("s_waitcnt vmcnt(0)")
    a("s_memtime s[%d:%d]" % (70 + 2 * n, 71 + 2 * n))
    a("s_load_dwordx2 s[60:61], s[0:1], 112")
    a("s_waitcnt lgkmcnt(0)")
    a("s_mov_b32 s62, 0x10000000"); a("s_mov_b32 s63, 0x20000"); a("s_and_b32 s61, s61, 0xffff")
    a("s_mul_i32 s64, s%d, %d" % (s_wg, nw)); a("s_add_u32 s64, s64, s%d" % s_w); a("s_lshl_b32 s64, s64, 6")
    a("s_add_u32 s64, s64, 0x8000000")
    a("v_mov_b32 v5, s64")
    for i in range(n + 1):
        a("s_sub_u32 s65, s%d, s70" % (70 + 2 * i))
        a("v_mov_b32 v4, s65")
        a("buffer_store_dword v4, v5, s[60:63], 0 offen offset:%d" % (4 * i))
    a("s_getreg_b32 s65, hwreg(HW_REG_XCC_ID)")
    a("v_mov_b32 v4, s65")
    a("buffer_store_dword v4, v5, s[60:63], 0 offen offset:60")
    a("s_memrealtime s[66:67]")
    a("s_waitcnt lgkmcnt(0)")
    a("v_mov_b32 v4, s66")
    a("buffer_store_dword v4, v5, s[60:63], 0 offen offset:56")
    a("v_mov_b32 v4, s98")
    a("buffer_store_dword v4, v5, s[60:63], 0 offen offset:52")

def kernelA(dbg=None, stamps=False, zero=False):
    a = Asm()
    a("s_cmp_ge_u32 s2, 128")
    a("s_cbranch_scc1 LA_end")
    if zero:
        zero_kvz(a)
    a("s_and_b32 s3, s2, 7")
    a("s_lshl_b32 s3, s3, 4")
    a("s_lshr_b32 s4, s2, 3")
    a("s_add_u32 s3, s3, s4")
    r = partA.emit_partA(a, dict(ka=0, cg=3, stamps=stamps), dbg)
    if stamps:
        emit_stamps(a, 7, 2, r["s_w"])
    if dbg == "lds":
        a("s_load_dwordx2 s[60:61], s[0:1], 112")
        a("s_waitcnt lgkmcnt(0)")
        a("s_mov_b32 s62, 0x10000000"); a("s_mov_b32 s63, 0x20000"); a("s_and_b32 s61, s61, 0xffff")
        a("s_mul_i32 s64, s3, %d" % 131072)
        a("v_lshlrev_b32 v3, 2, v0")
        a("s_mov_b32 s65, 0")
        a.label("Ldump")
        a("ds_read_b32 v4, v3")
        a("v_add_u32 v5, s64, v3")
        a("s_waitcnt lgkmcnt(0)")
        a("buffer_store_dword v4, v5, s[60:63], 0 offen")
        a("v_add_u32 v3, 1024, v3")
        a("s_add_u32 s65, s65, 1024")
        a("s_cmp_lt_u32 s65, %d" % partA.A_LDS)
        a("s_cbranch_scc1 Ldump")
    a("s_waitcnt vmcnt(0)")
    a.label("LA_end")
    a("s_endpgm")
    return a.finish()

def map_B(a):
    a("s_and_b32 s3, s2, 3"); a("s_lshl_b32 s3, s3, 2")
    a("s_bfe_u32 s4, s2, 0x20003"); a("s_add_u32 s3, s3, s4")
    a("s_bfe_u32 s4, s2, 0x10002"); a("s_lshl_b32 s4, s4, 2")
    a("s_bfe_u32 s5, s2, 0x20005"); a("s_add_u32 s4, s4, s5")

def kernelB1(stamps=False, touch=False):
    a = Asm()
    a("s_cmp_ge_u32 s2, 128")
    a("s_cbranch_scc1 LB1_end")
    map_B(a)
    partB.emit_B1(a, dict(ka=0, rb=3, hq=4, stamps=stamps, touch=touch))
    if stamps:
        emit_stamps(a, 5, 2, 44, 8)
    a("s_waitcnt vmcnt(0)")
    a.label("LB1_end")
    a("s_endpgm")
    return a.finish()

def kernelB2(stamps=False):
    a = Asm()
    a("s_cmp_ge_u32 s2, 128")
    a("s_cbranch_scc1 LB2_end")
    map_B(a)
    partB.emit_B2(a, dict(ka=0, rb=3, jb=4, stamps=stamps))
    if stamps:
        emit_stamps(a, 4, 2, 44, 8)
    a("s_waitcnt vmcnt(0)")
    a.label("LB2_end")
    a("s_endpgm")
    return a.finish()

def zero_kvz(a):
    a("s_load_dwordx2 s[60:61], s[0:1], 112")
    a("s_waitcnt lgkmcnt(0)")
    a("s_mov_b32 s62, %d" % partB.KVZ_BYTES); a("s_mov_b32 s63, 0x20000"); a("s_and_b32 s61, s61, 0xffff")
    a("s_mul_i32 s64, s2, 272")
    a("v_lshlrev_b32 v3, 2, v0")
    a("v_add_u32 v3, s64, v3")
    a("v_mov_b32 v4, 0")
    a("v_cmp_gt_u32 vcc, 68, v0")
    a("s_and_saveexec_b64 s[66:67], vcc")
    a("s_cbranch_execz Lzk")
    a("buffer_store_dword v4, v3, s[60:63], 0 offen")
    a.label("Lzk")
    a("s_mov_b64 exec, s[66:67]")

def kernelF(stamps=False, Bmod=None, Amod=None):
    Bmod = Bmod or partB2
    a = Asm()
    if stamps:
        a("s_memrealtime s[98:99]")
    a("s_cmp_ge_u32 s2, 256")
    a("s_cbranch_scc1 LF_end")
    a("s_lshr_b32 s6, s2, 4"); a("s_lshl_b32 s6, s6, 3"); a("s_and_b32 s7, s2, 7"); a("s_add_u32 s6, s6, s7")
    a("s_bitcmp1_b32 s2, 3")
    a("s_cbranch_scc1 LF_B")
    a("v_lshrrev_b32 v2, 6, v0")
    a("v_readfirstlane_b32 s7, v2")
    a("s_cmp_ge_u32 s7, 4")
    a("s_cbranch_scc0 LF_A")
    a("s_cmp_eq_u32 s7, 4")
    a("s_cbranch_scc0 LF_end")
    a("s_cmp_lt_u32 s6, 8")
    a("s_cbranch_scc0 LF_end")
    partB2.emit_zero_init(a, 0, 6)
    a("s_endpgm")
    a.label("LF_A")
    a("s_and_b32 s3, s6, 7"); a("s_lshl_b32 s3, s3, 4"); a("s_lshr_b32 s4, s6, 3"); a("s_add_u32 s3, s3, s4")
    r = partA.emit_partA(a, dict(ka=0, cg=3, stamps=stamps))
    if stamps:
        emit_stamps(a, 7, 2, r["s_w"], 8)
    a("s_waitcnt vmcnt(0)")
    a("s_endpgm")
    a.label("LF_B")
    a("s_and_b32 s3, s6, 3"); a("s_lshl_b32 s3, s3, 2")
    a("s_bfe_u32 s4, s6, 0x20003"); a("s_add_u32 s3, s3, s4")
    a("s_bfe_u32 s4, s6, 0x10002"); a("s_lshl_b32 s4, s4, 2")
    a("s_bfe_u32 s5, s6, 0x20005"); a("s_add_u32 s4, s4, s5")
    Bmod.emit_B(a, dict(ka=0, rb=3, hq=4, idx=6, stamps=stamps))
    if stamps:
        emit_stamps2(a, 9, 2, 44, 8)
    a("s_waitcnt vmcnt(0)")
    a.label("LF_end")
    a("s_endpgm")
    return a.finish()

def kernelG(stamps=False, Bmod=None, Aopts=None, Bopts=None, dbg=False):
    a = Asm()
    if dbg:
        stamps = True
    if stamps:
        a("s_memrealtime s[98:99]")
    a("s_cmp_ge_u32 s2, 256")
    a("s_cbranch_scc1 LF_end")
    a("s_lshr_b32 s6, s2, 4"); a("s_lshl_b32 s6, s6, 3"); a("s_and_b32 s7, s2, 7"); a("s_add_u32 s6, s6, s7")
    a("s_bitcmp1_b32 s2, 3")
    a("s_cbranch_scc1 LF_B")
    a("s_and_b32 s3, s6, 7"); a("s_lshl_b32 s3, s3, 4"); a("s_lshr_b32 s4, s6, 3"); a("s_add_u32 s3, s3, s4")
    S = dict(ka=0, cg=3, i16=4, stamps=stamps, zero_pre=Bmod.zero_pre(6), zero_post=Bmod.zero_post(6))
    S.update(Aopts or {})
    r = partA2.emit_partA(a, S)
    if stamps and not dbg:
        emit_stamps(a, 9, 2, r["s_w"], 8)
    a("s_waitcnt vmcnt(0)")
    a("s_endpgm")
    a.label("LF_B")
    a("s_and_b32 s3, s6, 3"); a("s_lshl_b32 s3, s3, 2")
    a("s_bfe_u32 s4, s6, 0x20003"); a("s_add_u32 s3, s3, s4")
    a("s_bfe_u32 s4, s6, 0x10002"); a("s_lshl_b32 s4, s4, 2")
    a("s_bfe_u32 s5, s6, 0x20005"); a("s_add_u32 s4, s4, s5")
    SB = dict(ka=0, rb=3, hq=4, idx=6, stamps=stamps)
    SB.update(Bopts or {})
    Bmod.emit_B(a, SB)
    if stamps and not dbg:
        emit_stamps(a, 12, 2, 44, 8)
    if dbg:
        emit_dbg(a, [1, 2, 4, 5, 6, 8], 6, 37, 44, 8)
    a("s_waitcnt vmcnt(0)")
    a.label("LF_end")
    a("s_endpgm")
    return a.finish()

def emit_dbg(a, idxs, s_sel, sel_val, s_w, base):
    l = a.newlabel("Ldbg")
    a("s_waitcnt vmcnt(0)")
    a("s_memtime s[96:97]")
    a("s_memrealtime s[66:67]")
    a("s_load_dwordx2 s[60:61], s[0:1], 104")
    a("s_waitcnt lgkmcnt(0)")
    a("s_cmp_eq_u32 s%d, %d" % (s_sel, sel_val))
    a("s_cbranch_scc0 %s" % l)
    a("s_cmp_eq_u32 s%d, 0" % s_w)
    a("s_cbranch_scc0 %s" % l)
    a("s_mov_b32 s62, 256"); a("s_mov_b32 s63, 0x20000"); a("s_and_b32 s61, s61, 0xffff")
    a("v_mov_b32 v5, 0")
    k = 0
    for i in idxs:
        a("s_sub_u32 s65, s%d, s70" % (70 + 2 * i))
        a("v_mov_b32 v4, s65")
        a("buffer_store_dword v4, v5, s[60:63], 0 offen offset:%d" % (4 * (base + k))); k += 1
    a("s_sub_u32 s65, s96, s70"); a("v_mov_b32 v4, s65")
    a("buffer_store_dword v4, v5, s[60:63], 0 offen offset:%d" % (4 * (base + k))); k += 1
    a("s_sub_u32 s65, s66, s98"); a("v_mov_b32 v4, s65")
    a("buffer_store_dword v4, v5, s[60:63], 0 offen offset:%d" % (4 * (base + k))); k += 1
    a.label(l)

def emit_stamps2(a, n, s_wg, s_w, nw):
    emit_stamps(a, n, s_wg, s_w, nw)

def kernelBx(Bmod=None, **kw):
    Bmod = Bmod or partB2
    a = Asm()
    a("s_memrealtime s[98:99]")
    a("s_cmp_ge_u32 s2, 128")
    a("s_cbranch_scc1 LF_end")
    a("s_mov_b32 s6, s2")
    a("s_and_b32 s3, s6, 3"); a("s_lshl_b32 s3, s3, 2")
    a("s_bfe_u32 s4, s6, 0x20003"); a("s_add_u32 s3, s3, s4")
    a("s_bfe_u32 s4, s6, 0x10002"); a("s_lshl_b32 s4, s4, 2")
    a("s_bfe_u32 s5, s6, 0x20005"); a("s_add_u32 s4, s4, s5")
    Bmod.emit_B(a, dict(ka=0, rb=3, hq=4, idx=6, stamps=True, x_stop=True, **kw))
    emit_stamps(a, 3, 2, 44, 8)
    a("s_waitcnt vmcnt(0)")
    a.label("LF_end")
    a("s_endpgm")
    return a.finish()

if __name__ == "__main__":
    mode = sys.argv[1]
    if mode == "A":
        txt = assemble([(NAME, 128, 256, partA.A_LDS)], [(NAME, kernelA(), 256, 256)])
    elif mode == "Astamp":
        txt = assemble([(NAME, 128, 256, partA.A_LDS)], [(NAME, kernelA(stamps=True), 256, 256)])
    elif mode == "v1" or mode == "v1st":
        st = mode == "v1st"
        txt = assemble([("ka_kernel", 128, 256, partA.A_LDS), ("kb1_kernel", 128, 512, 163840), ("kb2_kernel", 128, 512, 131072)],
                       [("ka_kernel", kernelA(zero=True), 256, 256), ("kb1_kernel", kernelB1(st), 256, 256), ("kb2_kernel", kernelB2(), 256, 256)])
    elif mode == "B1st":
        txt = assemble([(NAME, 128, 512, 163840)], [(NAME, kernelB1(True), 256, 256)])
    elif mode == "B1stT":
        txt = assemble([(NAME, 128, 512, 163840)], [(NAME, kernelB1(True, True), 256, 256)])
    elif mode == "B2st":
        txt = assemble([(NAME, 128, 512, 131072)], [(NAME, kernelB2(True), 256, 256)])
    elif mode == "v2" or mode == "v2st":
        txt = assemble([(NAME, 256, 512, 163840)], [(NAME, kernelF(mode == "v2st"), 256, 256)])
    elif mode.startswith("By"):
        kw = {}
        for f in mode.split("_")[1:]:
            if f.startswith("np"): kw["npro"] = int(f[2:])
            else: kw["x_" + f] = True
        txt = assemble([(NAME, 128, 512, 163840)], [(NAME, kernelBx(partB3, **kw), 256, 256)])
    elif mode.startswith("Bx"):
        kw = {}
        for f in mode.split("_")[1:]:
            kw["x_" + f] = True
        txt = assemble([(NAME, 128, 512, 163840)], [(NAME, kernelBx(**kw), 256, 256)])
    elif mode == "v3" or mode == "v3st":
        txt = assemble([(NAME, 256, 512, 163840)], [(NAME, kernelF(mode == "v3st", partB3), 256, 256)])
    elif mode.startswith("v4"):
        st = "st" in mode
        ao = {}
        if "late" in mode: ao["u_late"] = True
        if "spread" in mode: ao["u_spread"] = True
        if "tl" in mode: ao["touch_late"] = True
        if "bt" in mode: ao["btouch"] = True; ao["xcd"] = 7
        bo = {}
        import re as _re
        m_ = _re.search(r"np(\d)", mode)
        if m_: bo["npro"] = int(m_.group(1))
        txt = assemble([(NAME, 256, 512, 163840)], [(NAME, kernelG(st, partB3, ao, bo, dbg=("dbg" in mode)), 256, 256)])
    elif mode == "Adbg":
        txt = assemble([(NAME, 128, 256, partA.A_LDS)], [(NAME, kernelA("lds"), 256, 256)])
    open(sys.argv[2], "w").write(txt)
```

```python
from asmdsl import Asm
from partA import cmul, cmul2, XEXP, KREG, CB, UBASE, UCH, UCP, XROW, YOFF, LOG2E, INV2PI

SCR = 17408
DX = UBASE + 4 * UCH
YX = DX
YST = DX + 32768
STAMP_BASE = 70


def stamp(a, S, i):
    if S.get("stamps"):
        a("s_memtime s[%d:%d]" % (STAMP_BASE + 2 * i, STAMP_BASE + 2 * i + 1))


def emit_partA(a: Asm, S):
    ka, s_cg, s_i = S["ka"], S["cg"], S["i16"]
    sP = 16
    sD, sO, sU, sOS = 32, 34, 36, 40
    s_w, s_d, s_t0, s_t1, s_kreg, s_cnt = 44, 45, 46, 47, 48, 49
    s_k2, s_k4, s_c, s_h = 50, 51, 52, 53
    s_m0, s_m1 = 54, 56
    stamp(a, S, 0)
    a("s_load_dwordx16 s[%d:%d], s[%d:%d], 0" % (sP, sP + 15, ka, ka + 1))
    a("s_load_dwordx2 s[%d:%d], s[%d:%d], 64" % (sD, sD + 1, ka, ka + 1))
    a("s_load_dwordx2 s[%d:%d], s[%d:%d], 96" % (sO, sO + 1, ka, ka + 1))
    vLane, vT0, vT1, vT2, vT3 = 1, 3, 4, 5, 6
    vOffN, vOffD = 7, 8
    vU0, vU1, vU2 = 9, 10, 11
    vG = 12
    vIn = 14
    vLdt, vDsk = 26, 27
    vR = 28
    vDt, vDtL, vDtP = 46, 47, 48
    vXw, vXr, vD0 = 49, 50, 51
    vTouch = 20
    a("v_and_b32 v%d, 63, v0" % vLane)
    a("v_lshrrev_b32 v2, 6, v0")
    a("v_readfirstlane_b32 s%d, v2" % s_w)
    a("s_and_b32 s%d, s%d, 3" % (s_c, s_w))
    a("s_lshr_b32 s%d, s%d, 2" % (s_h, s_w))
    a("s_lshl_b32 s%d, s%d, 2" % (s_d, s_cg))
    a("s_add_u32 s%d, s%d, s%d" % (s_d, s_d, s_c))
    a("s_lshl_b32 s%d, s%d, 8" % (s_t0, s_d))
    a("s_lshl_b32 s%d, s%d, 7" % (s_t1, s_h))
    a("s_add_u32 s%d, s%d, s%d" % (s_t0, s_t0, s_t1))
    a("v_lshlrev_b32 v%d, 1, v%d" % (vOffN, vLane))
    a("v_add_u32 v%d, s%d, v%d" % (vOffN, s_t0, vOffN))
    a("s_lshl_b32 s%d, s%d, 1" % (s_t1, s_d))
    a("v_mov_b32 v%d, s%d" % (vOffD, s_t1))
    a("s_lshl_b32 s%d, s%d, 6" % (s_t0, s_c))
    a("v_add_u32 v%d, s%d, v%d" % (vG, s_t0, vLane))
    a("s_lshl_b32 s%d, s%d, 3" % (s_t0, s_cg))
    a("v_lshlrev_b32 v%d, 13, v%d" % (vU1, vG))
    a("v_add_u32 v%d, s%d, v%d" % (vU1, s_t0, vU1))
    a("v_add_u32 v%d, 0xfffffc00, v%d" % (vU0, vU1))
    a("v_add_u32 v%d, 4096, v%d" % (vU2, vU1))
    a("s_lshl_b32 s%d, s%d, 7" % (s_t1, s_i))
    a("s_and_b32 s%d, s%d, 1" % (s_cnt, s_c))
    a("s_lshl_b32 s%d, s%d, 6" % (s_cnt, s_cnt))
    a("s_add_u32 s%d, s%d, s%d" % (s_t1, s_t1, s_cnt))
    a("v_add_u32 v%d, s%d, v%d" % (vTouch, s_t1, vLane))
    a("v_lshlrev_b32 v%d, 10, v%d" % (vTouch, vTouch))
    a("v_add_u32 v%d, s%d, v%d" % (vTouch, s_t0, vTouch))
    a("s_waitcnt lgkmcnt(0)")
    if S.get("zero_pre"):
        S["zero_pre"](a, s_w)
    a("global_load_ushort v%d, v%d, s[%d:%d]" % (vLdt, vOffD, sP + 14, sP + 15))
    a("global_load_ushort v%d, v%d, s[%d:%d]" % (vDsk, vOffD, sD, sD + 1))
    for k in range(6):
        a("global_load_ushort v%d, v%d, s[%d:%d]" % (vIn + k, vOffN, sP + 2 + 2 * k, sP + 3 + 2 * k))
    a("s_mov_b32 s%d, s%d" % (sU, sP)); a("s_and_b32 s%d, s%d, 0xffff" % (sU + 1, sP + 1))
    a("s_mov_b32 s%d, 0x200000" % (sU + 2)); a("s_mov_b32 s%d, 0x20000" % (sU + 3))
    a("s_mov_b32 s%d, s%d" % (sOS, sO)); a("s_and_b32 s%d, s%d, 0xffff" % (sOS + 1, sO + 1))
    a("s_mov_b32 s%d, 0x400000" % (sOS + 2)); a("s_mov_b32 s%d, 0x20000" % (sOS + 3))

    def u_loads():
        a("buffer_load_dwordx2 v[%d:%d], v%d, s[%d:%d], 0 offen" % (vR, vR + 1, vU0, sU, sU + 3))
        for r in range(1, 9):
            vo = vU1 if r <= 4 else vU2
            a("buffer_load_dwordx2 v[%d:%d], v%d, s[%d:%d], 0 offen offset:%d" % (vR + 2 * r, vR + 2 * r + 1, vo, sU, sU + 3, ((r - 1) % 4) * 1024))

    if S.get("btouch"):
        s_x = S["xcd"]
        sBX, sBW = 60, 64
        vBT = 22
        lb = a.newlabel("Lbt")
        a("s_load_dwordx4 s[88:91], s[%d:%d], 72" % (ka, ka + 1))
        a("s_cmp_lt_u32 s%d, 4" % s_w)
        a("s_cbranch_scc0 %s" % lb)
        a("s_and_b32 s%d, s%d, 3" % (s_t0, s_x))
        a("s_lshl_b32 s%d, s%d, 9" % (s_t0, s_t0))
        a("s_lshl_b32 s%d, s%d, 5" % (s_t1, s_i))
        a("s_add_u32 s%d, s%d, s%d" % (s_t0, s_t0, s_t1))
        a("v_and_b32 v%d, 31, v%d" % (vBT, vLane))
        a("v_add_u32 v%d, s%d, v%d" % (vBT, s_t0, vBT))
        a("v_lshlrev_b32 v%d, 10, v%d" % (vBT, vBT))
        a("v_lshrrev_b32 v%d, 5, v%d" % (vT0, vLane))
        a("s_and_b32 s%d, s%d, 1" % (s_t1, s_w))
        a("s_lshl_b32 s%d, s%d, 1" % (s_t1, s_t1))
        a("v_add_u32 v%d, s%d, v%d" % (vT0, s_t1, vT0))
        a("v_lshlrev_b32 v%d, 8, v%d" % (vT0, vT0))
        a("v_add3_u32 v%d, v%d, v%d, %d" % (vBT, vBT, vT0, 0))
        a("v_add_u32 v%d, 128, v%d" % (vBT, vBT))
        a("s_lshr_b32 s%d, s%d, 2" % (s_t0, s_i))
        a("s_lshl_b32 s%d, s%d, 1" % (s_t0, s_t0))
        a("s_add_u32 s%d, s%d, 1" % (s_t0, s_t0))
        a("s_lshl_b32 s%d, s%d, 6" % (s_t0, s_t0))
        a("v_add_u32 v%d, s%d, v%d" % (vT1, s_t0, vLane))
        a("v_mul_u32_u24 v%d, 3072, v%d" % (vT1, vT1))
        a("s_lshr_b32 s%d, s%d, 2" % (s_t0, s_x))
        a("s_lshl_b32 s%d, s%d, 2" % (s_t0, s_t0))
        a("s_and_b32 s%d, s%d, 3" % (s_t1, s_i))
        a("s_add_u32 s%d, s%d, s%d" % (s_t0, s_t0, s_t1))
        a("s_lshl_b32 s%d, s%d, 7" % (s_t0, s_t0))
        a("s_and_b32 s%d, s%d, 1" % (s_t1, s_w))
        a("s_add_u32 s%d, s%d, 1" % (s_t1, s_t1))
        a("s_lshl_b32 s%d, s%d, 10" % (s_t1, s_t1))
        a("s_add_u32 s%d, s%d, s%d" % (s_t0, s_t0, s_t1))
        a("v_add_u32 v%d, s%d, v%d" % (vT1, s_t0, vT1))
        a("s_waitcnt lgkmcnt(0)")
        a("s_mov_b32 s%d, s88" % sBX); a("s_and_b32 s%d, s89, 0xffff" % (sBX + 1)); a("s_mov_b32 s%d, 0x200000" % (sBX + 2)); a("s_mov_b32 s%d, 0x20000" % (sBX + 3))
        a("s_mov_b32 s%d, s90" % sBW); a("s_and_b32 s%d, s91, 0xffff" % (sBW + 1)); a("s_mov_b32 s%d, 0x180000" % (sBW + 2)); a("s_mov_b32 s%d, 0x20000" % (sBW + 3))
        lb2 = a.newlabel("Lbt")
        a("s_cmp_lt_u32 s%d, 2" % s_w)
        a("s_cbranch_scc0 %s" % lb2)
        a("buffer_load_dword v%d, v%d, s[%d:%d], 0 offen" % (vBT + 1, vBT, sBX, sBX + 3))
        a("s_branch %s" % lb)
        a.label(lb2)
        a("buffer_load_dword v%d, v%d, s[%d:%d], 0 offen" % (vBT + 1, vT1, sBW, sBW + 3))
        a.label(lb)

    def touch():
        lt = a.newlabel("Lt")
        a("s_cmp_lt_u32 s%d, 2" % s_w)
        a("s_cbranch_scc0 %s" % lt)
        a("buffer_load_dword v%d, v%d, s[%d:%d], 0 offen" % (vTouch + 1, vTouch, sU, sU + 3))
        a.label(lt)
    if not S.get("touch_late"):
        touch()

    a("s_mul_i32 s%d, s%d, %d" % (s_kreg, s_w, SCR))
    a("v_lshlrev_b32 v%d, 2, v%d" % (vXw, vLane))
    a("v_add_u32 v%d, s%d, v%d" % (vXw, s_kreg, vXw))
    a("v_and_b32 v%d, 31, v%d" % (vT0, vLane))
    a("v_mul_u32_u24 v%d, %d, v%d" % (vXr, XROW, vT0))
    a("v_lshrrev_b32 v%d, 5, v%d" % (vT1, vLane))
    a("v_lshlrev_b32 v%d, 4, v%d" % (vT1, vT1))
    a("v_add3_u32 v%d, v%d, v%d, s%d" % (vXr, vXr, vT1, s_kreg))
    lw1, lw2 = a.newlabel("Lw"), a.newlabel("Lw")
    nb = 1 if S.get("btouch") else 0
    nt = 0 if S.get("touch_late") else 1
    lw3 = a.newlabel("Lw")
    a("s_cmp_lt_u32 s%d, 2" % s_w)
    a("s_cbranch_scc0 %s" % lw1)
    a("s_waitcnt vmcnt(%d)" % (nb + nt))
    a("s_branch %s" % lw2)
    a.label(lw1)
    a("s_cmp_lt_u32 s%d, 4" % s_w)
    a("s_cbranch_scc0 %s" % lw3)
    a("s_waitcnt vmcnt(%d)" % nb)
    a("s_branch %s" % lw2)
    a.label(lw3)
    a("s_waitcnt vmcnt(0)")
    a.label(lw2)
    if S.get("touch_late"):
        touch()
    if S.get("btouch2"):
        s_x = S["xcd"]
        l2 = a.newlabel("Lb2")
        a("s_load_dwordx4 s[88:91], s[%d:%d], 80" % (ka, ka + 1))
        a("s_cmp_ge_u32 s%d, 2" % s_w)
        a("s_cbranch_scc0 %s" % l2)
        a("s_cmp_lt_u32 s%d, 6" % s_w)
        a("s_cbranch_scc0 %s" % l2)
        a("s_lshl_b32 s%d, s%d, 7" % (s_t0, s_i))
        a("s_and_b32 s%d, s%d, 1" % (s_t1, s_w))
        a("s_lshl_b32 s%d, s%d, 6" % (s_t1, s_t1))
        a("s_add_u32 s%d, s%d, s%d" % (s_t0, s_t0, s_t1))
        a("v_add_u32 v%d, s%d, v%d" % (vT0, s_t0, vLane))
        a("v_lshrrev_b32 v%d, 2, v%d" % (vT1, vT0))
        a("v_and_b32 v%d, 3, v%d" % (vT0, vT0))
        a("s_lshr_b32 s%d, s%d, 2" % (s_t0, s_x))
        a("s_lshl_b32 s%d, s%d, 2" % (s_t0, s_t0))
        a("v_add_u32 v%d, s%d, v%d" % (vT0, s_t0, vT0))
        a("v_lshlrev_b32 v%d, 7, v%d" % (vT0, vT0))
        a("v_mul_u32_u24 v%d, 3072, v%d" % (vT2, vT1))
        a("v_add_u32 v%d, v%d, v%d" % (vT2, vT2, vT0))
        a("v_lshlrev_b32 v%d, 10, v%d" % (vT3, vT1))
        a("v_add_u32 v%d, v%d, v%d" % (vT3, vT3, vT0))
        a("s_waitcnt lgkmcnt(0)")
        a("s_mov_b32 s60, s88"); a("s_and_b32 s61, s89, 0xffff"); a("s_mov_b32 s62, 0x180000"); a("s_mov_b32 s63, 0x20000")
        a("s_mov_b32 s64, s90"); a("s_and_b32 s65, s91, 0xffff"); a("s_mov_b32 s66, 0x80000"); a("s_mov_b32 s67, 0x20000")
        l3 = a.newlabel("Lb3")
        a("s_cmp_lt_u32 s%d, 4" % s_w)
        a("s_cbranch_scc0 %s" % l3)
        a("buffer_load_dword v23, v%d, s[60:63], 0 offen" % vT2)
        a("s_branch %s" % l2)
        a.label(l3)
        a("buffer_load_dword v23, v%d, s[64:67], 0 offen" % vT3)
        a.label(l2)
    if S.get("zero_post"):
        S["zero_post"](a, s_w)
    stamp(a, S, 1)
    a("v_lshlrev_b32 v%d, 16, v%d" % (vLdt, vLdt))
    a("v_lshlrev_b32 v%d, 16, v%d" % (vDsk, vDsk))
    a("v_mul_f32 v%d, 0x%x, v%d" % (vDt, LOG2E, vLdt))
    a("v_exp_f32 v%d, v%d" % (vDt, vDt))
    for k in range(6):
        a("v_lshlrev_b32 v%d, 16, v%d" % (vIn + k, vIn + k))
    a("v_cvt_pk_bf16_f32 v%d, v%d, v%d" % (vDt, vDt, vDt))
    a("v_and_b32 v%d, 0xffff0000, v%d" % (vDt, vDt))
    a("v_mul_f32 v%d, 0x%x, v%d" % (vDtL, LOG2E, vDt))
    a("v_mul_f32 v%d, 0x%x, v%d" % (vDtP, INV2PI, vDt))
    a("v_cmp_eq_u32 vcc, 0, v%d" % vLane)
    a("v_cndmask_b32 v%d, 0, v%d, vcc" % (vD0, vDsk))
    real_a = a
    class _L:
        def __init__(self): self.l = []
        def __call__(self, t):
            for x in t.split("\n"):
                x = x.strip()
                if x: self.l.append(x)
    a = _L()
    c0 = 52
    Z1, Z2, Z4, Z8, Z16, Z32, Z64, Z128, Z256, W = [c0 + 2 * i for i in range(10)]
    wk = [72 + 2 * i for i in range(12)]
    tc = [96, 97, 98, 99]
    FA, FB = 100, 132
    DK = 164
    tci = [0]

    def put(P, rows, isX):
        t = tc[tci[0] % 4]; tci[0] += 1
        if isX:
            a("v_cvt_pk_bf16_f32 v%d, v%d, -v%d" % (t, P, P + 1))
        else:
            a("v_cvt_pk_bf16_f32 v%d, v%d, v%d" % (t, P, P + 1))
        for r in rows:
            a("ds_write_b32 v%d, v%d offset:%d" % (vXw, t, r * XROW + (0 if isX else YOFF)))

    I = vIn
    Are, Aim, Bre, Cre = I, I + 1, I + 2, I + 4
    m_, ph = wk[0], wk[0] + 1
    a("v_mul_f32 v%d, v%d, v%d" % (m_, Are, vDtL))
    a("v_mul_f32 v%d, v%d, v%d" % (ph, Aim, vDtP))
    a("v_exp_f32 v%d, v%d" % (m_, m_))
    a("v_rndne_f32 v%d, v%d" % (wk[2], ph))
    a("v_sub_f32 v%d, v%d, v%d" % (ph, ph, wk[2]))
    cmul(a, wk[1], Cre, Bre)
    a("v_cos_f32 v%d, v%d" % (Z1, ph))
    a("v_sin_f32 v%d, v%d" % (Z1 + 1, ph))
    a("v_mul_f32 v%d, v%d, v%d" % (W, wk[1], vDt))
    a("v_mul_f32 v%d, v%d, v%d" % (W + 1, wk[1] + 1, vDt))
    a("v_mul_f32 v%d, v%d, v%d" % (Z1, Z1, m_))
    a("v_mul_f32 v%d, v%d, v%d" % (Z1 + 1, Z1 + 1, m_))
    put(W, XEXP[0], True)
    cmul2(a, [(Z2, Z1, Z1), (wk[1], W, Z1)])
    put(wk[1], XEXP[1], True)
    cmul2(a, [(Z4, Z2, Z2), (wk[2], W, Z2), (wk[3], wk[1], Z2)])
    put(wk[2], XEXP[2], True); put(wk[3], XEXP[3], True)
    cmul2(a, [(Z8, Z4, Z4), (wk[4], W, Z4), (wk[5], wk[1], Z4), (wk[6], wk[2], Z4), (wk[7], wk[3], Z4)])
    for k_, e_ in ((4, 4), (5, 5), (6, 6), (7, 7)):
        put(wk[k_], XEXP[e_], True)
    cmul(a, Z16, Z8, Z8)
    a("v_mov_b32 v%d, 0x00003f80" % tc[0])
    tci[0] = 1
    a("ds_write_b32 v%d, v%d offset:%d" % (vXw, tc[0], YOFF))
    put(Z8, [1], False)
    cmul2(a, [(Z32, Z16, Z16), (wk[3], Z8, Z16)])
    put(Z16, [2], False); put(wk[3], [3], False)
    cmul2(a, [(Z64, Z32, Z32), (wk[1], Z8, Z32), (wk[2], Z16, Z32), (wk[7], wk[3], Z32)])
    put(Z32, [4], False); put(wk[1], [5], False); put(wk[2], [6], False); put(wk[7], [7], False)
    cur = [Z32, wk[1], wk[2], wk[7]]
    setA = [wk[3], wk[4], wk[5], wk[6]]
    setB = [wk[8], wk[9], wk[10], wk[11]]
    nxt = setB
    for j0 in range(8, 32, 4):
        extra = []
        if j0 == 8:
            extra = [(Z128, Z64, Z64)]
        elif j0 == 12:
            extra = [(Z256, Z128, Z128)]
        cmul2(a, [(nxt[k], cur[k], Z32) for k in range(4)] + extra)
        for k in range(4):
            put(nxt[k], [j0 + k], False)
        cur = nxt
        nxt = setA if cur is setB else setB
    G = wk[0]; Gn = wk[1]
    cmul(a, G, W, Z256)
    put(G, XEXP[256], True)
    cmul2(a, [(wk[2], G, Z2), (wk[3], G, Z4), (wk[4], G, Z8), (Gn, G, Z256)])
    put(wk[2], XEXP[258], True); put(wk[3], XEXP[260], True); put(wk[4], XEXP[264], True)
    cmul2(a, [(wk[5], wk[2], Z4), (wk[6], Gn, Z4), (wk[7], Gn, Z8), (G, Gn, Z256)])
    put(wk[5], XEXP[262], True); put(Gn, XEXP[512], True); put(wk[6], XEXP[516], True); put(wk[7], XEXP[520], True)
    cmul2(a, [(wk[2], G, Z4), (wk[3], G, Z8), (Gn, G, Z256)])
    put(G, XEXP[768], True); put(wk[2], XEXP[772], True); put(wk[3], XEXP[776], True)
    cmul2(a, [(wk[4], Gn, Z8), (G, Gn, Z256)])
    put(Gn, XEXP[1024], True); put(wk[4], XEXP[1032], True)
    cmul2(a, [(wk[5], G, Z8), (Gn, G, Z256)])
    put(G, XEXP[1280], True); put(wk[5], XEXP[1288], True)
    cmul2(a, [(wk[6], Gn, Z8), (G, Gn, Z256)])
    put(Gn, XEXP[1536], True); put(wk[6], XEXP[1544], True)
    cmul(a, wk[7], G, Z8)
    put(G, XEXP[1792], True); put(wk[7], XEXP[1800], True)
    kg_lines = a.l
    a = real_a
    for x in kg_lines:
        a(x)
    a("s_waitcnt lgkmcnt(0)")
    for m in range(7):
        a("ds_read_b128 v[%d:%d], v%d offset:%d" % (FA + 4 * m, FA + 4 * m + 3, vXr, 32 * m))
        a("ds_read_b128 v[%d:%d], v%d offset:%d" % (FB + 4 * m, FB + 4 * m + 3, vXr, YOFF + 32 * m))
    for m in range(8):
        if m == 1:
            a("ds_read_b128 v[%d:%d], v%d offset:%d" % (FA + 28, FA + 31, vXr, 32 * 7))
            a("ds_read_b128 v[%d:%d], v%d offset:%d" % (FB + 28, FB + 31, vXr, YOFF + 32 * 7))
        a("s_waitcnt lgkmcnt(%d)" % (12 if m == 0 else 14 - 2 * m))
        c_ = "0" if m == 0 else "v[%d:%d]" % (DK, DK + 15)
        a("v_mfma_f32_32x32x16_bf16 v[%d:%d], v[%d:%d], v[%d:%d], %s" % (DK, DK + 15, FA + 4 * m, FA + 4 * m + 3, FB + 4 * m, FB + 4 * m + 3, c_))
    stamp(a, S, 2)
    vDX, vKw, vKr_, vUw = 72, 73, 74, 78
    vA, vB, vZ = 80, 81, 82
    vBc = 86
    Y0, Y1 = 192, 208
    a("s_lshl_b32 s%d, s%d, 12" % (s_t0, s_c))
    a("s_add_u32 s%d, s%d, %d" % (s_t0, s_t0, DX))
    a("v_lshlrev_b32 v%d, 4, v%d" % (vDX, vLane))
    a("v_add_u32 v%d, s%d, v%d" % (vDX, s_t0, vDX))
    a("s_mul_i32 s%d, s%d, %d" % (s_kreg, s_c, KREG))
    a("v_lshlrev_b32 v%d, 4, v%d" % (vKw, vLane))
    a("v_sub_u32 v%d, s%d, v%d" % (vKw, s_kreg, vKw))
    a("v_add_u32 v%d, %d, v%d" % (vKw, 4 * 1020 - 3072, vKw))
    a("v_bfe_u32 v%d, v%d, 3, 2" % (vT1, vLane))
    for k in range(4):
        a("v_add_u32 v%d, %d, v%d" % (vT2, k, vT1))
        a("v_and_b32 v%d, 3, v%d" % (vT2, vT2))
        a("v_lshlrev_b32 v%d, 2, v%d" % (vT2, vT2))
        a("v_add_u32 v%d, v%d, v%d" % (vKr_ + k, vKw, vT2))
    a("v_bfe_u32 v%d, v%d, 3, 1" % (vT2, vLane))
    a("v_cmp_eq_u32 s[%d:%d], 1, v%d" % (s_m0, s_m0 + 1, vT2))
    a("v_bfe_u32 v%d, v%d, 4, 1" % (vT2, vLane))
    a("v_cmp_eq_u32 s[%d:%d], 1, v%d" % (s_m1, s_m1 + 1, vT2))
    a("v_and_b32 v%d, 1, v%d" % (vT1, vLane))
    a("v_cmp_eq_u32 s[58:59], 1, v%d" % vT1)
    a("v_lshrrev_b32 v%d, 3, v%d" % (vT0, vG))
    a("v_add_u32 v%d, v%d, v%d" % (vT0, vT0, vG))
    a("v_lshlrev_b32 v%d, 4, v%d" % (vUw, vT0))
    a("v_add_u32 v%d, %d, v%d" % (vUw, UBASE + 16, vUw))
    a("v_and_b32 v%d, 31, v%d" % (vT0, vLane))
    a("v_add_u32 v%d, 1, v%d" % (vT1, vT0))
    a("v_and_b32 v%d, 3, v%d" % (vT1, vT1))
    a("v_mul_u32_u24 v%d, %d, v%d" % (vT2, 4416 + 4, vT1))
    a("v_cmp_eq_u32 vcc, 0, v%d" % vT1)
    a("v_mov_b32 v%d, 16" % vT3)
    a("v_cndmask_b32 v%d, v%d, v%d, vcc" % (vT2, vT2, vT3))
    a("v_lshlrev_b32 v%d, 2, v%d" % (vT0, vT0))
    a("v_sub_u32 v%d, v%d, v%d" % (vT2, vT2, vT0))
    a("v_lshrrev_b32 v%d, 5, v%d" % (vT1, vLane))
    a("v_lshlrev_b32 v%d, 4, v%d" % (vT1, vT1))
    a("s_lshl_b32 s%d, s%d, 10" % (s_t0, s_h))
    a("s_add_u32 s%d, s%d, s%d" % (s_t0, s_t0, s_kreg))
    a("v_add3_u32 v%d, v%d, v%d, s%d" % (vA, vT2, vT1, s_t0))
    a("v_add_u32 v%d, %d, v%d" % (vA, 4 * 543 - 2048, vA))
    a("v_and_b32 v%d, 1, v%d" % (vT0, vLane))
    a("v_mul_u32_u24 v%d, %d, v%d" % (vT0, UCP, vT0))
    a("s_mul_i32 s%d, s%d, %d" % (s_t0, s_c, UCH))
    a("s_add_u32 s%d, s%d, %d" % (s_t0, s_t0, UBASE + 16))
    a("v_add_u32 v%d, s%d, v%d" % (vT0, s_t0, vT0))
    a("v_add_u32 v%d, -16, v%d" % (vZ, vT0))
    for j in range(1, 4):
        a("v_add_u32 v%d, %d, v%d" % (vZ + j, -16 - 32 * j, vT0))
    a("v_bfe_u32 v%d, v%d, 1, 4" % (vT2, vLane))
    a("v_mul_u32_u24 v%d, 144, v%d" % (vT2, vT2))
    a("v_add3_u32 v%d, v%d, v%d, v%d" % (vB, vT0, vT2, vT1))
    a("s_mul_i32 s%d, s%d, %d" % (s_t0, s_h, 8 * 144))
    a("s_add_u32 s%d, s%d, %d" % (s_t0, s_t0, -16 * 135))
    a("v_add_u32 v%d, s%d, v%d" % (vB, s_t0, vB))
    for i in range(16):
        a("v_mov_b32 v%d, 0" % (Y0 + i)); a("v_mov_b32 v%d, 0" % (Y1 + i))
    Z0 = 108
    for r in range(4):
        a("v_mov_b32 v%d, 0" % (Z0 + r))
    a("s_barrier")
    stamp(a, S, 3)
    lH1, lJb = a.newlabel("LAh"), a.newlabel("LAh")
    d = DK
    E = 112
    PK = 112
    TT, RR, vM = 128, 132, 144
    cv = lambda dst, lo, hi: a("v_cvt_pk_bf16_f32 v%d, v%d, v%d" % (dst, lo, hi))

    def kwrite(s_, P):
        a("ds_write_b128 v%d, v[%d:%d] offset:%d" % (vKw, P, P + 3, 16 * CB[0] + 1024 * (3 - s_)))
        for k in range(4):
            a("v_cndmask_b32 v%d, v%d, v%d, s[%d:%d]" % (TT + k, P + k, P + ((k + 1) & 3), s_m0, s_m0 + 1))
        R = RR + 4 * (s_ & 1)
        for k in range(4):
            a("v_cndmask_b32 v%d, v%d, v%d, s[%d:%d]" % (R + k, TT + k, TT + ((k + 2) & 3), s_m1, s_m1 + 1))
        for e in range(1, 4):
            for k in range(4):
                a("ds_write_b32 v%d, v%d offset:%d" % (vKr_ + k, R + k, 16 * CB[e] + 4 * e + 1024 * (3 - s_)))

    a("s_cmp_eq_u32 s%d, 1" % s_h)
    a("s_cbranch_scc1 %s" % lH1)
    a("v_lshlrev_b32 v%d, 2, v%d" % (vT0, vLane))
    a("v_add_u32 v%d, s%d, v%d" % (vT0, s_kreg, vT0))
    for e in range(4):
        a("ds_write_b32 v%d, v%d offset:%d" % (vT0, Z0, 16 * CB[e] + 4 * (1024 + e)))
    a("v_and_b32 v%d, 7, v%d" % (vT0, vLane))
    a("v_mul_u32_u24 v%d, %d, v%d" % (vT0, UCP, vT0))
    a("v_add_u32 v%d, %d, v%d" % (vT0, UBASE, vT0))
    a("ds_write_b128 v%d, v[108:111]" % vT0)
    a("s_barrier")
    stamp(a, S, 4)
    for q in range(4):
        a("ds_read_b128 v[%d:%d], v%d offset:%d" % (E + 4 * q, E + 4 * q + 3, vDX, 1024 * q))
    a("s_waitcnt lgkmcnt(0)")
    for i in range(15):
        a("v_add_f32 v%d, v%d, v%d" % (d + i, d + i, E + i))
    a("v_add_f32 v%d, v%d, v%d" % (d, d, vD0))
    cv(PK + 0, d + 7, d + 6); cv(PK + 1, d + 5, d + 4); cv(PK + 2, d + 3, d + 2); cv(PK + 3, d + 1, d + 0)
    cv(PK + 4, d + 10, d + 10); cv(PK + 5, d + 9, d + 9); cv(PK + 6, d + 9, d + 8); cv(PK + 7, d + 8, d + 8)
    for s_, (v0_, v1_) in ((2, (d + 11, d + 12)), (3, (d + 13, d + 14))):
        P = PK + 4 * s_
        a("v_cndmask_b32 v%d, v%d, v%d, s[58:59]" % (vM, v0_, v1_))
        cv(P + 0, v1_, v1_); cv(P + 1, v1_, vM); cv(P + 2, v0_, v0_); cv(P + 3, v0_, v0_)
    for s_ in range(4):
        kwrite(s_, PK + 4 * s_)
    a("s_branch %s" % lJb)
    a.label(lH1)
    for q in range(4):
        a("ds_write_b128 v%d, v[%d:%d] offset:%d" % (vDX, d + 4 * q, d + 4 * q + 3, 1024 * q))
    a("s_waitcnt lgkmcnt(0)")
    a("s_barrier")
    u_loads()
    PU = 112
    a("s_mov_b32 s%d, 0x05040100" % s_t0)
    a("s_mov_b32 s%d, 0x07060302" % s_t1)
    a("s_waitcnt vmcnt(0)")
    stamp(a, S, 4)
    for c in range(4):
        for rho in range(2):
            P = PU + 4 * (2 * c + rho)
            sel = s_t0 if (c & 1) == 0 else s_t1
            for j in range(4):
                r = rho + 2 * j
                a("v_perm_b32 v%d, v%d, v%d, s%d" % (P + j, vR + 2 * (r + 1) + (c >> 1), vR + 2 * r + (c >> 1), sel))
            a("ds_write_b128 v%d, v[%d:%d] offset:%d" % (vUw, P, P + 3, c * UCH + rho * UCP))
    a.label(lJb)
    stamp(a, S, 5)
    FR = 112
    a("s_waitcnt lgkmcnt(0)")
    a("s_barrier")
    stamp(a, S, 6)

    def reads(j, buf):
        F = FR + 16 * buf
        a("v_max_i32 v%d, v%d, v%d" % (vBc + (j & 1), vB, vZ + j))
        a("ds_read_b128 v[%d:%d], v%d offset:%d" % (F, F + 3, vA, 2048 + 32 * j))
        a("ds_read_b128 v[%d:%d], v%d offset:%d" % (F + 8, F + 11, vBc + (j & 1), 32 * j))
        a("ds_read_b128 v[%d:%d], v%d offset:%d" % (F + 12, F + 15, vB, 2304 + 32 * j))
        a("ds_read_b128 v[%d:%d], v%d offset:%d" % (F + 4, F + 7, vA, 32 * j))

    reads(0, 0); reads(1, 1)
    a("s_mov_b32 s%d, 0" % s_cnt)
    lp = a.newlabel("Lconv")
    a.label(lp)
    for j in range(4):
        if j < 2:
            reads(j + 2, j + 2)
        else:
            if j == 2:
                a("v_add_u32 v%d, 128, v%d" % (vA, vA))
                a("v_add_u32 v%d, 144, v%d" % (vB, vB))
            reads(j - 2, j - 2)
        a("s_waitcnt lgkmcnt(8)")
        F = FR + 16 * j
        a("v_mfma_f32_32x32x16_bf16 v[%d:%d], v[%d:%d], v[%d:%d], v[%d:%d]" % (Y0, Y0 + 15, F, F + 3, F + 8, F + 11, Y0, Y0 + 15))
        a("v_mfma_f32_32x32x16_bf16 v[%d:%d], v[%d:%d], v[%d:%d], v[%d:%d]" % (Y1, Y1 + 15, F, F + 3, F + 12, F + 15, Y1, Y1 + 15))
        a("v_mfma_f32_32x32x16_bf16 v[%d:%d], v[%d:%d], v[%d:%d], v[%d:%d]" % (Y1, Y1 + 15, F + 4, F + 7, F + 8, F + 11, Y1, Y1 + 15))
    a("s_add_u32 s%d, s%d, 1" % (s_cnt, s_cnt))
    a("s_cmp_lt_u32 s%d, 8" % s_cnt)
    a("s_cbranch_scc1 %s" % lp)
    vE0, vE1, vYw = 72, 73, 74
    a("s_lshl_b32 s%d, s%d, 12" % (s_t0, s_w))
    a("v_lshlrev_b32 v%d, 4, v%d" % (vE0, vLane))
    a("v_add_u32 v%d, s%d, v%d" % (vE0, s_t0, vE0))
    a("v_xor_b32 v%d, 0x4000, v%d" % (vE1, vE0))
    a("v_add_u32 v%d, %d, v%d" % (vE0, YX, vE0))
    a("v_add_u32 v%d, %d, v%d" % (vE1, YX, vE1))
    a("v_bfe_u32 v%d, v%d, 1, 4" % (vT0, vLane))
    a("v_mul_u32_u24 v%d, 528, v%d" % (vT0, vT0))
    a("v_and_b32 v%d, 1, v%d" % (vT1, vLane))
    a("v_lshlrev_b32 v%d, 3, v%d" % (vT1, vT1))
    a("v_lshrrev_b32 v%d, 5, v%d" % (vT2, vLane))
    a("v_lshlrev_b32 v%d, 6, v%d" % (vT2, vT2))
    a("v_add3_u32 v%d, v%d, v%d, v%d" % (vYw, vT0, vT1, vT2))
    a("s_lshl_b32 s%d, s%d, 1" % (s_t0, s_c))
    a("s_mul_i32 s%d, s%d, 8448" % (s_t1, s_h))
    a("s_add_u32 s%d, s%d, s%d" % (s_t0, s_t0, s_t1))
    a("s_add_u32 s%d, s%d, %d" % (s_t0, s_t0, YST))
    a("v_add_u32 v%d, s%d, v%d" % (vYw, s_t0, vYw))
    a("s_waitcnt lgkmcnt(0)")
    stamp(a, S, 7)
    lX1, lX2, lX3, lX4 = [a.newlabel("LAx") for _ in range(4)]
    a("s_cmp_eq_u32 s%d, 0" % s_h)
    a("s_cbranch_scc0 %s" % lX1)
    for q in range(4):
        a("ds_write_b128 v%d, v[%d:%d] offset:%d" % (vE0, Y1 + 4 * q, Y1 + 4 * q + 3, 1024 * q))
    a("s_branch %s" % lX2)
    a.label(lX1)
    for q in range(4):
        a("ds_write_b128 v%d, v[%d:%d] offset:%d" % (vE0, Y0 + 4 * q, Y0 + 4 * q + 3, 1024 * q))
    a.label(lX2)
    a("s_waitcnt lgkmcnt(0)")
    a("s_barrier")
    E = 112
    for q in range(4):
        a("ds_read_b128 v[%d:%d], v%d offset:%d" % (E + 4 * q, E + 4 * q + 3, vE1, 1024 * q))
    vRd, vOa = 75, 76
    a("v_lshrrev_b32 v%d, 4, v0" % vT0)
    a("v_lshlrev_b32 v%d, 4, v%d" % (vT0, vT0))
    a("v_lshlrev_b32 v%d, 5, v0" % vT1)
    a("v_add3_u32 v%d, v%d, v%d, %d" % (vRd, vT0, vT1, 0))
    a("v_add_u32 v%d, %d, v%d" % (vRd, YST, vRd))
    a("v_lshlrev_b32 v%d, 13, v0" % vOa)
    a("s_lshl_b32 s%d, s%d, 3" % (s_t0, s_cg))
    a("v_add_u32 v%d, s%d, v%d" % (vOa, s_t0, vOa))
    a("s_cmp_eq_u32 s%d, 0" % s_h)
    a("s_cbranch_scc0 %s" % lX3)
    a("s_waitcnt lgkmcnt(0)")
    for i in range(16):
        a("v_add_f32 v%d, v%d, v%d" % (E + i, E + i, Y0 + i))
    a("s_branch %s" % lX4)
    a.label(lX3)
    a("s_waitcnt lgkmcnt(0)")
    for i in range(16):
        a("v_add_f32 v%d, v%d, v%d" % (E + i, E + i, Y1 + i))
    a.label(lX4)
    tq = [128, 129, 130, 131]
    k = 0
    for q in range(4):
        for i in (0, 2):
            t = tq[k % 4]; k += 1
            a("v_cvt_pk_bf16_f32 v%d, v%d, v%d" % (t, E + 4 * q + i, E + 4 * q + i + 1))
            off = 128 * q + 16 * i
            a("ds_write_b16 v%d, v%d offset:%d" % (vYw, t, off))
            a("ds_write_b16_d16_hi v%d, v%d offset:%d" % (vYw, t, off + 16))
    a("s_waitcnt lgkmcnt(0)")
    a("s_barrier")
    stamp(a, S, 8)
    O = 132
    a("ds_read_b128 v[%d:%d], v%d" % (O, O + 3, vRd))
    a("ds_read_b128 v[%d:%d], v%d offset:16" % (O + 4, O + 7, vRd))
    a("s_mov_b32 s%d, 4096" % s_k2)
    for kk in range(4):
        if kk % 2 == 0:
            a("s_waitcnt lgkmcnt(%d)" % (1 - kk // 2))
        so = ["0", "s%d" % s_k2][kk // 2]
        a("buffer_store_dwordx2 v[%d:%d], v%d, s[%d:%d], %s offen offset:%d" % (O + 2 * kk, O + 2 * kk + 1, vOa, sOS, sOS + 3, so, 2048 * (kk & 1)))
    return dict(s_w=s_w)
```

```python
from asmdsl import Asm
from partB import srd

LOG2E = 0x3fb8aa3b
EPS = 0x358637bd
WS_KV = 0
WS_Z = 32768
WS_FLAG = 65536
WS_PQ = 1 << 20
SLOT = 32768
STAMP_BASE = 70
MAGIC = 0x5a17c0de
FLAG_OFFS = [0]


def stamp(a, S, i):
    if S.get("stamps"):
        a("s_memtime s[%d:%d]" % (STAMP_BASE + 2 * i, STAMP_BASE + 2 * i + 1))


class Lines:
    def __init__(self):
        self.l = []
    def __call__(self, t):
        for x in t.split("\n"):
            x = x.strip()
            if x:
                self.l.append(x)


class LTrack:
    def __init__(self, a):
        self.a = a
        self.q = []
    def issue(self, line, tag):
        if len(self.q) >= 15:
            self.a("s_waitcnt lgkmcnt(14)")
            self.q = self.q[-14:]
        self.a(line)
        self.q.append(tag)
    def need(self, tag):
        idx = [i for i, t in enumerate(self.q) if t == tag]
        if not idx:
            return
        n = len(self.q) - 1 - idx[-1]
        self.a("s_waitcnt lgkmcnt(%d)" % n)
        self.q = self.q[idx[-1] + 1:]


def phi4(a, regs, tmp):
    for k, r in enumerate(regs):
        a("v_mul_f32 v%d, 0x%x, v%d" % (tmp + k, LOG2E, r))
    for k, r in enumerate(regs):
        a("v_exp_f32 v%d, v%d clamp" % (tmp + k, tmp + k))
    for k, r in enumerate(regs):
        a("v_max_f32 v%d, 0x%x, v%d" % (r, EPS, r))
    for k, r in enumerate(regs):
        a("v_add_f32 v%d, v%d, v%d" % (r, r, tmp + k))


def interleave(a, prim, fill, per):
    fi = 0
    for p in prim:
        for x in p:
            a(x)
        for _ in range(per):
            if fi < len(fill):
                a(fill[fi]); fi += 1
    while fi < len(fill):
        a(fill[fi]); fi += 1


def emit_B(a: Asm, S):
    ka, s_rb, s_hq = S["ka"], S["rb"], S["hq"]
    s_w, s_rg, s_ch = 44, 45, 46
    sX, sW, sWS, sDBG = 28, 32, 36, 40
    s_t0, s_t1, s_m0x, s_m0w, s_off, s_rot = 47, 48, 49, 50, 51, 58
    sWO, sOUT = 60, 64
    s_cc, s_xo, s_wo = 59, 68, 69
    vLane = 1
    vT0, vT1, vT2, vT3 = 3, 4, 5, 6
    vXs0, vXs1, vWs, vWOs = 7, 8, 9, 2
    vXr = 10
    vWr = 14
    vXc = 15
    vWc = 19
    WF = 20
    AK, AV, AQ = 52, 68, 84
    TMP = 100
    XF = 128
    stamp(a, S, 0)
    a("s_load_dwordx8 s[16:23], s[%d:%d], 72" % (ka, ka + 1))
    a("s_load_dwordx4 s[24:27], s[%d:%d], 104" % (ka, ka + 1))
    a("v_and_b32 v1, 63, v0")
    a("v_lshrrev_b32 v2, 6, v0")
    a("v_readfirstlane_b32 s44, v2")
    a("s_and_b32 s45, s44, 3")
    a("s_lshr_b32 s46, s44, 2")
    a("s_add_u32 s%d, s%d, s%d" % (s_rot, s_hq, s_rb))
    a("s_and_b32 s%d, s%d, 3" % (s_rot, s_rot))
    a("s_lshl_b32 s%d, s%d, 1" % (s_rot, s_rot))
    a("v_lshrrev_b32 v%d, 3, v%d" % (vT0, vLane))
    a("v_and_b32 v%d, 7, v%d" % (vT1, vLane))
    a("v_lshrrev_b32 v%d, 1, v%d" % (vT2, vT0))
    a("v_xor_b32 v%d, v%d, v%d" % (vT2, vT2, vT1))
    a("s_lshl_b32 s%d, s%d, 7" % (s_t0, s_rb))
    a("s_lshl_b32 s%d, s%d, 4" % (s_t1, s_w))
    a("s_add_u32 s%d, s%d, s%d" % (s_t0, s_t0, s_t1))
    a("v_add_u32 v%d, s%d, v%d" % (vT3, s_t0, vT0))
    a("v_lshlrev_b32 v%d, 10, v%d" % (vT3, vT3))
    a("v_lshlrev_b32 v%d, 4, v%d" % (vXs0, vT2))
    a("v_add_u32 v%d, v%d, v%d" % (vXs0, vXs0, vT3))
    a("v_xor_b32 v%d, 4, v%d" % (vT2, vT2))
    a("v_lshlrev_b32 v%d, 4, v%d" % (vXs1, vT2))
    a("v_add_u32 v%d, v%d, v%d" % (vXs1, vXs1, vT3))
    a("v_add_u32 v%d, 8192, v%d" % (vXs1, vXs1))
    a("v_bfe_u32 v%d, v%d, 1, 1" % (vT2, vT0))
    a("v_lshlrev_b32 v%d, 2, v%d" % (vT2, vT2))
    a("v_xor_b32 v%d, v%d, v%d" % (vT2, vT2, vT1))
    a("v_lshlrev_b32 v%d, 4, v%d" % (vT2, vT2))
    a("s_lshl_b32 s%d, s%d, 3" % (s_t1, s_w))
    a("v_add_u32 v%d, s%d, v%d" % (vT3, s_t1, vT0))
    a("v_lshlrev_b32 v%d, 10, v%d" % (vWOs, vT3))
    a("v_mul_u32_u24 v%d, 3072, v%d" % (vT3, vT3))
    a("s_lshl_b32 s%d, s%d, 7" % (s_t1, s_hq))
    a("v_add3_u32 v%d, v%d, v%d, s%d" % (vWs, vT3, vT2, s_t1))
    a("v_add3_u32 v%d, v%d, v%d, s%d" % (vWOs, vWOs, vT2, s_t1))
    a("s_lshl_b32 s%d, s%d, 11" % (s_m0x, s_w))
    a("s_lshl_b32 s%d, s%d, 10" % (s_m0w, s_w))
    a("s_waitcnt lgkmcnt(0)")
    srd(a, sX, 16, 17, 2048 * 512 * 2)
    srd(a, sW, 18, 19, 512 * 1536 * 2)

    def chunk_offsets(e, c):
        e("s_add_u32 s%d, s%d, %d" % (s_cc, s_rot, c))
        e("s_and_b32 s%d, s%d, 7" % (s_cc, s_cc))
        e("s_lshl_b32 s%d, s%d, 7" % (s_xo, s_cc))
        e("s_mul_i32 s%d, s%d, 196608" % (s_wo, s_cc))

    def dma(e, m0base, m0off, vaddr, srdreg, so):
        e("s_add_u32 m0, s%d, %d" % (m0base, m0off))
        e("buffer_load_dwordx4 v%d, s[%d:%d], %s offen lds" % (vaddr, srdreg, srdreg + 3, so))

    def fill_op(e, i, j):
        b = (i % 5) * SLOT if i < 11 else 2 * SLOT
        if i < 8:
            if j == 0:
                chunk_offsets(e, i); dma(e, s_m0x, b, vXs0, sX, "s%d" % s_xo)
            elif j == 1:
                dma(e, s_m0x, b + 1024, vXs1, sX, "s%d" % s_xo)
            elif j == 2:
                e("s_add_u32 s%d, s%d, 1024" % (s_off, s_wo)); dma(e, s_m0w, b + 16384, vWs, sW, "s%d" % s_off)
            else:
                e("s_add_u32 s%d, s%d, 2048" % (s_off, s_wo)); dma(e, s_m0w, b + 24576, vWs, sW, "s%d" % s_off)
        elif i < 10:
            chunk_offsets(e, 4 * (i - 8) + j); dma(e, s_m0w, b + 8192 * j, vWs, sW, "s%d" % s_wo)
        else:
            e("s_mov_b32 s%d, %d" % (s_off, (4 * (i - 10) + j) * 65536)); dma(e, s_m0w, b + 8192 * j, vWOs, sWO, "s%d" % s_off)

    NPRO = S.get("npro", 2)
    for i in range(NPRO):
        for j in range(4):
            fill_op(a, i, j)
    srd(a, sWS, 26, 27, 1 << 28)
    srd(a, sDBG, 24, 25, 256)
    srd(a, sWO, 20, 21, 512 * 512 * 2)
    srd(a, sOUT, 22, 23, 2048 * 1024 * 2)
    a("v_and_b32 v%d, 31, v%d" % (vT0, vLane))
    a("v_lshrrev_b32 v%d, 5, v%d" % (vT1, vLane))
    a("v_bfe_u32 v%d, v%d, 1, 3" % (vT2, vLane))
    a("s_lshl_b32 s%d, s%d, 5" % (s_t0, s_rg))
    a("v_add_u32 v%d, s%d, v%d" % (vT3, s_t0, vT0))
    a("v_lshlrev_b32 v%d, 7, v%d" % (vT3, vT3))
    for i in range(4):
        a("v_add_u32 v%d, %d, v%d" % (vXr + i, 2 * i, vT1))
        a("v_xor_b32 v%d, v%d, v%d" % (vXr + i, vXr + i, vT2))
        a("v_lshlrev_b32 v%d, 4, v%d" % (vXr + i, vXr + i))
        a("v_add_u32 v%d, v%d, v%d" % (vXr + i, vXr + i, vT3))
    a("v_bfe_u32 v%d, v%d, 2, 2" % (vT0, vLane))
    a("v_lshlrev_b32 v%d, 3, v%d" % (vT2, vT1))
    a("v_add_u32 v%d, v%d, v%d" % (vT2, vT2, vT0))
    a("v_lshlrev_b32 v%d, 7, v%d" % (vWr, vT2))
    a("v_lshrrev_b32 v%d, 1, v%d" % (vT0, vT0))
    a("v_xor_b32 v%d, s%d, v%d" % (vT0, s_ch, vT0))
    a("v_lshlrev_b32 v%d, 6, v%d" % (vT0, vT0))
    a("v_add_u32 v%d, v%d, v%d" % (vWr, vWr, vT0))
    a("v_bfe_u32 v%d, v%d, 4, 1" % (vT0, vLane))
    a("v_lshlrev_b32 v%d, 5, v%d" % (vT0, vT0))
    a("v_and_b32 v%d, 3, v%d" % (vT2, vLane))
    a("v_lshlrev_b32 v%d, 3, v%d" % (vT2, vT2))
    a("v_add3_u32 v%d, v%d, v%d, v%d" % (vWr, vWr, vT0, vT2))
    for i in range(16):
        a("v_mov_b32 v%d, 0" % (AK + i)); a("v_mov_b32 v%d, 0" % (AV + i)); a("v_mov_b32 v%d, 0" % (AQ + i))

    vRW, vZW, vRR, vZR, vPQa, vKA, vZA, vG = 120, 121, 122, 123, 124, 125, 126, 127
    RED = 1 * SLOT
    ZRED = RED + 16384
    s_msk, s_hp, s_hf = 52, 54, 55
    a("v_bfe_u32 v%d, v%d, 4, 1" % (vT0, vLane))
    a("v_cmp_eq_u32 s[%d:%d], 1, v%d" % (s_msk, s_msk + 1, vT0))
    a("s_lshl_b32 s%d, s%d, 8" % (s_t0, s_w))
    a("s_add_u32 s%d, s%d, %d" % (s_t0, s_t0, ZRED))
    a("v_lshlrev_b32 v%d, 2, v%d" % (vT1, vLane))
    a("v_add_u32 v%d, s%d, v%d" % (vZW, s_t0, vT1))
    a("s_lshl_b32 s%d, s%d, 11" % (s_t0, s_w))
    a("s_add_u32 s%d, s%d, %d" % (s_t0, s_t0, RED))
    a("v_lshlrev_b32 v%d, 5, v%d" % (vRW, vLane))
    a("v_add_u32 v%d, s%d, v%d" % (vRW, s_t0, vRW))
    a("s_bfe_u32 s%d, s%d, 0x10001" % (s_hp, s_w))
    a("s_and_b32 s%d, s%d, 1" % (s_hf, s_w))
    a("s_lshl_b32 s%d, s%d, 5" % (s_t0, s_hf))
    a("s_lshl_b32 s%d, s%d, 4" % (s_t1, s_hp))
    a("s_add_u32 s%d, s%d, s%d" % (s_t0, s_t0, s_t1))
    a("s_lshl_b32 s%d, s%d, 5" % (s_t0, s_t0))
    a("s_lshl_b32 s%d, s%d, 13" % (s_t1, s_ch))
    a("s_add_u32 s%d, s%d, s%d" % (s_t0, s_t0, s_t1))
    a("s_add_u32 s%d, s%d, %d" % (s_t0, s_t0, RED))
    a("v_add_u32 v%d, s%d, v%d" % (vRR, s_t0, vT1))
    a("v_and_b32 v%d, 31, v%d" % (vZR, vLane))
    a("v_lshlrev_b32 v%d, 2, v%d" % (vZR, vZR))
    a("s_lshl_b32 s%d, s%d, 10" % (s_t1, s_ch))
    a("s_add_u32 s%d, s%d, %d" % (s_t1, s_t1, ZRED))
    a("v_add_u32 v%d, s%d, v%d" % (vZR, s_t1, vZR))
    a("s_lshl_b32 s%d, s%d, 2" % (s_t0, s_hq))
    a("s_lshl_b32 s%d, s%d, 1" % (s_t1, s_ch))
    a("s_add_u32 s%d, s%d, s%d" % (s_t0, s_t0, s_t1))
    a("s_add_u32 s%d, s%d, s%d" % (s_t1, s_t0, s_hp))
    a("s_lshl_b32 s%d, s%d, 10" % (s_t1, s_t1))
    a("s_lshl_b32 s%d, s%d, 9" % (s_off, s_hf))
    a("s_add_u32 s%d, s%d, s%d" % (s_t1, s_t1, s_off))
    a("v_add_u32 v%d, s%d, v%d" % (vKA, s_t1, vT1))
    a("v_bfe_u32 v%d, v%d, 4, 1" % (vZA, vLane))
    a("v_add_u32 v%d, s%d, v%d" % (vZA, s_t0, vZA))
    a("v_lshlrev_b32 v%d, 6, v%d" % (vZA, vZA))
    a("v_bfe_u32 v%d, v%d, 2, 1" % (vT2, vLane))
    a("v_lshlrev_b32 v%d, 5, v%d" % (vT2, vT2))
    a("v_add_u32 v%d, v%d, v%d" % (vZA, vZA, vT2))
    a("v_and_b32 v%d, 3, v%d" % (vT2, vLane))
    a("v_bfe_u32 v%d, v%d, 3, 1" % (vT3, vLane))
    a("v_lshlrev_b32 v%d, 2, v%d" % (vT3, vT3))
    a("v_add_u32 v%d, v%d, v%d" % (vT2, vT2, vT3))
    a("v_lshlrev_b32 v%d, 2, v%d" % (vT2, vT2))
    a("v_add_u32 v%d, v%d, v%d" % (vZA, vZA, vT2))
    a("v_add_u32 v%d, %d, v%d" % (vZA, WS_Z, vZA))
    a("s_lshl_b32 s%d, s%d, 6" % (s_t0, s_t0))
    a("s_lshl_b32 s%d, s%d, 2" % (s_t1, s_rb))
    a("s_add_u32 s%d, s%d, s%d" % (s_t0, s_t0, s_t1))
    a("s_add_u32 s%d, s%d, s%d" % (s_t0, s_t0, s_rg))
    a("s_lshl_b32 s%d, s%d, 10" % (s_t0, s_t0))
    a("s_add_u32 s%d, s%d, %d" % (s_t0, s_t0, WS_PQ))
    a("v_lshlrev_b32 v%d, 4, v%d" % (vPQa, vLane))
    a("v_add_u32 v%d, s%d, v%d" % (vPQa, s_t0, vPQa))

    def mf(e, D, A_, B_):
        e("v_mfma_f32_32x32x16_bf16 v[%d:%d], v[%d:%d], v[%d:%d], v[%d:%d]" % (D, D + 15, A_, A_ + 3, B_, B_ + 3, D, D + 15))

    def set_slot(slot):
        for i in range(4):
            a("v_add_u32 v%d, %d, v%d" % (vXc + i, slot * SLOT, vXr + i))
        a("v_add_u32 v%d, %d, v%d" % (vWc, slot * SLOT, vWr))

    def rd(c, i):
        X = XF + 16 * c + 4 * i
        F = WF + 8 * i
        a("ds_read_b128 v[%d:%d], v%d" % (X, X + 3, vXc + i))
        for mat, base in ((0, 16384), (1, 24576)):
            for j in range(2):
                a("ds_read_b64_tr_b16 v[%d:%d], v%d offset:%d" % (F + 4 * mat + 2 * j, F + 4 * mat + 2 * j + 1, vWc, base + (16 * i + 4 * j) * 128))

    def rdq(st):
        F = WF + 4 * (st % 8)
        j4, i = (st % 16) >> 2, st & 3
        for j in range(2):
            a("ds_read_b64_tr_b16 v[%d:%d], v%d offset:%d" % (F + 2 * j, F + 2 * j + 1, vWc, 8192 * j4 + (16 * i + 4 * j) * 128))

    def kvstep(c, i):
        X = XF + 16 * c + 4 * i
        F = WF + 8 * i
        mf(a, AK, X, F)
        mf(a, AV, X, F + 4)

    a("s_waitcnt vmcnt(%d)" % (4 * (NPRO - 1)))
    a("s_barrier")
    stamp(a, S, 1)
    for i in range(NPRO, 3):
        for j in range(4):
            fill_op(a, i, j)
    set_slot(0)
    rd(0, 0); rd(0, 1)
    mode = S.get("fillmode", "spread")
    if S.get("x_pre"): mode = "pre"
    if S.get("x_post"): mode = "post"
    if S.get("x_nofill"): mode = "none"
    waits = {"spread": 6, "pre": 8, "post": 4, "none": 63}

    def fills(i, where):
        if mode == "spread":
            fill_op(a, i, where)
        elif mode == "pre" and where == 1:
            for j in range(4):
                fill_op(a, i, j)
        elif mode == "post" and where == 2:
            for j in range(4):
                fill_op(a, i, j)

    for c in range(8):
        a("s_waitcnt lgkmcnt(5)")
        kvstep(c, 0); rd(c, 2); fills(c + 3, 0)
        a("s_waitcnt lgkmcnt(5)")
        mf(a, AK, XF + 16 * c + 4, WF + 8)
        rd(c, 3); fills(c + 3, 1)
        a("s_waitcnt vmcnt(%d) lgkmcnt(5)" % waits[mode])
        mf(a, AV, XF + 16 * c + 4, WF + 8 + 4)
        if not S.get("x_nobar"):
            a("s_barrier")
        kvstep(c, 2)
        if c < 7:
            set_slot((c + 1) % 5)
            rd(c + 1, 0)
            fills(c + 3, 2)
            a("s_waitcnt lgkmcnt(5)")
            kvstep(c, 3)
            rd(c + 1, 1)
            fills(c + 3, 3)
        else:
            a("v_add_u32 v%d, %d, v%d" % (vWc, 3 * SLOT, vWr))
            rdq(0); rdq(1)
            fills(c + 3, 2)
            a("s_waitcnt lgkmcnt(4)")
            kvstep(c, 3)
            rdq(2); rdq(3)
            fills(c + 3, 3)
    stamp(a, S, 2)
    if S.get("x_stop"):
        return
    a("v_and_b32 v%d, 7, v%d" % (vT2, vLane))
    a("v_lshlrev_b32 v%d, 2, v%d" % (vT2, vT2))
    a("buffer_load_dword v%d, v%d, s[%d:%d], 0 offen sc1" % (vG, vT2, sDBG, sDBG + 3))
    PKp, PVp = TMP, TMP + 8
    t4 = TMP + 16
    vZ, vOne = vT0, vT1
    vWc2 = vXc
    a("v_add_u32 v%d, %d, v%d" % (vWc2, 4 * SLOT, vWr))
    T = LTrack(a)
    T.q = [("q", st) for st in range(4) for _ in range(2)]

    def rdqT(st):
        F = WF + 4 * (st % 8)
        j4, i = (st % 16) >> 2, st & 3
        vb = vWc if st < 16 else vWc2
        for j in range(2):
            T.issue("ds_read_b64_tr_b16 v[%d:%d], v%d offset:%d" % (F + 2 * j, F + 2 * j + 1, vb, 8192 * j4 + (16 * i + 4 * j) * 128), ("q", st))

    def qslot(st, fill, per, prefetch=True):
        T.need(("q", st))
        mf(a, AQ, WF + 4 * (st % 8), XF + 4 * st)
        if prefetch and st + 4 < 32:
            rdqT(st + 4)
        for _ in range(per):
            if fill:
                a(fill.pop(0))

    f = Lines()
    f("v_mov_b32 v%d, 0" % vZ)
    f("v_mov_b32 v%d, 0x3f803f80" % vOne)
    for i in range(8):
        f("v_cvt_pk_bf16_f32 v%d, v%d, v%d" % (PVp + i, AV + 2 * i, AV + 2 * i + 1))
    for g in range(4):
        phi4(f, [AK + 4 * g + k for k in range(4)], t4)
        for i in (2 * g, 2 * g + 1):
            f("v_cvt_pk_bf16_f32 v%d, v%d, v%d" % (PKp + i, AK + 2 * i, AK + 2 * i + 1))
    fill = list(f.l)
    KP = S.get("kpost_per", 11)
    st = 0
    while fill and st < 8:
        qslot(st, fill, KP); st += 1
    while fill:
        a(fill.pop(0))
    DKV = AK
    a("v_mfma_f32_32x32x16_bf16 v[%d:%d], v[%d:%d], v[%d:%d], 0" % (DKV, DKV + 15, PKp, PKp + 3, PVp, PVp + 3))
    a("v_mfma_f32_32x32x16_bf16 v[%d:%d], v[%d:%d], v[%d:%d], v[%d:%d]" % (DKV, DKV + 15, PKp + 4, PKp + 7, PVp + 4, PVp + 7, DKV, DKV + 15))
    fill = ["v_dot2c_f32_bf16 v%d, v%d, v%d" % (vZ, PKp + i, vOne) for i in range(8)]
    while st < 11:
        qslot(st, fill, 4); st += 1
    while fill:
        a(fill.pop(0))
    T.issue("ds_write_b32 v%d, v%d" % (vZW, vZ), "w")
    SEL = PVp
    for i in range(8):
        a("v_cndmask_b32 v%d, v%d, v%d, s[%d:%d]" % (SEL + i, DKV + i, DKV + 8 + i, s_msk, s_msk + 1))
    T.issue("ds_write_b128 v%d, v[%d:%d]" % (vRW, SEL, SEL + 3), "w")
    T.issue("ds_write_b128 v%d, v[%d:%d] offset:16" % (vRW, SEL + 4, SEL + 7), "w")
    qslot(st, [], 0, prefetch=False); st += 1
    a("s_waitcnt vmcnt(0) lgkmcnt(0)")
    T.q = []
    a("s_barrier")
    stamp(a, S, 3)
    rdqT(15)
    lg, lgo = a.newlabel("Lg"), a.newlabel("Lgo")
    a("v_cmp_ne_u32 vcc, 1, v%d" % vG)
    a("s_cbranch_vccz %s" % lgo)
    a.label(lg)
    a("buffer_load_dword v%d, v%d, s[%d:%d], 0 offen sc1" % (vG, vT2, sDBG, sDBG + 3))
    a("s_waitcnt vmcnt(0)")
    a("v_cmp_ne_u32 vcc, 1, v%d" % vG)
    a("s_cbranch_vccnz %s" % lg)
    a.label(lgo)
    R_ = TMP
    for row in range(2):
        for g in range(4):
            T.issue("ds_read_b32 v%d, v%d offset:%d" % (R_ + 4 * row + g, vRR, 2048 * g + 256 * row), "kvr")
    qslot(st, [], 0); st += 1
    for g in range(4):
        for hf in range(2):
            T.issue("ds_read_b32 v%d, v%d offset:%d" % (R_ + 8 + 2 * g + hf, vZR, 256 * g + 128 * hf), "zr")
    T.need("kvr")
    for row in range(2):
        b = R_ + 4 * row
        a("v_add_f32 v%d, v%d, v%d" % (b, b, b + 1))
        a("v_add_f32 v%d, v%d, v%d" % (b + 2, b + 2, b + 3))
        a("v_add_f32 v%d, v%d, v%d" % (b, b, b + 2))
    for row in range(2):
        a("buffer_atomic_add_f32 v%d, v%d, s[%d:%d], 0 offen offset:%d" % (R_ + 4 * row, vKA, sWS, sWS + 3, WS_KV + 256 * row))
    qslot(st, [], 0); st += 1
    T.need("zr")
    b = R_ + 8
    for stp in (1, 2, 4):
        for k in range(0, 8, 2 * stp):
            a("v_add_f32 v%d, v%d, v%d" % (b + k, b + k, b + k + stp))
    lz = a.newlabel("Lz")
    a("s_and_b32 s%d, s%d, 3" % (s_t0, s_w))
    a("s_cmp_eq_u32 s%d, 0" % s_t0)
    a("s_cbranch_scc0 %s" % lz)
    a("s_mov_b64 s[56:57], exec")
    a("s_mov_b32 exec_lo, -1")
    a("s_mov_b32 exec_hi, 0")
    a("buffer_atomic_add_f32 v%d, v%d, s[%d:%d], 0 offen" % (b, vZA, sWS, sWS + 3))
    a("s_mov_b64 exec, s[56:57]")
    a.label(lz)
    fo = Lines()
    for j in range(4):
        fill_op(fo, 11, j)
    fill = list(fo.l)
    while st < 32:
        qslot(st, fill, 3); st += 1
    while fill:
        a(fill.pop(0))
    PQ = TMP
    for g in range(4):
        phi4(a, [AQ + 4 * g + k for k in range(4)], t4)
        for i in (2 * g, 2 * g + 1):
            a("v_cvt_pk_bf16_f32 v%d, v%d, v%d" % (PQ + i, AQ + 2 * i, AQ + 2 * i + 1))
        if g == 1:
            a("buffer_store_dwordx4 v[%d:%d], v%d, s[%d:%d], 0 offen sc1" % (PQ, PQ + 3, vPQa, sWS, sWS + 3))
    a("s_mov_b32 s%d, 65536" % s_off)
    a("buffer_store_dwordx4 v[%d:%d], v%d, s[%d:%d], s%d offen sc1" % (PQ + 4, PQ + 7, vPQa, sWS, sWS + 3, s_off))
    stamp(a, S, 4)
    s_hh = 46
    WO = 0
    KVF = 3 * SLOT
    OST = 4 * SLOT
    PQF = 128
    vKVa, vZa, vPQl, vKFw, vZFw = 11, 12, 13, 14, 15
    vKr, vWr2, vWr1 = 8, 9, 10
    a("v_lshlrev_b32 v%d, 4, v%d" % (vT0, vLane))
    a("s_lshl_b32 s%d, s%d, 12" % (s_t1, s_w))
    a("v_add_u32 v%d, s%d, v%d" % (vKVa, s_t1, vT0))
    a("s_and_b32 s%d, s%d, 1" % (s_t1, s_w))
    a("s_lshl_b32 s%d, s%d, 10" % (s_t1, s_t1))
    a("s_add_u32 s%d, s%d, %d" % (s_t1, s_t1, WS_Z))
    a("v_add_u32 v%d, s%d, v%d" % (vZa, s_t1, vT0))
    a("s_lshl_b32 s%d, s%d, 10" % (s_t0, s_hh))
    a("s_lshl_b32 s%d, s%d, 2" % (s_t1, s_rb))
    a("s_add_u32 s%d, s%d, s%d" % (s_t0, s_t0, s_t1))
    a("s_add_u32 s%d, s%d, s%d" % (s_t0, s_t0, s_rg))
    a("s_lshl_b32 s%d, s%d, 10" % (s_t0, s_t0))
    a("s_add_u32 s%d, s%d, %d" % (s_t0, s_t0, WS_PQ))
    a("v_add_u32 v%d, s%d, v%d" % (vPQl, s_t0, vT0))
    a("v_lshrrev_b32 v%d, 5, v%d" % (vT1, vLane))
    a("v_lshlrev_b32 v%d, 9, v%d" % (vT1, vT1))
    a("v_bfe_u32 v%d, v%d, 1, 4" % (vT2, vLane))
    a("v_lshlrev_b32 v%d, 4, v%d" % (vT2, vT2))
    a("v_and_b32 v%d, 1, v%d" % (vT3, vLane))
    a("v_lshlrev_b32 v%d, 3, v%d" % (vT3, vT3))
    a("v_add3_u32 v%d, v%d, v%d, v%d" % (vKFw, vT1, vT2, vT3))
    a("s_lshl_b32 s%d, s%d, 12" % (s_t1, s_w))
    a("s_add_u32 s%d, s%d, %d" % (s_t1, s_t1, KVF))
    a("v_add_u32 v%d, s%d, v%d" % (vKFw, s_t1, vKFw))
    a("s_and_b32 s%d, s%d, 1" % (s_t1, s_w))
    a("s_lshl_b32 s%d, s%d, 14" % (s_t1, s_t1))
    a("s_add_u32 s%d, s%d, %d" % (s_t1, s_t1, KVF + 256))
    a("v_lshrrev_b32 v%d, 2, v%d" % (vT2, vLane))
    a("v_lshlrev_b32 v%d, 10, v%d" % (vT2, vT2))
    a("v_bfe_u32 v%d, v%d, 1, 1" % (vT3, vLane))
    a("v_lshlrev_b32 v%d, 9, v%d" % (vT3, vT3))
    a("v_add3_u32 v%d, v%d, v%d, s%d" % (vZFw, vT2, vT3, s_t1))
    a("v_and_b32 v%d, 1, v%d" % (vT3, vLane))
    a("v_lshlrev_b32 v%d, 3, v%d" % (vT3, vT3))
    a("v_add_u32 v%d, v%d, v%d" % (vZFw, vZFw, vT3))
    a("v_lshlrev_b32 v%d, 4, v%d" % (vKr, vLane))
    a("s_lshl_b32 s%d, s%d, 14" % (s_t0, s_hh))
    a("s_add_u32 s%d, s%d, %d" % (s_t0, s_t0, KVF))
    a("v_add_u32 v%d, s%d, v%d" % (vKr, s_t0, vKr))
    a("v_lshrrev_b32 v%d, 5, v%d" % (vT1, vLane))
    a("v_bfe_u32 v%d, v%d, 2, 2" % (vT0, vLane))
    a("v_lshlrev_b32 v%d, 2, v%d" % (vT2, vT1))
    a("v_add_u32 v%d, v%d, v%d" % (vT2, vT2, vT0))
    a("v_lshlrev_b32 v%d, 7, v%d" % (vWr2, vT2))
    a("v_lshrrev_b32 v%d, 1, v%d" % (vT0, vT0))
    a("v_lshlrev_b32 v%d, 6, v%d" % (vT3, vT0))
    a("v_bfe_u32 v%d, v%d, 4, 1" % (vT2, vLane))
    a("v_lshlrev_b32 v%d, 5, v%d" % (vT2, vT2))
    a("v_add_u32 v%d, v%d, v%d" % (vWr2, vWr2, vT2))
    a("v_and_b32 v%d, 3, v%d" % (vT2, vLane))
    a("v_lshlrev_b32 v%d, 3, v%d" % (vT2, vT2))
    a("v_add_u32 v%d, v%d, v%d" % (vWr2, vWr2, vT2))
    a("s_lshl_b32 s%d, s%d, 16" % (s_t0, s_hh))
    a("v_add_u32 v%d, s%d, v%d" % (vWr2, s_t0, vWr2))
    a("v_xor_b32 v%d, 64, v%d" % (vWr1, vT3))
    a("v_add_u32 v%d, v%d, v%d" % (vWr1, vWr1, vWr2))
    a("v_add_u32 v%d, v%d, v%d" % (vWr2, vWr2, vT3))
    vE0, vE1, vSt, vRd, vOa = 192, 193, 194, 195, 196
    a("s_lshl_b32 s%d, s%d, 12" % (s_t0, s_w))
    a("s_add_u32 s%d, s%d, %d" % (s_t0, s_t0, OST))
    a("v_lshlrev_b32 v%d, 4, v%d" % (vE0, vLane))
    a("v_add_u32 v%d, s%d, v%d" % (vE0, s_t0, vE0))
    a("s_xor_b32 s%d, s%d, 4" % (s_t0, s_w))
    a("s_lshl_b32 s%d, s%d, 12" % (s_t0, s_t0))
    a("s_add_u32 s%d, s%d, %d" % (s_t0, s_t0, OST))
    a("v_lshlrev_b32 v%d, 4, v%d" % (vE1, vLane))
    a("v_add_u32 v%d, s%d, v%d" % (vE1, s_t0, vE1))
    a("v_and_b32 v%d, 31, v%d" % (vSt, vLane))
    a("s_lshl_b32 s%d, s%d, 5" % (s_t0, s_rg))
    a("v_add_u32 v%d, s%d, v%d" % (vSt, s_t0, vSt))
    a("v_mul_u32_u24 v%d, 144, v%d" % (vSt, vSt))
    a("v_lshrrev_b32 v%d, 5, v%d" % (vT3, vLane))
    a("v_lshlrev_b32 v%d, 3, v%d" % (vT3, vT3))
    a("s_lshl_b32 s%d, s%d, 6" % (s_t0, s_hh))
    a("v_add3_u32 v%d, v%d, v%d, s%d" % (vSt, vSt, vT3, s_t0))
    a("v_lshrrev_b32 v%d, 3, v%d" % (vOa, vLane))
    a("s_lshl_b32 s%d, s%d, 4" % (s_t0, s_w))
    a("v_add_u32 v%d, s%d, v%d" % (vOa, s_t0, vOa))
    a("v_and_b32 v%d, 7, v%d" % (vT3, vLane))
    a("v_lshlrev_b32 v%d, 4, v%d" % (vT3, vT3))
    a("v_mul_u32_u24 v%d, 144, v%d" % (vRd, vOa))
    a("v_add_u32 v%d, v%d, v%d" % (vRd, vRd, vT3))
    a("s_lshl_b32 s%d, s%d, 7" % (s_t0, s_rb))
    a("v_add_u32 v%d, s%d, v%d" % (vOa, s_t0, vOa))
    a("v_lshlrev_b32 v%d, 11, v%d" % (vOa, vOa))
    a("s_lshl_b32 s%d, s%d, 7" % (s_t0, s_hq))
    a("s_add_u32 s%d, s%d, 1024" % (s_t0, s_t0))
    a("v_add3_u32 v%d, v%d, v%d, s%d" % (vOa, vOa, vT3, s_t0))
    O0, O1 = 16, 32
    D1 = [48, 96]
    KA = [64, 112]
    WA = [68, 76]
    OB = [84, 88]
    vR = 92
    KL, ZL = 96, 116
    for i in range(16):
        a("v_mov_b32 v%d, 0" % (O0 + i)); a("v_mov_b32 v%d, 0" % (O1 + i))
    stamp(a, S, 9)
    a("s_waitcnt vmcnt(0)")
    stamp(a, S, 10)
    a("s_barrier")
    lpf = a.newlabel("Lpf")
    a("s_cmp_eq_u32 s%d, 7" % s_w)
    a("s_cbranch_scc0 %s" % lpf)
    a("s_lshl_b32 s%d, s%d, 7" % (s_t0, s_rb))
    a("s_add_u32 s%d, s%d, %d" % (s_t0, s_t0, WS_FLAG + 8192))
    a("v_mov_b32 v%d, s%d" % (vT0, s_t0))
    a("v_mov_b32 v%d, 1" % vT1)
    a("s_mov_b64 s[56:57], exec")
    a("s_mov_b64 exec, 1")
    a("buffer_atomic_add v%d, v%d, s[%d:%d], 0 offen" % (vT1, vT0, sWS, sWS + 3))
    a("s_mov_b64 exec, s[56:57]")
    a.label(lpf)
    lkf = a.newlabel("Lkf")
    a("s_cmp_eq_u32 s%d, 6" % s_w)
    a("s_cbranch_scc0 %s" % lkf)
    a("s_lshl_b32 s%d, s%d, 7" % (s_t0, s_hq))
    a("s_add_u32 s%d, s%d, %d" % (s_t0, s_t0, WS_FLAG))
    a("v_lshlrev_b32 v%d, 10, v%d" % (vT0, vLane))
    a("v_add_u32 v%d, s%d, v%d" % (vT0, s_t0, vT0))
    a("v_mov_b32 v%d, 1" % vT1)
    a("s_mov_b64 s[56:57], exec")
    a("s_mov_b64 exec, 0xff")
    a("buffer_atomic_add v%d, v%d, s[%d:%d], 0 offen" % (vT1, vT0, sWS, sWS + 3))
    a("s_mov_b64 exec, s[56:57]")
    a.label(lkf)
    vPa, vPt = 3, 4
    P0 = 120
    lw = a.newlabel("Lw")
    a("s_cmp_eq_u32 s%d, 0" % s_w)
    a("s_cbranch_scc0 %s" % lw)
    a("s_lshl_b32 s%d, s%d, 7" % (s_t0, s_rb))
    a("s_add_u32 s%d, s%d, %d" % (s_t0, s_t0, WS_FLAG + 8192))
    a("s_and_b32 s%d, s%d, 7" % (s_t1, s_rb))
    a("s_lshl_b32 s%d, s%d, 10" % (s_t1, s_t1))
    a("s_add_u32 s%d, s%d, %d" % (s_t1, s_t1, WS_FLAG))
    a("v_lshlrev_b32 v%d, 7, v%d" % (vPa, vLane))
    a("v_add_u32 v%d, s%d, v%d" % (vPa, s_t1, vPa))
    a("v_mov_b32 v%d, s%d" % (vT2, s_t0))
    a("v_cmp_gt_u32 s[56:57], 8, v%d" % vLane)
    a("v_cndmask_b32 v%d, v%d, v%d, s[56:57]" % (vPa, vT2, vPa))
    a("v_mov_b32 v%d, 8" % vPt)
    a("v_mov_b32 v%d, 16" % vT2)
    a("v_cndmask_b32 v%d, v%d, v%d, s[56:57]" % (vPt, vPt, vT2))
    a("s_mov_b64 s[54:55], exec")
    a("s_mov_b64 exec, 0x1ff")
    NP = S.get("npoll", 1)
    for k in range(NP):
        a("buffer_load_dword v%d, v%d, s[%d:%d], 0 offen sc1" % (P0 + k, vPa, sWS, sWS + 3))
    lp, lpd = a.newlabel("Lp"), a.newlabel("Lpd")
    a.label(lp)
    for k in range(NP):
        a("s_waitcnt vmcnt(%d)" % (NP - 1))
        a("v_cmp_ne_u32 vcc, v%d, v%d" % (P0 + k, vPt))
        a("s_and_b32 s%d, vcc_lo, 0x100" % s_t1)
        a("s_cbranch_scc0 %s" % lpd)
        if S.get("psleep"):
            a("s_sleep %d" % S["psleep"])
        a("buffer_load_dword v%d, v%d, s[%d:%d], 0 offen sc1" % (P0 + k, vPa, sWS, sWS + 3))
    a("s_branch %s" % lp)
    a.label(lpd)
    a("s_and_b32 s53, vcc_lo, 0xff")
    a("s_mov_b64 exec, s[54:55]")
    a.label(lw)
    a("s_barrier")
    stamp(a, S, 5)
    def ld_pq(i):
        if i == 0:
            so = "0"
        else:
            a("s_mov_b32 s%d, %d" % (s_off, i * 65536)); so = "s%d" % s_off
        a("buffer_load_dwordx4 v[%d:%d], v%d, s[%d:%d], %s offen sc1" % (PQF + 4 * i, PQF + 4 * i + 3, vPQl, sWS, sWS + 3, so))
    NPRE = 8
    lw2 = a.newlabel("Lw2")
    a("s_cmp_eq_u32 s%d, 0" % s_w)
    a("s_cbranch_scc0 %s" % lw2)
    a("s_cmp_eq_u32 s53, 0")
    a("s_cbranch_scc1 %s" % lw2)
    a("s_mov_b64 exec, 0xff")
    for k in range(NP):
        a("buffer_load_dword v%d, v%d, s[%d:%d], 0 offen sc1" % (P0 + k, vPa, sWS, sWS + 3))
    lp2, lpd2 = a.newlabel("Lp"), a.newlabel("Lpd")
    a.label(lp2)
    for k in range(NP):
        a("s_waitcnt vmcnt(%d)" % (NP - 1))
        a("v_cmp_ne_u32 vcc, v%d, v%d" % (P0 + k, vPt))
        a("s_and_b32 s%d, vcc_lo, 0xff" % s_t1)
        a("s_cbranch_scc0 %s" % lpd2)
        if S.get("psleep"):
            a("s_sleep %d" % S["psleep"])
        a("buffer_load_dword v%d, v%d, s[%d:%d], 0 offen sc1" % (P0 + k, vPa, sWS, sWS + 3))
    a("s_branch %s" % lp2)
    a.label(lpd2)
    a("s_mov_b64 exec, s[54:55]")
    a.label(lw2)
    lw3 = a.newlabel("Lw3")
    a("s_cmp_eq_u32 s%d, 0" % s_w)
    a("s_cbranch_scc1 %s" % lw3)
    for i in range(NPRE):
        ld_pq(i)
    a.label(lw3)
    a("s_barrier")
    stamp(a, S, 11)
    for i in range(4):
        a("buffer_load_dwordx4 v[%d:%d], v%d, s[%d:%d], 0 offen offset:%d sc1" % (KL + 4 * i, KL + 4 * i + 3, vKVa, sWS, sWS + 3, WS_KV + 1024 * i))
    a("buffer_load_dwordx4 v[%d:%d], v%d, s[%d:%d], 0 offen sc1" % (ZL, ZL + 3, vZa, sWS, sWS + 3))
    lw4 = a.newlabel("Lw4")
    a("s_cmp_eq_u32 s%d, 0" % s_w)
    a("s_cbranch_scc0 %s" % lw4)
    for i in range(NPRE):
        ld_pq(i)
    a.label(lw4)
    C_ = 120
    lc0, lc1 = a.newlabel("Lc"), a.newlabel("Lc")

    def conv_kv(younger):
        for i in range(4):
            a("s_waitcnt vmcnt(%d)" % (younger + 4 - i))
            a("v_cvt_pk_bf16_f32 v%d, v%d, v%d" % (C_ + 2 * i, KL + 4 * i, KL + 4 * i + 1))
            a("v_cvt_pk_bf16_f32 v%d, v%d, v%d" % (C_ + 2 * i + 1, KL + 4 * i + 2, KL + 4 * i + 3))
            a("ds_write_b64 v%d, v[%d:%d] offset:%d" % (vKFw, C_ + 2 * i, C_ + 2 * i + 1, 1024 * i))
        a("s_waitcnt vmcnt(%d)" % younger)
    a("s_cmp_eq_u32 s%d, 0" % s_w)
    a("s_cbranch_scc0 %s" % lc0)
    conv_kv(NPRE)
    a("s_branch %s" % lc1)
    a.label(lc0)
    conv_kv(0)
    a.label(lc1)
    lzz = a.newlabel("Lzz")
    a("s_cmp_lt_u32 s%d, 2" % s_w)
    a("s_cbranch_scc0 %s" % lzz)
    a("v_cvt_pk_bf16_f32 v94, v%d, v%d" % (ZL, ZL + 1))
    a("v_cvt_pk_bf16_f32 v95, v%d, v%d" % (ZL + 2, ZL + 3))
    a("ds_write_b64 v%d, v[94:95]" % vZFw)
    a("ds_write_b64 v%d, v[94:95] offset:64" % vZFw)
    a.label(lzz)
    a("s_waitcnt lgkmcnt(0)")
    a("s_barrier")
    stamp(a, S, 6)

    def rd_kv(h):
        a("ds_read_b128 v[%d:%d], v%d offset:%d" % (KA[h & 1], KA[h & 1] + 3, vKr, 1024 * h))

    def rd_wo(h):
        W_ = WA[h & 1]
        for jt, vb in ((0, vWr2), (1, vWr1)):
            for j in range(2):
                a("ds_read_b64_tr_b16 v[%d:%d], v%d offset:%d" % (W_ + 4 * jt + 2 * j, W_ + 4 * jt + 2 * j + 1, vb, WO + (16 * h + 8 * j) * 128))

    issued = [NPRE]

    def num(h):
        a("s_waitcnt vmcnt(%d)" % (issued[0] - 1 - h))
        a("v_mfma_f32_32x32x16_bf16 v[%d:%d], v[%d:%d], v[%d:%d], 0" % (D1[h & 1], D1[h & 1] + 15, KA[h & 1], KA[h & 1] + 3, PQF + 4 * h, PQF + 4 * h + 3))
        if issued[0] < 16:
            ld_pq(issued[0]); issued[0] += 1

    rd_kv(0)
    a("s_waitcnt lgkmcnt(0)")
    num(0)
    rd_kv(1); rd_wo(0)
    for h in range(16):
        if h + 1 < 16:
            a("s_waitcnt lgkmcnt(4)")
            num(h + 1)
        D = D1[h & 1]
        a("v_add_f32 v%d, 0x%x, v%d" % (vR, EPS, D + 8))
        a("v_rcp_f32 v%d, v%d" % (vR, vR))
        for i in range(8):
            a("v_mul_f32 v%d, v%d, v%d" % (D + i, D + i, vR))
        B_ = OB[h & 1]
        for i in range(4):
            a("v_cvt_pk_bf16_f32 v%d, v%d, v%d" % (B_ + i, D + 2 * i, D + 2 * i + 1))
        a("s_waitcnt lgkmcnt(0)")
        if h + 2 < 16:
            rd_kv(h + 2)
        W_ = WA[h & 1]
        a("v_mfma_f32_32x32x16_bf16 v[%d:%d], v[%d:%d], v[%d:%d], v[%d:%d]" % (O0, O0 + 15, W_, W_ + 3, B_, B_ + 3, O0, O0 + 15))
        a("v_mfma_f32_32x32x16_bf16 v[%d:%d], v[%d:%d], v[%d:%d], v[%d:%d]" % (O1, O1 + 15, W_ + 4, W_ + 7, B_, B_ + 3, O1, O1 + 15))
        if h + 1 < 16:
            rd_wo(h + 1)
    stamp(a, S, 7)
    lA, lB, lC, lD = [a.newlabel("Lx") for _ in range(4)]
    a("s_cmp_eq_u32 s%d, 0" % s_hh)
    a("s_cbranch_scc0 %s" % lA)
    for q in range(4):
        a("ds_write_b128 v%d, v[%d:%d] offset:%d" % (vE0, O1 + 4 * q, O1 + 4 * q + 3, 1024 * q))
    a("s_branch %s" % lB)
    a.label(lA)
    for q in range(4):
        a("ds_write_b128 v%d, v[%d:%d] offset:%d" % (vE0, O0 + 4 * q, O0 + 4 * q + 3, 1024 * q))
    a.label(lB)
    a("s_waitcnt lgkmcnt(0)")
    a("s_barrier")
    E = 48
    for q in range(4):
        a("ds_read_b128 v[%d:%d], v%d offset:%d" % (E + 4 * q, E + 4 * q + 3, vE1, 1024 * q))
    a("s_cmp_eq_u32 s%d, 0" % s_hh)
    a("s_cbranch_scc0 %s" % lC)
    a("s_waitcnt lgkmcnt(0)")
    for i in range(16):
        a("v_add_f32 v%d, v%d, v%d" % (E + i, E + i, O0 + i))
    a("s_branch %s" % lD)
    a.label(lC)
    a("s_waitcnt lgkmcnt(0)")
    for i in range(16):
        a("v_add_f32 v%d, v%d, v%d" % (E + i, E + i, O1 + i))
    a.label(lD)
    for q in range(4):
        a("v_cvt_pk_bf16_f32 v%d, v%d, v%d" % (64 + 2 * q, E + 4 * q, E + 4 * q + 1))
        a("v_cvt_pk_bf16_f32 v%d, v%d, v%d" % (65 + 2 * q, E + 4 * q + 2, E + 4 * q + 3))
        a("ds_write_b64 v%d, v[%d:%d] offset:%d" % (vSt, 64 + 2 * q, 65 + 2 * q, 16 * q))
    a("s_waitcnt lgkmcnt(0)")
    a("s_barrier")
    a("ds_read_b128 v[76:79], v%d" % vRd)
    a("ds_read_b128 v[80:83], v%d offset:%d" % (vRd, 8 * 144))
    a("s_mov_b32 s%d, 16384" % s_off)
    a("s_waitcnt lgkmcnt(1)")
    a("buffer_store_dwordx4 v[76:79], v%d, s[%d:%d], 0 offen" % (vOa, sOUT, sOUT + 3))
    a("s_waitcnt lgkmcnt(0)")
    a("buffer_store_dwordx4 v[80:83], v%d, s[%d:%d], s%d offen" % (vOa, sOUT, sOUT + 3, s_off))
    stamp(a, S, 8)


def zero_pre(s_idx):
    def f(a, s_w):
        l = a.newlabel("Lzp")
        a("s_cmp_lt_u32 s%d, 8" % s_idx)
        a("s_cbranch_scc0 %s" % l)
        a("s_cmp_eq_u32 s%d, 3" % s_w)
        a("s_cbranch_scc0 %s" % l)
        a("s_load_dwordx4 s[88:91], s[0:1], 104")
        for r in range(4):
            a("v_mov_b32 v%d, 0" % (200 + r))
        a("s_waitcnt lgkmcnt(0)")
        srd(a, 92, 90, 91, 1 << 28)
        a("v_lshlrev_b32 v204, 4, v1")
        a("s_lshl_b32 s64, s%d, 12" % s_idx)
        a("v_add_u32 v205, s64, v204")
        for r in range(4):
            a("buffer_store_dwordx4 v[200:203], v205, s[92:95], 0 offen offset:%d sc1" % (WS_KV + 1024 * r))
        a("s_lshl_b32 s64, s%d, 8" % s_idx)
        a("s_add_u32 s64, s64, %d" % WS_Z)
        a("v_and_b32 v206, 15, v1")
        a("v_lshlrev_b32 v205, 4, v206")
        a("v_add_u32 v205, s64, v205")
        a("buffer_store_dwordx4 v[200:203], v205, s[92:95], 0 offen sc1")
        a("s_lshl_b32 s64, s%d, 7" % s_idx)
        a("s_add_u32 s64, s64, %d" % WS_FLAG)
        a("v_and_b32 v206, 7, v1")
        a("v_lshlrev_b32 v206, 10, v206")
        a("v_add_u32 v206, s64, v206")
        a("s_lshl_b32 s65, s%d, 8" % s_idx)
        a("s_add_u32 s65, s65, %d" % (WS_FLAG + 8192 - 1024))
        a("v_lshlrev_b32 v205, 7, v1")
        a("v_add_u32 v205, s65, v205")
        a("v_add_u32 v207, -8, v1")
        a("v_cmp_gt_u32 s[66:67], 2, v207")
        a("v_cndmask_b32 v206, v206, v205, s[66:67]")
        a("buffer_store_dword v200, v206, s[92:95], 0 offen sc1")
        a.label(l)
    return f


def zero_post(s_idx):
    def f(a, s_w):
        l = a.newlabel("Lzq")
        a("s_cmp_lt_u32 s%d, 8" % s_idx)
        a("s_cbranch_scc0 %s" % l)
        a("s_cmp_eq_u32 s%d, 3" % s_w)
        a("s_cbranch_scc0 %s" % l)
        a("s_waitcnt vmcnt(0)")
        a("s_load_dwordx2 s[88:89], s[0:1], 104")
        a("s_waitcnt lgkmcnt(0)")
        srd(a, 60, 88, 89, 256)
        a("s_lshl_b32 s64, s%d, 2" % s_idx)
        a("v_mov_b32 v245, s64")
        a("v_mov_b32 v244, 1")
        a("s_mov_b64 s[66:67], exec")
        a("s_mov_b64 exec, 1")
        a("buffer_store_dword v244, v245, s[60:63], 0 offen sc1")
        a("s_mov_b64 exec, s[66:67]")
        a.label(l)
    return f
```

```python
import sys
from asmdsl import Asm
import partA, partB, partB2, partB3, partA2

NAME = "concat_heads__ssm_conv_s4__linear_attn_block__prompt_kernel"

HEADER = """; Kernarg layout (120 bytes): d_in[0..11], d_out (96), d_debug (104), d_ws (112)
"""

def kernel_text(name, body, nvgpr, accum, nsgpr=102):
    return """.globl {n}
.p2align 8
.type {n},@function
{n}:
{body}""".format(n=name, body=body), """.amdhsa_kernel {n}
  .amdhsa_next_free_vgpr {v}
  .amdhsa_next_free_sgpr {s}
  .amdhsa_accum_offset {acc}
  .amdhsa_group_segment_fixed_size 0
  .amdhsa_kernarg_size 120
  .amdhsa_user_sgpr_count 2
  .amdhsa_user_sgpr_kernarg_segment_ptr 1
  .amdhsa_system_sgpr_workgroup_id_x 1
.end_amdhsa_kernel
""".format(n=name, v=nvgpr, s=nsgpr, acc=accum)

def assemble(launches, kernels):
    out = [HEADER.rstrip()]
    if len(launches) == 1 and launches[0][0] == NAME:
        k, g, b, l = launches[0]
        out.append("; @launch grid=(%d,1,1) block=(%d,1,1) lds=%d" % (g, b, l))
    else:
        for k, g, b, l in launches:
            out.append("; @launch kernel=%s grid=(%d,1,1) block=(%d,1,1) lds=%d" % (k, g, b, l))
    out.append('.amdgcn_target "amdgcn-amd-amdhsa--gfx950"')
    out.append(".text")
    desc = []
    for name, body, nv, acc in kernels:
        t, d = kernel_text(name, body, nv, acc)
        out.append(t)
        desc.append(d)
    out.append('.section .rodata,"a"')
    for d in desc:
        out.append(".p2align 6")
        out.append(d.rstrip())
    return "\n".join(out) + "\n"

def emit_stamps(a, n, s_wg, s_w, nw=4):
    a("s_waitcnt vmcnt(0)")
    a("s_memtime s[%d:%d]" % (70 + 2 * n, 71 + 2 * n))
    a("s_load_dwordx2 s[60:61], s[0:1], 112")
    a("s_waitcnt lgkmcnt(0)")
    a("s_mov_b32 s62, 0x10000000"); a("s_mov_b32 s63, 0x20000"); a("s_and_b32 s61, s61, 0xffff")
    a("s_mul_i32 s64, s%d, %d" % (s_wg, nw)); a("s_add_u32 s64, s64, s%d" % s_w); a("s_lshl_b32 s64, s64, 6")
    a("s_add_u32 s64, s64, 0x8000000")
    a("v_mov_b32 v5, s64")
    for i in range(n + 1):
        a("s_sub_u32 s65, s%d, s70" % (70 + 2 * i))
        a("v_mov_b32 v4, s65")
        a("buffer_store_dword v4, v5, s[60:63], 0 offen offset:%d" % (4 * i))
    a("s_getreg_b32 s65, hwreg(HW_REG_XCC_ID)")
    a("v_mov_b32 v4, s65")
    a("buffer_store_dword v4, v5, s[60:63], 0 offen offset:60")
    a("s_memrealtime s[66:67]")
    a("s_waitcnt lgkmcnt(0)")
    a("v_mov_b32 v4, s66")
    a("buffer_store_dword v4, v5, s[60:63], 0 offen offset:56")
    a("v_mov_b32 v4, s98")
    a("buffer_store_dword v4, v5, s[60:63], 0 offen offset:52")

def kernelA(dbg=None, stamps=False, zero=False):
    a = Asm()
    a("s_cmp_ge_u32 s2, 128")
    a("s_cbranch_scc1 LA_end")
    if zero:
        zero_kvz(a)
    a("s_and_b32 s3, s2, 7")
    a("s_lshl_b32 s3, s3, 4")
    a("s_lshr_b32 s4, s2, 3")
    a("s_add_u32 s3, s3, s4")
    r = partA.emit_partA(a, dict(ka=0, cg=3, stamps=stamps), dbg)
    if stamps:
        emit_stamps(a, 7, 2, r["s_w"])
    if dbg == "lds":
        a("s_load_dwordx2 s[60:61], s[0:1], 112")
        a("s_waitcnt lgkmcnt(0)")
        a("s_mov_b32 s62, 0x10000000"); a("s_mov_b32 s63, 0x20000"); a("s_and_b32 s61, s61, 0xffff")
        a("s_mul_i32 s64, s3, %d" % 131072)
        a("v_lshlrev_b32 v3, 2, v0")
        a("s_mov_b32 s65, 0")
        a.label("Ldump")
        a("ds_read_b32 v4, v3")
        a("v_add_u32 v5, s64, v3")
        a("s_waitcnt lgkmcnt(0)")
        a("buffer_store_dword v4, v5, s[60:63], 0 offen")
        a("v_add_u32 v3, 1024, v3")
        a("s_add_u32 s65, s65, 1024")
        a("s_cmp_lt_u32 s65, %d" % partA.A_LDS)
        a("s_cbranch_scc1 Ldump")
    a("s_waitcnt vmcnt(0)")
    a.label("LA_end")
    a("s_endpgm")
    return a.finish()

def map_B(a):
    a("s_and_b32 s3, s2, 3"); a("s_lshl_b32 s3, s3, 2")
    a("s_bfe_u32 s4, s2, 0x20003"); a("s_add_u32 s3, s3, s4")
    a("s_bfe_u32 s4, s2, 0x10002"); a("s_lshl_b32 s4, s4, 2")
    a("s_bfe_u32 s5, s2, 0x20005"); a("s_add_u32 s4, s4, s5")

def kernelB1(stamps=False, touch=False):
    a = Asm()
    a("s_cmp_ge_u32 s2, 128")
    a("s_cbranch_scc1 LB1_end")
    map_B(a)
    partB.emit_B1(a, dict(ka=0, rb=3, hq=4, stamps=stamps, touch=touch))
    if stamps:
        emit_stamps(a, 5, 2, 44, 8)
    a("s_waitcnt vmcnt(0)")
    a.label("LB1_end")
    a("s_endpgm")
    return a.finish()

def kernelB2(stamps=False):
    a = Asm()
    a("s_cmp_ge_u32 s2, 128")
    a("s_cbranch_scc1 LB2_end")
    map_B(a)
    partB.emit_B2(a, dict(ka=0, rb=3, jb=4, stamps=stamps))
    if stamps:
        emit_stamps(a, 4, 2, 44, 8)
    a("s_waitcnt vmcnt(0)")
    a.label("LB2_end")
    a("s_endpgm")
    return a.finish()

def zero_kvz(a):
    a("s_load_dwordx2 s[60:61], s[0:1], 112")
    a("s_waitcnt lgkmcnt(0)")
    a("s_mov_b32 s62, %d" % partB.KVZ_BYTES); a("s_mov_b32 s63, 0x20000"); a("s_and_b32 s61, s61, 0xffff")
    a("s_mul_i32 s64, s2, 272")
    a("v_lshlrev_b32 v3, 2, v0")
    a("v_add_u32 v3, s64, v3")
    a("v_mov_b32 v4, 0")
    a("v_cmp_gt_u32 vcc, 68, v0")
    a("s_and_saveexec_b64 s[66:67], vcc")
    a("s_cbranch_execz Lzk")
    a("buffer_store_dword v4, v3, s[60:63], 0 offen")
    a.label("Lzk")
    a("s_mov_b64 exec, s[66:67]")

def kernelF(stamps=False, Bmod=None, Amod=None):
    Bmod = Bmod or partB2
    a = Asm()
    if stamps:
        a("s_memrealtime s[98:99]")
    a("s_cmp_ge_u32 s2, 256")
    a("s_cbranch_scc1 LF_end")
    a("s_lshr_b32 s6, s2, 4"); a("s_lshl_b32 s6, s6, 3"); a("s_and_b32 s7, s2, 7"); a("s_add_u32 s6, s6, s7")
    a("s_bitcmp1_b32 s2, 3")
    a("s_cbranch_scc1 LF_B")
    a("v_lshrrev_b32 v2, 6, v0")
    a("v_readfirstlane_b32 s7, v2")
    a("s_cmp_ge_u32 s7, 4")
    a("s_cbranch_scc0 LF_A")
    a("s_cmp_eq_u32 s7, 4")
    a("s_cbranch_scc0 LF_end")
    a("s_cmp_lt_u32 s6, 8")
    a("s_cbranch_scc0 LF_end")
    partB2.emit_zero_init(a, 0, 6)
    a("s_endpgm")
    a.label("LF_A")
    a("s_and_b32 s3, s6, 7"); a("s_lshl_b32 s3, s3, 4"); a("s_lshr_b32 s4, s6, 3"); a("s_add_u32 s3, s3, s4")
    r = partA.emit_partA(a, dict(ka=0, cg=3, stamps=stamps))
    if stamps:
        emit_stamps(a, 7, 2, r["s_w"], 8)
    a("s_waitcnt vmcnt(0)")
    a("s_endpgm")
    a.label("LF_B")
    a("s_and_b32 s3, s6, 3"); a("s_lshl_b32 s3, s3, 2")
    a("s_bfe_u32 s4, s6, 0x20003"); a("s_add_u32 s3, s3, s4")
    a("s_bfe_u32 s4, s6, 0x10002"); a("s_lshl_b32 s4, s4, 2")
    a("s_bfe_u32 s5, s6, 0x20005"); a("s_add_u32 s4, s4, s5")
    Bmod.emit_B(a, dict(ka=0, rb=3, hq=4, idx=6, stamps=stamps))
    if stamps:
        emit_stamps2(a, 9, 2, 44, 8)
    a("s_waitcnt vmcnt(0)")
    a.label("LF_end")
    a("s_endpgm")
    return a.finish()

def kernelG(stamps=False, Bmod=None, Aopts=None, Bopts=None, dbg=False):
    a = Asm()
    if dbg:
        stamps = True
    if stamps:
        a("s_memrealtime s[98:99]")
    a("s_cmp_ge_u32 s2, 256")
    a("s_cbranch_scc1 LF_end")
    a("s_lshr_b32 s6, s2, 4"); a("s_lshl_b32 s6, s6, 3"); a("s_and_b32 s7, s2, 7"); a("s_add_u32 s6, s6, s7")
    a("s_bitcmp1_b32 s2, 3")
    a("s_cbranch_scc1 LF_B")
    a("s_and_b32 s3, s6, 7"); a("s_lshl_b32 s3, s3, 4"); a("s_lshr_b32 s4, s6, 3"); a("s_add_u32 s3, s3, s4")
    S = dict(ka=0, cg=3, i16=4, stamps=stamps, zero_pre=Bmod.zero_pre(6), zero_post=Bmod.zero_post(6))
    S.update(Aopts or {})
    r = partA2.emit_partA(a, S)
    if stamps and not dbg:
        emit_stamps(a, 9, 2, r["s_w"], 8)
    a("s_waitcnt vmcnt(0)")
    a("s_endpgm")
    a.label("LF_B")
    a("s_and_b32 s3, s6, 3"); a("s_lshl_b32 s3, s3, 2")
    a("s_bfe_u32 s4, s6, 0x20003"); a("s_add_u32 s3, s3, s4")
    a("s_bfe_u32 s4, s6, 0x10002"); a("s_lshl_b32 s4, s4, 2")
    a("s_bfe_u32 s5, s6, 0x20005"); a("s_add_u32 s4, s4, s5")
    SB = dict(ka=0, rb=3, hq=4, idx=6, stamps=stamps)
    SB.update(Bopts or {})
    Bmod.emit_B(a, SB)
    if stamps and not dbg:
        emit_stamps(a, 12, 2, 44, 8)
    if dbg:
        emit_dbg(a, [1, 2, 4, 5, 6, 8], 6, 37, 44, 8)
    a("s_waitcnt vmcnt(0)")
    a.label("LF_end")
    a("s_endpgm")
    return a.finish()

def emit_dbg(a, idxs, s_sel, sel_val, s_w, base):
    l = a.newlabel("Ldbg")
    a("s_waitcnt vmcnt(0)")
    a("s_memtime s[96:97]")
    a("s_memrealtime s[66:67]")
    a("s_load_dwordx2 s[60:61], s[0:1], 104")
    a("s_waitcnt lgkmcnt(0)")
    a("s_cmp_eq_u32 s%d, %d" % (s_sel, sel_val))
    a("s_cbranch_scc0 %s" % l)
    a("s_cmp_eq_u32 s%d, 0" % s_w)
    a("s_cbranch_scc0 %s" % l)
    a("s_mov_b32 s62, 256"); a("s_mov_b32 s63, 0x20000"); a("s_and_b32 s61, s61, 0xffff")
    a("v_mov_b32 v5, 0")
    k = 0
    for i in idxs:
        a("s_sub_u32 s65, s%d, s70" % (70 + 2 * i))
        a("v_mov_b32 v4, s65")
        a("buffer_store_dword v4, v5, s[60:63], 0 offen offset:%d" % (4 * (base + k))); k += 1
    a("s_sub_u32 s65, s96, s70"); a("v_mov_b32 v4, s65")
    a("buffer_store_dword v4, v5, s[60:63], 0 offen offset:%d" % (4 * (base + k))); k += 1
    a("s_sub_u32 s65, s66, s98"); a("v_mov_b32 v4, s65")
    a("buffer_store_dword v4, v5, s[60:63], 0 offen offset:%d" % (4 * (base + k))); k += 1
    a.label(l)

def emit_stamps2(a, n, s_wg, s_w, nw):
    emit_stamps(a, n, s_wg, s_w, nw)

def kernelBx(Bmod=None, **kw):
    Bmod = Bmod or partB2
    a = Asm()
    a("s_memrealtime s[98:99]")
    a("s_cmp_ge_u32 s2, 128")
    a("s_cbranch_scc1 LF_end")
    a("s_mov_b32 s6, s2")
    a("s_and_b32 s3, s6, 3"); a("s_lshl_b32 s3, s3, 2")
    a("s_bfe_u32 s4, s6, 0x20003"); a("s_add_u32 s3, s3, s4")
    a("s_bfe_u32 s4, s6, 0x10002"); a("s_lshl_b32 s4, s4, 2")
    a("s_bfe_u32 s5, s6, 0x20005"); a("s_add_u32 s4, s4, s5")
    Bmod.emit_B(a, dict(ka=0, rb=3, hq=4, idx=6, stamps=True, x_stop=True, **kw))
    emit_stamps(a, 3, 2, 44, 8)
    a("s_waitcnt vmcnt(0)")
    a.label("LF_end")
    a("s_endpgm")
    return a.finish()

if __name__ == "__main__":
    mode = sys.argv[1]
    if mode == "A":
        txt = assemble([(NAME, 128, 256, partA.A_LDS)], [(NAME, kernelA(), 256, 256)])
    elif mode == "Astamp":
        txt = assemble([(NAME, 128, 256, partA.A_LDS)], [(NAME, kernelA(stamps=True), 256, 256)])
    elif mode == "v1" or mode == "v1st":
        st = mode == "v1st"
        txt = assemble([("ka_kernel", 128, 256, partA.A_LDS), ("kb1_kernel", 128, 512, 163840), ("kb2_kernel", 128, 512, 131072)],
                       [("ka_kernel", kernelA(zero=True), 256, 256), ("kb1_kernel", kernelB1(st), 256, 256), ("kb2_kernel", kernelB2(), 256, 256)])
    elif mode == "B1st":
        txt = assemble([(NAME, 128, 512, 163840)], [(NAME, kernelB1(True), 256, 256)])
    elif mode == "B1stT":
        txt = assemble([(NAME, 128, 512, 163840)], [(NAME, kernelB1(True, True), 256, 256)])
    elif mode == "B2st":
        txt = assemble([(NAME, 128, 512, 131072)], [(NAME, kernelB2(True), 256, 256)])
    elif mode == "v2" or mode == "v2st":
        txt = assemble([(NAME, 256, 512, 163840)], [(NAME, kernelF(mode == "v2st"), 256, 256)])
    elif mode.startswith("By"):
        kw = {}
        for f in mode.split("_")[1:]:
            if f.startswith("np"): kw["npro"] = int(f[2:])
            else: kw["x_" + f] = True
        txt = assemble([(NAME, 128, 512, 163840)], [(NAME, kernelBx(partB3, **kw), 256, 256)])
    elif mode.startswith("Bx"):
        kw = {}
        for f in mode.split("_")[1:]:
            kw["x_" + f] = True
        txt = assemble([(NAME, 128, 512, 163840)], [(NAME, kernelBx(**kw), 256, 256)])
    elif mode == "v3" or mode == "v3st":
        txt = assemble([(NAME, 256, 512, 163840)], [(NAME, kernelF(mode == "v3st", partB3), 256, 256)])
    elif mode.startswith("v4"):
        st = "st" in mode
        ao = {}
        if "late" in mode: ao["u_late"] = True
        if "spread" in mode: ao["u_spread"] = True
        if "tl" in mode: ao["touch_late"] = True
        if "bt" in mode: ao["btouch"] = True; ao["xcd"] = 7
        if "b2" in mode: ao["btouch2"] = True
        if "ue" in mode: ao["u_early"] = True
        if "ot" in mode: ao["otouch"] = True
        if "or" in mode: ao["orot"] = True
        bo = {}
        import re as _re
        m_ = _re.search(r"np(\d)", mode)
        if m_: bo["npro"] = int(m_.group(1))
        m_ = _re.search(r"pol(\d)", mode)
        if m_: bo["npoll"] = int(m_.group(1))
        m_ = _re.search(r"slp(\d+)", mode)
        if m_: bo["psleep"] = int(m_.group(1))
        m_ = _re.search(r"kp(\d+)", mode)
        if m_: bo["kpost_per"] = int(m_.group(1))
        txt = assemble([(NAME, 256, 512, 163840)], [(NAME, kernelG(st, partB3, ao, bo, dbg=("dbg" in mode)), 256, 256)])
    elif mode == "Adbg":
        txt = assemble([(NAME, 128, 256, partA.A_LDS)], [(NAME, kernelA("lds"), 256, 256)])
    open(sys.argv[2], "w").write(txt)
```

```python
from asmdsl import Asm
from partA import cmul, cmul2, XEXP, KREG, CB, UBASE, UCH, UCP, XROW, YOFF, LOG2E, INV2PI

SCR = 17408
DX = UBASE + 4 * UCH
YX = DX
YST = DX + 32768
STAMP_BASE = 70


def stamp(a, S, i):
    if S.get("stamps"):
        a("s_memtime s[%d:%d]" % (STAMP_BASE + 2 * i, STAMP_BASE + 2 * i + 1))


def emit_partA(a: Asm, S):
    ka, s_cg, s_i = S["ka"], S["cg"], S["i16"]
    sP = 16
    sD, sO, sU, sOS = 32, 34, 36, 40
    s_w, s_d, s_t0, s_t1, s_kreg, s_cnt = 44, 45, 46, 47, 48, 49
    s_k2, s_k4, s_c, s_h = 50, 51, 52, 53
    s_m0, s_m1 = 54, 56
    stamp(a, S, 0)
    a("s_load_dwordx16 s[%d:%d], s[%d:%d], 0" % (sP, sP + 15, ka, ka + 1))
    a("s_load_dwordx2 s[%d:%d], s[%d:%d], 64" % (sD, sD + 1, ka, ka + 1))
    a("s_load_dwordx2 s[%d:%d], s[%d:%d], 96" % (sO, sO + 1, ka, ka + 1))
    vLane, vT0, vT1, vT2, vT3 = 1, 3, 4, 5, 6
    vOffN, vOffD = 7, 8
    vU0, vU1, vU2 = 9, 10, 11
    vG = 12
    vIn = 14
    vLdt, vDsk = 26, 27
    vR = 28
    vDt, vDtL, vDtP = 46, 47, 48
    vXw, vXr, vD0 = 49, 50, 51
    vTouch = 20
    a("v_and_b32 v%d, 63, v0" % vLane)
    a("v_lshrrev_b32 v2, 6, v0")
    a("v_readfirstlane_b32 s%d, v2" % s_w)
    a("s_and_b32 s%d, s%d, 3" % (s_c, s_w))
    a("s_lshr_b32 s%d, s%d, 2" % (s_h, s_w))
    a("s_lshl_b32 s%d, s%d, 2" % (s_d, s_cg))
    a("s_add_u32 s%d, s%d, s%d" % (s_d, s_d, s_c))
    a("s_lshl_b32 s%d, s%d, 8" % (s_t0, s_d))
    a("s_lshl_b32 s%d, s%d, 7" % (s_t1, s_h))
    a("s_add_u32 s%d, s%d, s%d" % (s_t0, s_t0, s_t1))
    a("v_lshlrev_b32 v%d, 1, v%d" % (vOffN, vLane))
    a("v_add_u32 v%d, s%d, v%d" % (vOffN, s_t0, vOffN))
    a("s_lshl_b32 s%d, s%d, 1" % (s_t1, s_d))
    a("v_mov_b32 v%d, s%d" % (vOffD, s_t1))
    a("s_lshl_b32 s%d, s%d, 6" % (s_t0, s_c))
    a("v_add_u32 v%d, s%d, v%d" % (vG, s_t0, vLane))
    a("s_lshl_b32 s%d, s%d, 3" % (s_t0, s_cg))
    a("v_lshlrev_b32 v%d, 13, v%d" % (vU1, vG))
    a("v_add_u32 v%d, s%d, v%d" % (vU1, s_t0, vU1))
    a("v_add_u32 v%d, 0xfffffc00, v%d" % (vU0, vU1))
    a("v_add_u32 v%d, 4096, v%d" % (vU2, vU1))
    a("s_lshl_b32 s%d, s%d, 7" % (s_t1, s_i))
    a("s_and_b32 s%d, s%d, 1" % (s_cnt, s_c))
    a("s_lshl_b32 s%d, s%d, 6" % (s_cnt, s_cnt))
    a("s_add_u32 s%d, s%d, s%d" % (s_t1, s_t1, s_cnt))
    a("v_add_u32 v%d, s%d, v%d" % (vTouch, s_t1, vLane))
    a("v_lshlrev_b32 v%d, 10, v%d" % (vTouch, vTouch))
    a("v_add_u32 v%d, s%d, v%d" % (vTouch, s_t0, vTouch))
    a("s_waitcnt lgkmcnt(0)")
    if S.get("zero_pre"):
        S["zero_pre"](a, s_w)
    a("global_load_ushort v%d, v%d, s[%d:%d]" % (vLdt, vOffD, sP + 14, sP + 15))
    a("global_load_ushort v%d, v%d, s[%d:%d]" % (vDsk, vOffD, sD, sD + 1))
    for k in range(6):
        a("global_load_ushort v%d, v%d, s[%d:%d]" % (vIn + k, vOffN, sP + 2 + 2 * k, sP + 3 + 2 * k))
    a("s_mov_b32 s%d, s%d" % (sU, sP)); a("s_and_b32 s%d, s%d, 0xffff" % (sU + 1, sP + 1))
    a("s_mov_b32 s%d, 0x200000" % (sU + 2)); a("s_mov_b32 s%d, 0x20000" % (sU + 3))
    a("s_mov_b32 s%d, s%d" % (sOS, sO)); a("s_and_b32 s%d, s%d, 0xffff" % (sOS + 1, sO + 1))
    a("s_mov_b32 s%d, 0x400000" % (sOS + 2)); a("s_mov_b32 s%d, 0x20000" % (sOS + 3))

    def u_loads():
        a("buffer_load_dwordx2 v[%d:%d], v%d, s[%d:%d], 0 offen" % (vR, vR + 1, vU0, sU, sU + 3))
        for r in range(1, 9):
            vo = vU1 if r <= 4 else vU2
            a("buffer_load_dwordx2 v[%d:%d], v%d, s[%d:%d], 0 offen offset:%d" % (vR + 2 * r, vR + 2 * r + 1, vo, sU, sU + 3, ((r - 1) % 4) * 1024))

    if S.get("btouch"):
        s_x = S["xcd"]
        sBX, sBW = 60, 64
        vBT = 22
        lb = a.newlabel("Lbt")
        a("s_load_dwordx4 s[88:91], s[%d:%d], 72" % (ka, ka + 1))
        a("s_cmp_lt_u32 s%d, 4" % s_w)
        a("s_cbranch_scc0 %s" % lb)
        a("s_and_b32 s%d, s%d, 3" % (s_t0, s_x))
        a("s_lshl_b32 s%d, s%d, 9" % (s_t0, s_t0))
        a("s_lshl_b32 s%d, s%d, 5" % (s_t1, s_i))
        a("s_add_u32 s%d, s%d, s%d" % (s_t0, s_t0, s_t1))
        a("v_and_b32 v%d, 31, v%d" % (vBT, vLane))
        a("v_add_u32 v%d, s%d, v%d" % (vBT, s_t0, vBT))
        a("v_lshlrev_b32 v%d, 10, v%d" % (vBT, vBT))
        a("v_lshrrev_b32 v%d, 5, v%d" % (vT0, vLane))
        a("s_and_b32 s%d, s%d, 1" % (s_t1, s_w))
        a("s_lshl_b32 s%d, s%d, 1" % (s_t1, s_t1))
        a("v_add_u32 v%d, s%d, v%d" % (vT0, s_t1, vT0))
        a("v_lshlrev_b32 v%d, 8, v%d" % (vT0, vT0))
        a("v_add3_u32 v%d, v%d, v%d, %d" % (vBT, vBT, vT0, 0))
        a("v_add_u32 v%d, 128, v%d" % (vBT, vBT))
        a("s_lshr_b32 s%d, s%d, 2" % (s_t0, s_i))
        a("s_lshl_b32 s%d, s%d, 1" % (s_t0, s_t0))
        a("s_add_u32 s%d, s%d, 1" % (s_t0, s_t0))
        a("s_lshl_b32 s%d, s%d, 6" % (s_t0, s_t0))
        a("v_add_u32 v%d, s%d, v%d" % (vT1, s_t0, vLane))
        a("v_mul_u32_u24 v%d, 3072, v%d" % (vT1, vT1))
        a("s_lshr_b32 s%d, s%d, 2" % (s_t0, s_x))
        a("s_lshl_b32 s%d, s%d, 2" % (s_t0, s_t0))
        a("s_and_b32 s%d, s%d, 3" % (s_t1, s_i))
        a("s_add_u32 s%d, s%d, s%d" % (s_t0, s_t0, s_t1))
        a("s_lshl_b32 s%d, s%d, 7" % (s_t0, s_t0))
        a("s_and_b32 s%d, s%d, 1" % (s_t1, s_w))
        a("s_add_u32 s%d, s%d, 1" % (s_t1, s_t1))
        a("s_lshl_b32 s%d, s%d, 10" % (s_t1, s_t1))
        a("s_add_u32 s%d, s%d, s%d" % (s_t0, s_t0, s_t1))
        a("v_add_u32 v%d, s%d, v%d" % (vT1, s_t0, vT1))
        a("s_waitcnt lgkmcnt(0)")
        a("s_mov_b32 s%d, s88" % sBX); a("s_and_b32 s%d, s89, 0xffff" % (sBX + 1)); a("s_mov_b32 s%d, 0x200000" % (sBX + 2)); a("s_mov_b32 s%d, 0x20000" % (sBX + 3))
        a("s_mov_b32 s%d, s90" % sBW); a("s_and_b32 s%d, s91, 0xffff" % (sBW + 1)); a("s_mov_b32 s%d, 0x180000" % (sBW + 2)); a("s_mov_b32 s%d, 0x20000" % (sBW + 3))
        lb2 = a.newlabel("Lbt")
        a("s_cmp_lt_u32 s%d, 2" % s_w)
        a("s_cbranch_scc0 %s" % lb2)
        a("buffer_load_dword v%d, v%d, s[%d:%d], 0 offen" % (vBT + 1, vBT, sBX, sBX + 3))
        a("s_branch %s" % lb)
        a.label(lb2)
        a("buffer_load_dword v%d, v%d, s[%d:%d], 0 offen" % (vBT + 1, vT1, sBW, sBW + 3))
        a.label(lb)

    def touch():
        lt = a.newlabel("Lt")
        a("s_cmp_lt_u32 s%d, 2" % s_w)
        a("s_cbranch_scc0 %s" % lt)
        a("buffer_load_dword v%d, v%d, s[%d:%d], 0 offen" % (vTouch + 1, vTouch, sU, sU + 3))
        a.label(lt)
    if not S.get("touch_late"):
        touch()
    if S.get("u_early"):
        lue = a.newlabel("Lue")
        a("s_cmp_eq_u32 s%d, 1" % s_h)
        a("s_cbranch_scc0 %s" % lue)
        u_loads()
        a.label(lue)

    a("s_mul_i32 s%d, s%d, %d" % (s_kreg, s_w, SCR))
    a("v_lshlrev_b32 v%d, 2, v%d" % (vXw, vLane))
    a("v_add_u32 v%d, s%d, v%d" % (vXw, s_kreg, vXw))
    a("v_and_b32 v%d, 31, v%d" % (vT0, vLane))
    a("v_mul_u32_u24 v%d, %d, v%d" % (vXr, XROW, vT0))
    a("v_lshrrev_b32 v%d, 5, v%d" % (vT1, vLane))
    a("v_lshlrev_b32 v%d, 4, v%d" % (vT1, vT1))
    a("v_add3_u32 v%d, v%d, v%d, s%d" % (vXr, vXr, vT1, s_kreg))
    vDX, vKw, vKr_, vUw = 224, 225, 226, 230
    vA, vB, vZ = 231, 232, 233
    vBc = 237
    s_kb = 68
    Y0, Y1 = 192, 208
    a("s_lshl_b32 s%d, s%d, 12" % (s_t0, s_c))
    a("s_add_u32 s%d, s%d, %d" % (s_t0, s_t0, DX))
    a("v_lshlrev_b32 v%d, 4, v%d" % (vDX, vLane))
    a("v_add_u32 v%d, s%d, v%d" % (vDX, s_t0, vDX))
    a("s_mul_i32 s%d, s%d, %d" % (s_kb, s_c, KREG))
    a("v_lshlrev_b32 v%d, 4, v%d" % (vKw, vLane))
    a("v_sub_u32 v%d, s%d, v%d" % (vKw, s_kb, vKw))
    a("v_add_u32 v%d, %d, v%d" % (vKw, 4 * 1020 - 3072, vKw))
    a("v_bfe_u32 v%d, v%d, 3, 2" % (vT1, vLane))
    for k in range(4):
        a("v_add_u32 v%d, %d, v%d" % (vT2, k, vT1))
        a("v_and_b32 v%d, 3, v%d" % (vT2, vT2))
        a("v_lshlrev_b32 v%d, 2, v%d" % (vT2, vT2))
        a("v_add_u32 v%d, v%d, v%d" % (vKr_ + k, vKw, vT2))
    a("v_bfe_u32 v%d, v%d, 3, 1" % (vT2, vLane))
    a("v_cmp_eq_u32 s[%d:%d], 1, v%d" % (s_m0, s_m0 + 1, vT2))
    a("v_bfe_u32 v%d, v%d, 4, 1" % (vT2, vLane))
    a("v_cmp_eq_u32 s[%d:%d], 1, v%d" % (s_m1, s_m1 + 1, vT2))
    a("v_and_b32 v%d, 1, v%d" % (vT1, vLane))
    a("v_cmp_eq_u32 s[58:59], 1, v%d" % vT1)
    a("v_lshrrev_b32 v%d, 3, v%d" % (vT0, vG))
    a("v_add_u32 v%d, v%d, v%d" % (vT0, vT0, vG))
    a("v_lshlrev_b32 v%d, 4, v%d" % (vUw, vT0))
    a("v_add_u32 v%d, %d, v%d" % (vUw, UBASE + 16, vUw))
    a("v_and_b32 v%d, 31, v%d" % (vT0, vLane))
    a("v_add_u32 v%d, 1, v%d" % (vT1, vT0))
    a("v_and_b32 v%d, 3, v%d" % (vT1, vT1))
    a("v_mul_u32_u24 v%d, %d, v%d" % (vT2, 4416 + 4, vT1))
    a("v_cmp_eq_u32 vcc, 0, v%d" % vT1)
    a("v_mov_b32 v%d, 16" % vT3)
    a("v_cndmask_b32 v%d, v%d, v%d, vcc" % (vT2, vT2, vT3))
    a("v_lshlrev_b32 v%d, 2, v%d" % (vT0, vT0))
    a("v_sub_u32 v%d, v%d, v%d" % (vT2, vT2, vT0))
    a("v_lshrrev_b32 v%d, 5, v%d" % (vT1, vLane))
    a("v_lshlrev_b32 v%d, 4, v%d" % (vT1, vT1))
    a("s_lshl_b32 s%d, s%d, 10" % (s_t0, s_h))
    a("s_add_u32 s%d, s%d, s%d" % (s_t0, s_t0, s_kb))
    a("v_add3_u32 v%d, v%d, v%d, s%d" % (vA, vT2, vT1, s_t0))
    a("v_add_u32 v%d, %d, v%d" % (vA, 4 * 543 - 2048, vA))
    a("v_and_b32 v%d, 1, v%d" % (vT0, vLane))
    a("v_mul_u32_u24 v%d, %d, v%d" % (vT0, UCP, vT0))
    a("s_mul_i32 s%d, s%d, %d" % (s_t0, s_c, UCH))
    a("s_add_u32 s%d, s%d, %d" % (s_t0, s_t0, UBASE + 16))
    a("v_add_u32 v%d, s%d, v%d" % (vT0, s_t0, vT0))
    a("v_add_u32 v%d, -16, v%d" % (vZ, vT0))
    for j in range(1, 4):
        a("v_add_u32 v%d, %d, v%d" % (vZ + j, -16 - 32 * j, vT0))
    a("v_bfe_u32 v%d, v%d, 1, 4" % (vT2, vLane))
    a("v_mul_u32_u24 v%d, 144, v%d" % (vT2, vT2))
    a("v_add3_u32 v%d, v%d, v%d, v%d" % (vB, vT0, vT2, vT1))
    a("s_mul_i32 s%d, s%d, %d" % (s_t0, s_h, 8 * 144))
    a("s_add_u32 s%d, s%d, %d" % (s_t0, s_t0, -16 * 135))
    a("v_add_u32 v%d, s%d, v%d" % (vB, s_t0, vB))
    for i in range(16):
        a("v_mov_b32 v%d, 0" % (Y0 + i)); a("v_mov_b32 v%d, 0" % (Y1 + i))
    Z0 = 240
    for r in range(4):
        a("v_mov_b32 v%d, 0" % (Z0 + r))
    lw1, lw2 = a.newlabel("Lw"), a.newlabel("Lw")
    nb = 1 if S.get("btouch") else 0
    nt = 0 if S.get("touch_late") else 1
    lw3 = a.newlabel("Lw")
    a("s_cmp_lt_u32 s%d, 2" % s_w)
    a("s_cbranch_scc0 %s" % lw1)
    a("s_waitcnt vmcnt(%d)" % (nb + nt))
    a("s_branch %s" % lw2)
    a.label(lw1)
    a("s_cmp_lt_u32 s%d, 4" % s_w)
    a("s_cbranch_scc0 %s" % lw3)
    a("s_waitcnt vmcnt(%d)" % nb)
    a("s_branch %s" % lw2)
    a.label(lw3)
    a("s_waitcnt vmcnt(%d)" % (9 if S.get("u_early") else 0))
    a.label(lw2)
    if S.get("touch_late"):
        touch()
    if S.get("btouch2"):
        s_x = S["xcd"]
        l2 = a.newlabel("Lb2")
        a("s_load_dwordx4 s[88:91], s[%d:%d], 80" % (ka, ka + 1))
        a("s_cmp_ge_u32 s%d, 2" % s_w)
        a("s_cbranch_scc0 %s" % l2)
        a("s_cmp_lt_u32 s%d, 6" % s_w)
        a("s_cbranch_scc0 %s" % l2)
        a("s_lshl_b32 s%d, s%d, 7" % (s_t0, s_i))
        a("s_and_b32 s%d, s%d, 1" % (s_t1, s_w))
        a("s_lshl_b32 s%d, s%d, 6" % (s_t1, s_t1))
        a("s_add_u32 s%d, s%d, s%d" % (s_t0, s_t0, s_t1))
        a("v_add_u32 v%d, s%d, v%d" % (vT0, s_t0, vLane))
        a("v_lshrrev_b32 v%d, 2, v%d" % (vT1, vT0))
        a("v_and_b32 v%d, 3, v%d" % (vT0, vT0))
        a("s_lshr_b32 s%d, s%d, 2" % (s_t0, s_x))
        a("s_lshl_b32 s%d, s%d, 2" % (s_t0, s_t0))
        a("v_add_u32 v%d, s%d, v%d" % (vT0, s_t0, vT0))
        a("v_lshlrev_b32 v%d, 7, v%d" % (vT0, vT0))
        a("v_mul_u32_u24 v%d, 3072, v%d" % (vT2, vT1))
        a("v_add_u32 v%d, v%d, v%d" % (vT2, vT2, vT0))
        a("v_lshlrev_b32 v%d, 10, v%d" % (vT3, vT1))
        a("v_add_u32 v%d, v%d, v%d" % (vT3, vT3, vT0))
        a("s_waitcnt lgkmcnt(0)")
        a("s_mov_b32 s60, s88"); a("s_and_b32 s61, s89, 0xffff"); a("s_mov_b32 s62, 0x180000"); a("s_mov_b32 s63, 0x20000")
        a("s_mov_b32 s64, s90"); a("s_and_b32 s65, s91, 0xffff"); a("s_mov_b32 s66, 0x80000"); a("s_mov_b32 s67, 0x20000")
        l3 = a.newlabel("Lb3")
        a("s_cmp_lt_u32 s%d, 4" % s_w)
        a("s_cbranch_scc0 %s" % l3)
        a("buffer_load_dword v23, v%d, s[60:63], 0 offen" % vT2)
        a("s_branch %s" % l2)
        a.label(l3)
        a("buffer_load_dword v23, v%d, s[64:67], 0 offen" % vT3)
        a.label(l2)
    if S.get("zero_post"):
        S["zero_post"](a, s_w)
    stamp(a, S, 1)
    a("v_lshlrev_b32 v%d, 16, v%d" % (vLdt, vLdt))
    a("v_lshlrev_b32 v%d, 16, v%d" % (vDsk, vDsk))
    a("v_mul_f32 v%d, 0x%x, v%d" % (vDt, LOG2E, vLdt))
    a("v_exp_f32 v%d, v%d" % (vDt, vDt))
    for k in range(6):
        a("v_lshlrev_b32 v%d, 16, v%d" % (vIn + k, vIn + k))
    a("v_cvt_pk_bf16_f32 v%d, v%d, v%d" % (vDt, vDt, vDt))
    a("v_and_b32 v%d, 0xffff0000, v%d" % (vDt, vDt))
    a("v_mul_f32 v%d, 0x%x, v%d" % (vDtL, LOG2E, vDt))
    a("v_mul_f32 v%d, 0x%x, v%d" % (vDtP, INV2PI, vDt))
    a("v_cmp_eq_u32 vcc, 0, v%d" % vLane)
    a("v_cndmask_b32 v%d, 0, v%d, vcc" % (vD0, vDsk))
    real_a = a
    class _L:
        def __init__(self): self.l = []
        def __call__(self, t):
            for x in t.split("\n"):
                x = x.strip()
                if x: self.l.append(x)
    a = _L()
    c0 = 52
    Z1, Z2, Z4, Z8, Z16, Z32, Z64, Z128, Z256, W = [c0 + 2 * i for i in range(10)]
    wk = [72 + 2 * i for i in range(12)]
    tc = [96, 97, 98, 99]
    FA, FB = 100, 132
    DK = 164
    tci = [0]

    def put(P, rows, isX):
        t = tc[tci[0] % 4]; tci[0] += 1
        if isX:
            a("v_cvt_pk_bf16_f32 v%d, v%d, -v%d" % (t, P, P + 1))
        else:
            a("v_cvt_pk_bf16_f32 v%d, v%d, v%d" % (t, P, P + 1))
        for r in rows:
            a("ds_write_b32 v%d, v%d offset:%d" % (vXw, t, r * XROW + (0 if isX else YOFF)))

    I = vIn
    Are, Aim, Bre, Cre = I, I + 1, I + 2, I + 4
    m_, ph = wk[0], wk[0] + 1
    a("v_mul_f32 v%d, v%d, v%d" % (m_, Are, vDtL))
    a("v_mul_f32 v%d, v%d, v%d" % (ph, Aim, vDtP))
    a("v_exp_f32 v%d, v%d" % (m_, m_))
    a("v_rndne_f32 v%d, v%d" % (wk[2], ph))
    a("v_sub_f32 v%d, v%d, v%d" % (ph, ph, wk[2]))
    cmul(a, wk[1], Cre, Bre)
    a("v_cos_f32 v%d, v%d" % (Z1, ph))
    a("v_sin_f32 v%d, v%d" % (Z1 + 1, ph))
    a("v_mul_f32 v%d, v%d, v%d" % (W, wk[1], vDt))
    a("v_mul_f32 v%d, v%d, v%d" % (W + 1, wk[1] + 1, vDt))
    a("v_mul_f32 v%d, v%d, v%d" % (Z1, Z1, m_))
    a("v_mul_f32 v%d, v%d, v%d" % (Z1 + 1, Z1 + 1, m_))
    put(W, XEXP[0], True)
    cmul2(a, [(Z2, Z1, Z1), (wk[1], W, Z1)])
    put(wk[1], XEXP[1], True)
    cmul2(a, [(Z4, Z2, Z2), (wk[2], W, Z2), (wk[3], wk[1], Z2)])
    put(wk[2], XEXP[2], True); put(wk[3], XEXP[3], True)
    cmul2(a, [(Z8, Z4, Z4), (wk[4], W, Z4), (wk[5], wk[1], Z4), (wk[6], wk[2], Z4), (wk[7], wk[3], Z4)])
    for k_, e_ in ((4, 4), (5, 5), (6, 6), (7, 7)):
        put(wk[k_], XEXP[e_], True)
    cmul(a, Z16, Z8, Z8)
    a("v_mov_b32 v%d, 0x00003f80" % tc[0])
    tci[0] = 1
    a("ds_write_b32 v%d, v%d offset:%d" % (vXw, tc[0], YOFF))
    put(Z8, [1], False)
    cmul2(a, [(Z32, Z16, Z16), (wk[3], Z8, Z16)])
    put(Z16, [2], False); put(wk[3], [3], False)
    cmul2(a, [(Z64, Z32, Z32), (wk[1], Z8, Z32), (wk[2], Z16, Z32), (wk[7], wk[3], Z32)])
    put(Z32, [4], False); put(wk[1], [5], False); put(wk[2], [6], False); put(wk[7], [7], False)
    cur = [Z32, wk[1], wk[2], wk[7]]
    setA = [wk[3], wk[4], wk[5], wk[6]]
    setB = [wk[8], wk[9], wk[10], wk[11]]
    nxt = setB
    for j0 in range(8, 32, 4):
        extra = []
        if j0 == 8:
            extra = [(Z128, Z64, Z64)]
        elif j0 == 12:
            extra = [(Z256, Z128, Z128)]
        cmul2(a, [(nxt[k], cur[k], Z32) for k in range(4)] + extra)
        for k in range(4):
            put(nxt[k], [j0 + k], False)
        cur = nxt
        nxt = setA if cur is setB else setB
    G = wk[0]; Gn = wk[1]
    cmul(a, G, W, Z256)
    put(G, XEXP[256], True)
    cmul2(a, [(wk[2], G, Z2), (wk[3], G, Z4), (wk[4], G, Z8), (Gn, G, Z256)])
    put(wk[2], XEXP[258], True); put(wk[3], XEXP[260], True); put(wk[4], XEXP[264], True)
    cmul2(a, [(wk[5], wk[2], Z4), (wk[6], Gn, Z4), (wk[7], Gn, Z8), (G, Gn, Z256)])
    put(wk[5], XEXP[262], True); put(Gn, XEXP[512], True); put(wk[6], XEXP[516], True); put(wk[7], XEXP[520], True)
    cmul2(a, [(wk[2], G, Z4), (wk[3], G, Z8), (Gn, G, Z256)])
    put(G, XEXP[768], True); put(wk[2], XEXP[772], True); put(wk[3], XEXP[776], True)
    cmul2(a, [(wk[4], Gn, Z8), (G, Gn, Z256)])
    put(Gn, XEXP[1024], True); put(wk[4], XEXP[1032], True)
    cmul2(a, [(wk[5], G, Z8), (Gn, G, Z256)])
    put(G, XEXP[1280], True); put(wk[5], XEXP[1288], True)
    cmul2(a, [(wk[6], Gn, Z8), (G, Gn, Z256)])
    put(Gn, XEXP[1536], True); put(wk[6], XEXP[1544], True)
    cmul(a, wk[7], G, Z8)
    put(G, XEXP[1792], True); put(wk[7], XEXP[1800], True)
    kg_lines = a.l
    a = real_a
    for x in kg_lines:
        a(x)
    a("s_waitcnt lgkmcnt(0)")
    for m in range(7):
        a("ds_read_b128 v[%d:%d], v%d offset:%d" % (FA + 4 * m, FA + 4 * m + 3, vXr, 32 * m))
        a("ds_read_b128 v[%d:%d], v%d offset:%d" % (FB + 4 * m, FB + 4 * m + 3, vXr, YOFF + 32 * m))
    for m in range(8):
        if m == 1:
            a("ds_read_b128 v[%d:%d], v%d offset:%d" % (FA + 28, FA + 31, vXr, 32 * 7))
            a("ds_read_b128 v[%d:%d], v%d offset:%d" % (FB + 28, FB + 31, vXr, YOFF + 32 * 7))
        a("s_waitcnt lgkmcnt(%d)" % (12 if m == 0 else 14 - 2 * m))
        c_ = "0" if m == 0 else "v[%d:%d]" % (DK, DK + 15)
        a("v_mfma_f32_32x32x16_bf16 v[%d:%d], v[%d:%d], v[%d:%d], %s" % (DK, DK + 15, FA + 4 * m, FA + 4 * m + 3, FB + 4 * m, FB + 4 * m + 3, c_))
    stamp(a, S, 2)
    a("s_barrier")
    stamp(a, S, 3)
    lH1, lJb = a.newlabel("LAh"), a.newlabel("LAh")
    d = DK
    E = 112
    PK = 112
    TT, RR, vM = 128, 132, 144
    cv = lambda dst, lo, hi: a("v_cvt_pk_bf16_f32 v%d, v%d, v%d" % (dst, lo, hi))

    def kwrite(s_, P):
        a("ds_write_b128 v%d, v[%d:%d] offset:%d" % (vKw, P, P + 3, 16 * CB[0] + 1024 * (3 - s_)))
        for k in range(4):
            a("v_cndmask_b32 v%d, v%d, v%d, s[%d:%d]" % (TT + k, P + k, P + ((k + 1) & 3), s_m0, s_m0 + 1))
        R = RR + 4 * (s_ & 1)
        for k in range(4):
            a("v_cndmask_b32 v%d, v%d, v%d, s[%d:%d]" % (R + k, TT + k, TT + ((k + 2) & 3), s_m1, s_m1 + 1))
        for e in range(1, 4):
            for k in range(4):
                a("ds_write_b32 v%d, v%d offset:%d" % (vKr_ + k, R + k, 16 * CB[e] + 4 * e + 1024 * (3 - s_)))

    a("s_cmp_eq_u32 s%d, 1" % s_h)
    a("s_cbranch_scc1 %s" % lH1)
    a("v_lshlrev_b32 v%d, 2, v%d" % (vT0, vLane))
    a("v_add_u32 v%d, s%d, v%d" % (vT0, s_kb, vT0))
    for e in range(4):
        a("ds_write_b32 v%d, v%d offset:%d" % (vT0, Z0, 16 * CB[e] + 4 * (1024 + e)))
    a("v_and_b32 v%d, 7, v%d" % (vT0, vLane))
    a("v_mul_u32_u24 v%d, %d, v%d" % (vT0, UCP, vT0))
    a("v_add_u32 v%d, %d, v%d" % (vT0, UBASE, vT0))
    a("ds_write_b128 v%d, v[240:243]" % vT0)
    a("s_barrier")
    stamp(a, S, 4)
    for q in range(4):
        a("ds_read_b128 v[%d:%d], v%d offset:%d" % (E + 4 * q, E + 4 * q + 3, vDX, 1024 * q))
    a("s_waitcnt lgkmcnt(0)")
    for i in range(15):
        a("v_add_f32 v%d, v%d, v%d" % (d + i, d + i, E + i))
    a("v_add_f32 v%d, v%d, v%d" % (d, d, vD0))
    cv(PK + 0, d + 7, d + 6); cv(PK + 1, d + 5, d + 4); cv(PK + 2, d + 3, d + 2); cv(PK + 3, d + 1, d + 0)
    cv(PK + 4, d + 10, d + 10); cv(PK + 5, d + 9, d + 9); cv(PK + 6, d + 9, d + 8); cv(PK + 7, d + 8, d + 8)
    for s_, (v0_, v1_) in ((2, (d + 11, d + 12)), (3, (d + 13, d + 14))):
        P = PK + 4 * s_
        a("v_cndmask_b32 v%d, v%d, v%d, s[58:59]" % (vM, v0_, v1_))
        cv(P + 0, v1_, v1_); cv(P + 1, v1_, vM); cv(P + 2, v0_, v0_); cv(P + 3, v0_, v0_)
    for s_ in range(4):
        kwrite(s_, PK + 4 * s_)
    a("s_branch %s" % lJb)
    a.label(lH1)
    for q in range(4):
        a("ds_write_b128 v%d, v[%d:%d] offset:%d" % (vDX, d + 4 * q, d + 4 * q + 3, 1024 * q))
    a("s_waitcnt lgkmcnt(0)")
    a("s_barrier")
    if not S.get("u_early"):
        u_loads()
    PU = 112
    a("s_mov_b32 s%d, 0x05040100" % s_t0)
    a("s_mov_b32 s%d, 0x07060302" % s_t1)
    a("s_waitcnt vmcnt(0)")
    stamp(a, S, 4)
    for c in range(4):
        for rho in range(2):
            P = PU + 4 * (2 * c + rho)
            sel = s_t0 if (c & 1) == 0 else s_t1
            for j in range(4):
                r = rho + 2 * j
                a("v_perm_b32 v%d, v%d, v%d, s%d" % (P + j, vR + 2 * (r + 1) + (c >> 1), vR + 2 * r + (c >> 1), sel))
            a("ds_write_b128 v%d, v[%d:%d] offset:%d" % (vUw, P, P + 3, c * UCH + rho * UCP))
    a.label(lJb)
    stamp(a, S, 5)
    FR = 112
    a("s_waitcnt lgkmcnt(0)")
    a("s_barrier")
    stamp(a, S, 6)

    def reads(j, buf):
        F = FR + 16 * buf
        a("v_max_i32 v%d, v%d, v%d" % (vBc + (j & 1), vB, vZ + j))
        a("ds_read_b128 v[%d:%d], v%d offset:%d" % (F, F + 3, vA, 2048 + 32 * j))
        a("ds_read_b128 v[%d:%d], v%d offset:%d" % (F + 8, F + 11, vBc + (j & 1), 32 * j))
        a("ds_read_b128 v[%d:%d], v%d offset:%d" % (F + 12, F + 15, vB, 2304 + 32 * j))
        a("ds_read_b128 v[%d:%d], v%d offset:%d" % (F + 4, F + 7, vA, 32 * j))

    reads(0, 0); reads(1, 1)
    a("s_mov_b32 s%d, 0" % s_cnt)
    lp = a.newlabel("Lconv")
    a.label(lp)
    for j in range(4):
        if j < 2:
            reads(j + 2, j + 2)
        else:
            if j == 2:
                a("v_add_u32 v%d, 128, v%d" % (vA, vA))
                a("v_add_u32 v%d, 144, v%d" % (vB, vB))
            reads(j - 2, j - 2)
        a("s_waitcnt lgkmcnt(8)")
        F = FR + 16 * j
        a("v_mfma_f32_32x32x16_bf16 v[%d:%d], v[%d:%d], v[%d:%d], v[%d:%d]" % (Y0, Y0 + 15, F, F + 3, F + 8, F + 11, Y0, Y0 + 15))
        a("v_mfma_f32_32x32x16_bf16 v[%d:%d], v[%d:%d], v[%d:%d], v[%d:%d]" % (Y1, Y1 + 15, F, F + 3, F + 12, F + 15, Y1, Y1 + 15))
        a("v_mfma_f32_32x32x16_bf16 v[%d:%d], v[%d:%d], v[%d:%d], v[%d:%d]" % (Y1, Y1 + 15, F + 4, F + 7, F + 8, F + 11, Y1, Y1 + 15))
    a("s_add_u32 s%d, s%d, 1" % (s_cnt, s_cnt))
    a("s_cmp_lt_u32 s%d, 8" % s_cnt)
    a("s_cbranch_scc1 %s" % lp)
    vE0, vE1, vYw = 72, 73, 74
    a("s_lshl_b32 s%d, s%d, 12" % (s_t0, s_w))
    a("v_lshlrev_b32 v%d, 4, v%d" % (vE0, vLane))
    a("v_add_u32 v%d, s%d, v%d" % (vE0, s_t0, vE0))
    a("v_xor_b32 v%d, 0x4000, v%d" % (vE1, vE0))
    a("v_add_u32 v%d, %d, v%d" % (vE0, YX, vE0))
    a("v_add_u32 v%d, %d, v%d" % (vE1, YX, vE1))
    a("v_bfe_u32 v%d, v%d, 1, 4" % (vT0, vLane))
    a("v_mul_u32_u24 v%d, 528, v%d" % (vT0, vT0))
    a("v_and_b32 v%d, 1, v%d" % (vT1, vLane))
    a("v_lshlrev_b32 v%d, 3, v%d" % (vT1, vT1))
    a("v_lshrrev_b32 v%d, 5, v%d" % (vT2, vLane))
    a("v_lshlrev_b32 v%d, 6, v%d" % (vT2, vT2))
    a("v_add3_u32 v%d, v%d, v%d, v%d" % (vYw, vT0, vT1, vT2))
    a("s_lshl_b32 s%d, s%d, 1" % (s_t0, s_c))
    a("s_mul_i32 s%d, s%d, 8448" % (s_t1, s_h))
    a("s_add_u32 s%d, s%d, s%d" % (s_t0, s_t0, s_t1))
    a("s_add_u32 s%d, s%d, %d" % (s_t0, s_t0, YST))
    a("v_add_u32 v%d, s%d, v%d" % (vYw, s_t0, vYw))
    a("s_waitcnt lgkmcnt(0)")
    stamp(a, S, 7)
    lX1, lX2, lX3, lX4 = [a.newlabel("LAx") for _ in range(4)]
    a("s_cmp_eq_u32 s%d, 0" % s_h)
    a("s_cbranch_scc0 %s" % lX1)
    for q in range(4):
        a("ds_write_b128 v%d, v[%d:%d] offset:%d" % (vE0, Y1 + 4 * q, Y1 + 4 * q + 3, 1024 * q))
    a("s_branch %s" % lX2)
    a.label(lX1)
    for q in range(4):
        a("ds_write_b128 v%d, v[%d:%d] offset:%d" % (vE0, Y0 + 4 * q, Y0 + 4 * q + 3, 1024 * q))
    a.label(lX2)
    a("s_waitcnt lgkmcnt(0)")
    a("s_barrier")
    E = 112
    for q in range(4):
        a("ds_read_b128 v[%d:%d], v%d offset:%d" % (E + 4 * q, E + 4 * q + 3, vE1, 1024 * q))
    vRd, vOa = 75, 76
    a("v_lshrrev_b32 v%d, 4, v0" % vT0)
    a("v_lshlrev_b32 v%d, 4, v%d" % (vT0, vT0))
    a("v_lshlrev_b32 v%d, 5, v0" % vT1)
    a("v_add3_u32 v%d, v%d, v%d, %d" % (vRd, vT0, vT1, 0))
    a("v_add_u32 v%d, %d, v%d" % (vRd, YST, vRd))
    a("v_lshlrev_b32 v%d, 13, v0" % vOa)
    a("s_lshl_b32 s%d, s%d, 3" % (s_t0, s_cg))
    a("v_add_u32 v%d, s%d, v%d" % (vOa, s_t0, vOa))
    a("s_cmp_eq_u32 s%d, 0" % s_h)
    a("s_cbranch_scc0 %s" % lX3)
    a("s_waitcnt lgkmcnt(0)")
    for i in range(16):
        a("v_add_f32 v%d, v%d, v%d" % (E + i, E + i, Y0 + i))
    a("s_branch %s" % lX4)
    a.label(lX3)
    a("s_waitcnt lgkmcnt(0)")
    for i in range(16):
        a("v_add_f32 v%d, v%d, v%d" % (E + i, E + i, Y1 + i))
    a.label(lX4)
    tq = [128, 129, 130, 131]
    k = 0
    for q in range(4):
        for i in (0, 2):
            t = tq[k % 4]; k += 1
            a("v_cvt_pk_bf16_f32 v%d, v%d, v%d" % (t, E + 4 * q + i, E + 4 * q + i + 1))
            off = 128 * q + 16 * i
            a("ds_write_b16 v%d, v%d offset:%d" % (vYw, t, off))
            a("ds_write_b16_d16_hi v%d, v%d offset:%d" % (vYw, t, off + 16))
    a("s_waitcnt lgkmcnt(0)")
    a("s_barrier")
    stamp(a, S, 8)
    O = 132
    a("ds_read_b128 v[%d:%d], v%d" % (O, O + 3, vRd))
    a("ds_read_b128 v[%d:%d], v%d offset:16" % (O + 4, O + 7, vRd))
    a("s_mov_b32 s%d, 4096" % s_k2)
    for kk in range(4):
        if kk % 2 == 0:
            a("s_waitcnt lgkmcnt(%d)" % (1 - kk // 2))
        so = ["0", "s%d" % s_k2][kk // 2]
        a("buffer_store_dwordx2 v[%d:%d], v%d, s[%d:%d], %s offen offset:%d" % (O + 2 * kk, O + 2 * kk + 1, vOa, sOS, sOS + 3, so, 2048 * (kk & 1)))
    return dict(s_w=s_w)
```

```python
from asmdsl import Asm
from partA import cmul, cmul2, XEXP, KREG, CB, UBASE, UCH, UCP, XROW, YOFF, LOG2E, INV2PI

SCR = 17408
DX = UBASE + 4 * UCH
YX = DX
YST = DX + 32768
STAMP_BASE = 70


def stamp(a, S, i):
    if S.get("stamps"):
        a("s_memtime s[%d:%d]" % (STAMP_BASE + 2 * i, STAMP_BASE + 2 * i + 1))


def emit_partA(a: Asm, S):
    ka, s_cg, s_i = S["ka"], S["cg"], S["i16"]
    sP = 16
    sD, sO, sU, sOS = 32, 34, 36, 40
    s_w, s_d, s_t0, s_t1, s_kreg, s_cnt = 44, 45, 46, 47, 48, 49
    s_k2, s_k4, s_c, s_h = 50, 51, 52, 53
    s_m0, s_m1 = 54, 56
    stamp(a, S, 0)
    a("s_load_dwordx16 s[%d:%d], s[%d:%d], 0" % (sP, sP + 15, ka, ka + 1))
    a("s_load_dwordx2 s[%d:%d], s[%d:%d], 64" % (sD, sD + 1, ka, ka + 1))
    a("s_load_dwordx2 s[%d:%d], s[%d:%d], 96" % (sO, sO + 1, ka, ka + 1))
    vLane, vT0, vT1, vT2, vT3 = 1, 3, 4, 5, 6
    vOffN, vOffD = 7, 8
    vU0, vU1, vU2 = 9, 10, 11
    vG = 12
    vIn = 14
    vLdt, vDsk = 26, 27
    vR = 28
    vDt, vDtL, vDtP = 46, 47, 48
    vXw, vXr, vD0 = 49, 50, 51
    vTouch = 20
    a("v_and_b32 v%d, 63, v0" % vLane)
    a("v_lshrrev_b32 v2, 6, v0")
    a("v_readfirstlane_b32 s%d, v2" % s_w)
    a("s_and_b32 s%d, s%d, 3" % (s_c, s_w))
    a("s_lshr_b32 s%d, s%d, 2" % (s_h, s_w))
    a("s_lshl_b32 s%d, s%d, 2" % (s_d, s_cg))
    a("s_add_u32 s%d, s%d, s%d" % (s_d, s_d, s_c))
    a("s_lshl_b32 s%d, s%d, 8" % (s_t0, s_d))
    a("s_lshl_b32 s%d, s%d, 7" % (s_t1, s_h))
    a("s_add_u32 s%d, s%d, s%d" % (s_t0, s_t0, s_t1))
    a("v_lshlrev_b32 v%d, 1, v%d" % (vOffN, vLane))
    a("v_add_u32 v%d, s%d, v%d" % (vOffN, s_t0, vOffN))
    a("s_lshl_b32 s%d, s%d, 1" % (s_t1, s_d))
    a("v_mov_b32 v%d, s%d" % (vOffD, s_t1))
    a("s_lshl_b32 s%d, s%d, 6" % (s_t0, s_c))
    a("v_add_u32 v%d, s%d, v%d" % (vG, s_t0, vLane))
    a("s_lshl_b32 s%d, s%d, 3" % (s_t0, s_cg))
    a("v_lshlrev_b32 v%d, 13, v%d" % (vU1, vG))
    a("v_add_u32 v%d, s%d, v%d" % (vU1, s_t0, vU1))
    a("v_add_u32 v%d, 0xfffffc00, v%d" % (vU0, vU1))
    a("v_add_u32 v%d, 4096, v%d" % (vU2, vU1))
    a("s_lshl_b32 s%d, s%d, 7" % (s_t1, s_i))
    a("s_and_b32 s%d, s%d, 1" % (s_cnt, s_c))
    a("s_lshl_b32 s%d, s%d, 6" % (s_cnt, s_cnt))
    a("s_add_u32 s%d, s%d, s%d" % (s_t1, s_t1, s_cnt))
    a("v_add_u32 v%d, s%d, v%d" % (vTouch, s_t1, vLane))
    a("v_lshlrev_b32 v%d, 10, v%d" % (vTouch, vTouch))
    a("v_add_u32 v%d, s%d, v%d" % (vTouch, s_t0, vTouch))
    a("s_waitcnt lgkmcnt(0)")
    if S.get("zero_pre"):
        S["zero_pre"](a, s_w)
    a("global_load_ushort v%d, v%d, s[%d:%d]" % (vLdt, vOffD, sP + 14, sP + 15))
    a("global_load_ushort v%d, v%d, s[%d:%d]" % (vDsk, vOffD, sD, sD + 1))
    for k in range(6):
        a("global_load_ushort v%d, v%d, s[%d:%d]" % (vIn + k, vOffN, sP + 2 + 2 * k, sP + 3 + 2 * k))
    a("s_mov_b32 s%d, s%d" % (sU, sP)); a("s_and_b32 s%d, s%d, 0xffff" % (sU + 1, sP + 1))
    a("s_mov_b32 s%d, 0x200000" % (sU + 2)); a("s_mov_b32 s%d, 0x20000" % (sU + 3))
    a("s_mov_b32 s%d, s%d" % (sOS, sO)); a("s_and_b32 s%d, s%d, 0xffff" % (sOS + 1, sO + 1))
    a("s_mov_b32 s%d, 0x400000" % (sOS + 2)); a("s_mov_b32 s%d, 0x20000" % (sOS + 3))

    def u_loads():
        a("buffer_load_dwordx2 v[%d:%d], v%d, s[%d:%d], 0 offen" % (vR, vR + 1, vU0, sU, sU + 3))
        for r in range(1, 9):
            vo = vU1 if r <= 4 else vU2
            a("buffer_load_dwordx2 v[%d:%d], v%d, s[%d:%d], 0 offen offset:%d" % (vR + 2 * r, vR + 2 * r + 1, vo, sU, sU + 3, ((r - 1) % 4) * 1024))

    if S.get("btouch"):
        s_x = S["xcd"]
        sBX, sBW = 60, 64
        vBT = 22
        lb = a.newlabel("Lbt")
        a("s_load_dwordx4 s[88:91], s[%d:%d], 72" % (ka, ka + 1))
        a("s_cmp_lt_u32 s%d, 4" % s_w)
        a("s_cbranch_scc0 %s" % lb)
        a("s_and_b32 s%d, s%d, 3" % (s_t0, s_x))
        a("s_lshl_b32 s%d, s%d, 9" % (s_t0, s_t0))
        a("s_lshl_b32 s%d, s%d, 5" % (s_t1, s_i))
        a("s_add_u32 s%d, s%d, s%d" % (s_t0, s_t0, s_t1))
        a("v_and_b32 v%d, 31, v%d" % (vBT, vLane))
        a("v_add_u32 v%d, s%d, v%d" % (vBT, s_t0, vBT))
        a("v_lshlrev_b32 v%d, 10, v%d" % (vBT, vBT))
        a("v_lshrrev_b32 v%d, 5, v%d" % (vT0, vLane))
        a("s_and_b32 s%d, s%d, 1" % (s_t1, s_w))
        a("s_lshl_b32 s%d, s%d, 1" % (s_t1, s_t1))
        a("v_add_u32 v%d, s%d, v%d" % (vT0, s_t1, vT0))
        a("v_lshlrev_b32 v%d, 8, v%d" % (vT0, vT0))
        a("v_add3_u32 v%d, v%d, v%d, %d" % (vBT, vBT, vT0, 0))
        a("v_add_u32 v%d, 128, v%d" % (vBT, vBT))
        a("s_lshr_b32 s%d, s%d, 2" % (s_t0, s_i))
        a("s_lshl_b32 s%d, s%d, 1" % (s_t0, s_t0))
        a("s_add_u32 s%d, s%d, 1" % (s_t0, s_t0))
        a("s_lshl_b32 s%d, s%d, 6" % (s_t0, s_t0))
        a("v_add_u32 v%d, s%d, v%d" % (vT1, s_t0, vLane))
        a("v_mul_u32_u24 v%d, 3072, v%d" % (vT1, vT1))
        a("s_lshr_b32 s%d, s%d, 2" % (s_t0, s_x))
        a("s_lshl_b32 s%d, s%d, 2" % (s_t0, s_t0))
        a("s_and_b32 s%d, s%d, 3" % (s_t1, s_i))
        a("s_add_u32 s%d, s%d, s%d" % (s_t0, s_t0, s_t1))
        a("s_lshl_b32 s%d, s%d, 7" % (s_t0, s_t0))
        a("s_and_b32 s%d, s%d, 1" % (s_t1, s_w))
        a("s_add_u32 s%d, s%d, 1" % (s_t1, s_t1))
        a("s_lshl_b32 s%d, s%d, 10" % (s_t1, s_t1))
        a("s_add_u32 s%d, s%d, s%d" % (s_t0, s_t0, s_t1))
        a("v_add_u32 v%d, s%d, v%d" % (vT1, s_t0, vT1))
        a("s_waitcnt lgkmcnt(0)")
        a("s_mov_b32 s%d, s88" % sBX); a("s_and_b32 s%d, s89, 0xffff" % (sBX + 1)); a("s_mov_b32 s%d, 0x200000" % (sBX + 2)); a("s_mov_b32 s%d, 0x20000" % (sBX + 3))
        a("s_mov_b32 s%d, s90" % sBW); a("s_and_b32 s%d, s91, 0xffff" % (sBW + 1)); a("s_mov_b32 s%d, 0x180000" % (sBW + 2)); a("s_mov_b32 s%d, 0x20000" % (sBW + 3))
        lb2 = a.newlabel("Lbt")
        a("s_cmp_lt_u32 s%d, 2" % s_w)
        a("s_cbranch_scc0 %s" % lb2)
        a("buffer_load_dword v%d, v%d, s[%d:%d], 0 offen" % (vBT + 1, vBT, sBX, sBX + 3))
        a("s_branch %s" % lb)
        a.label(lb2)
        a("buffer_load_dword v%d, v%d, s[%d:%d], 0 offen" % (vBT + 1, vT1, sBW, sBW + 3))
        a.label(lb)

    def touch():
        lt = a.newlabel("Lt")
        a("s_cmp_lt_u32 s%d, 2" % s_w)
        a("s_cbranch_scc0 %s" % lt)
        a("buffer_load_dword v%d, v%d, s[%d:%d], 0 offen" % (vTouch + 1, vTouch, sU, sU + 3))
        a.label(lt)
    if not S.get("touch_late"):
        touch()
    if S.get("u_early"):
        lue = a.newlabel("Lue")
        a("s_cmp_eq_u32 s%d, 1" % s_h)
        a("s_cbranch_scc0 %s" % lue)
        u_loads()
        a.label(lue)

    a("s_mul_i32 s%d, s%d, %d" % (s_kreg, s_w, SCR))
    a("v_lshlrev_b32 v%d, 2, v%d" % (vXw, vLane))
    a("v_add_u32 v%d, s%d, v%d" % (vXw, s_kreg, vXw))
    a("v_and_b32 v%d, 31, v%d" % (vT0, vLane))
    a("v_mul_u32_u24 v%d, %d, v%d" % (vXr, XROW, vT0))
    a("v_lshrrev_b32 v%d, 5, v%d" % (vT1, vLane))
    a("v_lshlrev_b32 v%d, 4, v%d" % (vT1, vT1))
    a("v_add3_u32 v%d, v%d, v%d, s%d" % (vXr, vXr, vT1, s_kreg))
    vDX, vKw, vKr_, vUw = 224, 225, 226, 230
    vA, vB, vZ = 231, 232, 233
    vBc = 237
    s_kb = 68
    Y0, Y1 = 192, 208
    a("s_lshl_b32 s%d, s%d, 12" % (s_t0, s_c))
    a("s_add_u32 s%d, s%d, %d" % (s_t0, s_t0, DX))
    a("v_lshlrev_b32 v%d, 4, v%d" % (vDX, vLane))
    a("v_add_u32 v%d, s%d, v%d" % (vDX, s_t0, vDX))
    a("s_mul_i32 s%d, s%d, %d" % (s_kb, s_c, KREG))
    a("v_lshlrev_b32 v%d, 4, v%d" % (vKw, vLane))
    a("v_sub_u32 v%d, s%d, v%d" % (vKw, s_kb, vKw))
    a("v_add_u32 v%d, %d, v%d" % (vKw, 4 * 1020 - 3072, vKw))
    a("v_bfe_u32 v%d, v%d, 3, 2" % (vT1, vLane))
    for k in range(4):
        a("v_add_u32 v%d, %d, v%d" % (vT2, k, vT1))
        a("v_and_b32 v%d, 3, v%d" % (vT2, vT2))
        a("v_lshlrev_b32 v%d, 2, v%d" % (vT2, vT2))
        a("v_add_u32 v%d, v%d, v%d" % (vKr_ + k, vKw, vT2))
    a("v_bfe_u32 v%d, v%d, 3, 1" % (vT2, vLane))
    a("v_cmp_eq_u32 s[%d:%d], 1, v%d" % (s_m0, s_m0 + 1, vT2))
    a("v_bfe_u32 v%d, v%d, 4, 1" % (vT2, vLane))
    a("v_cmp_eq_u32 s[%d:%d], 1, v%d" % (s_m1, s_m1 + 1, vT2))
    a("v_and_b32 v%d, 1, v%d" % (vT1, vLane))
    a("v_cmp_eq_u32 s[58:59], 1, v%d" % vT1)
    a("v_lshrrev_b32 v%d, 3, v%d" % (vT0, vG))
    a("v_add_u32 v%d, v%d, v%d" % (vT0, vT0, vG))
    a("v_lshlrev_b32 v%d, 4, v%d" % (vUw, vT0))
    a("v_add_u32 v%d, %d, v%d" % (vUw, UBASE + 16, vUw))
    a("v_and_b32 v%d, 31, v%d" % (vT0, vLane))
    a("v_add_u32 v%d, 1, v%d" % (vT1, vT0))
    a("v_and_b32 v%d, 3, v%d" % (vT1, vT1))
    a("v_mul_u32_u24 v%d, %d, v%d" % (vT2, 4416 + 4, vT1))
    a("v_cmp_eq_u32 vcc, 0, v%d" % vT1)
    a("v_mov_b32 v%d, 16" % vT3)
    a("v_cndmask_b32 v%d, v%d, v%d, vcc" % (vT2, vT2, vT3))
    a("v_lshlrev_b32 v%d, 2, v%d" % (vT0, vT0))
    a("v_sub_u32 v%d, v%d, v%d" % (vT2, vT2, vT0))
    a("v_lshrrev_b32 v%d, 5, v%d" % (vT1, vLane))
    a("v_lshlrev_b32 v%d, 4, v%d" % (vT1, vT1))
    a("s_lshl_b32 s%d, s%d, 10" % (s_t0, s_h))
    a("s_add_u32 s%d, s%d, s%d" % (s_t0, s_t0, s_kb))
    a("v_add3_u32 v%d, v%d, v%d, s%d" % (vA, vT2, vT1, s_t0))
    a("v_add_u32 v%d, %d, v%d" % (vA, 4 * 543 - 2048, vA))
    a("v_and_b32 v%d, 1, v%d" % (vT0, vLane))
    a("v_mul_u32_u24 v%d, %d, v%d" % (vT0, UCP, vT0))
    a("s_mul_i32 s%d, s%d, %d" % (s_t0, s_c, UCH))
    a("s_add_u32 s%d, s%d, %d" % (s_t0, s_t0, UBASE + 16))
    a("v_add_u32 v%d, s%d, v%d" % (vT0, s_t0, vT0))
    a("v_add_u32 v%d, -16, v%d" % (vZ, vT0))
    for j in range(1, 4):
        a("v_add_u32 v%d, %d, v%d" % (vZ + j, -16 - 32 * j, vT0))
    a("v_bfe_u32 v%d, v%d, 1, 4" % (vT2, vLane))
    a("v_mul_u32_u24 v%d, 144, v%d" % (vT2, vT2))
    a("v_add3_u32 v%d, v%d, v%d, v%d" % (vB, vT0, vT2, vT1))
    a("s_mul_i32 s%d, s%d, %d" % (s_t0, s_h, 8 * 144))
    a("s_add_u32 s%d, s%d, %d" % (s_t0, s_t0, -16 * 135))
    a("v_add_u32 v%d, s%d, v%d" % (vB, s_t0, vB))
    for i in range(16):
        a("v_mov_b32 v%d, 0" % (Y0 + i)); a("v_mov_b32 v%d, 0" % (Y1 + i))
    Z0 = 240
    for r in range(4):
        a("v_mov_b32 v%d, 0" % (Z0 + r))
    lw1, lw2 = a.newlabel("Lw"), a.newlabel("Lw")
    nb = 1 if S.get("btouch") else 0
    nt = 0 if S.get("touch_late") else 1
    lw3 = a.newlabel("Lw")
    a("s_cmp_lt_u32 s%d, 2" % s_w)
    a("s_cbranch_scc0 %s" % lw1)
    a("s_waitcnt vmcnt(%d)" % (nb + nt))
    a("s_branch %s" % lw2)
    a.label(lw1)
    a("s_cmp_lt_u32 s%d, 4" % s_w)
    a("s_cbranch_scc0 %s" % lw3)
    a("s_waitcnt vmcnt(%d)" % nb)
    a("s_branch %s" % lw2)
    a.label(lw3)
    a("s_waitcnt vmcnt(%d)" % (9 if S.get("u_early") else 0))
    a.label(lw2)
    if S.get("touch_late"):
        touch()
    if S.get("btouch2"):
        s_x = S["xcd"]
        l2 = a.newlabel("Lb2")
        a("s_load_dwordx4 s[88:91], s[%d:%d], 80" % (ka, ka + 1))
        a("s_cmp_ge_u32 s%d, 2" % s_w)
        a("s_cbranch_scc0 %s" % l2)
        a("s_cmp_lt_u32 s%d, 6" % s_w)
        a("s_cbranch_scc0 %s" % l2)
        a("s_lshl_b32 s%d, s%d, 7" % (s_t0, s_i))
        a("s_and_b32 s%d, s%d, 1" % (s_t1, s_w))
        a("s_lshl_b32 s%d, s%d, 6" % (s_t1, s_t1))
        a("s_add_u32 s%d, s%d, s%d" % (s_t0, s_t0, s_t1))
        a("v_add_u32 v%d, s%d, v%d" % (vT0, s_t0, vLane))
        a("v_lshrrev_b32 v%d, 2, v%d" % (vT1, vT0))
        a("v_and_b32 v%d, 3, v%d" % (vT0, vT0))
        a("s_lshr_b32 s%d, s%d, 2" % (s_t0, s_x))
        a("s_lshl_b32 s%d, s%d, 2" % (s_t0, s_t0))
        a("v_add_u32 v%d, s%d, v%d" % (vT0, s_t0, vT0))
        a("v_lshlrev_b32 v%d, 7, v%d" % (vT0, vT0))
        a("v_mul_u32_u24 v%d, 3072, v%d" % (vT2, vT1))
        a("v_add_u32 v%d, v%d, v%d" % (vT2, vT2, vT0))
        a("v_lshlrev_b32 v%d, 10, v%d" % (vT3, vT1))
        a("v_add_u32 v%d, v%d, v%d" % (vT3, vT3, vT0))
        a("s_waitcnt lgkmcnt(0)")
        a("s_mov_b32 s60, s88"); a("s_and_b32 s61, s89, 0xffff"); a("s_mov_b32 s62, 0x180000"); a("s_mov_b32 s63, 0x20000")
        a("s_mov_b32 s64, s90"); a("s_and_b32 s65, s91, 0xffff"); a("s_mov_b32 s66, 0x80000"); a("s_mov_b32 s67, 0x20000")
        l3 = a.newlabel("Lb3")
        a("s_cmp_lt_u32 s%d, 4" % s_w)
        a("s_cbranch_scc0 %s" % l3)
        a("buffer_load_dword v23, v%d, s[60:63], 0 offen" % vT2)
        a("s_branch %s" % l2)
        a.label(l3)
        a("buffer_load_dword v23, v%d, s[64:67], 0 offen" % vT3)
        a.label(l2)
    if S.get("zero_post"):
        S["zero_post"](a, s_w)
    stamp(a, S, 1)
    a("v_lshlrev_b32 v%d, 16, v%d" % (vLdt, vLdt))
    a("v_lshlrev_b32 v%d, 16, v%d" % (vDsk, vDsk))
    a("v_mul_f32 v%d, 0x%x, v%d" % (vDt, LOG2E, vLdt))
    a("v_exp_f32 v%d, v%d" % (vDt, vDt))
    for k in range(6):
        a("v_lshlrev_b32 v%d, 16, v%d" % (vIn + k, vIn + k))
    a("v_cvt_pk_bf16_f32 v%d, v%d, v%d" % (vDt, vDt, vDt))
    a("v_and_b32 v%d, 0xffff0000, v%d" % (vDt, vDt))
    a("v_mul_f32 v%d, 0x%x, v%d" % (vDtL, LOG2E, vDt))
    a("v_mul_f32 v%d, 0x%x, v%d" % (vDtP, INV2PI, vDt))
    a("v_cmp_eq_u32 vcc, 0, v%d" % vLane)
    a("v_cndmask_b32 v%d, 0, v%d, vcc" % (vD0, vDsk))
    real_a = a
    class _L:
        def __init__(self): self.l = []
        def __call__(self, t):
            for x in t.split("\n"):
                x = x.strip()
                if x: self.l.append(x)
    a = _L()
    c0 = 52
    Z1, Z2, Z4, Z8, Z16, Z32, Z64, Z128, Z256, W = [c0 + 2 * i for i in range(10)]
    wk = [72 + 2 * i for i in range(12)]
    tc = [96, 97, 98, 99]
    FA, FB = 100, 132
    DK = 164
    tci = [0]

    def put(P, rows, isX):
        t = tc[tci[0] % 4]; tci[0] += 1
        if isX:
            a("v_cvt_pk_bf16_f32 v%d, v%d, -v%d" % (t, P, P + 1))
        else:
            a("v_cvt_pk_bf16_f32 v%d, v%d, v%d" % (t, P, P + 1))
        for r in rows:
            a("ds_write_b32 v%d, v%d offset:%d" % (vXw, t, r * XROW + (0 if isX else YOFF)))

    I = vIn
    Are, Aim, Bre, Cre = I, I + 1, I + 2, I + 4
    m_, ph = wk[0], wk[0] + 1
    a("v_mul_f32 v%d, v%d, v%d" % (m_, Are, vDtL))
    a("v_mul_f32 v%d, v%d, v%d" % (ph, Aim, vDtP))
    a("v_exp_f32 v%d, v%d" % (m_, m_))
    a("v_rndne_f32 v%d, v%d" % (wk[2], ph))
    a("v_sub_f32 v%d, v%d, v%d" % (ph, ph, wk[2]))
    cmul(a, wk[1], Cre, Bre)
    a("v_cos_f32 v%d, v%d" % (Z1, ph))
    a("v_sin_f32 v%d, v%d" % (Z1 + 1, ph))
    a("v_mul_f32 v%d, v%d, v%d" % (W, wk[1], vDt))
    a("v_mul_f32 v%d, v%d, v%d" % (W + 1, wk[1] + 1, vDt))
    a("v_mul_f32 v%d, v%d, v%d" % (Z1, Z1, m_))
    a("v_mul_f32 v%d, v%d, v%d" % (Z1 + 1, Z1 + 1, m_))
    put(W, XEXP[0], True)
    cmul2(a, [(Z2, Z1, Z1), (wk[1], W, Z1)])
    put(wk[1], XEXP[1], True)
    cmul2(a, [(Z4, Z2, Z2), (wk[2], W, Z2), (wk[3], wk[1], Z2)])
    put(wk[2], XEXP[2], True); put(wk[3], XEXP[3], True)
    cmul2(a, [(Z8, Z4, Z4), (wk[4], W, Z4), (wk[5], wk[1], Z4), (wk[6], wk[2], Z4), (wk[7], wk[3], Z4)])
    for k_, e_ in ((4, 4), (5, 5), (6, 6), (7, 7)):
        put(wk[k_], XEXP[e_], True)
    cmul(a, Z16, Z8, Z8)
    a("v_mov_b32 v%d, 0x00003f80" % tc[0])
    tci[0] = 1
    a("ds_write_b32 v%d, v%d offset:%d" % (vXw, tc[0], YOFF))
    put(Z8, [1], False)
    cmul2(a, [(Z32, Z16, Z16), (wk[3], Z8, Z16)])
    put(Z16, [2], False); put(wk[3], [3], False)
    cmul2(a, [(Z64, Z32, Z32), (wk[1], Z8, Z32), (wk[2], Z16, Z32), (wk[7], wk[3], Z32)])
    put(Z32, [4], False); put(wk[1], [5], False); put(wk[2], [6], False); put(wk[7], [7], False)
    cur = [Z32, wk[1], wk[2], wk[7]]
    setA = [wk[3], wk[4], wk[5], wk[6]]
    setB = [wk[8], wk[9], wk[10], wk[11]]
    nxt = setB
    for j0 in range(8, 32, 4):
        extra = []
        if j0 == 8:
            extra = [(Z128, Z64, Z64)]
        elif j0 == 12:
            extra = [(Z256, Z128, Z128)]
        cmul2(a, [(nxt[k], cur[k], Z32) for k in range(4)] + extra)
        for k in range(4):
            put(nxt[k], [j0 + k], False)
        cur = nxt
        nxt = setA if cur is setB else setB
    G = wk[0]; Gn = wk[1]
    cmul(a, G, W, Z256)
    put(G, XEXP[256], True)
    cmul2(a, [(wk[2], G, Z2), (wk[3], G, Z4), (wk[4], G, Z8), (Gn, G, Z256)])
    put(wk[2], XEXP[258], True); put(wk[3], XEXP[260], True); put(wk[4], XEXP[264], True)
    cmul2(a, [(wk[5], wk[2], Z4), (wk[6], Gn, Z4), (wk[7], Gn, Z8), (G, Gn, Z256)])
    put(wk[5], XEXP[262], True); put(Gn, XEXP[512], True); put(wk[6], XEXP[516], True); put(wk[7], XEXP[520], True)
    cmul2(a, [(wk[2], G, Z4), (wk[3], G, Z8), (Gn, G, Z256)])
    put(G, XEXP[768], True); put(wk[2], XEXP[772], True); put(wk[3], XEXP[776], True)
    cmul2(a, [(wk[4], Gn, Z8), (G, Gn, Z256)])
    put(Gn, XEXP[1024], True); put(wk[4], XEXP[1032], True)
    cmul2(a, [(wk[5], G, Z8), (Gn, G, Z256)])
    put(G, XEXP[1280], True); put(wk[5], XEXP[1288], True)
    cmul2(a, [(wk[6], Gn, Z8), (G, Gn, Z256)])
    put(Gn, XEXP[1536], True); put(wk[6], XEXP[1544], True)
    cmul(a, wk[7], G, Z8)
    put(G, XEXP[1792], True); put(wk[7], XEXP[1800], True)
    kg_lines = a.l
    a = real_a
    for x in kg_lines:
        a(x)
    a("s_waitcnt lgkmcnt(0)")
    for m in range(7):
        a("ds_read_b128 v[%d:%d], v%d offset:%d" % (FA + 4 * m, FA + 4 * m + 3, vXr, 32 * m))
        a("ds_read_b128 v[%d:%d], v%d offset:%d" % (FB + 4 * m, FB + 4 * m + 3, vXr, YOFF + 32 * m))
    for m in range(8):
        if m == 1:
            a("ds_read_b128 v[%d:%d], v%d offset:%d" % (FA + 28, FA + 31, vXr, 32 * 7))
            a("ds_read_b128 v[%d:%d], v%d offset:%d" % (FB + 28, FB + 31, vXr, YOFF + 32 * 7))
        a("s_waitcnt lgkmcnt(%d)" % (12 if m == 0 else 14 - 2 * m))
        c_ = "0" if m == 0 else "v[%d:%d]" % (DK, DK + 15)
        a("v_mfma_f32_32x32x16_bf16 v[%d:%d], v[%d:%d], v[%d:%d], %s" % (DK, DK + 15, FA + 4 * m, FA + 4 * m + 3, FB + 4 * m, FB + 4 * m + 3, c_))
    stamp(a, S, 2)
    a("s_barrier")
    stamp(a, S, 3)
    lH1, lJb = a.newlabel("LAh"), a.newlabel("LAh")
    d = DK
    E = 112
    PK = 112
    TT, RR, vM = 128, 132, 144
    cv = lambda dst, lo, hi: a("v_cvt_pk_bf16_f32 v%d, v%d, v%d" % (dst, lo, hi))

    def kwrite(s_, P):
        a("ds_write_b128 v%d, v[%d:%d] offset:%d" % (vKw, P, P + 3, 16 * CB[0] + 1024 * (3 - s_)))
        for k in range(4):
            a("v_cndmask_b32 v%d, v%d, v%d, s[%d:%d]" % (TT + k, P + k, P + ((k + 1) & 3), s_m0, s_m0 + 1))
        R = RR + 4 * (s_ & 1)
        for k in range(4):
            a("v_cndmask_b32 v%d, v%d, v%d, s[%d:%d]" % (R + k, TT + k, TT + ((k + 2) & 3), s_m1, s_m1 + 1))
        for e in range(1, 4):
            for k in range(4):
                a("ds_write_b32 v%d, v%d offset:%d" % (vKr_ + k, R + k, 16 * CB[e] + 4 * e + 1024 * (3 - s_)))

    a("s_cmp_eq_u32 s%d, 1" % s_h)
    a("s_cbranch_scc1 %s" % lH1)
    a("v_lshlrev_b32 v%d, 2, v%d" % (vT0, vLane))
    a("v_add_u32 v%d, s%d, v%d" % (vT0, s_kb, vT0))
    for e in range(4):
        a("ds_write_b32 v%d, v%d offset:%d" % (vT0, Z0, 16 * CB[e] + 4 * (1024 + e)))
    a("v_and_b32 v%d, 7, v%d" % (vT0, vLane))
    a("v_mul_u32_u24 v%d, %d, v%d" % (vT0, UCP, vT0))
    a("v_add_u32 v%d, %d, v%d" % (vT0, UBASE, vT0))
    a("ds_write_b128 v%d, v[240:243]" % vT0)
    a("s_barrier")
    stamp(a, S, 4)
    for q in range(4):
        a("ds_read_b128 v[%d:%d], v%d offset:%d" % (E + 4 * q, E + 4 * q + 3, vDX, 1024 * q))
    a("s_waitcnt lgkmcnt(0)")
    for i in range(15):
        a("v_add_f32 v%d, v%d, v%d" % (d + i, d + i, E + i))
    a("v_add_f32 v%d, v%d, v%d" % (d, d, vD0))
    cv(PK + 0, d + 7, d + 6); cv(PK + 1, d + 5, d + 4); cv(PK + 2, d + 3, d + 2); cv(PK + 3, d + 1, d + 0)
    cv(PK + 4, d + 10, d + 10); cv(PK + 5, d + 9, d + 9); cv(PK + 6, d + 9, d + 8); cv(PK + 7, d + 8, d + 8)
    for s_, (v0_, v1_) in ((2, (d + 11, d + 12)), (3, (d + 13, d + 14))):
        P = PK + 4 * s_
        a("v_cndmask_b32 v%d, v%d, v%d, s[58:59]" % (vM, v0_, v1_))
        cv(P + 0, v1_, v1_); cv(P + 1, v1_, vM); cv(P + 2, v0_, v0_); cv(P + 3, v0_, v0_)
    for s_ in range(4):
        kwrite(s_, PK + 4 * s_)
    a("s_branch %s" % lJb)
    a.label(lH1)
    for q in range(4):
        a("ds_write_b128 v%d, v[%d:%d] offset:%d" % (vDX, d + 4 * q, d + 4 * q + 3, 1024 * q))
    a("s_waitcnt lgkmcnt(0)")
    a("s_barrier")
    if not S.get("u_early"):
        u_loads()
    PU = 112
    a("s_mov_b32 s%d, 0x05040100" % s_t0)
    a("s_mov_b32 s%d, 0x07060302" % s_t1)
    a("s_waitcnt vmcnt(0)")
    stamp(a, S, 4)
    for c in range(4):
        for rho in range(2):
            P = PU + 4 * (2 * c + rho)
            sel = s_t0 if (c & 1) == 0 else s_t1
            for j in range(4):
                r = rho + 2 * j
                a("v_perm_b32 v%d, v%d, v%d, s%d" % (P + j, vR + 2 * (r + 1) + (c >> 1), vR + 2 * r + (c >> 1), sel))
            a("ds_write_b128 v%d, v[%d:%d] offset:%d" % (vUw, P, P + 3, c * UCH + rho * UCP))
    a.label(lJb)
    stamp(a, S, 5)
    FR = 112
    a("s_waitcnt lgkmcnt(0)")
    a("s_barrier")
    stamp(a, S, 6)
    if S.get("otouch"):
        lo = a.newlabel("Lot")
        a("s_cmp_lt_u32 s%d, 2" % s_w)
        a("s_cbranch_scc0 %s" % lo)
        a("s_lshl_b32 s%d, s%d, 7" % (s_t0, s_i))
        a("s_lshl_b32 s%d, s%d, 6" % (s_t1, s_w))
        a("s_add_u32 s%d, s%d, s%d" % (s_t0, s_t0, s_t1))
        a("v_add_u32 v%d, s%d, v%d" % (vT0, s_t0, vLane))
        a("v_lshlrev_b32 v%d, 11, v%d" % (vT0, vT0))
        a("s_lshl_b32 s%d, s%d, 3" % (s_t0, s_cg))
        a("v_add_u32 v%d, s%d, v%d" % (vT0, s_t0, vT0))
        a("buffer_load_dword v%d, v%d, s[%d:%d], 0 offen" % (vT1, vT0, sOS, sOS + 3))
        a.label(lo)

    def reads(j, buf):
        F = FR + 16 * buf
        a("v_max_i32 v%d, v%d, v%d" % (vBc + (j & 1), vB, vZ + j))
        a("ds_read_b128 v[%d:%d], v%d offset:%d" % (F, F + 3, vA, 2048 + 32 * j))
        a("ds_read_b128 v[%d:%d], v%d offset:%d" % (F + 8, F + 11, vBc + (j & 1), 32 * j))
        a("ds_read_b128 v[%d:%d], v%d offset:%d" % (F + 12, F + 15, vB, 2304 + 32 * j))
        a("ds_read_b128 v[%d:%d], v%d offset:%d" % (F + 4, F + 7, vA, 32 * j))

    reads(0, 0); reads(1, 1)
    a("s_mov_b32 s%d, 0" % s_cnt)
    lp = a.newlabel("Lconv")
    a.label(lp)
    for j in range(4):
        if j < 2:
            reads(j + 2, j + 2)
        else:
            if j == 2:
                a("v_add_u32 v%d, 128, v%d" % (vA, vA))
                a("v_add_u32 v%d, 144, v%d" % (vB, vB))
            reads(j - 2, j - 2)
        a("s_waitcnt lgkmcnt(8)")
        F = FR + 16 * j
        a("v_mfma_f32_32x32x16_bf16 v[%d:%d], v[%d:%d], v[%d:%d], v[%d:%d]" % (Y0, Y0 + 15, F, F + 3, F + 8, F + 11, Y0, Y0 + 15))
        a("v_mfma_f32_32x32x16_bf16 v[%d:%d], v[%d:%d], v[%d:%d], v[%d:%d]" % (Y1, Y1 + 15, F, F + 3, F + 12, F + 15, Y1, Y1 + 15))
        a("v_mfma_f32_32x32x16_bf16 v[%d:%d], v[%d:%d], v[%d:%d], v[%d:%d]" % (Y1, Y1 + 15, F + 4, F + 7, F + 8, F + 11, Y1, Y1 + 15))
    a("s_add_u32 s%d, s%d, 1" % (s_cnt, s_cnt))
    a("s_cmp_lt_u32 s%d, 8" % s_cnt)
    a("s_cbranch_scc1 %s" % lp)
    vE0, vE1, vYw = 72, 73, 74
    a("s_lshl_b32 s%d, s%d, 12" % (s_t0, s_w))
    a("v_lshlrev_b32 v%d, 4, v%d" % (vE0, vLane))
    a("v_add_u32 v%d, s%d, v%d" % (vE0, s_t0, vE0))
    a("v_xor_b32 v%d, 0x4000, v%d" % (vE1, vE0))
    a("v_add_u32 v%d, %d, v%d" % (vE0, YX, vE0))
    a("v_add_u32 v%d, %d, v%d" % (vE1, YX, vE1))
    a("v_bfe_u32 v%d, v%d, 1, 4" % (vT0, vLane))
    a("v_mul_u32_u24 v%d, 528, v%d" % (vT0, vT0))
    a("v_and_b32 v%d, 1, v%d" % (vT1, vLane))
    a("v_lshlrev_b32 v%d, 3, v%d" % (vT1, vT1))
    a("v_lshrrev_b32 v%d, 5, v%d" % (vT2, vLane))
    a("v_lshlrev_b32 v%d, 6, v%d" % (vT2, vT2))
    a("v_add3_u32 v%d, v%d, v%d, v%d" % (vYw, vT0, vT1, vT2))
    a("s_lshl_b32 s%d, s%d, 1" % (s_t0, s_c))
    a("s_mul_i32 s%d, s%d, 8448" % (s_t1, s_h))
    a("s_add_u32 s%d, s%d, s%d" % (s_t0, s_t0, s_t1))
    a("s_add_u32 s%d, s%d, %d" % (s_t0, s_t0, YST))
    a("v_add_u32 v%d, s%d, v%d" % (vYw, s_t0, vYw))
    a("s_waitcnt lgkmcnt(0)")
    stamp(a, S, 7)
    lX1, lX2, lX3, lX4 = [a.newlabel("LAx") for _ in range(4)]
    a("s_cmp_eq_u32 s%d, 0" % s_h)
    a("s_cbranch_scc0 %s" % lX1)
    for q in range(4):
        a("ds_write_b128 v%d, v[%d:%d] offset:%d" % (vE0, Y1 + 4 * q, Y1 + 4 * q + 3, 1024 * q))
    a("s_branch %s" % lX2)
    a.label(lX1)
    for q in range(4):
        a("ds_write_b128 v%d, v[%d:%d] offset:%d" % (vE0, Y0 + 4 * q, Y0 + 4 * q + 3, 1024 * q))
    a.label(lX2)
    a("s_waitcnt lgkmcnt(0)")
    a("s_barrier")
    E = 112
    for q in range(4):
        a("ds_read_b128 v[%d:%d], v%d offset:%d" % (E + 4 * q, E + 4 * q + 3, vE1, 1024 * q))
    vRd, vOa = 75, 76
    vGp = 77
    if S.get("orot"):
        a("s_lshl_b32 s%d, s%d, 5" % (s_t0, s_i))
        a("v_add_u32 v%d, s%d, v0" % (vGp, s_t0))
        a("v_and_b32 v%d, 511, v%d" % (vGp, vGp))
    else:
        a("v_mov_b32 v%d, v0" % vGp)
    a("v_lshrrev_b32 v%d, 4, v%d" % (vT0, vGp))
    a("v_lshlrev_b32 v%d, 4, v%d" % (vT0, vT0))
    a("v_lshlrev_b32 v%d, 5, v%d" % (vT1, vGp))
    a("v_add3_u32 v%d, v%d, v%d, %d" % (vRd, vT0, vT1, 0))
    a("v_add_u32 v%d, %d, v%d" % (vRd, YST, vRd))
    a("v_lshlrev_b32 v%d, 13, v%d" % (vOa, vGp))
    a("s_lshl_b32 s%d, s%d, 3" % (s_t0, s_cg))
    a("v_add_u32 v%d, s%d, v%d" % (vOa, s_t0, vOa))
    a("s_cmp_eq_u32 s%d, 0" % s_h)
    a("s_cbranch_scc0 %s" % lX3)
    a("s_waitcnt lgkmcnt(0)")
    for i in range(16):
        a("v_add_f32 v%d, v%d, v%d" % (E + i, E + i, Y0 + i))
    a("s_branch %s" % lX4)
    a.label(lX3)
    a("s_waitcnt lgkmcnt(0)")
    for i in range(16):
        a("v_add_f32 v%d, v%d, v%d" % (E + i, E + i, Y1 + i))
    a.label(lX4)
    tq = [128, 129, 130, 131]
    k = 0
    for q in range(4):
        for i in (0, 2):
            t = tq[k % 4]; k += 1
            a("v_cvt_pk_bf16_f32 v%d, v%d, v%d" % (t, E + 4 * q + i, E + 4 * q + i + 1))
            off = 128 * q + 16 * i
            a("ds_write_b16 v%d, v%d offset:%d" % (vYw, t, off))
            a("ds_write_b16_d16_hi v%d, v%d offset:%d" % (vYw, t, off + 16))
    a("s_waitcnt lgkmcnt(0)")
    a("s_barrier")
    stamp(a, S, 8)
    O = 132
    a("ds_read_b128 v[%d:%d], v%d" % (O, O + 3, vRd))
    a("ds_read_b128 v[%d:%d], v%d offset:16" % (O + 4, O + 7, vRd))
    a("s_mov_b32 s%d, 4096" % s_k2)
    for kk in range(4):
        if kk % 2 == 0:
            a("s_waitcnt lgkmcnt(%d)" % (1 - kk // 2))
        so = ["0", "s%d" % s_k2][kk // 2]
        a("buffer_store_dwordx2 v[%d:%d], v%d, s[%d:%d], %s offen offset:%d" % (O + 2 * kk, O + 2 * kk + 1, vOa, sOS, sOS + 3, so, 2048 * (kk & 1)))
    return dict(s_w=s_w)
```

```python
from asmdsl import Asm
from partB import srd

LOG2E = 0x3fb8aa3b
EPS = 0x358637bd
WS_KV = 0
WS_Z = 32768
WS_FLAG = 65536
WS_PQ = 1 << 20
SLOT = 32768
STAMP_BASE = 70
MAGIC = 0x5a17c0de
FLAG_OFFS = [0]


def stamp(a, S, i):
    if S.get("stamps"):
        a("s_memtime s[%d:%d]" % (STAMP_BASE + 2 * i, STAMP_BASE + 2 * i + 1))


class Lines:
    def __init__(self):
        self.l = []
    def __call__(self, t):
        for x in t.split("\n"):
            x = x.strip()
            if x:
                self.l.append(x)


class LTrack:
    def __init__(self, a):
        self.a = a
        self.q = []
    def issue(self, line, tag):
        if len(self.q) >= 15:
            self.a("s_waitcnt lgkmcnt(14)")
            self.q = self.q[-14:]
        self.a(line)
        self.q.append(tag)
    def need(self, tag):
        idx = [i for i, t in enumerate(self.q) if t == tag]
        if not idx:
            return
        n = len(self.q) - 1 - idx[-1]
        self.a("s_waitcnt lgkmcnt(%d)" % n)
        self.q = self.q[idx[-1] + 1:]


def phi4(a, regs, tmp):
    for k, r in enumerate(regs):
        a("v_mul_f32 v%d, 0x%x, v%d" % (tmp + k, LOG2E, r))
    for k, r in enumerate(regs):
        a("v_exp_f32 v%d, v%d clamp" % (tmp + k, tmp + k))
    for k, r in enumerate(regs):
        a("v_max_f32 v%d, 0x%x, v%d" % (r, EPS, r))
    for k, r in enumerate(regs):
        a("v_add_f32 v%d, v%d, v%d" % (r, r, tmp + k))


def interleave(a, prim, fill, per):
    fi = 0
    for p in prim:
        for x in p:
            a(x)
        for _ in range(per):
            if fi < len(fill):
                a(fill[fi]); fi += 1
    while fi < len(fill):
        a(fill[fi]); fi += 1


def emit_B(a: Asm, S):
    ka, s_rb, s_hq = S["ka"], S["rb"], S["hq"]
    s_w, s_rg, s_ch = 44, 45, 46
    sX, sW, sWS, sDBG = 28, 32, 36, 40
    s_t0, s_t1, s_m0x, s_m0w, s_off, s_rot = 47, 48, 49, 50, 51, 58
    sWO, sOUT = 60, 64
    s_cc, s_xo, s_wo = 59, 68, 69
    vLane = 1
    vT0, vT1, vT2, vT3 = 3, 4, 5, 6
    vXs0, vXs1, vWs, vWOs = 7, 8, 9, 2
    vXr = 10
    vWr = 14
    vXc = 15
    vWc = 19
    WF = 20
    AK, AV, AQ = 52, 68, 84
    TMP = 100
    XF = 128
    stamp(a, S, 0)
    a("s_load_dwordx8 s[16:23], s[%d:%d], 72" % (ka, ka + 1))
    a("s_load_dwordx4 s[24:27], s[%d:%d], 104" % (ka, ka + 1))
    a("v_and_b32 v1, 63, v0")
    a("v_lshrrev_b32 v2, 6, v0")
    a("v_readfirstlane_b32 s44, v2")
    a("s_and_b32 s45, s44, 3")
    a("s_lshr_b32 s46, s44, 2")
    a("s_add_u32 s%d, s%d, s%d" % (s_rot, s_hq, s_rb))
    a("s_and_b32 s%d, s%d, 3" % (s_rot, s_rot))
    a("s_lshl_b32 s%d, s%d, 1" % (s_rot, s_rot))
    a("v_lshrrev_b32 v%d, 3, v%d" % (vT0, vLane))
    a("v_and_b32 v%d, 7, v%d" % (vT1, vLane))
    a("v_lshrrev_b32 v%d, 1, v%d" % (vT2, vT0))
    a("v_xor_b32 v%d, v%d, v%d" % (vT2, vT2, vT1))
    a("s_lshl_b32 s%d, s%d, 7" % (s_t0, s_rb))
    a("s_lshl_b32 s%d, s%d, 4" % (s_t1, s_w))
    a("s_add_u32 s%d, s%d, s%d" % (s_t0, s_t0, s_t1))
    a("v_add_u32 v%d, s%d, v%d" % (vT3, s_t0, vT0))
    a("v_lshlrev_b32 v%d, 10, v%d" % (vT3, vT3))
    a("v_lshlrev_b32 v%d, 4, v%d" % (vXs0, vT2))
    a("v_add_u32 v%d, v%d, v%d" % (vXs0, vXs0, vT3))
    a("v_xor_b32 v%d, 4, v%d" % (vT2, vT2))
    a("v_lshlrev_b32 v%d, 4, v%d" % (vXs1, vT2))
    a("v_add_u32 v%d, v%d, v%d" % (vXs1, vXs1, vT3))
    a("v_add_u32 v%d, 8192, v%d" % (vXs1, vXs1))
    a("v_bfe_u32 v%d, v%d, 1, 1" % (vT2, vT0))
    a("v_lshlrev_b32 v%d, 2, v%d" % (vT2, vT2))
    a("v_xor_b32 v%d, v%d, v%d" % (vT2, vT2, vT1))
    a("v_lshlrev_b32 v%d, 4, v%d" % (vT2, vT2))
    a("s_lshl_b32 s%d, s%d, 3" % (s_t1, s_w))
    a("v_add_u32 v%d, s%d, v%d" % (vT3, s_t1, vT0))
    a("v_lshlrev_b32 v%d, 10, v%d" % (vWOs, vT3))
    a("v_mul_u32_u24 v%d, 3072, v%d" % (vT3, vT3))
    a("s_lshl_b32 s%d, s%d, 7" % (s_t1, s_hq))
    a("v_add3_u32 v%d, v%d, v%d, s%d" % (vWs, vT3, vT2, s_t1))
    a("v_add3_u32 v%d, v%d, v%d, s%d" % (vWOs, vWOs, vT2, s_t1))
    a("s_lshl_b32 s%d, s%d, 11" % (s_m0x, s_w))
    a("s_lshl_b32 s%d, s%d, 10" % (s_m0w, s_w))
    a("s_waitcnt lgkmcnt(0)")
    srd(a, sX, 16, 17, 2048 * 512 * 2)
    srd(a, sW, 18, 19, 512 * 1536 * 2)

    def chunk_offsets(e, c):
        e("s_add_u32 s%d, s%d, %d" % (s_cc, s_rot, c))
        e("s_and_b32 s%d, s%d, 7" % (s_cc, s_cc))
        e("s_lshl_b32 s%d, s%d, 7" % (s_xo, s_cc))
        e("s_mul_i32 s%d, s%d, 196608" % (s_wo, s_cc))

    def dma(e, m0base, m0off, vaddr, srdreg, so):
        e("s_add_u32 m0, s%d, %d" % (m0base, m0off))
        e("buffer_load_dwordx4 v%d, s[%d:%d], %s offen lds" % (vaddr, srdreg, srdreg + 3, so))

    def fill_op(e, i, j):
        b = (i % 5) * SLOT if i < 11 else 2 * SLOT
        if i < 8:
            if j == 0:
                chunk_offsets(e, i); dma(e, s_m0x, b, vXs0, sX, "s%d" % s_xo)
            elif j == 1:
                dma(e, s_m0x, b + 1024, vXs1, sX, "s%d" % s_xo)
            elif j == 2:
                e("s_add_u32 s%d, s%d, 1024" % (s_off, s_wo)); dma(e, s_m0w, b + 16384, vWs, sW, "s%d" % s_off)
            else:
                e("s_add_u32 s%d, s%d, 2048" % (s_off, s_wo)); dma(e, s_m0w, b + 24576, vWs, sW, "s%d" % s_off)
        elif i < 10:
            chunk_offsets(e, 4 * (i - 8) + j); dma(e, s_m0w, b + 8192 * j, vWs, sW, "s%d" % s_wo)
        else:
            e("s_mov_b32 s%d, %d" % (s_off, (4 * (i - 10) + j) * 65536)); dma(e, s_m0w, b + 8192 * j, vWOs, sWO, "s%d" % s_off)

    NPRO = S.get("npro", 2)
    for i in range(NPRO):
        for j in range(4):
            fill_op(a, i, j)
    srd(a, sWS, 26, 27, 1 << 28)
    srd(a, sDBG, 24, 25, 256)
    srd(a, sWO, 20, 21, 512 * 512 * 2)
    srd(a, sOUT, 22, 23, 2048 * 1024 * 2)
    a("v_and_b32 v%d, 31, v%d" % (vT0, vLane))
    a("v_lshrrev_b32 v%d, 5, v%d" % (vT1, vLane))
    a("v_bfe_u32 v%d, v%d, 1, 3" % (vT2, vLane))
    a("s_lshl_b32 s%d, s%d, 5" % (s_t0, s_rg))
    a("v_add_u32 v%d, s%d, v%d" % (vT3, s_t0, vT0))
    a("v_lshlrev_b32 v%d, 7, v%d" % (vT3, vT3))
    for i in range(4):
        a("v_add_u32 v%d, %d, v%d" % (vXr + i, 2 * i, vT1))
        a("v_xor_b32 v%d, v%d, v%d" % (vXr + i, vXr + i, vT2))
        a("v_lshlrev_b32 v%d, 4, v%d" % (vXr + i, vXr + i))
        a("v_add_u32 v%d, v%d, v%d" % (vXr + i, vXr + i, vT3))
    a("v_bfe_u32 v%d, v%d, 2, 2" % (vT0, vLane))
    a("v_lshlrev_b32 v%d, 3, v%d" % (vT2, vT1))
    a("v_add_u32 v%d, v%d, v%d" % (vT2, vT2, vT0))
    a("v_lshlrev_b32 v%d, 7, v%d" % (vWr, vT2))
    a("v_lshrrev_b32 v%d, 1, v%d" % (vT0, vT0))
    a("v_xor_b32 v%d, s%d, v%d" % (vT0, s_ch, vT0))
    a("v_lshlrev_b32 v%d, 6, v%d" % (vT0, vT0))
    a("v_add_u32 v%d, v%d, v%d" % (vWr, vWr, vT0))
    a("v_bfe_u32 v%d, v%d, 4, 1" % (vT0, vLane))
    a("v_lshlrev_b32 v%d, 5, v%d" % (vT0, vT0))
    a("v_and_b32 v%d, 3, v%d" % (vT2, vLane))
    a("v_lshlrev_b32 v%d, 3, v%d" % (vT2, vT2))
    a("v_add3_u32 v%d, v%d, v%d, v%d" % (vWr, vWr, vT0, vT2))
    for i in range(16):
        a("v_mov_b32 v%d, 0" % (AK + i)); a("v_mov_b32 v%d, 0" % (AV + i)); a("v_mov_b32 v%d, 0" % (AQ + i))

    vRW, vZW, vRR, vZR, vPQa, vKA, vZA, vG = 120, 121, 122, 123, 124, 125, 126, 127
    RED = 1 * SLOT
    ZRED = RED + 16384
    PFOK = RED + 20480
    s_msk, s_hp, s_hf = 52, 54, 55
    a("v_bfe_u32 v%d, v%d, 4, 1" % (vT0, vLane))
    a("v_cmp_eq_u32 s[%d:%d], 1, v%d" % (s_msk, s_msk + 1, vT0))
    a("s_lshl_b32 s%d, s%d, 8" % (s_t0, s_w))
    a("s_add_u32 s%d, s%d, %d" % (s_t0, s_t0, ZRED))
    a("v_lshlrev_b32 v%d, 2, v%d" % (vT1, vLane))
    a("v_add_u32 v%d, s%d, v%d" % (vZW, s_t0, vT1))
    a("s_lshl_b32 s%d, s%d, 11" % (s_t0, s_w))
    a("s_add_u32 s%d, s%d, %d" % (s_t0, s_t0, RED))
    a("v_lshlrev_b32 v%d, 5, v%d" % (vRW, vLane))
    a("v_add_u32 v%d, s%d, v%d" % (vRW, s_t0, vRW))
    a("s_bfe_u32 s%d, s%d, 0x10001" % (s_hp, s_w))
    a("s_and_b32 s%d, s%d, 1" % (s_hf, s_w))
    a("s_lshl_b32 s%d, s%d, 5" % (s_t0, s_hf))
    a("s_lshl_b32 s%d, s%d, 4" % (s_t1, s_hp))
    a("s_add_u32 s%d, s%d, s%d" % (s_t0, s_t0, s_t1))
    a("s_lshl_b32 s%d, s%d, 5" % (s_t0, s_t0))
    a("s_lshl_b32 s%d, s%d, 13" % (s_t1, s_ch))
    a("s_add_u32 s%d, s%d, s%d" % (s_t0, s_t0, s_t1))
    a("s_add_u32 s%d, s%d, %d" % (s_t0, s_t0, RED))
    a("v_add_u32 v%d, s%d, v%d" % (vRR, s_t0, vT1))
    a("v_and_b32 v%d, 31, v%d" % (vZR, vLane))
    a("v_lshlrev_b32 v%d, 2, v%d" % (vZR, vZR))
    a("s_lshl_b32 s%d, s%d, 10" % (s_t1, s_ch))
    a("s_add_u32 s%d, s%d, %d" % (s_t1, s_t1, ZRED))
    a("v_add_u32 v%d, s%d, v%d" % (vZR, s_t1, vZR))
    a("s_lshl_b32 s%d, s%d, 2" % (s_t0, s_hq))
    a("s_lshl_b32 s%d, s%d, 1" % (s_t1, s_ch))
    a("s_add_u32 s%d, s%d, s%d" % (s_t0, s_t0, s_t1))
    a("s_add_u32 s%d, s%d, s%d" % (s_t1, s_t0, s_hp))
    a("s_lshl_b32 s%d, s%d, 10" % (s_t1, s_t1))
    a("s_lshl_b32 s%d, s%d, 9" % (s_off, s_hf))
    a("s_add_u32 s%d, s%d, s%d" % (s_t1, s_t1, s_off))
    a("v_add_u32 v%d, s%d, v%d" % (vKA, s_t1, vT1))
    a("v_bfe_u32 v%d, v%d, 4, 1" % (vZA, vLane))
    a("v_add_u32 v%d, s%d, v%d" % (vZA, s_t0, vZA))
    a("v_lshlrev_b32 v%d, 6, v%d" % (vZA, vZA))
    a("v_bfe_u32 v%d, v%d, 2, 1" % (vT2, vLane))
    a("v_lshlrev_b32 v%d, 5, v%d" % (vT2, vT2))
    a("v_add_u32 v%d, v%d, v%d" % (vZA, vZA, vT2))
    a("v_and_b32 v%d, 3, v%d" % (vT2, vLane))
    a("v_bfe_u32 v%d, v%d, 3, 1" % (vT3, vLane))
    a("v_lshlrev_b32 v%d, 2, v%d" % (vT3, vT3))
    a("v_add_u32 v%d, v%d, v%d" % (vT2, vT2, vT3))
    a("v_lshlrev_b32 v%d, 2, v%d" % (vT2, vT2))
    a("v_add_u32 v%d, v%d, v%d" % (vZA, vZA, vT2))
    a("v_add_u32 v%d, %d, v%d" % (vZA, WS_Z, vZA))
    a("s_lshl_b32 s%d, s%d, 6" % (s_t0, s_t0))
    a("s_lshl_b32 s%d, s%d, 2" % (s_t1, s_rb))
    a("s_add_u32 s%d, s%d, s%d" % (s_t0, s_t0, s_t1))
    a("s_add_u32 s%d, s%d, s%d" % (s_t0, s_t0, s_rg))
    a("s_lshl_b32 s%d, s%d, 10" % (s_t0, s_t0))
    a("s_add_u32 s%d, s%d, %d" % (s_t0, s_t0, WS_PQ))
    a("v_lshlrev_b32 v%d, 4, v%d" % (vPQa, vLane))
    a("v_add_u32 v%d, s%d, v%d" % (vPQa, s_t0, vPQa))

    def mf(e, D, A_, B_):
        e("v_mfma_f32_32x32x16_bf16 v[%d:%d], v[%d:%d], v[%d:%d], v[%d:%d]" % (D, D + 15, A_, A_ + 3, B_, B_ + 3, D, D + 15))

    def set_slot(slot):
        for i in range(4):
            a("v_add_u32 v%d, %d, v%d" % (vXc + i, slot * SLOT, vXr + i))
        a("v_add_u32 v%d, %d, v%d" % (vWc, slot * SLOT, vWr))

    def rd(c, i):
        X = XF + 16 * c + 4 * i
        F = WF + 8 * i
        a("ds_read_b128 v[%d:%d], v%d" % (X, X + 3, vXc + i))
        for mat, base in ((0, 16384), (1, 24576)):
            for j in range(2):
                a("ds_read_b64_tr_b16 v[%d:%d], v%d offset:%d" % (F + 4 * mat + 2 * j, F + 4 * mat + 2 * j + 1, vWc, base + (16 * i + 4 * j) * 128))

    def rdq(st):
        F = WF + 4 * (st % 8)
        j4, i = (st % 16) >> 2, st & 3
        for j in range(2):
            a("ds_read_b64_tr_b16 v[%d:%d], v%d offset:%d" % (F + 2 * j, F + 2 * j + 1, vWc, 8192 * j4 + (16 * i + 4 * j) * 128))

    def kvstep(c, i):
        X = XF + 16 * c + 4 * i
        F = WF + 8 * i
        mf(a, AK, X, F)
        mf(a, AV, X, F + 4)

    a("s_waitcnt vmcnt(%d)" % (4 * (NPRO - 1)))
    a("s_barrier")
    stamp(a, S, 1)
    for i in range(NPRO, 3):
        for j in range(4):
            fill_op(a, i, j)
    set_slot(0)
    rd(0, 0); rd(0, 1)
    mode = S.get("fillmode", "spread")
    if S.get("x_pre"): mode = "pre"
    if S.get("x_post"): mode = "post"
    if S.get("x_nofill"): mode = "none"
    waits = {"spread": 6, "pre": 8, "post": 4, "none": 63}

    def fills(i, where):
        if mode == "spread":
            fill_op(a, i, where)
        elif mode == "pre" and where == 1:
            for j in range(4):
                fill_op(a, i, j)
        elif mode == "post" and where == 2:
            for j in range(4):
                fill_op(a, i, j)

    for c in range(8):
        a("s_waitcnt lgkmcnt(5)")
        kvstep(c, 0); rd(c, 2); fills(c + 3, 0)
        a("s_waitcnt lgkmcnt(5)")
        mf(a, AK, XF + 16 * c + 4, WF + 8)
        rd(c, 3); fills(c + 3, 1)
        a("s_waitcnt vmcnt(%d) lgkmcnt(5)" % waits[mode])
        mf(a, AV, XF + 16 * c + 4, WF + 8 + 4)
        if not S.get("x_nobar"):
            a("s_barrier")
        kvstep(c, 2)
        if c < 7:
            set_slot((c + 1) % 5)
            rd(c + 1, 0)
            fills(c + 3, 2)
            a("s_waitcnt lgkmcnt(5)")
            kvstep(c, 3)
            rd(c + 1, 1)
            fills(c + 3, 3)
        else:
            a("v_add_u32 v%d, %d, v%d" % (vWc, 3 * SLOT, vWr))
            rdq(0); rdq(1)
            fills(c + 3, 2)
            a("s_waitcnt lgkmcnt(4)")
            kvstep(c, 3)
            rdq(2); rdq(3)
            fills(c + 3, 3)
    stamp(a, S, 2)
    if S.get("x_stop"):
        return
    a("v_and_b32 v%d, 7, v%d" % (vT2, vLane))
    a("v_lshlrev_b32 v%d, 2, v%d" % (vT2, vT2))
    a("buffer_load_dword v%d, v%d, s[%d:%d], 0 offen sc1" % (vG, vT2, sDBG, sDBG + 3))
    PKp, PVp = TMP, TMP + 8
    t4 = TMP + 16
    vZ, vOne = vT0, vT1
    vWc2 = vXc
    a("v_add_u32 v%d, %d, v%d" % (vWc2, 4 * SLOT, vWr))
    T = LTrack(a)
    T.q = [("q", st) for st in range(4) for _ in range(2)]

    def rdqT(st):
        F = WF + 4 * (st % 8)
        j4, i = (st % 16) >> 2, st & 3
        vb = vWc if st < 16 else vWc2
        for j in range(2):
            T.issue("ds_read_b64_tr_b16 v[%d:%d], v%d offset:%d" % (F + 2 * j, F + 2 * j + 1, vb, 8192 * j4 + (16 * i + 4 * j) * 128), ("q", st))

    def qslot(st, fill, per, prefetch=True):
        T.need(("q", st))
        mf(a, AQ, WF + 4 * (st % 8), XF + 4 * st)
        if prefetch and st + 4 < 32:
            rdqT(st + 4)
        for _ in range(per):
            if fill:
                a(fill.pop(0))

    f = Lines()
    f("v_mov_b32 v%d, 0" % vZ)
    f("v_mov_b32 v%d, 0x3f803f80" % vOne)
    for i in range(8):
        f("v_cvt_pk_bf16_f32 v%d, v%d, v%d" % (PVp + i, AV + 2 * i, AV + 2 * i + 1))
    for g in range(4):
        phi4(f, [AK + 4 * g + k for k in range(4)], t4)
        for i in (2 * g, 2 * g + 1):
            f("v_cvt_pk_bf16_f32 v%d, v%d, v%d" % (PKp + i, AK + 2 * i, AK + 2 * i + 1))
    fill = list(f.l)
    KP = S.get("kpost_per", 11)
    st = 0
    while fill and st < 8:
        qslot(st, fill, KP); st += 1
    while fill:
        a(fill.pop(0))
    DKV = AK
    a("v_mfma_f32_32x32x16_bf16 v[%d:%d], v[%d:%d], v[%d:%d], 0" % (DKV, DKV + 15, PKp, PKp + 3, PVp, PVp + 3))
    a("v_mfma_f32_32x32x16_bf16 v[%d:%d], v[%d:%d], v[%d:%d], v[%d:%d]" % (DKV, DKV + 15, PKp + 4, PKp + 7, PVp + 4, PVp + 7, DKV, DKV + 15))
    fill = ["v_dot2c_f32_bf16 v%d, v%d, v%d" % (vZ, PKp + i, vOne) for i in range(8)]
    while st < 11:
        qslot(st, fill, 4); st += 1
    while fill:
        a(fill.pop(0))
    T.issue("ds_write_b32 v%d, v%d" % (vZW, vZ), "w")
    SEL = PVp
    for i in range(8):
        a("v_cndmask_b32 v%d, v%d, v%d, s[%d:%d]" % (SEL + i, DKV + i, DKV + 8 + i, s_msk, s_msk + 1))
    T.issue("ds_write_b128 v%d, v[%d:%d]" % (vRW, SEL, SEL + 3), "w")
    T.issue("ds_write_b128 v%d, v[%d:%d] offset:16" % (vRW, SEL + 4, SEL + 7), "w")
    qslot(st, [], 0, prefetch=False); st += 1
    a("s_waitcnt vmcnt(0) lgkmcnt(0)")
    T.q = []
    a("s_barrier")
    stamp(a, S, 3)
    rdqT(15)
    lg, lgo = a.newlabel("Lg"), a.newlabel("Lgo")
    a("v_cmp_ne_u32 vcc, 1, v%d" % vG)
    a("s_cbranch_vccz %s" % lgo)
    a.label(lg)
    a("buffer_load_dword v%d, v%d, s[%d:%d], 0 offen sc1" % (vG, vT2, sDBG, sDBG + 3))
    a("s_waitcnt vmcnt(0)")
    a("v_cmp_ne_u32 vcc, 1, v%d" % vG)
    a("s_cbranch_vccnz %s" % lg)
    a.label(lgo)
    R_ = TMP
    for row in range(2):
        for g in range(4):
            T.issue("ds_read_b32 v%d, v%d offset:%d" % (R_ + 4 * row + g, vRR, 2048 * g + 256 * row), "kvr")
    qslot(st, [], 0); st += 1
    for g in range(4):
        for hf in range(2):
            T.issue("ds_read_b32 v%d, v%d offset:%d" % (R_ + 8 + 2 * g + hf, vZR, 256 * g + 128 * hf), "zr")
    T.need("kvr")
    for row in range(2):
        b = R_ + 4 * row
        a("v_add_f32 v%d, v%d, v%d" % (b, b, b + 1))
        a("v_add_f32 v%d, v%d, v%d" % (b + 2, b + 2, b + 3))
        a("v_add_f32 v%d, v%d, v%d" % (b, b, b + 2))
    for row in range(2):
        a("buffer_atomic_add_f32 v%d, v%d, s[%d:%d], 0 offen offset:%d" % (R_ + 4 * row, vKA, sWS, sWS + 3, WS_KV + 256 * row))
    qslot(st, [], 0); st += 1
    T.need("zr")
    b = R_ + 8
    for stp in (1, 2, 4):
        for k in range(0, 8, 2 * stp):
            a("v_add_f32 v%d, v%d, v%d" % (b + k, b + k, b + k + stp))
    lz = a.newlabel("Lz")
    a("s_and_b32 s%d, s%d, 3" % (s_t0, s_w))
    a("s_cmp_eq_u32 s%d, 0" % s_t0)
    a("s_cbranch_scc0 %s" % lz)
    a("s_mov_b64 s[56:57], exec")
    a("s_mov_b32 exec_lo, -1")
    a("s_mov_b32 exec_hi, 0")
    a("buffer_atomic_add_f32 v%d, v%d, s[%d:%d], 0 offen" % (b, vZA, sWS, sWS + 3))
    a("s_mov_b64 exec, s[56:57]")
    a.label(lz)
    fo = Lines()
    for j in range(4):
        fill_op(fo, 11, j)
    fill = list(fo.l)
    while st < 32:
        qslot(st, fill, 3); st += 1
    while fill:
        a(fill.pop(0))
    a("s_waitcnt vmcnt(0)")
    a("s_barrier")
    stamp(a, S, 9)
    lkf = a.newlabel("Lkf")
    a("s_cmp_eq_u32 s%d, 6" % s_w)
    a("s_cbranch_scc0 %s" % lkf)
    a("s_lshl_b32 s%d, s%d, 7" % (s_t0, s_hq))
    a("s_add_u32 s%d, s%d, %d" % (s_t0, s_t0, WS_FLAG))
    a("v_lshlrev_b32 v%d, 10, v%d" % (vT0, vLane))
    a("v_add_u32 v%d, s%d, v%d" % (vT0, s_t0, vT0))
    a("v_mov_b32 v%d, 1" % vT1)
    a("s_mov_b64 s[56:57], exec")
    a("s_mov_b64 exec, 0xff")
    a("buffer_atomic_add v%d, v%d, s[%d:%d], 0 offen" % (vT1, vT0, sWS, sWS + 3))
    a("s_mov_b64 exec, s[56:57]")
    a.label(lkf)
    PQ = TMP
    for g in range(4):
        phi4(a, [AQ + 4 * g + k for k in range(4)], t4)
        for i in (2 * g, 2 * g + 1):
            a("v_cvt_pk_bf16_f32 v%d, v%d, v%d" % (PQ + i, AQ + 2 * i, AQ + 2 * i + 1))
        if g == 1:
            a("buffer_store_dwordx4 v[%d:%d], v%d, s[%d:%d], 0 offen sc1" % (PQ, PQ + 3, vPQa, sWS, sWS + 3))
    a("s_mov_b32 s%d, 65536" % s_off)
    a("buffer_store_dwordx4 v[%d:%d], v%d, s[%d:%d], s%d offen sc1" % (PQ + 4, PQ + 7, vPQa, sWS, sWS + 3, s_off))
    stamp(a, S, 4)
    s_hh = 46
    WO = 0
    KVF = 3 * SLOT
    OST = 4 * SLOT
    PQF = 128
    vKVa, vZa, vPQl, vKFw, vZFw = 11, 12, 13, 14, 15
    vKr, vWr2, vWr1 = 8, 9, 10
    a("v_lshlrev_b32 v%d, 4, v%d" % (vT0, vLane))
    a("s_lshl_b32 s%d, s%d, 12" % (s_t1, s_w))
    a("v_add_u32 v%d, s%d, v%d" % (vKVa, s_t1, vT0))
    a("s_and_b32 s%d, s%d, 1" % (s_t1, s_w))
    a("s_lshl_b32 s%d, s%d, 10" % (s_t1, s_t1))
    a("s_add_u32 s%d, s%d, %d" % (s_t1, s_t1, WS_Z))
    a("v_add_u32 v%d, s%d, v%d" % (vZa, s_t1, vT0))
    a("s_lshl_b32 s%d, s%d, 10" % (s_t0, s_hh))
    a("s_lshl_b32 s%d, s%d, 2" % (s_t1, s_rb))
    a("s_add_u32 s%d, s%d, s%d" % (s_t0, s_t0, s_t1))
    a("s_add_u32 s%d, s%d, s%d" % (s_t0, s_t0, s_rg))
    a("s_lshl_b32 s%d, s%d, 10" % (s_t0, s_t0))
    a("s_add_u32 s%d, s%d, %d" % (s_t0, s_t0, WS_PQ))
    a("v_add_u32 v%d, s%d, v%d" % (vPQl, s_t0, vT0))
    a("v_lshrrev_b32 v%d, 5, v%d" % (vT1, vLane))
    a("v_lshlrev_b32 v%d, 9, v%d" % (vT1, vT1))
    a("v_bfe_u32 v%d, v%d, 1, 4" % (vT2, vLane))
    a("v_lshlrev_b32 v%d, 4, v%d" % (vT2, vT2))
    a("v_and_b32 v%d, 1, v%d" % (vT3, vLane))
    a("v_lshlrev_b32 v%d, 3, v%d" % (vT3, vT3))
    a("v_add3_u32 v%d, v%d, v%d, v%d" % (vKFw, vT1, vT2, vT3))
    a("s_lshl_b32 s%d, s%d, 12" % (s_t1, s_w))
    a("s_add_u32 s%d, s%d, %d" % (s_t1, s_t1, KVF))
    a("v_add_u32 v%d, s%d, v%d" % (vKFw, s_t1, vKFw))
    a("s_and_b32 s%d, s%d, 1" % (s_t1, s_w))
    a("s_lshl_b32 s%d, s%d, 14" % (s_t1, s_t1))
    a("s_add_u32 s%d, s%d, %d" % (s_t1, s_t1, KVF + 256))
    a("v_lshrrev_b32 v%d, 2, v%d" % (vT2, vLane))
    a("v_lshlrev_b32 v%d, 10, v%d" % (vT2, vT2))
    a("v_bfe_u32 v%d, v%d, 1, 1" % (vT3, vLane))
    a("v_lshlrev_b32 v%d, 9, v%d" % (vT3, vT3))
    a("v_add3_u32 v%d, v%d, v%d, s%d" % (vZFw, vT2, vT3, s_t1))
    a("v_and_b32 v%d, 1, v%d" % (vT3, vLane))
    a("v_lshlrev_b32 v%d, 3, v%d" % (vT3, vT3))
    a("v_add_u32 v%d, v%d, v%d" % (vZFw, vZFw, vT3))
    a("v_lshlrev_b32 v%d, 4, v%d" % (vKr, vLane))
    a("s_lshl_b32 s%d, s%d, 14" % (s_t0, s_hh))
    a("s_add_u32 s%d, s%d, %d" % (s_t0, s_t0, KVF))
    a("v_add_u32 v%d, s%d, v%d" % (vKr, s_t0, vKr))
    a("v_lshrrev_b32 v%d, 5, v%d" % (vT1, vLane))
    a("v_bfe_u32 v%d, v%d, 2, 2" % (vT0, vLane))
    a("v_lshlrev_b32 v%d, 2, v%d" % (vT2, vT1))
    a("v_add_u32 v%d, v%d, v%d" % (vT2, vT2, vT0))
    a("v_lshlrev_b32 v%d, 7, v%d" % (vWr2, vT2))
    a("v_lshrrev_b32 v%d, 1, v%d" % (vT0, vT0))
    a("v_lshlrev_b32 v%d, 6, v%d" % (vT3, vT0))
    a("v_bfe_u32 v%d, v%d, 4, 1" % (vT2, vLane))
    a("v_lshlrev_b32 v%d, 5, v%d" % (vT2, vT2))
    a("v_add_u32 v%d, v%d, v%d" % (vWr2, vWr2, vT2))
    a("v_and_b32 v%d, 3, v%d" % (vT2, vLane))
    a("v_lshlrev_b32 v%d, 3, v%d" % (vT2, vT2))
    a("v_add_u32 v%d, v%d, v%d" % (vWr2, vWr2, vT2))
    a("s_lshl_b32 s%d, s%d, 16" % (s_t0, s_hh))
    a("v_add_u32 v%d, s%d, v%d" % (vWr2, s_t0, vWr2))
    a("v_xor_b32 v%d, 64, v%d" % (vWr1, vT3))
    a("v_add_u32 v%d, v%d, v%d" % (vWr1, vWr1, vWr2))
    a("v_add_u32 v%d, v%d, v%d" % (vWr2, vWr2, vT3))
    vE0, vE1, vSt, vRd, vOa = 192, 193, 194, 195, 196
    a("s_lshl_b32 s%d, s%d, 12" % (s_t0, s_w))
    a("s_add_u32 s%d, s%d, %d" % (s_t0, s_t0, OST))
    a("v_lshlrev_b32 v%d, 4, v%d" % (vE0, vLane))
    a("v_add_u32 v%d, s%d, v%d" % (vE0, s_t0, vE0))
    a("s_xor_b32 s%d, s%d, 4" % (s_t0, s_w))
    a("s_lshl_b32 s%d, s%d, 12" % (s_t0, s_t0))
    a("s_add_u32 s%d, s%d, %d" % (s_t0, s_t0, OST))
    a("v_lshlrev_b32 v%d, 4, v%d" % (vE1, vLane))
    a("v_add_u32 v%d, s%d, v%d" % (vE1, s_t0, vE1))
    a("v_and_b32 v%d, 31, v%d" % (vSt, vLane))
    a("s_lshl_b32 s%d, s%d, 5" % (s_t0, s_rg))
    a("v_add_u32 v%d, s%d, v%d" % (vSt, s_t0, vSt))
    a("v_mul_u32_u24 v%d, 144, v%d" % (vSt, vSt))
    a("v_lshrrev_b32 v%d, 5, v%d" % (vT3, vLane))
    a("v_lshlrev_b32 v%d, 3, v%d" % (vT3, vT3))
    a("s_lshl_b32 s%d, s%d, 6" % (s_t0, s_hh))
    a("v_add3_u32 v%d, v%d, v%d, s%d" % (vSt, vSt, vT3, s_t0))
    a("v_lshrrev_b32 v%d, 3, v%d" % (vOa, vLane))
    a("s_lshl_b32 s%d, s%d, 4" % (s_t0, s_w))
    a("v_add_u32 v%d, s%d, v%d" % (vOa, s_t0, vOa))
    a("v_and_b32 v%d, 7, v%d" % (vT3, vLane))
    a("v_lshlrev_b32 v%d, 4, v%d" % (vT3, vT3))
    a("v_mul_u32_u24 v%d, 144, v%d" % (vRd, vOa))
    a("v_add_u32 v%d, v%d, v%d" % (vRd, vRd, vT3))
    a("s_lshl_b32 s%d, s%d, 7" % (s_t0, s_rb))
    a("v_add_u32 v%d, s%d, v%d" % (vOa, s_t0, vOa))
    a("v_lshlrev_b32 v%d, 11, v%d" % (vOa, vOa))
    a("s_lshl_b32 s%d, s%d, 7" % (s_t0, s_hq))
    a("s_add_u32 s%d, s%d, 1024" % (s_t0, s_t0))
    a("v_add3_u32 v%d, v%d, v%d, s%d" % (vOa, vOa, vT3, s_t0))
    O0, O1 = 16, 32
    D1 = [48, 96]
    KA = [64, 112]
    WA = [68, 76]
    OB = [84, 88]
    vR = 92
    KL, ZL = 96, 116
    for i in range(16):
        a("v_mov_b32 v%d, 0" % (O0 + i)); a("v_mov_b32 v%d, 0" % (O1 + i))
    a("s_waitcnt vmcnt(0)")
    stamp(a, S, 10)
    a("s_barrier")
    lpf = a.newlabel("Lpf")
    a("s_cmp_eq_u32 s%d, 7" % s_w)
    a("s_cbranch_scc0 %s" % lpf)
    a("s_lshl_b32 s%d, s%d, 7" % (s_t0, s_rb))
    a("s_add_u32 s%d, s%d, %d" % (s_t0, s_t0, WS_FLAG + 8192))
    a("v_mov_b32 v%d, s%d" % (vT0, s_t0))
    a("v_mov_b32 v%d, 1" % vT1)
    a("s_mov_b64 s[56:57], exec")
    a("s_mov_b64 exec, 1")
    a("buffer_atomic_add v%d, v%d, s[%d:%d], 0 offen" % (vT1, vT0, sWS, sWS + 3))
    a("s_mov_b64 exec, s[56:57]")
    a.label(lpf)
    vPa, vPt = 3, 4
    P0 = 120
    lw = a.newlabel("Lw")
    a("s_cmp_eq_u32 s%d, 0" % s_w)
    a("s_cbranch_scc0 %s" % lw)
    a("s_lshl_b32 s%d, s%d, 7" % (s_t0, s_rb))
    a("s_add_u32 s%d, s%d, %d" % (s_t0, s_t0, WS_FLAG + 8192))
    a("s_and_b32 s%d, s%d, 7" % (s_t1, s_rb))
    a("s_lshl_b32 s%d, s%d, 10" % (s_t1, s_t1))
    a("s_add_u32 s%d, s%d, %d" % (s_t1, s_t1, WS_FLAG))
    a("v_lshlrev_b32 v%d, 7, v%d" % (vPa, vLane))
    a("v_add_u32 v%d, s%d, v%d" % (vPa, s_t1, vPa))
    a("v_mov_b32 v%d, s%d" % (vT2, s_t0))
    a("v_cmp_gt_u32 s[56:57], 8, v%d" % vLane)
    a("v_cndmask_b32 v%d, v%d, v%d, s[56:57]" % (vPa, vT2, vPa))
    a("v_mov_b32 v%d, 8" % vPt)
    a("v_mov_b32 v%d, 16" % vT2)
    a("v_cndmask_b32 v%d, v%d, v%d, s[56:57]" % (vPt, vPt, vT2))
    a("s_mov_b64 s[54:55], exec")
    a("s_mov_b64 exec, 0x1ff")
    a("buffer_load_dword v%d, v%d, s[%d:%d], 0 offen sc1" % (P0, vPa, sWS, sWS + 3))
    lp, lpd = a.newlabel("Lp"), a.newlabel("Lpd")
    a.label(lp)
    a("s_waitcnt vmcnt(0)")
    a("v_cmp_ne_u32 vcc, v%d, v%d" % (P0, vPt))
    a("s_and_b32 s%d, vcc_lo, 0xff" % s_t1)
    a("s_cbranch_scc0 %s" % lpd)
    if S.get("psleep"):
        a("s_sleep %d" % S["psleep"])
    a("buffer_load_dword v%d, v%d, s[%d:%d], 0 offen sc1" % (P0, vPa, sWS, sWS + 3))
    a("s_branch %s" % lp)
    a.label(lpd)
    a("s_and_b32 s53, vcc_lo, 0x100")
    a("s_mov_b64 exec, s[54:55]")
    a("v_mov_b32 v%d, s53" % vT2)
    a("v_mov_b32 v%d, %d" % (vT3, PFOK))
    a("ds_write_b32 v%d, v%d" % (vT3, vT2))
    a("s_waitcnt lgkmcnt(0)")
    a.label(lw)
    a("s_barrier")
    stamp(a, S, 11)
    def ld_pq(i):
        if i == 0:
            so = "0"
        else:
            a("s_mov_b32 s%d, %d" % (s_off, i * 65536)); so = "s%d" % s_off
        a("buffer_load_dwordx4 v[%d:%d], v%d, s[%d:%d], %s offen sc1" % (PQF + 4 * i, PQF + 4 * i + 3, vPQl, sWS, sWS + 3, so))
    NPRE = 8
    a("v_mov_b32 v%d, %d" % (vT3, PFOK))
    a("ds_read_b32 v%d, v%d" % (vT2, vT3))
    for i in range(4):
        a("buffer_load_dwordx4 v[%d:%d], v%d, s[%d:%d], 0 offen offset:%d sc1" % (KL + 4 * i, KL + 4 * i + 3, vKVa, sWS, sWS + 3, WS_KV + 1024 * i))
    a("buffer_load_dwordx4 v[%d:%d], v%d, s[%d:%d], 0 offen sc1" % (ZL, ZL + 3, vZa, sWS, sWS + 3))
    a("s_waitcnt lgkmcnt(0)")
    a("v_readfirstlane_b32 s53, v%d" % vT2)
    C_ = 120

    def conv_kv(younger):
        for i in range(4):
            a("s_waitcnt vmcnt(%d)" % (younger + 4 - i))
            a("v_cvt_pk_bf16_f32 v%d, v%d, v%d" % (C_ + 2 * i, KL + 4 * i, KL + 4 * i + 1))
            a("v_cvt_pk_bf16_f32 v%d, v%d, v%d" % (C_ + 2 * i + 1, KL + 4 * i + 2, KL + 4 * i + 3))
            a("ds_write_b64 v%d, v[%d:%d] offset:%d" % (vKFw, C_ + 2 * i, C_ + 2 * i + 1, 1024 * i))
        a("s_waitcnt vmcnt(%d)" % younger)
        lzz = a.newlabel("Lzz")
        a("s_cmp_lt_u32 s%d, 2" % s_w)
        a("s_cbranch_scc0 %s" % lzz)
        a("v_cvt_pk_bf16_f32 v94, v%d, v%d" % (ZL, ZL + 1))
        a("v_cvt_pk_bf16_f32 v95, v%d, v%d" % (ZL + 2, ZL + 3))
        a("ds_write_b64 v%d, v[94:95]" % vZFw)
        a("ds_write_b64 v%d, v[94:95] offset:64" % vZFw)
        a.label(lzz)

    lslow, ljoin = a.newlabel("Lslow"), a.newlabel("Ljoin")
    a("s_cmp_eq_u32 s53, 0")
    a("s_cbranch_scc0 %s" % lslow)
    for i in range(NPRE):
        ld_pq(i)
    conv_kv(NPRE)
    a("s_waitcnt lgkmcnt(0)")
    a("s_barrier")
    a("s_branch %s" % ljoin)
    a.label(lslow)
    conv_kv(0)
    lw2, lp2, lpd2 = a.newlabel("Lw2"), a.newlabel("Lp"), a.newlabel("Lpd")
    a("s_cmp_eq_u32 s%d, 0" % s_w)
    a("s_cbranch_scc0 %s" % lw2)
    a("s_mov_b64 exec, 0x100")
    a.label(lp2)
    a("buffer_load_dword v%d, v%d, s[%d:%d], 0 offen sc1" % (93, vPa, sWS, sWS + 3))
    a("s_waitcnt vmcnt(0)")
    a("v_cmp_ne_u32 vcc, v93, v%d" % vPt)
    a("s_cbranch_vccnz %s" % lp2)
    a("s_mov_b64 exec, s[54:55]")
    a.label(lw2)
    a("s_waitcnt lgkmcnt(0)")
    a("s_barrier")
    for i in range(NPRE):
        ld_pq(i)
    a.label(ljoin)
    stamp(a, S, 6)

    def rd_kv(h):
        a("ds_read_b128 v[%d:%d], v%d offset:%d" % (KA[h & 1], KA[h & 1] + 3, vKr, 1024 * h))

    def rd_wo(h):
        W_ = WA[h & 1]
        for jt, vb in ((0, vWr2), (1, vWr1)):
            for j in range(2):
                a("ds_read_b64_tr_b16 v[%d:%d], v%d offset:%d" % (W_ + 4 * jt + 2 * j, W_ + 4 * jt + 2 * j + 1, vb, WO + (16 * h + 8 * j) * 128))

    issued = [NPRE]

    def num(h):
        a("s_waitcnt vmcnt(%d)" % (issued[0] - 1 - h))
        a("v_mfma_f32_32x32x16_bf16 v[%d:%d], v[%d:%d], v[%d:%d], 0" % (D1[h & 1], D1[h & 1] + 15, KA[h & 1], KA[h & 1] + 3, PQF + 4 * h, PQF + 4 * h + 3))
        if issued[0] < 16:
            ld_pq(issued[0]); issued[0] += 1

    rd_kv(0)
    a("s_waitcnt lgkmcnt(0)")
    num(0)
    rd_kv(1); rd_wo(0)
    for h in range(16):
        if h + 1 < 16:
            a("s_waitcnt lgkmcnt(4)")
            num(h + 1)
        D = D1[h & 1]
        a("v_add_f32 v%d, 0x%x, v%d" % (vR, EPS, D + 8))
        a("v_rcp_f32 v%d, v%d" % (vR, vR))
        for i in range(8):
            a("v_mul_f32 v%d, v%d, v%d" % (D + i, D + i, vR))
        B_ = OB[h & 1]
        for i in range(4):
            a("v_cvt_pk_bf16_f32 v%d, v%d, v%d" % (B_ + i, D + 2 * i, D + 2 * i + 1))
        a("s_waitcnt lgkmcnt(0)")
        if h + 2 < 16:
            rd_kv(h + 2)
        W_ = WA[h & 1]
        a("v_mfma_f32_32x32x16_bf16 v[%d:%d], v[%d:%d], v[%d:%d], v[%d:%d]" % (O0, O0 + 15, W_, W_ + 3, B_, B_ + 3, O0, O0 + 15))
        a("v_mfma_f32_32x32x16_bf16 v[%d:%d], v[%d:%d], v[%d:%d], v[%d:%d]" % (O1, O1 + 15, W_ + 4, W_ + 7, B_, B_ + 3, O1, O1 + 15))
        if h + 1 < 16:
            rd_wo(h + 1)
    stamp(a, S, 7)
    lA, lB, lC, lD = [a.newlabel("Lx") for _ in range(4)]
    a("s_cmp_eq_u32 s%d, 0" % s_hh)
    a("s_cbranch_scc0 %s" % lA)
    for q in range(4):
        a("ds_write_b128 v%d, v[%d:%d] offset:%d" % (vE0, O1 + 4 * q, O1 + 4 * q + 3, 1024 * q))
    a("s_branch %s" % lB)
    a.label(lA)
    for q in range(4):
        a("ds_write_b128 v%d, v[%d:%d] offset:%d" % (vE0, O0 + 4 * q, O0 + 4 * q + 3, 1024 * q))
    a.label(lB)
    a("s_waitcnt lgkmcnt(0)")
    a("s_barrier")
    E = 48
    for q in range(4):
        a("ds_read_b128 v[%d:%d], v%d offset:%d" % (E + 4 * q, E + 4 * q + 3, vE1, 1024 * q))
    a("s_cmp_eq_u32 s%d, 0" % s_hh)
    a("s_cbranch_scc0 %s" % lC)
    a("s_waitcnt lgkmcnt(0)")
    for i in range(16):
        a("v_add_f32 v%d, v%d, v%d" % (E + i, E + i, O0 + i))
    a("s_branch %s" % lD)
    a.label(lC)
    a("s_waitcnt lgkmcnt(0)")
    for i in range(16):
        a("v_add_f32 v%d, v%d, v%d" % (E + i, E + i, O1 + i))
    a.label(lD)
    for q in range(4):
        a("v_cvt_pk_bf16_f32 v%d, v%d, v%d" % (64 + 2 * q, E + 4 * q, E + 4 * q + 1))
        a("v_cvt_pk_bf16_f32 v%d, v%d, v%d" % (65 + 2 * q, E + 4 * q + 2, E + 4 * q + 3))
        a("ds_write_b64 v%d, v[%d:%d] offset:%d" % (vSt, 64 + 2 * q, 65 + 2 * q, 16 * q))
    a("s_waitcnt lgkmcnt(0)")
    a("s_barrier")
    a("ds_read_b128 v[76:79], v%d" % vRd)
    a("ds_read_b128 v[80:83], v%d offset:%d" % (vRd, 8 * 144))
    a("s_mov_b32 s%d, 16384" % s_off)
    a("s_waitcnt lgkmcnt(1)")
    a("buffer_store_dwordx4 v[76:79], v%d, s[%d:%d], 0 offen" % (vOa, sOUT, sOUT + 3))
    a("s_waitcnt lgkmcnt(0)")
    a("buffer_store_dwordx4 v[80:83], v%d, s[%d:%d], s%d offen" % (vOa, sOUT, sOUT + 3, s_off))
    stamp(a, S, 8)


def zero_pre(s_idx):
    def f(a, s_w):
        l = a.newlabel("Lzp")
        a("s_cmp_lt_u32 s%d, 8" % s_idx)
        a("s_cbranch_scc0 %s" % l)
        a("s_cmp_eq_u32 s%d, 3" % s_w)
        a("s_cbranch_scc0 %s" % l)
        a("s_load_dwordx4 s[88:91], s[0:1], 104")
        for r in range(4):
            a("v_mov_b32 v%d, 0" % (200 + r))
        a("s_waitcnt lgkmcnt(0)")
        srd(a, 92, 90, 91, 1 << 28)
        a("v_lshlrev_b32 v204, 4, v1")
        a("s_lshl_b32 s64, s%d, 12" % s_idx)
        a("v_add_u32 v205, s64, v204")
        for r in range(4):
            a("buffer_store_dwordx4 v[200:203], v205, s[92:95], 0 offen offset:%d sc1" % (WS_KV + 1024 * r))
        a("s_lshl_b32 s64, s%d, 8" % s_idx)
        a("s_add_u32 s64, s64, %d" % WS_Z)
        a("v_and_b32 v206, 15, v1")
        a("v_lshlrev_b32 v205, 4, v206")
        a("v_add_u32 v205, s64, v205")
        a("buffer_store_dwordx4 v[200:203], v205, s[92:95], 0 offen sc1")
        a("s_lshl_b32 s64, s%d, 7" % s_idx)
        a("s_add_u32 s64, s64, %d" % WS_FLAG)
        a("v_and_b32 v206, 7, v1")
        a("v_lshlrev_b32 v206, 10, v206")
        a("v_add_u32 v206, s64, v206")
        a("s_lshl_b32 s65, s%d, 8" % s_idx)
        a("s_add_u32 s65, s65, %d" % (WS_FLAG + 8192 - 1024))
        a("v_lshlrev_b32 v205, 7, v1")
        a("v_add_u32 v205, s65, v205")
        a("v_add_u32 v207, -8, v1")
        a("v_cmp_gt_u32 s[66:67], 2, v207")
        a("v_cndmask_b32 v206, v206, v205, s[66:67]")
        a("buffer_store_dword v200, v206, s[92:95], 0 offen sc1")
        a.label(l)
    return f


def zero_post(s_idx):
    def f(a, s_w):
        l = a.newlabel("Lzq")
        a("s_cmp_lt_u32 s%d, 8" % s_idx)
        a("s_cbranch_scc0 %s" % l)
        a("s_cmp_eq_u32 s%d, 3" % s_w)
        a("s_cbranch_scc0 %s" % l)
        a("s_waitcnt vmcnt(0)")
        a("s_load_dwordx2 s[88:89], s[0:1], 104")
        a("s_waitcnt lgkmcnt(0)")
        srd(a, 60, 88, 89, 256)
        a("s_lshl_b32 s64, s%d, 2" % s_idx)
        a("v_mov_b32 v245, s64")
        a("v_mov_b32 v244, 1")
        a("s_mov_b64 s[66:67], exec")
        a("s_mov_b64 exec, 1")
        a("buffer_store_dword v244, v245, s[60:63], 0 offen sc1")
        a("s_mov_b64 exec, s[66:67]")
        a.label(l)
    return f
```

```python
from asmdsl import Asm
from partA import cmul, cmul2, XEXP, KREG, CB, UBASE, UCH, UCP, XROW, YOFF, LOG2E, INV2PI

SCR = 17408
YX = UBASE + 4 * UCH
YST = YX + 32768
DX = UBASE + 4 * SCR
FLG = DX + 16384
WS_UT = 4 << 20
WS_TF = 65536 + 12288
TIN, TOUT = 0, 24576
STAMP_BASE = 70


def stamp(a, S, i):
    if S.get("stamps"):
        a("s_memtime s[%d:%d]" % (STAMP_BASE + 2 * i, STAMP_BASE + 2 * i + 1))


def emit_partA(a: Asm, S):
    ka, s_cg, s_i = S["ka"], S["cg"], S["i16"]
    sP = 16
    sD, sO, sU, sOS = 32, 34, 36, 40
    s_w, s_d, s_t0, s_t1, s_kreg, s_cnt = 44, 45, 46, 47, 48, 49
    s_k2, s_k4, s_c, s_h = 50, 51, 52, 53
    s_m0, s_m1 = 54, 56
    stamp(a, S, 0)
    a("s_load_dwordx16 s[%d:%d], s[%d:%d], 0" % (sP, sP + 15, ka, ka + 1))
    a("s_load_dwordx2 s[%d:%d], s[%d:%d], 64" % (sD, sD + 1, ka, ka + 1))
    a("s_load_dwordx2 s[%d:%d], s[%d:%d], 96" % (sO, sO + 1, ka, ka + 1))
    vLane, vT0, vT1, vT2, vT3 = 1, 3, 4, 5, 6
    vOffN, vOffD = 7, 8
    vU0, vU1, vU2 = 9, 10, 11
    vG = 12
    vIn = 14
    vLdt, vDsk = 26, 27
    vR = 28
    vDt, vDtL, vDtP = 46, 47, 48
    vXw, vXr, vD0 = 49, 50, 51
    vTouch = 20
    a("v_and_b32 v%d, 63, v0" % vLane)
    a("v_lshrrev_b32 v2, 6, v0")
    a("v_readfirstlane_b32 s%d, v2" % s_w)
    a("s_and_b32 s%d, s%d, 3" % (s_c, s_w))
    a("s_lshr_b32 s%d, s%d, 2" % (s_h, s_w))
    a("s_lshl_b32 s%d, s%d, 2" % (s_d, s_cg))
    a("s_add_u32 s%d, s%d, s%d" % (s_d, s_d, s_c))
    a("s_lshl_b32 s%d, s%d, 8" % (s_t0, s_d))
    a("s_lshl_b32 s%d, s%d, 7" % (s_t1, s_h))
    a("s_add_u32 s%d, s%d, s%d" % (s_t0, s_t0, s_t1))
    a("v_lshlrev_b32 v%d, 1, v%d" % (vOffN, vLane))
    a("v_add_u32 v%d, s%d, v%d" % (vOffN, s_t0, vOffN))
    a("s_lshl_b32 s%d, s%d, 1" % (s_t1, s_d))
    a("v_mov_b32 v%d, s%d" % (vOffD, s_t1))
    a("s_lshl_b32 s%d, s%d, 6" % (s_t0, s_c))
    a("v_add_u32 v%d, s%d, v%d" % (vG, s_t0, vLane))
    a("s_lshl_b32 s%d, s%d, 3" % (s_t0, s_cg))
    a("v_lshlrev_b32 v%d, 13, v%d" % (vU1, vG))
    a("v_add_u32 v%d, s%d, v%d" % (vU1, s_t0, vU1))
    a("v_add_u32 v%d, 0xfffffc00, v%d" % (vU0, vU1))
    a("v_add_u32 v%d, 4096, v%d" % (vU2, vU1))
    a("s_lshl_b32 s%d, s%d, 7" % (s_t1, s_i))
    a("s_and_b32 s%d, s%d, 1" % (s_cnt, s_c))
    a("s_lshl_b32 s%d, s%d, 6" % (s_cnt, s_cnt))
    a("s_add_u32 s%d, s%d, s%d" % (s_t1, s_t1, s_cnt))
    a("v_add_u32 v%d, s%d, v%d" % (vTouch, s_t1, vLane))
    a("v_lshlrev_b32 v%d, 10, v%d" % (vTouch, vTouch))
    a("v_add_u32 v%d, s%d, v%d" % (vTouch, s_t0, vTouch))
    a("s_waitcnt lgkmcnt(0)")
    if S.get("zero_pre"):
        S["zero_pre"](a, s_w)
    a("global_load_ushort v%d, v%d, s[%d:%d]" % (vLdt, vOffD, sP + 14, sP + 15))
    a("global_load_ushort v%d, v%d, s[%d:%d]" % (vDsk, vOffD, sD, sD + 1))
    for k in range(6):
        a("global_load_ushort v%d, v%d, s[%d:%d]" % (vIn + k, vOffN, sP + 2 + 2 * k, sP + 3 + 2 * k))
    a("s_mov_b32 s%d, s%d" % (sU, sP)); a("s_and_b32 s%d, s%d, 0xffff" % (sU + 1, sP + 1))
    a("s_mov_b32 s%d, 0x200000" % (sU + 2)); a("s_mov_b32 s%d, 0x20000" % (sU + 3))
    a("s_mov_b32 s%d, s%d" % (sOS, sO)); a("s_and_b32 s%d, s%d, 0xffff" % (sOS + 1, sO + 1))
    a("s_mov_b32 s%d, 0x400000" % (sOS + 2)); a("s_mov_b32 s%d, 0x20000" % (sOS + 3))

    def u_loads():
        a("buffer_load_dwordx2 v[%d:%d], v%d, s[%d:%d], 0 offen" % (vR, vR + 1, vU0, sU, sU + 3))
        for r in range(1, 9):
            vo = vU1 if r <= 4 else vU2
            a("buffer_load_dwordx2 v[%d:%d], v%d, s[%d:%d], 0 offen offset:%d" % (vR + 2 * r, vR + 2 * r + 1, vo, sU, sU + 3, ((r - 1) % 4) * 1024))

    TS = S.get("tstage")
    if TS:
        s_x = S["xcd"]
        sWSa, sDB = 8, 12
        vTa, vGd = 20, 21
        a("s_load_dwordx4 s[88:91], s[%d:%d], 104" % (ka, ka + 1))
        a("s_lshl_b32 s%d, s%d, 7" % (s_t0, s_i))
        a("s_lshl_b32 s%d, s%d, 4" % (s_t1, s_w))
        a("s_add_u32 s%d, s%d, s%d" % (s_t0, s_t0, s_t1))
        a("s_sub_u32 s%d, s%d, 8" % (s_t0, s_t0))
        a("v_lshrrev_b32 v%d, 3, v%d" % (vT0, vLane))
        a("v_add_u32 v%d, s%d, v%d" % (vT0, s_t0, vT0))
        a("v_lshlrev_b32 v%d, 10, v%d" % (vT0, vT0))
        a("v_and_b32 v%d, 7, v%d" % (vT1, vLane))
        a("v_lshlrev_b32 v%d, 4, v%d" % (vT1, vT1))
        a("s_lshl_b32 s%d, s%d, 7" % (s_t1, s_x))
        a("v_add3_u32 v%d, v%d, v%d, s%d" % (vTa, vT0, vT1, s_t1))
        a("s_mul_i32 s%d, s%d, 3072" % (s_t0, s_w))
        for k in range(3):
            a("s_add_u32 m0, s%d, %d" % (s_t0, TIN + 1024 * k))
            a("buffer_load_dwordx4 v%d, s[%d:%d], 0 offen lds" % (vTa, sU, sU + 3))
            if k < 2:
                a("v_add_u32 v%d, 8192, v%d" % (vTa, vTa))
        a("s_waitcnt lgkmcnt(0)")
        a("s_mov_b32 s%d, s90" % sWSa); a("s_and_b32 s%d, s91, 0xffff" % (sWSa + 1)); a("s_mov_b32 s%d, 0x10000000" % (sWSa + 2)); a("s_mov_b32 s%d, 0x20000" % (sWSa + 3))
        a("s_mov_b32 s%d, s88" % sDB); a("s_and_b32 s%d, s89, 0xffff" % (sDB + 1)); a("s_mov_b32 s%d, 256" % (sDB + 2)); a("s_mov_b32 s%d, 0x20000" % (sDB + 3))

    def touch():
        lt = a.newlabel("Lt")
        a("s_cmp_lt_u32 s%d, 2" % s_w)
        a("s_cbranch_scc0 %s" % lt)
        a("buffer_load_dword v%d, v%d, s[%d:%d], 0 offen" % (vTouch + 1, vTouch, sU, sU + 3))
        a.label(lt)
    if not S.get("touch_late") and not TS:
        touch()
    if S.get("u_early"):
        lue = a.newlabel("Lue")
        a("s_cmp_eq_u32 s%d, 1" % s_h)
        a("s_cbranch_scc0 %s" % lue)
        u_loads()
        a.label(lue)

    a("s_mul_i32 s%d, s%d, %d" % (s_kreg, s_c, KREG))
    a("s_mul_i32 s%d, s%d, %d" % (s_t0, s_c, SCR))
    a("s_add_u32 s%d, s%d, %d" % (s_t0, s_t0, UBASE))
    a("s_cmp_eq_u32 s%d, 1" % s_h)
    a("s_cselect_b32 s%d, s%d, s%d" % (s_kreg, s_t0, s_kreg))
    a("v_lshlrev_b32 v%d, 2, v%d" % (vXw, vLane))
    a("v_add_u32 v%d, s%d, v%d" % (vXw, s_kreg, vXw))
    a("v_and_b32 v%d, 31, v%d" % (vT0, vLane))
    a("v_mul_u32_u24 v%d, %d, v%d" % (vXr, XROW, vT0))
    a("v_lshrrev_b32 v%d, 5, v%d" % (vT1, vLane))
    a("v_lshlrev_b32 v%d, 4, v%d" % (vT1, vT1))
    a("v_add3_u32 v%d, v%d, v%d, s%d" % (vXr, vXr, vT1, s_kreg))
    vDX, vKw, vKr_, vUw = 224, 225, 226, 230
    vA, vB, vZ = 231, 232, 233
    vBc = 237
    s_kb = 68
    Y0, Y1 = 192, 208
    a("s_lshl_b32 s%d, s%d, 12" % (s_t0, s_c))
    a("s_add_u32 s%d, s%d, %d" % (s_t0, s_t0, DX))
    a("v_lshlrev_b32 v%d, 4, v%d" % (vDX, vLane))
    a("v_add_u32 v%d, s%d, v%d" % (vDX, s_t0, vDX))
    a("s_mul_i32 s%d, s%d, %d" % (s_kb, s_c, KREG))
    a("v_lshlrev_b32 v%d, 4, v%d" % (vKw, vLane))
    a("v_sub_u32 v%d, s%d, v%d" % (vKw, s_kb, vKw))
    a("v_add_u32 v%d, %d, v%d" % (vKw, 4 * 1020 - 3072, vKw))
    a("v_bfe_u32 v%d, v%d, 3, 2" % (vT1, vLane))
    for k in range(4):
        a("v_add_u32 v%d, %d, v%d" % (vT2, k, vT1))
        a("v_and_b32 v%d, 3, v%d" % (vT2, vT2))
        a("v_lshlrev_b32 v%d, 2, v%d" % (vT2, vT2))
        a("v_add_u32 v%d, v%d, v%d" % (vKr_ + k, vKw, vT2))
    a("v_bfe_u32 v%d, v%d, 3, 1" % (vT2, vLane))
    a("v_cmp_eq_u32 s[%d:%d], 1, v%d" % (s_m0, s_m0 + 1, vT2))
    a("v_bfe_u32 v%d, v%d, 4, 1" % (vT2, vLane))
    a("v_cmp_eq_u32 s[%d:%d], 1, v%d" % (s_m1, s_m1 + 1, vT2))
    a("v_and_b32 v%d, 1, v%d" % (vT1, vLane))
    a("v_cmp_eq_u32 s[58:59], 1, v%d" % vT1)
    a("v_lshrrev_b32 v%d, 3, v%d" % (vT0, vG))
    a("v_add_u32 v%d, v%d, v%d" % (vT0, vT0, vG))
    a("v_lshlrev_b32 v%d, 4, v%d" % (vUw, vT0))
    a("v_add_u32 v%d, %d, v%d" % (vUw, UBASE + 16, vUw))
    a("v_and_b32 v%d, 31, v%d" % (vT0, vLane))
    a("v_add_u32 v%d, 1, v%d" % (vT1, vT0))
    a("v_and_b32 v%d, 3, v%d" % (vT1, vT1))
    a("v_mul_u32_u24 v%d, %d, v%d" % (vT2, 4416 + 4, vT1))
    a("v_cmp_eq_u32 vcc, 0, v%d" % vT1)
    a("v_mov_b32 v%d, 16" % vT3)
    a("v_cndmask_b32 v%d, v%d, v%d, vcc" % (vT2, vT2, vT3))
    a("v_lshlrev_b32 v%d, 2, v%d" % (vT0, vT0))
    a("v_sub_u32 v%d, v%d, v%d" % (vT2, vT2, vT0))
    a("v_lshrrev_b32 v%d, 5, v%d" % (vT1, vLane))
    a("v_lshlrev_b32 v%d, 4, v%d" % (vT1, vT1))
    a("s_lshl_b32 s%d, s%d, 10" % (s_t0, s_h))
    a("s_add_u32 s%d, s%d, s%d" % (s_t0, s_t0, s_kb))
    a("v_add3_u32 v%d, v%d, v%d, s%d" % (vA, vT2, vT1, s_t0))
    a("v_add_u32 v%d, %d, v%d" % (vA, 4 * 543 - 2048, vA))
    a("v_and_b32 v%d, 1, v%d" % (vT0, vLane))
    a("v_mul_u32_u24 v%d, %d, v%d" % (vT0, UCP, vT0))
    a("s_mul_i32 s%d, s%d, %d" % (s_t0, s_c, UCH))
    a("s_add_u32 s%d, s%d, %d" % (s_t0, s_t0, UBASE + 16))
    a("v_add_u32 v%d, s%d, v%d" % (vT0, s_t0, vT0))
    a("v_add_u32 v%d, -16, v%d" % (vZ, vT0))
    for j in range(1, 4):
        a("v_add_u32 v%d, %d, v%d" % (vZ + j, -16 - 32 * j, vT0))
    a("v_bfe_u32 v%d, v%d, 1, 4" % (vT2, vLane))
    a("v_mul_u32_u24 v%d, 144, v%d" % (vT2, vT2))
    a("v_add3_u32 v%d, v%d, v%d, v%d" % (vB, vT0, vT2, vT1))
    a("s_mul_i32 s%d, s%d, %d" % (s_t0, s_h, 8 * 144))
    a("s_add_u32 s%d, s%d, %d" % (s_t0, s_t0, -16 * 135))
    a("v_add_u32 v%d, s%d, v%d" % (vB, s_t0, vB))
    for i in range(16):
        a("v_mov_b32 v%d, 0" % (Y0 + i)); a("v_mov_b32 v%d, 0" % (Y1 + i))
    Z0 = 240
    for r in range(4):
        a("v_mov_b32 v%d, 0" % (Z0 + r))
    vE0, vE1, vYw = 246, 247, 248
    a("s_lshl_b32 s%d, s%d, 12" % (s_t0, s_w))
    a("v_lshlrev_b32 v%d, 4, v%d" % (vE0, vLane))
    a("v_add_u32 v%d, s%d, v%d" % (vE0, s_t0, vE0))
    a("v_xor_b32 v%d, 0x4000, v%d" % (vE1, vE0))
    a("v_add_u32 v%d, %d, v%d" % (vE0, YX, vE0))
    a("v_add_u32 v%d, %d, v%d" % (vE1, YX, vE1))
    a("v_bfe_u32 v%d, v%d, 1, 4" % (vT0, vLane))
    a("v_mul_u32_u24 v%d, 528, v%d" % (vT0, vT0))
    a("v_and_b32 v%d, 1, v%d" % (vT1, vLane))
    a("v_lshlrev_b32 v%d, 3, v%d" % (vT1, vT1))
    a("v_lshrrev_b32 v%d, 5, v%d" % (vT2, vLane))
    a("v_lshlrev_b32 v%d, 6, v%d" % (vT2, vT2))
    a("v_add3_u32 v%d, v%d, v%d, v%d" % (vYw, vT0, vT1, vT2))
    a("s_lshl_b32 s%d, s%d, 1" % (s_t0, s_c))
    a("s_mul_i32 s%d, s%d, 8448" % (s_t1, s_h))
    a("s_add_u32 s%d, s%d, s%d" % (s_t0, s_t0, s_t1))
    a("s_add_u32 s%d, s%d, %d" % (s_t0, s_t0, YST))
    a("v_add_u32 v%d, s%d, v%d" % (vYw, s_t0, vYw))
    vRd, vOa = 249, 250
    vGp = 251
    if S.get("orot"):
        a("s_lshl_b32 s%d, s%d, 5" % (s_t0, s_i))
        a("v_add_u32 v%d, s%d, v0" % (vGp, s_t0))
        a("v_and_b32 v%d, 511, v%d" % (vGp, vGp))
    else:
        a("v_mov_b32 v%d, v0" % vGp)
    a("v_lshrrev_b32 v%d, 4, v%d" % (vT0, vGp))
    a("v_lshlrev_b32 v%d, 4, v%d" % (vT0, vT0))
    a("v_lshlrev_b32 v%d, 5, v%d" % (vT1, vGp))
    a("v_add3_u32 v%d, v%d, v%d, %d" % (vRd, vT0, vT1, 0))
    a("v_add_u32 v%d, %d, v%d" % (vRd, YST, vRd))
    a("v_lshlrev_b32 v%d, 13, v%d" % (vOa, vGp))
    a("s_lshl_b32 s%d, s%d, 3" % (s_t0, s_cg))
    a("v_add_u32 v%d, s%d, v%d" % (vOa, s_t0, vOa))
    if S.get("btouch"):
        s_x = S["xcd"]
        sBX, sBW = 60, 64
        vBT = 22
        lb = a.newlabel("Lbt")
        a("s_load_dwordx4 s[88:91], s[%d:%d], 72" % (ka, ka + 1))
        a("s_cmp_lt_u32 s%d, 4" % s_w)
        a("s_cbranch_scc0 %s" % lb)
        a("s_and_b32 s%d, s%d, 3" % (s_t0, s_x))
        a("s_lshl_b32 s%d, s%d, 9" % (s_t0, s_t0))
        a("s_lshl_b32 s%d, s%d, 5" % (s_t1, s_i))
        a("s_add_u32 s%d, s%d, s%d" % (s_t0, s_t0, s_t1))
        a("v_and_b32 v%d, 31, v%d" % (vBT, vLane))
        a("v_add_u32 v%d, s%d, v%d" % (vBT, s_t0, vBT))
        a("v_lshlrev_b32 v%d, 10, v%d" % (vBT, vBT))
        a("v_lshrrev_b32 v%d, 5, v%d" % (vT0, vLane))
        a("s_and_b32 s%d, s%d, 1" % (s_t1, s_w))
        a("s_lshl_b32 s%d, s%d, 1" % (s_t1, s_t1))
        a("v_add_u32 v%d, s%d, v%d" % (vT0, s_t1, vT0))
        a("v_lshlrev_b32 v%d, 8, v%d" % (vT0, vT0))
        a("v_add3_u32 v%d, v%d, v%d, %d" % (vBT, vBT, vT0, 0))
        a("v_add_u32 v%d, 128, v%d" % (vBT, vBT))
        a("s_lshr_b32 s%d, s%d, 2" % (s_t0, s_i))
        a("s_lshl_b32 s%d, s%d, 1" % (s_t0, s_t0))
        a("s_add_u32 s%d, s%d, 1" % (s_t0, s_t0))
        a("s_lshl_b32 s%d, s%d, 6" % (s_t0, s_t0))
        a("v_add_u32 v%d, s%d, v%d" % (vT1, s_t0, vLane))
        a("v_mul_u32_u24 v%d, 3072, v%d" % (vT1, vT1))
        a("s_lshr_b32 s%d, s%d, 2" % (s_t0, s_x))
        a("s_lshl_b32 s%d, s%d, 2" % (s_t0, s_t0))
        a("s_and_b32 s%d, s%d, 3" % (s_t1, s_i))
        a("s_add_u32 s%d, s%d, s%d" % (s_t0, s_t0, s_t1))
        a("s_lshl_b32 s%d, s%d, 7" % (s_t0, s_t0))
        a("s_and_b32 s%d, s%d, 1" % (s_t1, s_w))
        a("s_add_u32 s%d, s%d, 1" % (s_t1, s_t1))
        a("s_lshl_b32 s%d, s%d, 10" % (s_t1, s_t1))
        a("s_add_u32 s%d, s%d, s%d" % (s_t0, s_t0, s_t1))
        a("v_add_u32 v%d, s%d, v%d" % (vT1, s_t0, vT1))
        a("s_waitcnt lgkmcnt(0)")
        a("s_mov_b32 s%d, s88" % sBX); a("s_and_b32 s%d, s89, 0xffff" % (sBX + 1)); a("s_mov_b32 s%d, 0x200000" % (sBX + 2)); a("s_mov_b32 s%d, 0x20000" % (sBX + 3))
        a("s_mov_b32 s%d, s90" % sBW); a("s_and_b32 s%d, s91, 0xffff" % (sBW + 1)); a("s_mov_b32 s%d, 0x180000" % (sBW + 2)); a("s_mov_b32 s%d, 0x20000" % (sBW + 3))
        lb2 = a.newlabel("Lbt")
        a("s_cmp_lt_u32 s%d, 2" % s_w)
        a("s_cbranch_scc0 %s" % lb2)
        a("buffer_load_dword v%d, v%d, s[%d:%d], 0 offen" % (vBT + 1, vBT, sBX, sBX + 3))
        a("s_branch %s" % lb)
        a.label(lb2)
        a("buffer_load_dword v%d, v%d, s[%d:%d], 0 offen" % (vBT + 1, vT1, sBW, sBW + 3))
        a.label(lb)

    vFl = 252
    a("v_and_b32 v%d, 7, v%d" % (vFl, vLane))
    a("v_lshlrev_b32 v%d, 2, v%d" % (vFl, vFl))
    a("v_add_u32 v%d, %d, v%d" % (vFl, FLG, vFl))
    a("ds_write_b32 v%d, v%d" % (vFl, Z0))
    a("s_waitcnt lgkmcnt(0)")
    a("s_barrier")
    lw1, lw2 = a.newlabel("Lw"), a.newlabel("Lw")
    nb = 1 if S.get("btouch") else 0
    nt = 0 if (S.get("touch_late") or TS) else 1
    lw3 = a.newlabel("Lw")
    a("s_cmp_lt_u32 s%d, 2" % s_w)
    a("s_cbranch_scc0 %s" % lw1)
    a("s_waitcnt vmcnt(%d)" % (nb + nt))
    a("s_branch %s" % lw2)
    a.label(lw1)
    a("s_cmp_lt_u32 s%d, 4" % s_w)
    a("s_cbranch_scc0 %s" % lw3)
    a("s_waitcnt vmcnt(%d)" % nb)
    a("s_branch %s" % lw2)
    a.label(lw3)
    a("s_waitcnt vmcnt(%d)" % (9 if S.get("u_early") else 0))
    a.label(lw2)
    if S.get("touch_late") and not TS:
        touch()
    if S.get("btouch2"):
        s_x = S["xcd"]
        l2 = a.newlabel("Lb2")
        a("s_load_dwordx4 s[88:91], s[%d:%d], 80" % (ka, ka + 1))
        a("s_cmp_ge_u32 s%d, 2" % s_w)
        a("s_cbranch_scc0 %s" % l2)
        a("s_cmp_lt_u32 s%d, 6" % s_w)
        a("s_cbranch_scc0 %s" % l2)
        a("s_lshl_b32 s%d, s%d, 7" % (s_t0, s_i))
        a("s_and_b32 s%d, s%d, 1" % (s_t1, s_w))
        a("s_lshl_b32 s%d, s%d, 6" % (s_t1, s_t1))
        a("s_add_u32 s%d, s%d, s%d" % (s_t0, s_t0, s_t1))
        a("v_add_u32 v%d, s%d, v%d" % (vT0, s_t0, vLane))
        a("v_lshrrev_b32 v%d, 2, v%d" % (vT1, vT0))
        a("v_and_b32 v%d, 3, v%d" % (vT0, vT0))
        a("s_lshr_b32 s%d, s%d, 2" % (s_t0, s_x))
        a("s_lshl_b32 s%d, s%d, 2" % (s_t0, s_t0))
        a("v_add_u32 v%d, s%d, v%d" % (vT0, s_t0, vT0))
        a("v_lshlrev_b32 v%d, 7, v%d" % (vT0, vT0))
        a("v_mul_u32_u24 v%d, 3072, v%d" % (vT2, vT1))
        a("v_add_u32 v%d, v%d, v%d" % (vT2, vT2, vT0))
        a("v_lshlrev_b32 v%d, 10, v%d" % (vT3, vT1))
        a("v_add_u32 v%d, v%d, v%d" % (vT3, vT3, vT0))
        a("s_waitcnt lgkmcnt(0)")
        a("s_mov_b32 s60, s88"); a("s_and_b32 s61, s89, 0xffff"); a("s_mov_b32 s62, 0x180000"); a("s_mov_b32 s63, 0x20000")
        a("s_mov_b32 s64, s90"); a("s_and_b32 s65, s91, 0xffff"); a("s_mov_b32 s66, 0x80000"); a("s_mov_b32 s67, 0x20000")
        l3 = a.newlabel("Lb3")
        a("s_cmp_lt_u32 s%d, 4" % s_w)
        a("s_cbranch_scc0 %s" % l3)
        a("buffer_load_dword v23, v%d, s[60:63], 0 offen" % vT2)
        a("s_branch %s" % l2)
        a.label(l3)
        a("buffer_load_dword v23, v%d, s[64:67], 0 offen" % vT3)
        a.label(l2)
    if S.get("zero_post"):
        S["zero_post"](a, s_w)
    stamp(a, S, 1)
    if TS:
        TR = 100
        vTr, vTw = 96, 97
        a("v_bfe_u32 v%d, v%d, 4, 1" % (vT0, vLane))
        a("v_lshlrev_b32 v%d, 3, v%d" % (vT0, vT0))
        a("v_bfe_u32 v%d, v%d, 2, 2" % (vT1, vLane))
        a("v_add_u32 v%d, v%d, v%d" % (vT0, vT0, vT1))
        a("v_lshlrev_b32 v%d, 7, v%d" % (vTr, vT0))
        a("v_lshrrev_b32 v%d, 5, v%d" % (vT1, vLane))
        a("v_lshlrev_b32 v%d, 5, v%d" % (vT2, vT1))
        a("v_and_b32 v%d, 3, v%d" % (vT3, vLane))
        a("v_lshlrev_b32 v%d, 3, v%d" % (vT3, vT3))
        a("v_add3_u32 v%d, v%d, v%d, v%d" % (vTr, vTr, vT2, vT3))
        a("s_mul_i32 s%d, s%d, 3072" % (s_t0, s_w))
        a("v_add_u32 v%d, s%d, v%d" % (vTr, s_t0, vTr))
        for ver in range(2):
            for r in range(2):
                R_ = TR + 4 * (2 * ver + r)
                for x in range(2):
                    a("ds_read_b64_tr_b16 v[%d:%d], v%d offset:%d" % (R_ + 2 * x, R_ + 2 * x + 1, vTr, TIN + (7 + ver + 4 * x) * 128 + 64 * r))
        a("v_lshlrev_b32 v%d, 4, v%d" % (vT1, vT1))
        a("v_and_b32 v%d, 15, v%d" % (vT2, vLane))
        a("v_add_u32 v%d, v%d, v%d" % (vT1, vT1, vT2))
        a("v_mul_u32_u24 v%d, 272, v%d" % (vTw, vT1))
        a("v_bfe_u32 v%d, v%d, 4, 1" % (vT0, vLane))
        a("v_lshlrev_b32 v%d, 4, v%d" % (vT0, vT0))
        a("s_lshl_b32 s%d, s%d, 5" % (s_t0, s_w))
        a("s_add_u32 s%d, s%d, %d" % (s_t0, s_t0, TOUT))
        a("v_add3_u32 v%d, v%d, v%d, s%d" % (vTw, vTw, vT0, s_t0))
        for ver in range(2):
            for r in range(2):
                R_ = TR + 4 * (2 * ver + r)
                kk_ = 2 * ver + r
                a("s_waitcnt lgkmcnt(%d)" % ((6 - 2 * kk_) + kk_))
                a("ds_write_b128 v%d, v[%d:%d] offset:%d" % (vTw, R_, R_ + 3, ver * 17408 + r * 32 * 272))
        a("v_lshrrev_b32 v%d, 4, v%d" % (vT0, vLane))
        a("s_lshl_b32 s%d, s%d, 3" % (s_t0, s_w))
        a("v_add_u32 v%d, s%d, v%d" % (vT0, s_t0, vT0))
        a("v_mul_u32_u24 v%d, 272, v%d" % (vTr, vT0))
        a("v_and_b32 v%d, 15, v%d" % (vT1, vLane))
        a("v_lshlrev_b32 v%d, 4, v%d" % (vT1, vT1))
        a("v_add_u32 v%d, v%d, v%d" % (vTr, vTr, vT1))
        a("v_add_u32 v%d, %d, v%d" % (vTr, TOUT, vTr))
        a("s_lshl_b32 s%d, s%d, 6" % (s_t0, s_x))
        a("v_add_u32 v%d, s%d, v%d" % (vT0, s_t0, vT0))
        a("v_lshlrev_b32 v%d, 12, v%d" % (vTw + 1, vT0))
        a("s_lshl_b32 s%d, s%d, 8" % (s_t0, s_i))
        a("s_add_u32 s%d, s%d, %d" % (s_t0, s_t0, WS_UT))
        a("v_add3_u32 v%d, v%d, v%d, s%d" % (vTw + 1, vTw + 1, vT1, s_t0))
        a("s_waitcnt lgkmcnt(0)")
        a("s_barrier")
        for k in range(4):
            ver, kk = k >> 1, k & 1
            a("ds_read_b128 v[%d:%d], v%d offset:%d" % (TR + 4 * k, TR + 4 * k + 3, vTr, ver * 17408 + kk * 4 * 272))
        for k in range(4):
            ver, kk = k >> 1, k & 1
            a("s_mov_b32 s%d, %d" % (s_t0, ver * 0x200000 + kk * 4 * 4096))
            a("s_waitcnt lgkmcnt(%d)" % (3 - k))
            a("buffer_store_dwordx4 v[%d:%d], v%d, s[%d:%d], s%d offen sc1" % (TR + 4 * k, TR + 4 * k + 3, vTw + 1, sWSa, sWSa + 3, s_t0))
        a("s_lshl_b32 s%d, s%d, 2" % (s_t0, s_x))
        a("v_mov_b32 v%d, s%d" % (vGd + 1, s_t0))
        a("buffer_load_dword v%d, v%d, s[%d:%d], 0 offen sc1" % (vGd, vGd + 1, sDB, sDB + 3))
        a("s_barrier")
    a("v_lshlrev_b32 v%d, 16, v%d" % (vLdt, vLdt))
    a("v_lshlrev_b32 v%d, 16, v%d" % (vDsk, vDsk))
    a("v_mul_f32 v%d, 0x%x, v%d" % (vDt, LOG2E, vLdt))
    a("v_exp_f32 v%d, v%d" % (vDt, vDt))
    for k in range(6):
        a("v_lshlrev_b32 v%d, 16, v%d" % (vIn + k, vIn + k))
    a("v_cvt_pk_bf16_f32 v%d, v%d, v%d" % (vDt, vDt, vDt))
    a("v_and_b32 v%d, 0xffff0000, v%d" % (vDt, vDt))
    a("v_mul_f32 v%d, 0x%x, v%d" % (vDtL, LOG2E, vDt))
    a("v_mul_f32 v%d, 0x%x, v%d" % (vDtP, INV2PI, vDt))
    a("v_cmp_eq_u32 vcc, 0, v%d" % vLane)
    a("v_cndmask_b32 v%d, 0, v%d, vcc" % (vD0, vDsk))
    real_a = a
    class _L:
        def __init__(self): self.l = []
        def __call__(self, t):
            for x in t.split("\n"):
                x = x.strip()
                if x: self.l.append(x)
    a = _L()
    c0 = 52
    Z1, Z2, Z4, Z8, Z16, Z32, Z64, Z128, Z256, W = [c0 + 2 * i for i in range(10)]
    wk = [72 + 2 * i for i in range(12)]
    tc = [96, 97, 98, 99]
    FA, FB = 100, 132
    DK = 164
    tci = [0]

    def put(P, rows, isX):
        t = tc[tci[0] % 4]; tci[0] += 1
        if isX:
            a("v_cvt_pk_bf16_f32 v%d, v%d, -v%d" % (t, P, P + 1))
        else:
            a("v_cvt_pk_bf16_f32 v%d, v%d, v%d" % (t, P, P + 1))
        for r in rows:
            a("ds_write_b32 v%d, v%d offset:%d" % (vXw, t, r * XROW + (0 if isX else YOFF)))

    I = vIn
    Are, Aim, Bre, Cre = I, I + 1, I + 2, I + 4
    m_, ph = wk[0], wk[0] + 1
    a("v_mul_f32 v%d, v%d, v%d" % (m_, Are, vDtL))
    a("v_mul_f32 v%d, v%d, v%d" % (ph, Aim, vDtP))
    a("v_exp_f32 v%d, v%d" % (m_, m_))
    a("v_rndne_f32 v%d, v%d" % (wk[2], ph))
    a("v_sub_f32 v%d, v%d, v%d" % (ph, ph, wk[2]))
    cmul(a, wk[1], Cre, Bre)
    a("v_cos_f32 v%d, v%d" % (Z1, ph))
    a("v_sin_f32 v%d, v%d" % (Z1 + 1, ph))
    a("v_mul_f32 v%d, v%d, v%d" % (W, wk[1], vDt))
    a("v_mul_f32 v%d, v%d, v%d" % (W + 1, wk[1] + 1, vDt))
    a("v_mul_f32 v%d, v%d, v%d" % (Z1, Z1, m_))
    a("v_mul_f32 v%d, v%d, v%d" % (Z1 + 1, Z1 + 1, m_))
    put(W, XEXP[0], True)
    cmul2(a, [(Z2, Z1, Z1), (wk[1], W, Z1)])
    put(wk[1], XEXP[1], True)
    cmul2(a, [(Z4, Z2, Z2), (wk[2], W, Z2), (wk[3], wk[1], Z2)])
    put(wk[2], XEXP[2], True); put(wk[3], XEXP[3], True)
    cmul2(a, [(Z8, Z4, Z4), (wk[4], W, Z4), (wk[5], wk[1], Z4), (wk[6], wk[2], Z4), (wk[7], wk[3], Z4)])
    for k_, e_ in ((4, 4), (5, 5), (6, 6), (7, 7)):
        put(wk[k_], XEXP[e_], True)
    cmul(a, Z16, Z8, Z8)
    a("v_mov_b32 v%d, 0x00003f80" % tc[0])
    tci[0] = 1
    a("ds_write_b32 v%d, v%d offset:%d" % (vXw, tc[0], YOFF))
    put(Z8, [1], False)
    cmul2(a, [(Z32, Z16, Z16), (wk[3], Z8, Z16)])
    put(Z16, [2], False); put(wk[3], [3], False)
    cmul2(a, [(Z64, Z32, Z32), (wk[1], Z8, Z32), (wk[2], Z16, Z32), (wk[7], wk[3], Z32)])
    put(Z32, [4], False); put(wk[1], [5], False); put(wk[2], [6], False); put(wk[7], [7], False)
    cur = [Z32, wk[1], wk[2], wk[7]]
    setA = [wk[3], wk[4], wk[5], wk[6]]
    setB = [wk[8], wk[9], wk[10], wk[11]]
    nxt = setB
    for j0 in range(8, 32, 4):
        extra = []
        if j0 == 8:
            extra = [(Z128, Z64, Z64)]
        elif j0 == 12:
            extra = [(Z256, Z128, Z128)]
        cmul2(a, [(nxt[k], cur[k], Z32) for k in range(4)] + extra)
        for k in range(4):
            put(nxt[k], [j0 + k], False)
        cur = nxt
        nxt = setA if cur is setB else setB
    G = wk[0]; Gn = wk[1]
    cmul(a, G, W, Z256)
    put(G, XEXP[256], True)
    cmul2(a, [(wk[2], G, Z2), (wk[3], G, Z4), (wk[4], G, Z8), (Gn, G, Z256)])
    put(wk[2], XEXP[258], True); put(wk[3], XEXP[260], True); put(wk[4], XEXP[264], True)
    cmul2(a, [(wk[5], wk[2], Z4), (wk[6], Gn, Z4), (wk[7], Gn, Z8), (G, Gn, Z256)])
    put(wk[5], XEXP[262], True); put(Gn, XEXP[512], True); put(wk[6], XEXP[516], True); put(wk[7], XEXP[520], True)
    cmul2(a, [(wk[2], G, Z4), (wk[3], G, Z8), (Gn, G, Z256)])
    put(G, XEXP[768], True); put(wk[2], XEXP[772], True); put(wk[3], XEXP[776], True)
    cmul2(a, [(wk[4], Gn, Z8), (G, Gn, Z256)])
    put(Gn, XEXP[1024], True); put(wk[4], XEXP[1032], True)
    cmul2(a, [(wk[5], G, Z8), (Gn, G, Z256)])
    put(G, XEXP[1280], True); put(wk[5], XEXP[1288], True)
    cmul2(a, [(wk[6], Gn, Z8), (G, Gn, Z256)])
    put(Gn, XEXP[1536], True); put(wk[6], XEXP[1544], True)
    cmul(a, wk[7], G, Z8)
    put(G, XEXP[1792], True); put(wk[7], XEXP[1800], True)
    kg_lines = a.l
    a = real_a
    for li, x in enumerate(kg_lines):
        a(x)
        if TS and li == len(kg_lines) // 3:
            a("s_waitcnt vmcnt(0)")
            a("s_barrier")
            ltf, ltg, ltgo = a.newlabel("Ltf"), a.newlabel("Ltg"), a.newlabel("Ltgo")
            a("s_cmp_eq_u32 s%d, 0" % s_w)
            a("s_cbranch_scc0 %s" % ltf)
            a("v_cmp_ne_u32 vcc, 1, v%d" % vGd)
            a("s_cbranch_vccz %s" % ltgo)
            a.label(ltg)
            a("buffer_load_dword v%d, v%d, s[%d:%d], 0 offen sc1" % (vGd, vGd + 1, sDB, sDB + 3))
            a("s_waitcnt vmcnt(0)")
            a("v_cmp_ne_u32 vcc, 1, v%d" % vGd)
            a("s_cbranch_vccnz %s" % ltg)
            a.label(ltgo)
            a("s_lshl_b32 s%d, s%d, 7" % (s_t0, S["xcd"]))
            a("s_add_u32 s%d, s%d, %d" % (s_t0, s_t0, WS_TF))
            a("v_mov_b32 v%d, s%d" % (vGd + 1, s_t0))
            a("v_mov_b32 v%d, 1" % vGd)
            a("s_mov_b64 s[88:89], exec")
            a("s_mov_b64 exec, 1")
            a("buffer_atomic_add v%d, v%d, s[%d:%d], 0 offen" % (vGd, vGd + 1, sWSa, sWSa + 3))
            a("s_mov_b64 exec, s[88:89]")
            a.label(ltf)
    a("s_waitcnt lgkmcnt(0)")
    for m in range(7):
        a("ds_read_b128 v[%d:%d], v%d offset:%d" % (FA + 4 * m, FA + 4 * m + 3, vXr, 32 * m))
        a("ds_read_b128 v[%d:%d], v%d offset:%d" % (FB + 4 * m, FB + 4 * m + 3, vXr, YOFF + 32 * m))
    for m in range(8):
        if m == 1:
            a("ds_read_b128 v[%d:%d], v%d offset:%d" % (FA + 28, FA + 31, vXr, 32 * 7))
            a("ds_read_b128 v[%d:%d], v%d offset:%d" % (FB + 28, FB + 31, vXr, YOFF + 32 * 7))
        a("s_waitcnt lgkmcnt(%d)" % (12 if m == 0 else 14 - 2 * m))
        c_ = "0" if m == 0 else "v[%d:%d]" % (DK, DK + 15)
        a("v_mfma_f32_32x32x16_bf16 v[%d:%d], v[%d:%d], v[%d:%d], %s" % (DK, DK + 15, FA + 4 * m, FA + 4 * m + 3, FB + 4 * m, FB + 4 * m + 3, c_))
    stamp(a, S, 2)
    stamp(a, S, 3)
    lH1, lJb = a.newlabel("LAh"), a.newlabel("LAh")
    d = DK
    E = 112
    PK = 112
    TT, RR, vM = 128, 132, 144
    vOne, vFa = 253, 254
    cv = lambda dst, lo, hi: a("v_cvt_pk_bf16_f32 v%d, v%d, v%d" % (dst, lo, hi))

    def kwrite(s_, P):
        a("ds_write_b128 v%d, v[%d:%d] offset:%d" % (vKw, P, P + 3, 16 * CB[0] + 1024 * (3 - s_)))
        for k in range(4):
            a("v_cndmask_b32 v%d, v%d, v%d, s[%d:%d]" % (TT + k, P + k, P + ((k + 1) & 3), s_m0, s_m0 + 1))
        R = RR + 4 * (s_ & 1)
        for k in range(4):
            a("v_cndmask_b32 v%d, v%d, v%d, s[%d:%d]" % (R + k, TT + k, TT + ((k + 2) & 3), s_m1, s_m1 + 1))
        for e in range(1, 4):
            for k in range(4):
                a("ds_write_b32 v%d, v%d offset:%d" % (vKr_ + k, R + k, 16 * CB[e] + 4 * e + 1024 * (3 - s_)))

    a("v_mov_b32 v%d, 1" % vOne)
    a("s_lshl_b32 s%d, s%d, 2" % (s_t0, s_c))
    a("s_add_u32 s%d, s%d, %d" % (s_t0, s_t0, FLG))
    a("v_mov_b32 v%d, s%d" % (vFa, s_t0))
    a("s_cmp_eq_u32 s%d, 1" % s_h)
    a("s_cbranch_scc1 %s" % lH1)
    for q in range(4):
        a("ds_write_b128 v%d, v[%d:%d] offset:%d" % (vDX, d + 4 * q, d + 4 * q + 3, 1024 * q))
    a("s_waitcnt lgkmcnt(0)")
    a("ds_write_b32 v%d, v%d" % (vFa, vOne))
    if not TS:
        u_loads()
        PU = 112
        a("s_mov_b32 s%d, 0x05040100" % s_t0)
        a("s_mov_b32 s%d, 0x07060302" % s_t1)
        a("v_mov_b32 v%d, %d" % (vT0, FLG + 16))
        lsp = a.newlabel("Lsp")
        a.label(lsp)
        a("ds_read_b128 v[144:147], v%d" % vT0)
        a("s_waitcnt lgkmcnt(0)")
        a("v_and_b32 v144, v144, v145")
        a("v_and_b32 v146, v146, v147")
        a("v_and_b32 v144, v144, v146")
        a("v_readfirstlane_b32 s%d, v144" % s_cnt)
        a("s_cmp_eq_u32 s%d, 1" % s_cnt)
        a("s_cbranch_scc0 %s" % lsp)
        a("v_and_b32 v%d, 7, v%d" % (vT0, vLane))
        a("v_mul_u32_u24 v%d, %d, v%d" % (vT0, UCP, vT0))
        a("v_add_u32 v%d, %d, v%d" % (vT0, UBASE, vT0))
        a("ds_write_b128 v%d, v[240:243]" % vT0)
        a("s_waitcnt vmcnt(0)")
        stamp(a, S, 4)
        for c in range(4):
            for rho in range(2):
                P = PU + 4 * (2 * c + rho)
                sel = s_t0 if (c & 1) == 0 else s_t1
                for j in range(4):
                    r = rho + 2 * j
                    a("v_perm_b32 v%d, v%d, v%d, s%d" % (P + j, vR + 2 * (r + 1) + (c >> 1), vR + 2 * r + (c >> 1), sel))
                a("ds_write_b128 v%d, v[%d:%d] offset:%d" % (vUw, P, P + 3, c * UCH + rho * UCP))
    else:
        a("s_lshl_b32 s%d, s%d, 7" % (s_t0, S["xcd"]))
        a("s_add_u32 s%d, s%d, %d" % (s_t0, s_t0, WS_TF))
        a("v_mov_b32 v144, s%d" % s_t0)
        a("v_mul_u32_u24 v145, 57, v%d" % vLane)
        a("v_lshrrev_b32 v145, 9, v145")
        a("v_sub_u32 v145, v%d, v145" % vLane)
        a("v_lshlrev_b32 v145, 4, v145")
        a("s_lshl_b32 s%d, s%d, 12" % (s_t1, s_d))
        a("s_add_u32 s%d, s%d, %d" % (s_t1, s_t1, WS_UT))
        a("v_add_u32 v145, s%d, v145" % s_t1)
        lpo = a.newlabel("Lpo")
        a.label(lpo)
        a("buffer_load_dword v146, v144, s[8:11], 0 offen sc1")
        a("s_waitcnt vmcnt(0)")
        a("v_readfirstlane_b32 s%d, v146" % s_cnt)
        a("s_cmp_eq_u32 s%d, 16" % s_cnt)
        a("s_cbranch_scc0 %s" % lpo)
        a("v_mov_b32 v%d, %d" % (vT0, FLG + 16))
        lsp2 = a.newlabel("Lsp")
        a.label(lsp2)
        a("ds_read_b128 v[148:151], v%d" % vT0)
        a("s_waitcnt lgkmcnt(0)")
        a("v_and_b32 v148, v148, v149")
        a("v_and_b32 v150, v150, v151")
        a("v_and_b32 v148, v148, v150")
        a("v_readfirstlane_b32 s%d, v148" % s_cnt)
        a("s_cmp_eq_u32 s%d, 1" % s_cnt)
        a("s_cbranch_scc0 %s" % lsp2)
        a("s_mul_i32 s%d, s%d, %d" % (s_t0, s_c, UCH))
        a("s_add_u32 s%d, s%d, %d" % (s_t0, s_t0, UBASE + 16))
        a("s_mov_b64 s[88:89], exec")
        for k in range(5):
            if k == 0:
                a("s_mov_b32 exec_lo, -1"); a("s_mov_b32 exec_hi, 0x7fffffff")
            if k == 4:
                a("s_mov_b32 exec_lo, -1"); a("s_mov_b32 exec_hi, 7")
            for rho in range(2):
                a("s_add_u32 m0, s%d, %d" % (s_t0, rho * UCP + 1008 * k))
                a("s_mov_b32 s%d, %d" % (s_t1, rho * 0x200000 + 896 * k))
                a("buffer_load_dwordx4 v145, s[8:11], s%d offen sc1 lds" % s_t1)
        a("s_mov_b64 exec, s[88:89]")
        a("v_and_b32 v%d, 7, v%d" % (vT0, vLane))
        a("v_mul_u32_u24 v%d, %d, v%d" % (vT0, UCP, vT0))
        a("v_add_u32 v%d, %d, v%d" % (vT0, UBASE, vT0))
        a("ds_write_b128 v%d, v[240:243]" % vT0)
        a("s_waitcnt vmcnt(0)")
        stamp(a, S, 4)
    a("s_branch %s" % lJb)
    a.label(lH1)
    a("ds_write_b32 v%d, v%d offset:16" % (vFa, vOne))
    lsq = a.newlabel("Lsq")
    a.label(lsq)
    a("ds_read_b32 v144, v%d" % vFa)
    a("s_waitcnt lgkmcnt(0)")
    a("v_readfirstlane_b32 s%d, v144" % s_cnt)
    a("s_cmp_eq_u32 s%d, 1" % s_cnt)
    a("s_cbranch_scc0 %s" % lsq)
    stamp(a, S, 4)
    for q in range(4):
        a("ds_read_b128 v[%d:%d], v%d offset:%d" % (E + 4 * q, E + 4 * q + 3, vDX, 1024 * q))
    a("v_lshlrev_b32 v%d, 2, v%d" % (vT0, vLane))
    a("v_add_u32 v%d, s%d, v%d" % (vT0, s_kb, vT0))
    for e in range(4):
        a("ds_write_b32 v%d, v%d offset:%d" % (vT0, Z0, 16 * CB[e] + 4 * (1024 + e)))
    a("s_waitcnt lgkmcnt(4)")
    for i in range(15):
        a("v_add_f32 v%d, v%d, v%d" % (d + i, d + i, E + i))
    a("v_add_f32 v%d, v%d, v%d" % (d, d, vD0))
    cv(PK + 0, d + 7, d + 6); cv(PK + 1, d + 5, d + 4); cv(PK + 2, d + 3, d + 2); cv(PK + 3, d + 1, d + 0)
    cv(PK + 4, d + 10, d + 10); cv(PK + 5, d + 9, d + 9); cv(PK + 6, d + 9, d + 8); cv(PK + 7, d + 8, d + 8)
    for s_, (v0_, v1_) in ((2, (d + 11, d + 12)), (3, (d + 13, d + 14))):
        P = PK + 4 * s_
        a("v_cndmask_b32 v%d, v%d, v%d, s[58:59]" % (vM, v0_, v1_))
        cv(P + 0, v1_, v1_); cv(P + 1, v1_, vM); cv(P + 2, v0_, v0_); cv(P + 3, v0_, v0_)
    for s_ in range(4):
        kwrite(s_, PK + 4 * s_)
    a.label(lJb)
    stamp(a, S, 5)
    FR = 112
    a("s_waitcnt lgkmcnt(0)")
    a("s_barrier")
    stamp(a, S, 6)
    if S.get("otouch"):
        lo = a.newlabel("Lot")
        a("s_cmp_lt_u32 s%d, 2" % s_w)
        a("s_cbranch_scc0 %s" % lo)
        a("s_lshl_b32 s%d, s%d, 7" % (s_t0, s_i))
        a("s_lshl_b32 s%d, s%d, 6" % (s_t1, s_w))
        a("s_add_u32 s%d, s%d, s%d" % (s_t0, s_t0, s_t1))
        a("v_add_u32 v%d, s%d, v%d" % (vT0, s_t0, vLane))
        a("v_lshlrev_b32 v%d, 11, v%d" % (vT0, vT0))
        a("s_lshl_b32 s%d, s%d, 3" % (s_t0, s_cg))
        a("v_add_u32 v%d, s%d, v%d" % (vT0, s_t0, vT0))
        a("buffer_load_dword v%d, v%d, s[%d:%d], 0 offen" % (vT1, vT0, sOS, sOS + 3))
        a.label(lo)

    def reads(j, buf):
        F = FR + 16 * buf
        a("v_max_i32 v%d, v%d, v%d" % (vBc + (j & 1), vB, vZ + j))
        a("ds_read_b128 v[%d:%d], v%d offset:%d" % (F, F + 3, vA, 2048 + 32 * j))
        a("ds_read_b128 v[%d:%d], v%d offset:%d" % (F + 8, F + 11, vBc + (j & 1), 32 * j))
        a("ds_read_b128 v[%d:%d], v%d offset:%d" % (F + 12, F + 15, vB, 2304 + 32 * j))
        a("ds_read_b128 v[%d:%d], v%d offset:%d" % (F + 4, F + 7, vA, 32 * j))

    if S.get("cprio"):
        lpr = a.newlabel("Lpr")
        a("s_cmp_eq_u32 s%d, 1" % s_h)
        a("s_cbranch_scc0 %s" % lpr)
        a("s_setprio 1")
        a.label(lpr)
    reads(0, 0); reads(1, 1)
    a("s_mov_b32 s%d, 0" % s_cnt)
    lp = a.newlabel("Lconv")
    a.label(lp)
    for j in range(4):
        if j < 2:
            reads(j + 2, j + 2)
        else:
            if j == 2:
                a("v_add_u32 v%d, 128, v%d" % (vA, vA))
                a("v_add_u32 v%d, 144, v%d" % (vB, vB))
            reads(j - 2, j - 2)
        a("s_waitcnt lgkmcnt(8)")
        F = FR + 16 * j
        m0 = "v_mfma_f32_32x32x16_bf16 v[%d:%d], v[%d:%d], v[%d:%d], v[%d:%d]" % (Y0, Y0 + 15, F, F + 3, F + 8, F + 11, Y0, Y0 + 15)
        m1 = "v_mfma_f32_32x32x16_bf16 v[%d:%d], v[%d:%d], v[%d:%d], v[%d:%d]" % (Y1, Y1 + 15, F, F + 3, F + 12, F + 15, Y1, Y1 + 15)
        m2 = "v_mfma_f32_32x32x16_bf16 v[%d:%d], v[%d:%d], v[%d:%d], v[%d:%d]" % (Y1, Y1 + 15, F + 4, F + 7, F + 8, F + 11, Y1, Y1 + 15)
        for x in ((m1, m0, m2) if S.get("cswap") else (m0, m1, m2)):
            a(x)
    a("s_add_u32 s%d, s%d, 1" % (s_cnt, s_cnt))
    if S.get("cprio"):
        lq = a.newlabel("Lq")
        a("s_cmp_eq_u32 s%d, %d" % (s_cnt, S.get("cprio_n", 4)))
        a("s_cbranch_scc0 %s" % lq)
        a("s_setprio 0")
        a.label(lq)
    a("s_cmp_lt_u32 s%d, 8" % s_cnt)
    a("s_cbranch_scc1 %s" % lp)
    a("s_waitcnt lgkmcnt(0)")
    stamp(a, S, 7)
    lX1, lX2, lX3, lX4 = [a.newlabel("LAx") for _ in range(4)]
    a("s_cmp_eq_u32 s%d, 0" % s_h)
    a("s_cbranch_scc0 %s" % lX1)
    for q in range(4):
        a("ds_write_b128 v%d, v[%d:%d] offset:%d" % (vE0, Y1 + 4 * q, Y1 + 4 * q + 3, 1024 * q))
    a("s_branch %s" % lX2)
    a.label(lX1)
    for q in range(4):
        a("ds_write_b128 v%d, v[%d:%d] offset:%d" % (vE0, Y0 + 4 * q, Y0 + 4 * q + 3, 1024 * q))
    a.label(lX2)
    a("s_waitcnt lgkmcnt(0)")
    a("s_barrier")
    E = 112
    for q in range(4):
        a("ds_read_b128 v[%d:%d], v%d offset:%d" % (E + 4 * q, E + 4 * q + 3, vE1, 1024 * q))
    a("s_cmp_eq_u32 s%d, 0" % s_h)
    a("s_cbranch_scc0 %s" % lX3)
    a("s_waitcnt lgkmcnt(0)")
    for i in range(16):
        a("v_add_f32 v%d, v%d, v%d" % (E + i, E + i, Y0 + i))
    a("s_branch %s" % lX4)
    a.label(lX3)
    a("s_waitcnt lgkmcnt(0)")
    for i in range(16):
        a("v_add_f32 v%d, v%d, v%d" % (E + i, E + i, Y1 + i))
    a.label(lX4)
    tq = [128, 129, 130, 131]
    k = 0
    for q in range(4):
        for i in (0, 2):
            t = tq[k % 4]; k += 1
            a("v_cvt_pk_bf16_f32 v%d, v%d, v%d" % (t, E + 4 * q + i, E + 4 * q + i + 1))
            off = 128 * q + 16 * i
            a("ds_write_b16 v%d, v%d offset:%d" % (vYw, t, off))
            a("ds_write_b16_d16_hi v%d, v%d offset:%d" % (vYw, t, off + 16))
    a("s_waitcnt lgkmcnt(0)")
    a("s_barrier")
    stamp(a, S, 8)
    O = 132
    a("ds_read_b128 v[%d:%d], v%d" % (O, O + 3, vRd))
    a("ds_read_b128 v[%d:%d], v%d offset:16" % (O + 4, O + 7, vRd))
    a("s_mov_b32 s%d, 4096" % s_k2)
    for kk in range(4):
        if kk % 2 == 0:
            a("s_waitcnt lgkmcnt(%d)" % (1 - kk // 2))
        so = ["0", "s%d" % s_k2][kk // 2]
        a("buffer_store_dwordx2 v[%d:%d], v%d, s[%d:%d], %s offen offset:%d" % (O + 2 * kk, O + 2 * kk + 1, vOa, sOS, sOS + 3, so, 2048 * (kk & 1)))
    return dict(s_w=s_w)
```

```python
from asmdsl import Asm
from partB import srd

LOG2E = 0x3fb8aa3b
EPS = 0x358637bd
WS_KV = 0
WS_Z = 32768
WS_FLAG = 65536
WS_PQ = 1 << 20
SLOT = 32768
STAMP_BASE = 70
MAGIC = 0x5a17c0de
FLAG_OFFS = [0]


def stamp(a, S, i):
    if S.get("stamps"):
        a("s_memtime s[%d:%d]" % (STAMP_BASE + 2 * i, STAMP_BASE + 2 * i + 1))


class Lines:
    def __init__(self):
        self.l = []
    def __call__(self, t):
        for x in t.split("\n"):
            x = x.strip()
            if x:
                self.l.append(x)


class LTrack:
    def __init__(self, a):
        self.a = a
        self.q = []
    def issue(self, line, tag):
        if len(self.q) >= 15:
            self.a("s_waitcnt lgkmcnt(14)")
            self.q = self.q[-14:]
        self.a(line)
        self.q.append(tag)
    def need(self, tag):
        idx = [i for i, t in enumerate(self.q) if t == tag]
        if not idx:
            return
        n = len(self.q) - 1 - idx[-1]
        self.a("s_waitcnt lgkmcnt(%d)" % n)
        self.q = self.q[idx[-1] + 1:]


def phi4(a, regs, tmp):
    for k, r in enumerate(regs):
        a("v_mul_f32 v%d, 0x%x, v%d" % (tmp + k, LOG2E, r))
    for k, r in enumerate(regs):
        a("v_exp_f32 v%d, v%d clamp" % (tmp + k, tmp + k))
    for k, r in enumerate(regs):
        a("v_max_f32 v%d, 0x%x, v%d" % (r, EPS, r))
    for k, r in enumerate(regs):
        a("v_add_f32 v%d, v%d, v%d" % (r, r, tmp + k))


def interleave(a, prim, fill, per):
    fi = 0
    for p in prim:
        for x in p:
            a(x)
        for _ in range(per):
            if fi < len(fill):
                a(fill[fi]); fi += 1
    while fi < len(fill):
        a(fill[fi]); fi += 1


def emit_B(a: Asm, S):
    ka, s_rb, s_hq = S["ka"], S["rb"], S["hq"]
    s_w, s_rg, s_ch = 44, 45, 46
    sX, sW, sWS, sDBG = 28, 32, 36, 40
    s_t0, s_t1, s_m0x, s_m0w, s_off, s_rot = 47, 48, 49, 50, 51, 58
    sWO, sOUT = 60, 64
    s_cc, s_xo, s_wo = 59, 68, 69
    vLane = 1
    vT0, vT1, vT2, vT3 = 3, 4, 5, 6
    vXs0, vXs1, vWs, vWOs = 7, 8, 9, 2
    vXr = 10
    vWr = 14
    vXc = 15
    vWc = 19
    WF = 20
    AK, AV, AQ = 52, 68, 84
    TMP = 100
    XF = 128
    stamp(a, S, 0)
    a("s_load_dwordx8 s[16:23], s[%d:%d], 72" % (ka, ka + 1))
    a("s_load_dwordx4 s[24:27], s[%d:%d], 104" % (ka, ka + 1))
    a("v_and_b32 v1, 63, v0")
    a("v_lshrrev_b32 v2, 6, v0")
    a("v_readfirstlane_b32 s44, v2")
    a("s_and_b32 s45, s44, 3")
    a("s_lshr_b32 s46, s44, 2")
    a("s_add_u32 s%d, s%d, s%d" % (s_rot, s_hq, s_rb))
    a("s_and_b32 s%d, s%d, 3" % (s_rot, s_rot))
    a("s_lshl_b32 s%d, s%d, 1" % (s_rot, s_rot))
    a("v_lshrrev_b32 v%d, 3, v%d" % (vT0, vLane))
    a("v_and_b32 v%d, 7, v%d" % (vT1, vLane))
    a("v_lshrrev_b32 v%d, 1, v%d" % (vT2, vT0))
    a("v_xor_b32 v%d, v%d, v%d" % (vT2, vT2, vT1))
    a("s_lshl_b32 s%d, s%d, 7" % (s_t0, s_rb))
    a("s_lshl_b32 s%d, s%d, 4" % (s_t1, s_w))
    a("s_add_u32 s%d, s%d, s%d" % (s_t0, s_t0, s_t1))
    a("v_add_u32 v%d, s%d, v%d" % (vT3, s_t0, vT0))
    a("v_lshlrev_b32 v%d, 10, v%d" % (vT3, vT3))
    a("v_lshlrev_b32 v%d, 4, v%d" % (vXs0, vT2))
    a("v_add_u32 v%d, v%d, v%d" % (vXs0, vXs0, vT3))
    a("v_xor_b32 v%d, 4, v%d" % (vT2, vT2))
    a("v_lshlrev_b32 v%d, 4, v%d" % (vXs1, vT2))
    a("v_add_u32 v%d, v%d, v%d" % (vXs1, vXs1, vT3))
    a("v_add_u32 v%d, 8192, v%d" % (vXs1, vXs1))
    a("v_bfe_u32 v%d, v%d, 1, 1" % (vT2, vT0))
    a("v_lshlrev_b32 v%d, 2, v%d" % (vT2, vT2))
    a("v_xor_b32 v%d, v%d, v%d" % (vT2, vT2, vT1))
    a("v_lshlrev_b32 v%d, 4, v%d" % (vT2, vT2))
    a("s_lshl_b32 s%d, s%d, 3" % (s_t1, s_w))
    a("v_add_u32 v%d, s%d, v%d" % (vT3, s_t1, vT0))
    a("v_lshlrev_b32 v%d, 10, v%d" % (vWOs, vT3))
    a("v_mul_u32_u24 v%d, 3072, v%d" % (vT3, vT3))
    a("s_lshl_b32 s%d, s%d, 7" % (s_t1, s_hq))
    a("v_add3_u32 v%d, v%d, v%d, s%d" % (vWs, vT3, vT2, s_t1))
    a("v_add3_u32 v%d, v%d, v%d, s%d" % (vWOs, vWOs, vT2, s_t1))
    a("s_lshl_b32 s%d, s%d, 11" % (s_m0x, s_w))
    a("s_lshl_b32 s%d, s%d, 10" % (s_m0w, s_w))
    a("s_waitcnt lgkmcnt(0)")
    srd(a, sX, 16, 17, 2048 * 512 * 2)
    srd(a, sW, 18, 19, 512 * 1536 * 2)

    def chunk_offsets(e, c):
        e("s_add_u32 s%d, s%d, %d" % (s_cc, s_rot, c))
        e("s_and_b32 s%d, s%d, 7" % (s_cc, s_cc))
        e("s_lshl_b32 s%d, s%d, 7" % (s_xo, s_cc))
        e("s_mul_i32 s%d, s%d, 196608" % (s_wo, s_cc))

    def dma(e, m0base, m0off, vaddr, srdreg, so):
        e("s_add_u32 m0, s%d, %d" % (m0base, m0off))
        e("buffer_load_dwordx4 v%d, s[%d:%d], %s offen lds" % (vaddr, srdreg, srdreg + 3, so))

    def fill_op(e, i, j):
        b = (i % 5) * SLOT if i < 11 else 2 * SLOT
        if i < 8:
            if j == 0:
                chunk_offsets(e, i); dma(e, s_m0x, b, vXs0, sX, "s%d" % s_xo)
            elif j == 1:
                dma(e, s_m0x, b + 1024, vXs1, sX, "s%d" % s_xo)
            elif j == 2:
                e("s_add_u32 s%d, s%d, 1024" % (s_off, s_wo)); dma(e, s_m0w, b + 16384, vWs, sW, "s%d" % s_off)
            else:
                e("s_add_u32 s%d, s%d, 2048" % (s_off, s_wo)); dma(e, s_m0w, b + 24576, vWs, sW, "s%d" % s_off)
        elif i < 10:
            chunk_offsets(e, 4 * (i - 8) + j); dma(e, s_m0w, b + 8192 * j, vWs, sW, "s%d" % s_wo)
        else:
            e("s_mov_b32 s%d, %d" % (s_off, (4 * (i - 10) + j) * 65536)); dma(e, s_m0w, b + 8192 * j, vWOs, sWO, "s%d" % s_off)

    NPRO = S.get("npro", 2)
    for i in range(NPRO):
        for j in range(4):
            fill_op(a, i, j)
    srd(a, sWS, 26, 27, 1 << 28)
    srd(a, sDBG, 24, 25, 256)
    srd(a, sWO, 20, 21, 512 * 512 * 2)
    srd(a, sOUT, 22, 23, 2048 * 1024 * 2)
    a("v_and_b32 v%d, 31, v%d" % (vT0, vLane))
    a("v_lshrrev_b32 v%d, 5, v%d" % (vT1, vLane))
    a("v_bfe_u32 v%d, v%d, 1, 3" % (vT2, vLane))
    a("s_lshl_b32 s%d, s%d, 5" % (s_t0, s_rg))
    a("v_add_u32 v%d, s%d, v%d" % (vT3, s_t0, vT0))
    a("v_lshlrev_b32 v%d, 7, v%d" % (vT3, vT3))
    for i in range(4):
        a("v_add_u32 v%d, %d, v%d" % (vXr + i, 2 * i, vT1))
        a("v_xor_b32 v%d, v%d, v%d" % (vXr + i, vXr + i, vT2))
        a("v_lshlrev_b32 v%d, 4, v%d" % (vXr + i, vXr + i))
        a("v_add_u32 v%d, v%d, v%d" % (vXr + i, vXr + i, vT3))
    a("v_bfe_u32 v%d, v%d, 2, 2" % (vT0, vLane))
    a("v_lshlrev_b32 v%d, 3, v%d" % (vT2, vT1))
    a("v_add_u32 v%d, v%d, v%d" % (vT2, vT2, vT0))
    a("v_lshlrev_b32 v%d, 7, v%d" % (vWr, vT2))
    a("v_lshrrev_b32 v%d, 1, v%d" % (vT0, vT0))
    a("v_xor_b32 v%d, s%d, v%d" % (vT0, s_ch, vT0))
    a("v_lshlrev_b32 v%d, 6, v%d" % (vT0, vT0))
    a("v_add_u32 v%d, v%d, v%d" % (vWr, vWr, vT0))
    a("v_bfe_u32 v%d, v%d, 4, 1" % (vT0, vLane))
    a("v_lshlrev_b32 v%d, 5, v%d" % (vT0, vT0))
    a("v_and_b32 v%d, 3, v%d" % (vT2, vLane))
    a("v_lshlrev_b32 v%d, 3, v%d" % (vT2, vT2))
    a("v_add3_u32 v%d, v%d, v%d, v%d" % (vWr, vWr, vT0, vT2))
    for i in range(16):
        a("v_mov_b32 v%d, 0" % (AK + i)); a("v_mov_b32 v%d, 0" % (AV + i)); a("v_mov_b32 v%d, 0" % (AQ + i))

    vRW, vZW, vRR, vZR, vPQa, vKA, vZA, vG = 120, 121, 122, 123, 124, 125, 126, 127
    RED = 1 * SLOT
    ZRED = RED + 16384
    PFOK = RED + 20480
    s_msk, s_hp, s_hf = 52, 54, 55
    a("v_bfe_u32 v%d, v%d, 4, 1" % (vT0, vLane))
    a("v_cmp_eq_u32 s[%d:%d], 1, v%d" % (s_msk, s_msk + 1, vT0))
    a("s_lshl_b32 s%d, s%d, 8" % (s_t0, s_w))
    a("s_add_u32 s%d, s%d, %d" % (s_t0, s_t0, ZRED))
    a("v_lshlrev_b32 v%d, 2, v%d" % (vT1, vLane))
    a("v_add_u32 v%d, s%d, v%d" % (vZW, s_t0, vT1))
    a("s_lshl_b32 s%d, s%d, 11" % (s_t0, s_w))
    a("s_add_u32 s%d, s%d, %d" % (s_t0, s_t0, RED))
    a("v_lshlrev_b32 v%d, 5, v%d" % (vRW, vLane))
    a("v_add_u32 v%d, s%d, v%d" % (vRW, s_t0, vRW))
    a("s_bfe_u32 s%d, s%d, 0x10001" % (s_hp, s_w))
    a("s_and_b32 s%d, s%d, 1" % (s_hf, s_w))
    a("s_lshl_b32 s%d, s%d, 5" % (s_t0, s_hf))
    a("s_lshl_b32 s%d, s%d, 4" % (s_t1, s_hp))
    a("s_add_u32 s%d, s%d, s%d" % (s_t0, s_t0, s_t1))
    a("s_lshl_b32 s%d, s%d, 5" % (s_t0, s_t0))
    a("s_lshl_b32 s%d, s%d, 13" % (s_t1, s_ch))
    a("s_add_u32 s%d, s%d, s%d" % (s_t0, s_t0, s_t1))
    a("s_add_u32 s%d, s%d, %d" % (s_t0, s_t0, RED))
    a("v_add_u32 v%d, s%d, v%d" % (vRR, s_t0, vT1))
    a("v_and_b32 v%d, 31, v%d" % (vZR, vLane))
    a("v_lshlrev_b32 v%d, 2, v%d" % (vZR, vZR))
    a("s_lshl_b32 s%d, s%d, 10" % (s_t1, s_ch))
    a("s_add_u32 s%d, s%d, %d" % (s_t1, s_t1, ZRED))
    a("v_add_u32 v%d, s%d, v%d" % (vZR, s_t1, vZR))
    a("s_lshl_b32 s%d, s%d, 2" % (s_t0, s_hq))
    a("s_lshl_b32 s%d, s%d, 1" % (s_t1, s_ch))
    a("s_add_u32 s%d, s%d, s%d" % (s_t0, s_t0, s_t1))
    a("s_add_u32 s%d, s%d, s%d" % (s_t1, s_t0, s_hp))
    a("s_lshl_b32 s%d, s%d, 10" % (s_t1, s_t1))
    a("s_lshl_b32 s%d, s%d, 9" % (s_off, s_hf))
    a("s_add_u32 s%d, s%d, s%d" % (s_t1, s_t1, s_off))
    a("v_add_u32 v%d, s%d, v%d" % (vKA, s_t1, vT1))
    a("v_bfe_u32 v%d, v%d, 4, 1" % (vZA, vLane))
    a("v_add_u32 v%d, s%d, v%d" % (vZA, s_t0, vZA))
    a("v_lshlrev_b32 v%d, 6, v%d" % (vZA, vZA))
    a("v_bfe_u32 v%d, v%d, 2, 1" % (vT2, vLane))
    a("v_lshlrev_b32 v%d, 5, v%d" % (vT2, vT2))
    a("v_add_u32 v%d, v%d, v%d" % (vZA, vZA, vT2))
    a("v_and_b32 v%d, 3, v%d" % (vT2, vLane))
    a("v_bfe_u32 v%d, v%d, 3, 1" % (vT3, vLane))
    a("v_lshlrev_b32 v%d, 2, v%d" % (vT3, vT3))
    a("v_add_u32 v%d, v%d, v%d" % (vT2, vT2, vT3))
    a("v_lshlrev_b32 v%d, 2, v%d" % (vT2, vT2))
    a("v_add_u32 v%d, v%d, v%d" % (vZA, vZA, vT2))
    a("v_add_u32 v%d, %d, v%d" % (vZA, WS_Z, vZA))
    a("s_lshl_b32 s%d, s%d, 6" % (s_t0, s_t0))
    a("s_lshl_b32 s%d, s%d, 2" % (s_t1, s_rb))
    a("s_add_u32 s%d, s%d, s%d" % (s_t0, s_t0, s_t1))
    a("s_add_u32 s%d, s%d, s%d" % (s_t0, s_t0, s_rg))
    a("s_lshl_b32 s%d, s%d, 10" % (s_t0, s_t0))
    a("s_add_u32 s%d, s%d, %d" % (s_t0, s_t0, WS_PQ))
    a("v_lshlrev_b32 v%d, 4, v%d" % (vPQa, vLane))
    a("v_add_u32 v%d, s%d, v%d" % (vPQa, s_t0, vPQa))

    def mf(e, D, A_, B_):
        e("v_mfma_f32_32x32x16_bf16 v[%d:%d], v[%d:%d], v[%d:%d], v[%d:%d]" % (D, D + 15, A_, A_ + 3, B_, B_ + 3, D, D + 15))

    def set_slot(slot):
        for i in range(4):
            a("v_add_u32 v%d, %d, v%d" % (vXc + i, slot * SLOT, vXr + i))
        a("v_add_u32 v%d, %d, v%d" % (vWc, slot * SLOT, vWr))

    def rd(c, i):
        X = XF + 16 * c + 4 * i
        F = WF + 8 * i
        a("ds_read_b128 v[%d:%d], v%d" % (X, X + 3, vXc + i))
        for mat, base in ((0, 16384), (1, 24576)):
            for j in range(2):
                a("ds_read_b64_tr_b16 v[%d:%d], v%d offset:%d" % (F + 4 * mat + 2 * j, F + 4 * mat + 2 * j + 1, vWc, base + (16 * i + 4 * j) * 128))

    def rdq(st):
        F = WF + 4 * (st % 8)
        j4, i = (st % 16) >> 2, st & 3
        for j in range(2):
            a("ds_read_b64_tr_b16 v[%d:%d], v%d offset:%d" % (F + 2 * j, F + 2 * j + 1, vWc, 8192 * j4 + (16 * i + 4 * j) * 128))

    def kvstep(c, i):
        X = XF + 16 * c + 4 * i
        F = WF + 8 * i
        mf(a, AK, X, F)
        mf(a, AV, X, F + 4)

    a("s_waitcnt vmcnt(%d)" % (4 * (NPRO - 1)))
    a("s_barrier")
    stamp(a, S, 1)
    for i in range(NPRO, 3):
        for j in range(4):
            fill_op(a, i, j)
    set_slot(0)
    rd(0, 0); rd(0, 1)
    mode = S.get("fillmode", "spread")
    if S.get("x_pre"): mode = "pre"
    if S.get("x_post"): mode = "post"
    if S.get("x_nofill"): mode = "none"
    waits = {"spread": 6, "pre": 8, "post": 4, "none": 63}

    def fills(i, where):
        if mode == "spread":
            fill_op(a, i, where)
        elif mode == "pre" and where == 1:
            for j in range(4):
                fill_op(a, i, j)
        elif mode == "post" and where == 2:
            for j in range(4):
                fill_op(a, i, j)

    for c in range(8):
        a("s_waitcnt lgkmcnt(5)")
        kvstep(c, 0); rd(c, 2); fills(c + 3, 0)
        a("s_waitcnt lgkmcnt(5)")
        mf(a, AK, XF + 16 * c + 4, WF + 8)
        rd(c, 3); fills(c + 3, 1)
        a("s_waitcnt vmcnt(%d) lgkmcnt(5)" % waits[mode])
        mf(a, AV, XF + 16 * c + 4, WF + 8 + 4)
        if not S.get("x_nobar"):
            a("s_barrier")
        kvstep(c, 2)
        if c < 7:
            set_slot((c + 1) % 5)
            rd(c + 1, 0)
            fills(c + 3, 2)
            a("s_waitcnt lgkmcnt(5)")
            kvstep(c, 3)
            rd(c + 1, 1)
            fills(c + 3, 3)
        else:
            a("v_add_u32 v%d, %d, v%d" % (vWc, 3 * SLOT, vWr))
            rdq(0); rdq(1)
            fills(c + 3, 2)
            a("s_waitcnt lgkmcnt(4)")
            kvstep(c, 3)
            rdq(2); rdq(3)
            fills(c + 3, 3)
    stamp(a, S, 2)
    if S.get("x_stop"):
        return
    a("v_and_b32 v%d, 7, v%d" % (vT2, vLane))
    a("v_lshlrev_b32 v%d, 2, v%d" % (vT2, vT2))
    a("buffer_load_dword v%d, v%d, s[%d:%d], 0 offen sc1" % (vG, vT2, sDBG, sDBG + 3))
    PKp, PVp = TMP, TMP + 8
    t4 = TMP + 16
    vZ, vOne = vT0, vT1
    vWc2 = vXc
    a("v_add_u32 v%d, %d, v%d" % (vWc2, 4 * SLOT, vWr))
    T = LTrack(a)
    T.q = [("q", st) for st in range(4) for _ in range(2)]

    def rdqT(st):
        F = WF + 4 * (st % 8)
        j4, i = (st % 16) >> 2, st & 3
        vb = vWc if st < 16 else vWc2
        for j in range(2):
            T.issue("ds_read_b64_tr_b16 v[%d:%d], v%d offset:%d" % (F + 2 * j, F + 2 * j + 1, vb, 8192 * j4 + (16 * i + 4 * j) * 128), ("q", st))

    def qslot(st, fill, per, prefetch=True):
        T.need(("q", st))
        mf(a, AQ, WF + 4 * (st % 8), XF + 4 * st)
        if prefetch and st + 4 < 32:
            rdqT(st + 4)
        for _ in range(per):
            if fill:
                a(fill.pop(0))

    f = Lines()
    f("v_mov_b32 v%d, 0" % vZ)
    f("v_mov_b32 v%d, 0x3f803f80" % vOne)
    for i in range(8):
        f("v_cvt_pk_bf16_f32 v%d, v%d, v%d" % (PVp + i, AV + 2 * i, AV + 2 * i + 1))
    for g in range(4):
        phi4(f, [AK + 4 * g + k for k in range(4)], t4)
        for i in (2 * g, 2 * g + 1):
            f("v_cvt_pk_bf16_f32 v%d, v%d, v%d" % (PKp + i, AK + 2 * i, AK + 2 * i + 1))
    fill = list(f.l)
    KP = S.get("kpost_per", 11)
    st = 0
    while fill and st < 8:
        qslot(st, fill, KP); st += 1
    while fill:
        a(fill.pop(0))
    DKV = AK
    a("v_mfma_f32_32x32x16_bf16 v[%d:%d], v[%d:%d], v[%d:%d], 0" % (DKV, DKV + 15, PKp, PKp + 3, PVp, PVp + 3))
    a("v_mfma_f32_32x32x16_bf16 v[%d:%d], v[%d:%d], v[%d:%d], v[%d:%d]" % (DKV, DKV + 15, PKp + 4, PKp + 7, PVp + 4, PVp + 7, DKV, DKV + 15))
    fill = ["v_dot2c_f32_bf16 v%d, v%d, v%d" % (vZ, PKp + i, vOne) for i in range(8)]
    while st < 11:
        qslot(st, fill, 4); st += 1
    while fill:
        a(fill.pop(0))
    T.issue("ds_write_b32 v%d, v%d" % (vZW, vZ), "w")
    SEL = PVp
    for i in range(8):
        a("v_cndmask_b32 v%d, v%d, v%d, s[%d:%d]" % (SEL + i, DKV + i, DKV + 8 + i, s_msk, s_msk + 1))
    T.issue("ds_write_b128 v%d, v[%d:%d]" % (vRW, SEL, SEL + 3), "w")
    T.issue("ds_write_b128 v%d, v[%d:%d] offset:16" % (vRW, SEL + 4, SEL + 7), "w")
    qslot(st, [], 0, prefetch=False); st += 1
    a("s_waitcnt vmcnt(0) lgkmcnt(0)")
    T.q = []
    a("s_barrier")
    stamp(a, S, 3)
    rdqT(15)
    lg, lgo = a.newlabel("Lg"), a.newlabel("Lgo")
    a("v_cmp_ne_u32 vcc, 1, v%d" % vG)
    a("s_cbranch_vccz %s" % lgo)
    a.label(lg)
    a("buffer_load_dword v%d, v%d, s[%d:%d], 0 offen sc1" % (vG, vT2, sDBG, sDBG + 3))
    a("s_waitcnt vmcnt(0)")
    a("v_cmp_ne_u32 vcc, 1, v%d" % vG)
    a("s_cbranch_vccnz %s" % lg)
    a.label(lgo)
    R_ = TMP
    for row in range(2):
        for g in range(4):
            T.issue("ds_read_b32 v%d, v%d offset:%d" % (R_ + 4 * row + g, vRR, 2048 * g + 256 * row), "kvr")
    qslot(st, [], 0); st += 1
    for g in range(4):
        for hf in range(2):
            T.issue("ds_read_b32 v%d, v%d offset:%d" % (R_ + 8 + 2 * g + hf, vZR, 256 * g + 128 * hf), "zr")
    T.need("kvr")
    for row in range(2):
        b = R_ + 4 * row
        a("v_add_f32 v%d, v%d, v%d" % (b, b, b + 1))
        a("v_add_f32 v%d, v%d, v%d" % (b + 2, b + 2, b + 3))
        a("v_add_f32 v%d, v%d, v%d" % (b, b, b + 2))
    for row in range(2):
        a("buffer_atomic_add_f32 v%d, v%d, s[%d:%d], 0 offen offset:%d" % (R_ + 4 * row, vKA, sWS, sWS + 3, WS_KV + 256 * row))
    qslot(st, [], 0); st += 1
    T.need("zr")
    b = R_ + 8
    for stp in (1, 2, 4):
        for k in range(0, 8, 2 * stp):
            a("v_add_f32 v%d, v%d, v%d" % (b + k, b + k, b + k + stp))
    lz = a.newlabel("Lz")
    a("s_and_b32 s%d, s%d, 3" % (s_t0, s_w))
    a("s_cmp_eq_u32 s%d, 0" % s_t0)
    a("s_cbranch_scc0 %s" % lz)
    a("s_mov_b64 s[56:57], exec")
    a("s_mov_b32 exec_lo, -1")
    a("s_mov_b32 exec_hi, 0")
    a("buffer_atomic_add_f32 v%d, v%d, s[%d:%d], 0 offen" % (b, vZA, sWS, sWS + 3))
    a("s_mov_b64 exec, s[56:57]")
    a.label(lz)
    fo = Lines()
    for j in range(4):
        fill_op(fo, 11, j)
    fill = list(fo.l)
    while st < 32:
        qslot(st, fill, 3); st += 1
    while fill:
        a(fill.pop(0))
    a("s_waitcnt vmcnt(0)")
    a("s_barrier")
    stamp(a, S, 9)
    lkf = a.newlabel("Lkf")
    a("s_cmp_eq_u32 s%d, 6" % s_w)
    a("s_cbranch_scc0 %s" % lkf)
    a("s_lshl_b32 s%d, s%d, 7" % (s_t0, s_hq))
    a("s_add_u32 s%d, s%d, %d" % (s_t0, s_t0, WS_FLAG))
    a("v_lshlrev_b32 v%d, 10, v%d" % (vT0, vLane))
    a("v_add_u32 v%d, s%d, v%d" % (vT0, s_t0, vT0))
    a("v_mov_b32 v%d, 1" % vT1)
    a("s_mov_b64 s[56:57], exec")
    a("s_mov_b64 exec, 0xff")
    a("buffer_atomic_add v%d, v%d, s[%d:%d], 0 offen" % (vT1, vT0, sWS, sWS + 3))
    a("s_mov_b64 exec, s[56:57]")
    a.label(lkf)
    PQ = TMP
    for g in range(4):
        phi4(a, [AQ + 4 * g + k for k in range(4)], t4)
        for i in (2 * g, 2 * g + 1):
            a("v_cvt_pk_bf16_f32 v%d, v%d, v%d" % (PQ + i, AQ + 2 * i, AQ + 2 * i + 1))
        if g == 1:
            a("buffer_store_dwordx4 v[%d:%d], v%d, s[%d:%d], 0 offen sc1" % (PQ, PQ + 3, vPQa, sWS, sWS + 3))
    a("s_mov_b32 s%d, 65536" % s_off)
    a("buffer_store_dwordx4 v[%d:%d], v%d, s[%d:%d], s%d offen sc1" % (PQ + 4, PQ + 7, vPQa, sWS, sWS + 3, s_off))
    stamp(a, S, 4)
    s_hh = 46
    WO = 0
    KVF = 3 * SLOT
    OST = 4 * SLOT
    PQF = 128
    vKVa, vZa, vPQl, vKFw, vZFw = 11, 12, 13, 14, 15
    vKr, vWr2, vWr1 = 8, 9, 10
    a("v_lshlrev_b32 v%d, 4, v%d" % (vT0, vLane))
    a("s_lshl_b32 s%d, s%d, 12" % (s_t1, s_w))
    a("v_add_u32 v%d, s%d, v%d" % (vKVa, s_t1, vT0))
    a("s_and_b32 s%d, s%d, 1" % (s_t1, s_w))
    a("s_lshl_b32 s%d, s%d, 10" % (s_t1, s_t1))
    a("s_add_u32 s%d, s%d, %d" % (s_t1, s_t1, WS_Z))
    a("v_add_u32 v%d, s%d, v%d" % (vZa, s_t1, vT0))
    a("s_lshl_b32 s%d, s%d, 10" % (s_t0, s_hh))
    a("s_lshl_b32 s%d, s%d, 2" % (s_t1, s_rb))
    a("s_add_u32 s%d, s%d, s%d" % (s_t0, s_t0, s_t1))
    a("s_add_u32 s%d, s%d, s%d" % (s_t0, s_t0, s_rg))
    a("s_lshl_b32 s%d, s%d, 10" % (s_t0, s_t0))
    a("s_add_u32 s%d, s%d, %d" % (s_t0, s_t0, WS_PQ))
    a("v_add_u32 v%d, s%d, v%d" % (vPQl, s_t0, vT0))
    a("v_lshrrev_b32 v%d, 5, v%d" % (vT1, vLane))
    a("v_lshlrev_b32 v%d, 9, v%d" % (vT1, vT1))
    a("v_bfe_u32 v%d, v%d, 1, 4" % (vT2, vLane))
    a("v_lshlrev_b32 v%d, 4, v%d" % (vT2, vT2))
    a("v_and_b32 v%d, 1, v%d" % (vT3, vLane))
    a("v_lshlrev_b32 v%d, 3, v%d" % (vT3, vT3))
    a("v_add3_u32 v%d, v%d, v%d, v%d" % (vKFw, vT1, vT2, vT3))
    a("s_lshl_b32 s%d, s%d, 12" % (s_t1, s_w))
    a("s_add_u32 s%d, s%d, %d" % (s_t1, s_t1, KVF))
    a("v_add_u32 v%d, s%d, v%d" % (vKFw, s_t1, vKFw))
    a("s_and_b32 s%d, s%d, 1" % (s_t1, s_w))
    a("s_lshl_b32 s%d, s%d, 14" % (s_t1, s_t1))
    a("s_add_u32 s%d, s%d, %d" % (s_t1, s_t1, KVF + 256))
    a("v_lshrrev_b32 v%d, 2, v%d" % (vT2, vLane))
    a("v_lshlrev_b32 v%d, 10, v%d" % (vT2, vT2))
    a("v_bfe_u32 v%d, v%d, 1, 1" % (vT3, vLane))
    a("v_lshlrev_b32 v%d, 9, v%d" % (vT3, vT3))
    a("v_add3_u32 v%d, v%d, v%d, s%d" % (vZFw, vT2, vT3, s_t1))
    a("v_and_b32 v%d, 1, v%d" % (vT3, vLane))
    a("v_lshlrev_b32 v%d, 3, v%d" % (vT3, vT3))
    a("v_add_u32 v%d, v%d, v%d" % (vZFw, vZFw, vT3))
    a("v_lshlrev_b32 v%d, 4, v%d" % (vKr, vLane))
    a("s_lshl_b32 s%d, s%d, 14" % (s_t0, s_hh))
    a("s_add_u32 s%d, s%d, %d" % (s_t0, s_t0, KVF))
    a("v_add_u32 v%d, s%d, v%d" % (vKr, s_t0, vKr))
    a("v_lshrrev_b32 v%d, 5, v%d" % (vT1, vLane))
    a("v_bfe_u32 v%d, v%d, 2, 2" % (vT0, vLane))
    a("v_lshlrev_b32 v%d, 2, v%d" % (vT2, vT1))
    a("v_add_u32 v%d, v%d, v%d" % (vT2, vT2, vT0))
    a("v_lshlrev_b32 v%d, 7, v%d" % (vWr2, vT2))
    a("v_lshrrev_b32 v%d, 1, v%d" % (vT0, vT0))
    a("v_lshlrev_b32 v%d, 6, v%d" % (vT3, vT0))
    a("v_bfe_u32 v%d, v%d, 4, 1" % (vT2, vLane))
    a("v_lshlrev_b32 v%d, 5, v%d" % (vT2, vT2))
    a("v_add_u32 v%d, v%d, v%d" % (vWr2, vWr2, vT2))
    a("v_and_b32 v%d, 3, v%d" % (vT2, vLane))
    a("v_lshlrev_b32 v%d, 3, v%d" % (vT2, vT2))
    a("v_add_u32 v%d, v%d, v%d" % (vWr2, vWr2, vT2))
    a("s_lshl_b32 s%d, s%d, 16" % (s_t0, s_hh))
    a("v_add_u32 v%d, s%d, v%d" % (vWr2, s_t0, vWr2))
    a("v_xor_b32 v%d, 64, v%d" % (vWr1, vT3))
    a("v_add_u32 v%d, v%d, v%d" % (vWr1, vWr1, vWr2))
    a("v_add_u32 v%d, v%d, v%d" % (vWr2, vWr2, vT3))
    vE0, vE1, vSt, vRd, vOa = 192, 193, 194, 195, 196
    a("s_lshl_b32 s%d, s%d, 12" % (s_t0, s_w))
    a("s_add_u32 s%d, s%d, %d" % (s_t0, s_t0, OST))
    a("v_lshlrev_b32 v%d, 4, v%d" % (vE0, vLane))
    a("v_add_u32 v%d, s%d, v%d" % (vE0, s_t0, vE0))
    a("s_xor_b32 s%d, s%d, 4" % (s_t0, s_w))
    a("s_lshl_b32 s%d, s%d, 12" % (s_t0, s_t0))
    a("s_add_u32 s%d, s%d, %d" % (s_t0, s_t0, OST))
    a("v_lshlrev_b32 v%d, 4, v%d" % (vE1, vLane))
    a("v_add_u32 v%d, s%d, v%d" % (vE1, s_t0, vE1))
    a("v_and_b32 v%d, 31, v%d" % (vSt, vLane))
    a("s_lshl_b32 s%d, s%d, 5" % (s_t0, s_rg))
    a("v_add_u32 v%d, s%d, v%d" % (vSt, s_t0, vSt))
    a("v_mul_u32_u24 v%d, 144, v%d" % (vSt, vSt))
    a("v_lshrrev_b32 v%d, 5, v%d" % (vT3, vLane))
    a("v_lshlrev_b32 v%d, 3, v%d" % (vT3, vT3))
    a("s_lshl_b32 s%d, s%d, 6" % (s_t0, s_hh))
    a("v_add3_u32 v%d, v%d, v%d, s%d" % (vSt, vSt, vT3, s_t0))
    a("v_lshrrev_b32 v%d, 3, v%d" % (vOa, vLane))
    a("s_lshl_b32 s%d, s%d, 4" % (s_t0, s_w))
    a("v_add_u32 v%d, s%d, v%d" % (vOa, s_t0, vOa))
    a("v_and_b32 v%d, 7, v%d" % (vT3, vLane))
    a("v_lshlrev_b32 v%d, 4, v%d" % (vT3, vT3))
    a("v_mul_u32_u24 v%d, 144, v%d" % (vRd, vOa))
    a("v_add_u32 v%d, v%d, v%d" % (vRd, vRd, vT3))
    a("s_lshl_b32 s%d, s%d, 7" % (s_t0, s_rb))
    a("v_add_u32 v%d, s%d, v%d" % (vOa, s_t0, vOa))
    a("v_lshlrev_b32 v%d, 11, v%d" % (vOa, vOa))
    a("s_lshl_b32 s%d, s%d, 7" % (s_t0, s_hq))
    a("s_add_u32 s%d, s%d, 1024" % (s_t0, s_t0))
    a("v_add3_u32 v%d, v%d, v%d, s%d" % (vOa, vOa, vT3, s_t0))
    O0, O1 = 16, 32
    D1 = [48, 96]
    KA = [64, 112]
    WA = [68, 76]
    OB = [84, 88]
    vR = 92
    KL, ZL = 96, 116
    for i in range(16):
        a("v_mov_b32 v%d, 0" % (O0 + i)); a("v_mov_b32 v%d, 0" % (O1 + i))
    a("s_waitcnt vmcnt(0)")
    stamp(a, S, 10)
    a("s_barrier")
    lpf = a.newlabel("Lpf")
    a("s_cmp_eq_u32 s%d, 7" % s_w)
    a("s_cbranch_scc0 %s" % lpf)
    a("s_lshl_b32 s%d, s%d, 7" % (s_t0, s_rb))
    a("s_add_u32 s%d, s%d, %d" % (s_t0, s_t0, WS_FLAG + 8192))
    a("v_mov_b32 v%d, s%d" % (vT0, s_t0))
    a("v_mov_b32 v%d, 1" % vT1)
    a("s_mov_b64 s[56:57], exec")
    a("s_mov_b64 exec, 1")
    a("buffer_atomic_add v%d, v%d, s[%d:%d], 0 offen" % (vT1, vT0, sWS, sWS + 3))
    a("s_mov_b64 exec, s[56:57]")
    a.label(lpf)
    vPa, vPt = 3, 4
    P0 = 120
    lw = a.newlabel("Lw")
    a("s_cmp_eq_u32 s%d, 0" % s_w)
    a("s_cbranch_scc0 %s" % lw)
    a("s_lshl_b32 s%d, s%d, 7" % (s_t0, s_rb))
    a("s_add_u32 s%d, s%d, %d" % (s_t0, s_t0, WS_FLAG + 8192))
    a("s_and_b32 s%d, s%d, 7" % (s_t1, s_rb))
    a("s_lshl_b32 s%d, s%d, 10" % (s_t1, s_t1))
    a("s_add_u32 s%d, s%d, %d" % (s_t1, s_t1, WS_FLAG))
    a("v_lshlrev_b32 v%d, 7, v%d" % (vPa, vLane))
    a("v_add_u32 v%d, s%d, v%d" % (vPa, s_t1, vPa))
    a("v_mov_b32 v%d, s%d" % (vT2, s_t0))
    a("v_cmp_gt_u32 s[56:57], 8, v%d" % vLane)
    a("v_cndmask_b32 v%d, v%d, v%d, s[56:57]" % (vPa, vT2, vPa))
    a("v_mov_b32 v%d, 8" % vPt)
    a("v_mov_b32 v%d, 16" % vT2)
    a("v_cndmask_b32 v%d, v%d, v%d, s[56:57]" % (vPt, vPt, vT2))
    a("s_mov_b64 s[54:55], exec")
    a("s_mov_b64 exec, 0x1ff")
    a("buffer_load_dword v%d, v%d, s[%d:%d], 0 offen sc1" % (P0, vPa, sWS, sWS + 3))
    lp, lpd = a.newlabel("Lp"), a.newlabel("Lpd")
    a.label(lp)
    a("s_waitcnt vmcnt(0)")
    a("v_cmp_ne_u32 vcc, v%d, v%d" % (P0, vPt))
    a("s_and_b32 s%d, vcc_lo, 0xff" % s_t1)
    a("s_cbranch_scc0 %s" % lpd)
    if S.get("psleep"):
        a("s_sleep %d" % S["psleep"])
    a("buffer_load_dword v%d, v%d, s[%d:%d], 0 offen sc1" % (P0, vPa, sWS, sWS + 3))
    a("s_branch %s" % lp)
    a.label(lpd)
    a("s_and_b32 s53, vcc_lo, 0x100")
    a("s_mov_b64 exec, s[54:55]")
    a("v_mov_b32 v%d, s53" % vT2)
    a("v_mov_b32 v%d, %d" % (vT3, PFOK))
    a("ds_write_b32 v%d, v%d" % (vT3, vT2))
    a("s_waitcnt lgkmcnt(0)")
    a.label(lw)
    a("s_barrier")
    stamp(a, S, 11)
    def ld_pq(i):
        if i == 0:
            so = "0"
        else:
            a("s_mov_b32 s%d, %d" % (s_off, i * 65536)); so = "s%d" % s_off
        a("buffer_load_dwordx4 v[%d:%d], v%d, s[%d:%d], %s offen sc1" % (PQF + 4 * i, PQF + 4 * i + 3, vPQl, sWS, sWS + 3, so))
    NPRE = 8
    a("v_mov_b32 v%d, %d" % (vT3, PFOK))
    a("ds_read_b32 v%d, v%d" % (vT2, vT3))
    for i in range(4):
        a("buffer_load_dwordx4 v[%d:%d], v%d, s[%d:%d], 0 offen offset:%d sc1" % (KL + 4 * i, KL + 4 * i + 3, vKVa, sWS, sWS + 3, WS_KV + 1024 * i))
    a("buffer_load_dwordx4 v[%d:%d], v%d, s[%d:%d], 0 offen sc1" % (ZL, ZL + 3, vZa, sWS, sWS + 3))
    a("s_waitcnt lgkmcnt(0)")
    a("v_readfirstlane_b32 s53, v%d" % vT2)
    C_ = 120

    def conv_kv(younger):
        for i in range(4):
            a("s_waitcnt vmcnt(%d)" % (younger + 4 - i))
            a("v_cvt_pk_bf16_f32 v%d, v%d, v%d" % (C_ + 2 * i, KL + 4 * i, KL + 4 * i + 1))
            a("v_cvt_pk_bf16_f32 v%d, v%d, v%d" % (C_ + 2 * i + 1, KL + 4 * i + 2, KL + 4 * i + 3))
            a("ds_write_b64 v%d, v[%d:%d] offset:%d" % (vKFw, C_ + 2 * i, C_ + 2 * i + 1, 1024 * i))
        a("s_waitcnt vmcnt(%d)" % younger)
        lzz = a.newlabel("Lzz")
        a("s_cmp_lt_u32 s%d, 2" % s_w)
        a("s_cbranch_scc0 %s" % lzz)
        a("v_cvt_pk_bf16_f32 v94, v%d, v%d" % (ZL, ZL + 1))
        a("v_cvt_pk_bf16_f32 v95, v%d, v%d" % (ZL + 2, ZL + 3))
        a("ds_write_b64 v%d, v[94:95]" % vZFw)
        a("ds_write_b64 v%d, v[94:95] offset:64" % vZFw)
        a.label(lzz)

    lslow, ljoin = a.newlabel("Lslow"), a.newlabel("Ljoin")
    a("s_cmp_eq_u32 s53, 0")
    a("s_cbranch_scc0 %s" % lslow)
    for i in range(NPRE):
        ld_pq(i)
    conv_kv(NPRE)
    a("s_waitcnt lgkmcnt(0)")
    a("s_barrier")
    a("s_branch %s" % ljoin)
    a.label(lslow)
    conv_kv(0)
    lw2, lp2, lpd2 = a.newlabel("Lw2"), a.newlabel("Lp"), a.newlabel("Lpd")
    a("s_cmp_eq_u32 s%d, 0" % s_w)
    a("s_cbranch_scc0 %s" % lw2)
    a("s_mov_b64 exec, 0x100")
    a.label(lp2)
    a("buffer_load_dword v%d, v%d, s[%d:%d], 0 offen sc1" % (93, vPa, sWS, sWS + 3))
    a("s_waitcnt vmcnt(0)")
    a("v_cmp_ne_u32 vcc, v93, v%d" % vPt)
    a("s_cbranch_vccnz %s" % lp2)
    a("s_mov_b64 exec, s[54:55]")
    a.label(lw2)
    a("s_waitcnt lgkmcnt(0)")
    a("s_barrier")
    for i in range(NPRE):
        ld_pq(i)
    a.label(ljoin)
    stamp(a, S, 6)

    def rd_kv(h):
        a("ds_read_b128 v[%d:%d], v%d offset:%d" % (KA[h & 1], KA[h & 1] + 3, vKr, 1024 * h))

    def rd_wo(h):
        W_ = WA[h & 1]
        for jt, vb in ((0, vWr2), (1, vWr1)):
            for j in range(2):
                a("ds_read_b64_tr_b16 v[%d:%d], v%d offset:%d" % (W_ + 4 * jt + 2 * j, W_ + 4 * jt + 2 * j + 1, vb, WO + (16 * h + 8 * j) * 128))

    issued = [NPRE]

    def num(h):
        a("s_waitcnt vmcnt(%d)" % (issued[0] - 1 - h))
        a("v_mfma_f32_32x32x16_bf16 v[%d:%d], v[%d:%d], v[%d:%d], 0" % (D1[h & 1], D1[h & 1] + 15, KA[h & 1], KA[h & 1] + 3, PQF + 4 * h, PQF + 4 * h + 3))
        if issued[0] < 16:
            ld_pq(issued[0]); issued[0] += 1

    rd_kv(0)
    a("s_waitcnt lgkmcnt(0)")
    num(0)
    rd_kv(1); rd_wo(0)
    for h in range(16):
        if h + 1 < 16:
            a("s_waitcnt lgkmcnt(4)")
            num(h + 1)
        D = D1[h & 1]
        a("v_add_f32 v%d, 0x%x, v%d" % (vR, EPS, D + 8))
        a("v_rcp_f32 v%d, v%d" % (vR, vR))
        for i in range(8):
            a("v_mul_f32 v%d, v%d, v%d" % (D + i, D + i, vR))
        B_ = OB[h & 1]
        for i in range(4):
            a("v_cvt_pk_bf16_f32 v%d, v%d, v%d" % (B_ + i, D + 2 * i, D + 2 * i + 1))
        a("s_waitcnt lgkmcnt(0)")
        if h + 2 < 16:
            rd_kv(h + 2)
        W_ = WA[h & 1]
        a("v_mfma_f32_32x32x16_bf16 v[%d:%d], v[%d:%d], v[%d:%d], v[%d:%d]" % (O0, O0 + 15, W_, W_ + 3, B_, B_ + 3, O0, O0 + 15))
        a("v_mfma_f32_32x32x16_bf16 v[%d:%d], v[%d:%d], v[%d:%d], v[%d:%d]" % (O1, O1 + 15, W_ + 4, W_ + 7, B_, B_ + 3, O1, O1 + 15))
        if h + 1 < 16:
            rd_wo(h + 1)
    stamp(a, S, 7)
    lA, lB, lC, lD = [a.newlabel("Lx") for _ in range(4)]
    a("s_cmp_eq_u32 s%d, 0" % s_hh)
    a("s_cbranch_scc0 %s" % lA)
    for q in range(4):
        a("ds_write_b128 v%d, v[%d:%d] offset:%d" % (vE0, O1 + 4 * q, O1 + 4 * q + 3, 1024 * q))
    a("s_branch %s" % lB)
    a.label(lA)
    for q in range(4):
        a("ds_write_b128 v%d, v[%d:%d] offset:%d" % (vE0, O0 + 4 * q, O0 + 4 * q + 3, 1024 * q))
    a.label(lB)
    a("s_waitcnt lgkmcnt(0)")
    a("s_barrier")
    E = 48
    for q in range(4):
        a("ds_read_b128 v[%d:%d], v%d offset:%d" % (E + 4 * q, E + 4 * q + 3, vE1, 1024 * q))
    a("s_cmp_eq_u32 s%d, 0" % s_hh)
    a("s_cbranch_scc0 %s" % lC)
    a("s_waitcnt lgkmcnt(0)")
    for i in range(16):
        a("v_add_f32 v%d, v%d, v%d" % (E + i, E + i, O0 + i))
    a("s_branch %s" % lD)
    a.label(lC)
    a("s_waitcnt lgkmcnt(0)")
    for i in range(16):
        a("v_add_f32 v%d, v%d, v%d" % (E + i, E + i, O1 + i))
    a.label(lD)
    for q in range(4):
        a("v_cvt_pk_bf16_f32 v%d, v%d, v%d" % (64 + 2 * q, E + 4 * q, E + 4 * q + 1))
        a("v_cvt_pk_bf16_f32 v%d, v%d, v%d" % (65 + 2 * q, E + 4 * q + 2, E + 4 * q + 3))
        a("ds_write_b64 v%d, v[%d:%d] offset:%d" % (vSt, 64 + 2 * q, 65 + 2 * q, 16 * q))
    a("s_waitcnt lgkmcnt(0)")
    a("s_barrier")
    a("ds_read_b128 v[76:79], v%d" % vRd)
    a("ds_read_b128 v[80:83], v%d offset:%d" % (vRd, 8 * 144))
    a("s_mov_b32 s%d, 16384" % s_off)
    a("s_waitcnt lgkmcnt(1)")
    a("buffer_store_dwordx4 v[76:79], v%d, s[%d:%d], 0 offen" % (vOa, sOUT, sOUT + 3))
    a("s_waitcnt lgkmcnt(0)")
    a("buffer_store_dwordx4 v[80:83], v%d, s[%d:%d], s%d offen" % (vOa, sOUT, sOUT + 3, s_off))
    stamp(a, S, 8)


def zero_pre(s_idx):
    def f(a, s_w):
        l = a.newlabel("Lzp")
        a("s_cmp_lt_u32 s%d, 8" % s_idx)
        a("s_cbranch_scc0 %s" % l)
        a("s_cmp_eq_u32 s%d, 3" % s_w)
        a("s_cbranch_scc0 %s" % l)
        a("s_load_dwordx4 s[88:91], s[0:1], 104")
        for r in range(4):
            a("v_mov_b32 v%d, 0" % (200 + r))
        a("s_waitcnt lgkmcnt(0)")
        srd(a, 92, 90, 91, 1 << 28)
        a("v_lshlrev_b32 v204, 4, v1")
        a("s_lshl_b32 s64, s%d, 12" % s_idx)
        a("v_add_u32 v205, s64, v204")
        for r in range(4):
            a("buffer_store_dwordx4 v[200:203], v205, s[92:95], 0 offen offset:%d sc1" % (WS_KV + 1024 * r))
        a("s_lshl_b32 s64, s%d, 8" % s_idx)
        a("s_add_u32 s64, s64, %d" % WS_Z)
        a("v_and_b32 v206, 15, v1")
        a("v_lshlrev_b32 v205, 4, v206")
        a("v_add_u32 v205, s64, v205")
        a("buffer_store_dwordx4 v[200:203], v205, s[92:95], 0 offen sc1")
        a("s_lshl_b32 s64, s%d, 7" % s_idx)
        a("s_add_u32 s64, s64, %d" % WS_FLAG)
        a("v_and_b32 v206, 7, v1")
        a("v_lshlrev_b32 v206, 10, v206")
        a("v_add_u32 v206, s64, v206")
        a("s_lshl_b32 s65, s%d, 8" % s_idx)
        a("s_add_u32 s65, s65, %d" % (WS_FLAG + 8192 - 1024))
        a("v_lshlrev_b32 v205, 7, v1")
        a("v_add_u32 v205, s65, v205")
        a("v_add_u32 v207, -8, v1")
        a("v_cmp_gt_u32 s[66:67], 2, v207")
        a("v_cndmask_b32 v206, v206, v205, s[66:67]")
        a("buffer_store_dword v200, v206, s[92:95], 0 offen sc1")
        a("s_lshl_b32 s64, s%d, 7" % s_idx)
        a("s_add_u32 s64, s64, %d" % (WS_FLAG + 12288))
        a("v_mov_b32 v206, s64")
        a("buffer_store_dword v200, v206, s[92:95], 0 offen sc1")
        a.label(l)
    return f


def zero_post(s_idx):
    def f(a, s_w):
        l = a.newlabel("Lzq")
        a("s_cmp_lt_u32 s%d, 8" % s_idx)
        a("s_cbranch_scc0 %s" % l)
        a("s_cmp_eq_u32 s%d, 3" % s_w)
        a("s_cbranch_scc0 %s" % l)
        a("s_waitcnt vmcnt(0)")
        a("s_load_dwordx2 s[88:89], s[0:1], 104")
        a("s_waitcnt lgkmcnt(0)")
        srd(a, 60, 88, 89, 256)
        a("s_lshl_b32 s64, s%d, 2" % s_idx)
        a("v_mov_b32 v245, s64")
        a("v_mov_b32 v244, 1")
        a("s_mov_b64 s[66:67], exec")
        a("s_mov_b64 exec, 1")
        a("buffer_store_dword v244, v245, s[60:63], 0 offen sc1")
        a("s_mov_b64 exec, s[66:67]")
        a.label(l)
    return f
```

```python
import sys
from asmdsl import Asm
import partA, partB, partB2, partB3, partA2

NAME = "concat_heads__ssm_conv_s4__linear_attn_block__prompt_kernel"

HEADER = """; Kernarg layout (120 bytes): d_in[0..11], d_out (96), d_debug (104), d_ws (112)
"""

def kernel_text(name, body, nvgpr, accum, nsgpr=102):
    return """.globl {n}
.p2align 8
.type {n},@function
{n}:
{body}""".format(n=name, body=body), """.amdhsa_kernel {n}
  .amdhsa_next_free_vgpr {v}
  .amdhsa_next_free_sgpr {s}
  .amdhsa_accum_offset {acc}
  .amdhsa_group_segment_fixed_size 0
  .amdhsa_kernarg_size 120
  .amdhsa_user_sgpr_count 2
  .amdhsa_user_sgpr_kernarg_segment_ptr 1
  .amdhsa_system_sgpr_workgroup_id_x 1
.end_amdhsa_kernel
""".format(n=name, v=nvgpr, s=nsgpr, acc=accum)

def assemble(launches, kernels):
    out = [HEADER.rstrip()]
    if len(launches) == 1 and launches[0][0] == NAME:
        k, g, b, l = launches[0]
        out.append("; @launch grid=(%d,1,1) block=(%d,1,1) lds=%d" % (g, b, l))
    else:
        for k, g, b, l in launches:
            out.append("; @launch kernel=%s grid=(%d,1,1) block=(%d,1,1) lds=%d" % (k, g, b, l))
    out.append('.amdgcn_target "amdgcn-amd-amdhsa--gfx950"')
    out.append(".text")
    desc = []
    for name, body, nv, acc in kernels:
        t, d = kernel_text(name, body, nv, acc)
        out.append(t)
        desc.append(d)
    out.append('.section .rodata,"a"')
    for d in desc:
        out.append(".p2align 6")
        out.append(d.rstrip())
    return "\n".join(out) + "\n"

def emit_stamps(a, n, s_wg, s_w, nw=4):
    a("s_waitcnt vmcnt(0)")
    a("s_memtime s[%d:%d]" % (70 + 2 * n, 71 + 2 * n))
    a("s_load_dwordx2 s[60:61], s[0:1], 112")
    a("s_waitcnt lgkmcnt(0)")
    a("s_mov_b32 s62, 0x10000000"); a("s_mov_b32 s63, 0x20000"); a("s_and_b32 s61, s61, 0xffff")
    a("s_mul_i32 s64, s%d, %d" % (s_wg, nw)); a("s_add_u32 s64, s64, s%d" % s_w); a("s_lshl_b32 s64, s64, 6")
    a("s_add_u32 s64, s64, 0x8000000")
    a("v_mov_b32 v5, s64")
    for i in range(n + 1):
        a("s_sub_u32 s65, s%d, s70" % (70 + 2 * i))
        a("v_mov_b32 v4, s65")
        a("buffer_store_dword v4, v5, s[60:63], 0 offen offset:%d" % (4 * i))
    a("s_getreg_b32 s65, hwreg(HW_REG_XCC_ID)")
    a("v_mov_b32 v4, s65")
    a("buffer_store_dword v4, v5, s[60:63], 0 offen offset:60")
    a("s_memrealtime s[66:67]")
    a("s_waitcnt lgkmcnt(0)")
    a("v_mov_b32 v4, s66")
    a("buffer_store_dword v4, v5, s[60:63], 0 offen offset:56")
    a("v_mov_b32 v4, s98")
    a("buffer_store_dword v4, v5, s[60:63], 0 offen offset:52")

def kernelA(dbg=None, stamps=False, zero=False):
    a = Asm()
    a("s_cmp_ge_u32 s2, 128")
    a("s_cbranch_scc1 LA_end")
    if zero:
        zero_kvz(a)
    a("s_and_b32 s3, s2, 7")
    a("s_lshl_b32 s3, s3, 4")
    a("s_lshr_b32 s4, s2, 3")
    a("s_add_u32 s3, s3, s4")
    r = partA.emit_partA(a, dict(ka=0, cg=3, stamps=stamps), dbg)
    if stamps:
        emit_stamps(a, 7, 2, r["s_w"])
    if dbg == "lds":
        a("s_load_dwordx2 s[60:61], s[0:1], 112")
        a("s_waitcnt lgkmcnt(0)")
        a("s_mov_b32 s62, 0x10000000"); a("s_mov_b32 s63, 0x20000"); a("s_and_b32 s61, s61, 0xffff")
        a("s_mul_i32 s64, s3, %d" % 131072)
        a("v_lshlrev_b32 v3, 2, v0")
        a("s_mov_b32 s65, 0")
        a.label("Ldump")
        a("ds_read_b32 v4, v3")
        a("v_add_u32 v5, s64, v3")
        a("s_waitcnt lgkmcnt(0)")
        a("buffer_store_dword v4, v5, s[60:63], 0 offen")
        a("v_add_u32 v3, 1024, v3")
        a("s_add_u32 s65, s65, 1024")
        a("s_cmp_lt_u32 s65, %d" % partA.A_LDS)
        a("s_cbranch_scc1 Ldump")
    a("s_waitcnt vmcnt(0)")
    a.label("LA_end")
    a("s_endpgm")
    return a.finish()

def map_B(a):
    a("s_and_b32 s3, s2, 3"); a("s_lshl_b32 s3, s3, 2")
    a("s_bfe_u32 s4, s2, 0x20003"); a("s_add_u32 s3, s3, s4")
    a("s_bfe_u32 s4, s2, 0x10002"); a("s_lshl_b32 s4, s4, 2")
    a("s_bfe_u32 s5, s2, 0x20005"); a("s_add_u32 s4, s4, s5")

def kernelB1(stamps=False, touch=False):
    a = Asm()
    a("s_cmp_ge_u32 s2, 128")
    a("s_cbranch_scc1 LB1_end")
    map_B(a)
    partB.emit_B1(a, dict(ka=0, rb=3, hq=4, stamps=stamps, touch=touch))
    if stamps:
        emit_stamps(a, 5, 2, 44, 8)
    a("s_waitcnt vmcnt(0)")
    a.label("LB1_end")
    a("s_endpgm")
    return a.finish()

def kernelB2(stamps=False):
    a = Asm()
    a("s_cmp_ge_u32 s2, 128")
    a("s_cbranch_scc1 LB2_end")
    map_B(a)
    partB.emit_B2(a, dict(ka=0, rb=3, jb=4, stamps=stamps))
    if stamps:
        emit_stamps(a, 4, 2, 44, 8)
    a("s_waitcnt vmcnt(0)")
    a.label("LB2_end")
    a("s_endpgm")
    return a.finish()

def zero_kvz(a):
    a("s_load_dwordx2 s[60:61], s[0:1], 112")
    a("s_waitcnt lgkmcnt(0)")
    a("s_mov_b32 s62, %d" % partB.KVZ_BYTES); a("s_mov_b32 s63, 0x20000"); a("s_and_b32 s61, s61, 0xffff")
    a("s_mul_i32 s64, s2, 272")
    a("v_lshlrev_b32 v3, 2, v0")
    a("v_add_u32 v3, s64, v3")
    a("v_mov_b32 v4, 0")
    a("v_cmp_gt_u32 vcc, 68, v0")
    a("s_and_saveexec_b64 s[66:67], vcc")
    a("s_cbranch_execz Lzk")
    a("buffer_store_dword v4, v3, s[60:63], 0 offen")
    a.label("Lzk")
    a("s_mov_b64 exec, s[66:67]")

def kernelF(stamps=False, Bmod=None, Amod=None):
    Bmod = Bmod or partB2
    a = Asm()
    if stamps:
        a("s_memrealtime s[98:99]")
    a("s_cmp_ge_u32 s2, 256")
    a("s_cbranch_scc1 LF_end")
    a("s_lshr_b32 s6, s2, 4"); a("s_lshl_b32 s6, s6, 3"); a("s_and_b32 s7, s2, 7"); a("s_add_u32 s6, s6, s7")
    a("s_bitcmp1_b32 s2, 3")
    a("s_cbranch_scc1 LF_B")
    a("v_lshrrev_b32 v2, 6, v0")
    a("v_readfirstlane_b32 s7, v2")
    a("s_cmp_ge_u32 s7, 4")
    a("s_cbranch_scc0 LF_A")
    a("s_cmp_eq_u32 s7, 4")
    a("s_cbranch_scc0 LF_end")
    a("s_cmp_lt_u32 s6, 8")
    a("s_cbranch_scc0 LF_end")
    partB2.emit_zero_init(a, 0, 6)
    a("s_endpgm")
    a.label("LF_A")
    a("s_and_b32 s3, s6, 7"); a("s_lshl_b32 s3, s3, 4"); a("s_lshr_b32 s4, s6, 3"); a("s_add_u32 s3, s3, s4")
    r = partA.emit_partA(a, dict(ka=0, cg=3, stamps=stamps))
    if stamps:
        emit_stamps(a, 7, 2, r["s_w"], 8)
    a("s_waitcnt vmcnt(0)")
    a("s_endpgm")
    a.label("LF_B")
    a("s_and_b32 s3, s6, 3"); a("s_lshl_b32 s3, s3, 2")
    a("s_bfe_u32 s4, s6, 0x20003"); a("s_add_u32 s3, s3, s4")
    a("s_bfe_u32 s4, s6, 0x10002"); a("s_lshl_b32 s4, s4, 2")
    a("s_bfe_u32 s5, s6, 0x20005"); a("s_add_u32 s4, s4, s5")
    Bmod.emit_B(a, dict(ka=0, rb=3, hq=4, idx=6, stamps=stamps))
    if stamps:
        emit_stamps2(a, 9, 2, 44, 8)
    a("s_waitcnt vmcnt(0)")
    a.label("LF_end")
    a("s_endpgm")
    return a.finish()

def kernelG(stamps=False, Bmod=None, Aopts=None, Bopts=None, dbg=False):
    a = Asm()
    if dbg:
        stamps = True
    if stamps:
        a("s_memrealtime s[98:99]")
    a("s_cmp_ge_u32 s2, 256")
    a("s_cbranch_scc1 LF_end")
    a("s_lshr_b32 s6, s2, 4"); a("s_lshl_b32 s6, s6, 3"); a("s_and_b32 s7, s2, 7"); a("s_add_u32 s6, s6, s7")
    a("s_bitcmp1_b32 s2, 3")
    a("s_cbranch_scc1 LF_B")
    a("s_and_b32 s3, s6, 7"); a("s_lshl_b32 s3, s3, 4"); a("s_lshr_b32 s4, s6, 3"); a("s_add_u32 s3, s3, s4")
    S = dict(ka=0, cg=3, i16=4, stamps=stamps, zero_pre=Bmod.zero_pre(6), zero_post=Bmod.zero_post(6))
    S.update(Aopts or {})
    r = partA2.emit_partA(a, S)
    if stamps and not dbg:
        emit_stamps(a, 9, 2, r["s_w"], 8)
    a("s_waitcnt vmcnt(0)")
    a("s_endpgm")
    a.label("LF_B")
    a("s_and_b32 s3, s6, 3"); a("s_lshl_b32 s3, s3, 2")
    a("s_bfe_u32 s4, s6, 0x20003"); a("s_add_u32 s3, s3, s4")
    a("s_bfe_u32 s4, s6, 0x10002"); a("s_lshl_b32 s4, s4, 2")
    a("s_bfe_u32 s5, s6, 0x20005"); a("s_add_u32 s4, s4, s5")
    SB = dict(ka=0, rb=3, hq=4, idx=6, stamps=stamps)
    SB.update(Bopts or {})
    Bmod.emit_B(a, SB)
    if stamps and not dbg:
        emit_stamps(a, 12, 2, 44, 8)
    if dbg:
        emit_dbg(a, [1, 2, 4, 5, 6, 8], 6, 37, 44, 8)
    a("s_waitcnt vmcnt(0)")
    a.label("LF_end")
    a("s_endpgm")
    return a.finish()

def emit_dbg(a, idxs, s_sel, sel_val, s_w, base):
    l = a.newlabel("Ldbg")
    a("s_waitcnt vmcnt(0)")
    a("s_memtime s[96:97]")
    a("s_memrealtime s[66:67]")
    a("s_load_dwordx2 s[60:61], s[0:1], 104")
    a("s_waitcnt lgkmcnt(0)")
    a("s_cmp_eq_u32 s%d, %d" % (s_sel, sel_val))
    a("s_cbranch_scc0 %s" % l)
    a("s_cmp_eq_u32 s%d, 0" % s_w)
    a("s_cbranch_scc0 %s" % l)
    a("s_mov_b32 s62, 256"); a("s_mov_b32 s63, 0x20000"); a("s_and_b32 s61, s61, 0xffff")
    a("v_mov_b32 v5, 0")
    k = 0
    for i in idxs:
        a("s_sub_u32 s65, s%d, s70" % (70 + 2 * i))
        a("v_mov_b32 v4, s65")
        a("buffer_store_dword v4, v5, s[60:63], 0 offen offset:%d" % (4 * (base + k))); k += 1
    a("s_sub_u32 s65, s96, s70"); a("v_mov_b32 v4, s65")
    a("buffer_store_dword v4, v5, s[60:63], 0 offen offset:%d" % (4 * (base + k))); k += 1
    a("s_sub_u32 s65, s66, s98"); a("v_mov_b32 v4, s65")
    a("buffer_store_dword v4, v5, s[60:63], 0 offen offset:%d" % (4 * (base + k))); k += 1
    a.label(l)

def emit_stamps2(a, n, s_wg, s_w, nw):
    emit_stamps(a, n, s_wg, s_w, nw)

def kernelBx(Bmod=None, **kw):
    Bmod = Bmod or partB2
    a = Asm()
    a("s_memrealtime s[98:99]")
    a("s_cmp_ge_u32 s2, 128")
    a("s_cbranch_scc1 LF_end")
    a("s_mov_b32 s6, s2")
    a("s_and_b32 s3, s6, 3"); a("s_lshl_b32 s3, s3, 2")
    a("s_bfe_u32 s4, s6, 0x20003"); a("s_add_u32 s3, s3, s4")
    a("s_bfe_u32 s4, s6, 0x10002"); a("s_lshl_b32 s4, s4, 2")
    a("s_bfe_u32 s5, s6, 0x20005"); a("s_add_u32 s4, s4, s5")
    Bmod.emit_B(a, dict(ka=0, rb=3, hq=4, idx=6, stamps=True, x_stop=True, **kw))
    emit_stamps(a, 3, 2, 44, 8)
    a("s_waitcnt vmcnt(0)")
    a.label("LF_end")
    a("s_endpgm")
    return a.finish()

if __name__ == "__main__":
    mode = sys.argv[1]
    if mode == "A":
        txt = assemble([(NAME, 128, 256, partA.A_LDS)], [(NAME, kernelA(), 256, 256)])
    elif mode == "Astamp":
        txt = assemble([(NAME, 128, 256, partA.A_LDS)], [(NAME, kernelA(stamps=True), 256, 256)])
    elif mode == "v1" or mode == "v1st":
        st = mode == "v1st"
        txt = assemble([("ka_kernel", 128, 256, partA.A_LDS), ("kb1_kernel", 128, 512, 163840), ("kb2_kernel", 128, 512, 131072)],
                       [("ka_kernel", kernelA(zero=True), 256, 256), ("kb1_kernel", kernelB1(st), 256, 256), ("kb2_kernel", kernelB2(), 256, 256)])
    elif mode == "B1st":
        txt = assemble([(NAME, 128, 512, 163840)], [(NAME, kernelB1(True), 256, 256)])
    elif mode == "B1stT":
        txt = assemble([(NAME, 128, 512, 163840)], [(NAME, kernelB1(True, True), 256, 256)])
    elif mode == "B2st":
        txt = assemble([(NAME, 128, 512, 131072)], [(NAME, kernelB2(True), 256, 256)])
    elif mode == "v2" or mode == "v2st":
        txt = assemble([(NAME, 256, 512, 163840)], [(NAME, kernelF(mode == "v2st"), 256, 256)])
    elif mode.startswith("By"):
        kw = {}
        for f in mode.split("_")[1:]:
            if f.startswith("np"): kw["npro"] = int(f[2:])
            else: kw["x_" + f] = True
        txt = assemble([(NAME, 128, 512, 163840)], [(NAME, kernelBx(partB3, **kw), 256, 256)])
    elif mode.startswith("Bx"):
        kw = {}
        for f in mode.split("_")[1:]:
            kw["x_" + f] = True
        txt = assemble([(NAME, 128, 512, 163840)], [(NAME, kernelBx(**kw), 256, 256)])
    elif mode == "v3" or mode == "v3st":
        txt = assemble([(NAME, 256, 512, 163840)], [(NAME, kernelF(mode == "v3st", partB3), 256, 256)])
    elif mode.startswith("v4"):
        st = "st" in mode
        ao = {}
        if "late" in mode: ao["u_late"] = True
        if "spread" in mode: ao["u_spread"] = True
        if "tl" in mode: ao["touch_late"] = True
        if "bt" in mode: ao["btouch"] = True; ao["xcd"] = 7
        if "b2" in mode: ao["btouch2"] = True
        if "ue" in mode: ao["u_early"] = True
        if "ot" in mode: ao["otouch"] = True
        if "or" in mode: ao["orot"] = True
        if "cs" in mode: ao["cswap"] = True
        if "ts" in mode: ao["tstage"] = True; ao["xcd"] = 7
        if "cp" in mode:
            ao["cprio"] = True
            import re as _r2
            mm = _r2.search(r"cp(\d)", mode)
            if mm: ao["cprio_n"] = int(mm.group(1))
        bo = {}
        import re as _re
        m_ = _re.search(r"np(\d)", mode)
        if m_: bo["npro"] = int(m_.group(1))
        m_ = _re.search(r"pol(\d)", mode)
        if m_: bo["npoll"] = int(m_.group(1))
        m_ = _re.search(r"slp(\d+)", mode)
        if m_: bo["psleep"] = int(m_.group(1))
        m_ = _re.search(r"kp(\d+)", mode)
        if m_: bo["kpost_per"] = int(m_.group(1))
        txt = assemble([(NAME, 256, 512, 163840)], [(NAME, kernelG(st, partB3, ao, bo, dbg=("dbg" in mode)), 256, 256)])
    elif mode == "Adbg":
        txt = assemble([(NAME, 128, 256, partA.A_LDS)], [(NAME, kernelA("lds"), 256, 256)])
    open(sys.argv[2], "w").write(txt)
```

```python
from asmdsl import Asm
from partA import cmul, cmul2, XEXP, KREG, CB, UBASE, UCH, UCP, XROW, YOFF, LOG2E, INV2PI

SCR = 17408
YX = UBASE + 4 * UCH
YST = YX + 32768
DX = UBASE + 4 * SCR
FLG = DX + 16384
STAMP_BASE = 70


def stamp(a, S, i):
    if S.get("stamps"):
        a("s_memtime s[%d:%d]" % (STAMP_BASE + 2 * i, STAMP_BASE + 2 * i + 1))


def emit_partA(a: Asm, S):
    ka, s_cg, s_i = S["ka"], S["cg"], S["i16"]
    sP = 16
    sD, sO, sU, sOS = 32, 34, 36, 40
    s_w, s_d, s_t0, s_t1, s_kreg, s_cnt = 44, 45, 46, 47, 48, 49
    s_k2, s_k4, s_c, s_h = 50, 51, 52, 53
    s_m0, s_m1 = 54, 56
    stamp(a, S, 0)
    a("s_load_dwordx16 s[%d:%d], s[%d:%d], 0" % (sP, sP + 15, ka, ka + 1))
    a("s_load_dwordx2 s[%d:%d], s[%d:%d], 64" % (sD, sD + 1, ka, ka + 1))
    a("s_load_dwordx2 s[%d:%d], s[%d:%d], 96" % (sO, sO + 1, ka, ka + 1))
    vLane, vT0, vT1, vT2, vT3 = 1, 3, 4, 5, 6
    vOffN, vOffD = 7, 8
    vU0, vU1, vU2 = 9, 10, 11
    vG = 12
    vIn = 14
    vLdt, vDsk = 26, 27
    vR = 28
    vDt, vDtL, vDtP = 46, 47, 48
    vXw, vXr, vD0 = 49, 50, 51
    vTouch = 20
    a("v_and_b32 v%d, 63, v0" % vLane)
    a("v_lshrrev_b32 v2, 6, v0")
    a("v_readfirstlane_b32 s%d, v2" % s_w)
    a("s_and_b32 s%d, s%d, 3" % (s_c, s_w))
    a("s_lshr_b32 s%d, s%d, 2" % (s_h, s_w))
    a("s_lshl_b32 s%d, s%d, 2" % (s_d, s_cg))
    a("s_add_u32 s%d, s%d, s%d" % (s_d, s_d, s_c))
    a("s_lshl_b32 s%d, s%d, 8" % (s_t0, s_d))
    a("s_lshl_b32 s%d, s%d, 7" % (s_t1, s_h))
    a("s_add_u32 s%d, s%d, s%d" % (s_t0, s_t0, s_t1))
    a("v_lshlrev_b32 v%d, 1, v%d" % (vOffN, vLane))
    a("v_add_u32 v%d, s%d, v%d" % (vOffN, s_t0, vOffN))
    a("s_lshl_b32 s%d, s%d, 1" % (s_t1, s_d))
    a("v_mov_b32 v%d, s%d" % (vOffD, s_t1))
    a("s_lshl_b32 s%d, s%d, 6" % (s_t0, s_c))
    a("v_add_u32 v%d, s%d, v%d" % (vG, s_t0, vLane))
    a("s_lshl_b32 s%d, s%d, 3" % (s_t0, s_cg))
    a("v_lshlrev_b32 v%d, 13, v%d" % (vU1, vG))
    a("v_add_u32 v%d, s%d, v%d" % (vU1, s_t0, vU1))
    a("v_add_u32 v%d, 0xfffffc00, v%d" % (vU0, vU1))
    a("v_add_u32 v%d, 4096, v%d" % (vU2, vU1))
    a("s_lshl_b32 s%d, s%d, 7" % (s_t1, s_i))
    a("s_and_b32 s%d, s%d, 1" % (s_cnt, s_c))
    a("s_lshl_b32 s%d, s%d, 6" % (s_cnt, s_cnt))
    a("s_add_u32 s%d, s%d, s%d" % (s_t1, s_t1, s_cnt))
    a("v_add_u32 v%d, s%d, v%d" % (vTouch, s_t1, vLane))
    a("v_lshlrev_b32 v%d, 10, v%d" % (vTouch, vTouch))
    a("v_add_u32 v%d, s%d, v%d" % (vTouch, s_t0, vTouch))
    a("s_waitcnt lgkmcnt(0)")
    if S.get("zero_pre"):
        S["zero_pre"](a, s_w)
    a("global_load_ushort v%d, v%d, s[%d:%d]" % (vLdt, vOffD, sP + 14, sP + 15))
    a("global_load_ushort v%d, v%d, s[%d:%d]" % (vDsk, vOffD, sD, sD + 1))
    for k in range(6):
        a("global_load_ushort v%d, v%d, s[%d:%d]" % (vIn + k, vOffN, sP + 2 + 2 * k, sP + 3 + 2 * k))
    a("s_mov_b32 s%d, s%d" % (sU, sP)); a("s_and_b32 s%d, s%d, 0xffff" % (sU + 1, sP + 1))
    a("s_mov_b32 s%d, 0x200000" % (sU + 2)); a("s_mov_b32 s%d, 0x20000" % (sU + 3))
    a("s_mov_b32 s%d, s%d" % (sOS, sO)); a("s_and_b32 s%d, s%d, 0xffff" % (sOS + 1, sO + 1))
    a("s_mov_b32 s%d, 0x400000" % (sOS + 2)); a("s_mov_b32 s%d, 0x20000" % (sOS + 3))

    def u_loads():
        a("buffer_load_dwordx2 v[%d:%d], v%d, s[%d:%d], 0 offen" % (vR, vR + 1, vU0, sU, sU + 3))
        for r in range(1, 9):
            vo = vU1 if r <= 4 else vU2
            a("buffer_load_dwordx2 v[%d:%d], v%d, s[%d:%d], 0 offen offset:%d" % (vR + 2 * r, vR + 2 * r + 1, vo, sU, sU + 3, ((r - 1) % 4) * 1024))

    def touch():
        lt = a.newlabel("Lt")
        a("s_cmp_lt_u32 s%d, 2" % s_w)
        a("s_cbranch_scc0 %s" % lt)
        a("buffer_load_dword v%d, v%d, s[%d:%d], 0 offen" % (vTouch + 1, vTouch, sU, sU + 3))
        a.label(lt)
    if not S.get("touch_late"):
        touch()
    if S.get("u_early"):
        lue = a.newlabel("Lue")
        a("s_cmp_eq_u32 s%d, 1" % s_h)
        a("s_cbranch_scc0 %s" % lue)
        u_loads()
        a.label(lue)

    a("s_mul_i32 s%d, s%d, %d" % (s_kreg, s_c, KREG))
    a("s_mul_i32 s%d, s%d, %d" % (s_t0, s_c, SCR))
    a("s_add_u32 s%d, s%d, %d" % (s_t0, s_t0, UBASE))
    a("s_cmp_eq_u32 s%d, 1" % s_h)
    a("s_cselect_b32 s%d, s%d, s%d" % (s_kreg, s_t0, s_kreg))
    a("v_lshlrev_b32 v%d, 2, v%d" % (vXw, vLane))
    a("v_add_u32 v%d, s%d, v%d" % (vXw, s_kreg, vXw))
    a("v_and_b32 v%d, 31, v%d" % (vT0, vLane))
    a("v_mul_u32_u24 v%d, %d, v%d" % (vXr, XROW, vT0))
    a("v_lshrrev_b32 v%d, 5, v%d" % (vT1, vLane))
    a("v_lshlrev_b32 v%d, 4, v%d" % (vT1, vT1))
    a("v_add3_u32 v%d, v%d, v%d, s%d" % (vXr, vXr, vT1, s_kreg))
    vDX, vKw, vKr_, vUw = 224, 225, 226, 230
    vA, vB, vZ = 231, 232, 233
    vBc = 237
    s_kb = 68
    Y0, Y1 = 192, 208
    a("s_lshl_b32 s%d, s%d, 12" % (s_t0, s_c))
    a("s_add_u32 s%d, s%d, %d" % (s_t0, s_t0, DX))
    a("v_lshlrev_b32 v%d, 4, v%d" % (vDX, vLane))
    a("v_add_u32 v%d, s%d, v%d" % (vDX, s_t0, vDX))
    a("s_mul_i32 s%d, s%d, %d" % (s_kb, s_c, KREG))
    a("v_lshlrev_b32 v%d, 4, v%d" % (vKw, vLane))
    a("v_sub_u32 v%d, s%d, v%d" % (vKw, s_kb, vKw))
    a("v_add_u32 v%d, %d, v%d" % (vKw, 4 * 1020 - 3072, vKw))
    a("v_bfe_u32 v%d, v%d, 3, 2" % (vT1, vLane))
    for k in range(4):
        a("v_add_u32 v%d, %d, v%d" % (vT2, k, vT1))
        a("v_and_b32 v%d, 3, v%d" % (vT2, vT2))
        a("v_lshlrev_b32 v%d, 2, v%d" % (vT2, vT2))
        a("v_add_u32 v%d, v%d, v%d" % (vKr_ + k, vKw, vT2))
    a("v_bfe_u32 v%d, v%d, 3, 1" % (vT2, vLane))
    a("v_cmp_eq_u32 s[%d:%d], 1, v%d" % (s_m0, s_m0 + 1, vT2))
    a("v_bfe_u32 v%d, v%d, 4, 1" % (vT2, vLane))
    a("v_cmp_eq_u32 s[%d:%d], 1, v%d" % (s_m1, s_m1 + 1, vT2))
    a("v_and_b32 v%d, 1, v%d" % (vT1, vLane))
    a("v_cmp_eq_u32 s[58:59], 1, v%d" % vT1)
    a("v_lshrrev_b32 v%d, 3, v%d" % (vT0, vG))
    a("v_add_u32 v%d, v%d, v%d" % (vT0, vT0, vG))
    a("v_lshlrev_b32 v%d, 4, v%d" % (vUw, vT0))
    a("v_add_u32 v%d, %d, v%d" % (vUw, UBASE + 16, vUw))
    a("v_and_b32 v%d, 31, v%d" % (vT0, vLane))
    a("v_add_u32 v%d, 1, v%d" % (vT1, vT0))
    a("v_and_b32 v%d, 3, v%d" % (vT1, vT1))
    a("v_mul_u32_u24 v%d, %d, v%d" % (vT2, 4416 + 4, vT1))
    a("v_cmp_eq_u32 vcc, 0, v%d" % vT1)
    a("v_mov_b32 v%d, 16" % vT3)
    a("v_cndmask_b32 v%d, v%d, v%d, vcc" % (vT2, vT2, vT3))
    a("v_lshlrev_b32 v%d, 2, v%d" % (vT0, vT0))
    a("v_sub_u32 v%d, v%d, v%d" % (vT2, vT2, vT0))
    a("v_lshrrev_b32 v%d, 5, v%d" % (vT1, vLane))
    a("v_lshlrev_b32 v%d, 4, v%d" % (vT1, vT1))
    a("s_lshl_b32 s%d, s%d, 10" % (s_t0, s_h))
    a("s_add_u32 s%d, s%d, s%d" % (s_t0, s_t0, s_kb))
    a("v_add3_u32 v%d, v%d, v%d, s%d" % (vA, vT2, vT1, s_t0))
    a("v_add_u32 v%d, %d, v%d" % (vA, 4 * 543 - 2048, vA))
    a("v_and_b32 v%d, 1, v%d" % (vT0, vLane))
    a("v_mul_u32_u24 v%d, %d, v%d" % (vT0, UCP, vT0))
    a("s_mul_i32 s%d, s%d, %d" % (s_t0, s_c, UCH))
    a("s_add_u32 s%d, s%d, %d" % (s_t0, s_t0, UBASE + 16))
    a("v_add_u32 v%d, s%d, v%d" % (vT0, s_t0, vT0))
    a("v_add_u32 v%d, -16, v%d" % (vZ, vT0))
    for j in range(1, 4):
        a("v_add_u32 v%d, %d, v%d" % (vZ + j, -16 - 32 * j, vT0))
    a("v_bfe_u32 v%d, v%d, 1, 4" % (vT2, vLane))
    a("v_mul_u32_u24 v%d, 144, v%d" % (vT2, vT2))
    a("v_add3_u32 v%d, v%d, v%d, v%d" % (vB, vT0, vT2, vT1))
    a("s_mul_i32 s%d, s%d, %d" % (s_t0, s_h, 8 * 144))
    a("s_add_u32 s%d, s%d, %d" % (s_t0, s_t0, -16 * 135))
    a("v_add_u32 v%d, s%d, v%d" % (vB, s_t0, vB))
    for i in range(16):
        a("v_mov_b32 v%d, 0" % (Y0 + i)); a("v_mov_b32 v%d, 0" % (Y1 + i))
    Z0 = 240
    for r in range(4):
        a("v_mov_b32 v%d, 0" % (Z0 + r))
    vE0, vE1, vYw = 246, 247, 248
    a("s_lshl_b32 s%d, s%d, 12" % (s_t0, s_w))
    a("v_lshlrev_b32 v%d, 4, v%d" % (vE0, vLane))
    a("v_add_u32 v%d, s%d, v%d" % (vE0, s_t0, vE0))
    a("v_xor_b32 v%d, 0x4000, v%d" % (vE1, vE0))
    a("v_add_u32 v%d, %d, v%d" % (vE0, YX, vE0))
    a("v_add_u32 v%d, %d, v%d" % (vE1, YX, vE1))
    a("v_bfe_u32 v%d, v%d, 1, 4" % (vT0, vLane))
    a("v_mul_u32_u24 v%d, 528, v%d" % (vT0, vT0))
    a("v_and_b32 v%d, 1, v%d" % (vT1, vLane))
    a("v_lshlrev_b32 v%d, 3, v%d" % (vT1, vT1))
    a("v_lshrrev_b32 v%d, 5, v%d" % (vT2, vLane))
    a("v_lshlrev_b32 v%d, 6, v%d" % (vT2, vT2))
    a("v_add3_u32 v%d, v%d, v%d, v%d" % (vYw, vT0, vT1, vT2))
    a("s_lshl_b32 s%d, s%d, 1" % (s_t0, s_c))
    a("s_mul_i32 s%d, s%d, 8448" % (s_t1, s_h))
    a("s_add_u32 s%d, s%d, s%d" % (s_t0, s_t0, s_t1))
    a("s_add_u32 s%d, s%d, %d" % (s_t0, s_t0, YST))
    a("v_add_u32 v%d, s%d, v%d" % (vYw, s_t0, vYw))
    vRd, vOa = 249, 250
    vGp = 251
    if S.get("orot"):
        a("s_lshl_b32 s%d, s%d, 5" % (s_t0, s_i))
        a("v_add_u32 v%d, s%d, v0" % (vGp, s_t0))
        a("v_and_b32 v%d, 511, v%d" % (vGp, vGp))
    else:
        a("v_mov_b32 v%d, v0" % vGp)
    a("v_lshrrev_b32 v%d, 4, v%d" % (vT0, vGp))
    a("v_lshlrev_b32 v%d, 4, v%d" % (vT0, vT0))
    a("v_lshlrev_b32 v%d, 5, v%d" % (vT1, vGp))
    a("v_add3_u32 v%d, v%d, v%d, %d" % (vRd, vT0, vT1, 0))
    a("v_add_u32 v%d, %d, v%d" % (vRd, YST, vRd))
    a("v_lshlrev_b32 v%d, 13, v%d" % (vOa, vGp))
    a("s_lshl_b32 s%d, s%d, 3" % (s_t0, s_cg))
    a("v_add_u32 v%d, s%d, v%d" % (vOa, s_t0, vOa))
    if S.get("btouch"):
        s_x = S["xcd"]
        sBX, sBW = 60, 64
        vBT = 22
        lb = a.newlabel("Lbt")
        a("s_load_dwordx4 s[88:91], s[%d:%d], 72" % (ka, ka + 1))
        a("s_cmp_lt_u32 s%d, 4" % s_w)
        a("s_cbranch_scc0 %s" % lb)
        a("s_and_b32 s%d, s%d, 3" % (s_t0, s_x))
        a("s_lshl_b32 s%d, s%d, 9" % (s_t0, s_t0))
        a("s_lshl_b32 s%d, s%d, 5" % (s_t1, s_i))
        a("s_add_u32 s%d, s%d, s%d" % (s_t0, s_t0, s_t1))
        a("v_and_b32 v%d, 31, v%d" % (vBT, vLane))
        a("v_add_u32 v%d, s%d, v%d" % (vBT, s_t0, vBT))
        a("v_lshlrev_b32 v%d, 10, v%d" % (vBT, vBT))
        a("v_lshrrev_b32 v%d, 5, v%d" % (vT0, vLane))
        a("s_and_b32 s%d, s%d, 1" % (s_t1, s_w))
        a("s_lshl_b32 s%d, s%d, 1" % (s_t1, s_t1))
        a("v_add_u32 v%d, s%d, v%d" % (vT0, s_t1, vT0))
        a("v_lshlrev_b32 v%d, 8, v%d" % (vT0, vT0))
        a("v_add3_u32 v%d, v%d, v%d, %d" % (vBT, vBT, vT0, 0))
        a("v_add_u32 v%d, 128, v%d" % (vBT, vBT))
        a("s_lshr_b32 s%d, s%d, 2" % (s_t0, s_i))
        a("s_lshl_b32 s%d, s%d, 1" % (s_t0, s_t0))
        a("s_add_u32 s%d, s%d, 1" % (s_t0, s_t0))
        a("s_lshl_b32 s%d, s%d, 6" % (s_t0, s_t0))
        a("v_add_u32 v%d, s%d, v%d" % (vT1, s_t0, vLane))
        a("v_mul_u32_u24 v%d, 3072, v%d" % (vT1, vT1))
        a("s_lshr_b32 s%d, s%d, 2" % (s_t0, s_x))
        a("s_lshl_b32 s%d, s%d, 2" % (s_t0, s_t0))
        a("s_and_b32 s%d, s%d, 3" % (s_t1, s_i))
        a("s_add_u32 s%d, s%d, s%d" % (s_t0, s_t0, s_t1))
        a("s_lshl_b32 s%d, s%d, 7" % (s_t0, s_t0))
        a("s_and_b32 s%d, s%d, 1" % (s_t1, s_w))
        a("s_add_u32 s%d, s%d, 1" % (s_t1, s_t1))
        a("s_lshl_b32 s%d, s%d, 10" % (s_t1, s_t1))
        a("s_add_u32 s%d, s%d, s%d" % (s_t0, s_t0, s_t1))
        a("v_add_u32 v%d, s%d, v%d" % (vT1, s_t0, vT1))
        a("s_waitcnt lgkmcnt(0)")
        a("s_mov_b32 s%d, s88" % sBX); a("s_and_b32 s%d, s89, 0xffff" % (sBX + 1)); a("s_mov_b32 s%d, 0x200000" % (sBX + 2)); a("s_mov_b32 s%d, 0x20000" % (sBX + 3))
        a("s_mov_b32 s%d, s90" % sBW); a("s_and_b32 s%d, s91, 0xffff" % (sBW + 1)); a("s_mov_b32 s%d, 0x180000" % (sBW + 2)); a("s_mov_b32 s%d, 0x20000" % (sBW + 3))
        lb2 = a.newlabel("Lbt")
        a("s_cmp_lt_u32 s%d, 2" % s_w)
        a("s_cbranch_scc0 %s" % lb2)
        a("buffer_load_dword v%d, v%d, s[%d:%d], 0 offen" % (vBT + 1, vBT, sBX, sBX + 3))
        a("s_branch %s" % lb)
        a.label(lb2)
        a("buffer_load_dword v%d, v%d, s[%d:%d], 0 offen" % (vBT + 1, vT1, sBW, sBW + 3))
        a.label(lb)

    vFl = 252
    a("v_and_b32 v%d, 7, v%d" % (vFl, vLane))
    a("v_lshlrev_b32 v%d, 2, v%d" % (vFl, vFl))
    a("v_add_u32 v%d, %d, v%d" % (vFl, FLG, vFl))
    a("ds_write_b32 v%d, v%d" % (vFl, Z0))
    a("s_waitcnt lgkmcnt(0)")
    a("s_barrier")
    lw1, lw2 = a.newlabel("Lw"), a.newlabel("Lw")
    nb = 1 if S.get("btouch") else 0
    nt = 0 if S.get("touch_late") else 1
    lw3 = a.newlabel("Lw")
    a("s_cmp_lt_u32 s%d, 2" % s_w)
    a("s_cbranch_scc0 %s" % lw1)
    a("s_waitcnt vmcnt(%d)" % (nb + nt))
    a("s_branch %s" % lw2)
    a.label(lw1)
    a("s_cmp_lt_u32 s%d, 4" % s_w)
    a("s_cbranch_scc0 %s" % lw3)
    a("s_waitcnt vmcnt(%d)" % nb)
    a("s_branch %s" % lw2)
    a.label(lw3)
    a("s_waitcnt vmcnt(%d)" % (9 if S.get("u_early") else 0))
    a.label(lw2)
    if S.get("touch_late"):
        touch()
    if S.get("btouch2"):
        s_x = S["xcd"]
        l2 = a.newlabel("Lb2")
        a("s_load_dwordx4 s[88:91], s[%d:%d], 80" % (ka, ka + 1))
        a("s_cmp_ge_u32 s%d, 2" % s_w)
        a("s_cbranch_scc0 %s" % l2)
        a("s_cmp_lt_u32 s%d, 6" % s_w)
        a("s_cbranch_scc0 %s" % l2)
        a("s_lshl_b32 s%d, s%d, 7" % (s_t0, s_i))
        a("s_and_b32 s%d, s%d, 1" % (s_t1, s_w))
        a("s_lshl_b32 s%d, s%d, 6" % (s_t1, s_t1))
        a("s_add_u32 s%d, s%d, s%d" % (s_t0, s_t0, s_t1))
        a("v_add_u32 v%d, s%d, v%d" % (vT0, s_t0, vLane))
        a("v_lshrrev_b32 v%d, 2, v%d" % (vT1, vT0))
        a("v_and_b32 v%d, 3, v%d" % (vT0, vT0))
        a("s_lshr_b32 s%d, s%d, 2" % (s_t0, s_x))
        a("s_lshl_b32 s%d, s%d, 2" % (s_t0, s_t0))
        a("v_add_u32 v%d, s%d, v%d" % (vT0, s_t0, vT0))
        a("v_lshlrev_b32 v%d, 7, v%d" % (vT0, vT0))
        a("v_mul_u32_u24 v%d, 3072, v%d" % (vT2, vT1))
        a("v_add_u32 v%d, v%d, v%d" % (vT2, vT2, vT0))
        a("v_lshlrev_b32 v%d, 10, v%d" % (vT3, vT1))
        a("v_add_u32 v%d, v%d, v%d" % (vT3, vT3, vT0))
        a("s_waitcnt lgkmcnt(0)")
        a("s_mov_b32 s60, s88"); a("s_and_b32 s61, s89, 0xffff"); a("s_mov_b32 s62, 0x180000"); a("s_mov_b32 s63, 0x20000")
        a("s_mov_b32 s64, s90"); a("s_and_b32 s65, s91, 0xffff"); a("s_mov_b32 s66, 0x80000"); a("s_mov_b32 s67, 0x20000")
        l3 = a.newlabel("Lb3")
        a("s_cmp_lt_u32 s%d, 4" % s_w)
        a("s_cbranch_scc0 %s" % l3)
        a("buffer_load_dword v23, v%d, s[60:63], 0 offen" % vT2)
        a("s_branch %s" % l2)
        a.label(l3)
        a("buffer_load_dword v23, v%d, s[64:67], 0 offen" % vT3)
        a.label(l2)
    if S.get("zero_post"):
        S["zero_post"](a, s_w)
    stamp(a, S, 1)
    a("v_lshlrev_b32 v%d, 16, v%d" % (vLdt, vLdt))
    a("v_lshlrev_b32 v%d, 16, v%d" % (vDsk, vDsk))
    a("v_mul_f32 v%d, 0x%x, v%d" % (vDt, LOG2E, vLdt))
    a("v_exp_f32 v%d, v%d" % (vDt, vDt))
    for k in range(6):
        a("v_lshlrev_b32 v%d, 16, v%d" % (vIn + k, vIn + k))
    a("v_cvt_pk_bf16_f32 v%d, v%d, v%d" % (vDt, vDt, vDt))
    a("v_and_b32 v%d, 0xffff0000, v%d" % (vDt, vDt))
    a("v_mul_f32 v%d, 0x%x, v%d" % (vDtL, LOG2E, vDt))
    a("v_mul_f32 v%d, 0x%x, v%d" % (vDtP, INV2PI, vDt))
    a("v_cmp_eq_u32 vcc, 0, v%d" % vLane)
    a("v_cndmask_b32 v%d, 0, v%d, vcc" % (vD0, vDsk))
    real_a = a
    class _L:
        def __init__(self): self.l = []
        def __call__(self, t):
            for x in t.split("\n"):
                x = x.strip()
                if x: self.l.append(x)
    a = _L()
    c0 = 52
    Z1, Z2, Z4, Z8, Z16, Z32, Z64, Z128, Z256, W = [c0 + 2 * i for i in range(10)]
    wk = [72 + 2 * i for i in range(12)]
    tc = [96, 97, 98, 99]
    FA, FB = 100, 132
    DK = 164
    tci = [0]

    def put(P, rows, isX):
        t = tc[tci[0] % 4]; tci[0] += 1
        if isX:
            a("v_cvt_pk_bf16_f32 v%d, v%d, -v%d" % (t, P, P + 1))
        else:
            a("v_cvt_pk_bf16_f32 v%d, v%d, v%d" % (t, P, P + 1))
        for r in rows:
            a("ds_write_b32 v%d, v%d offset:%d" % (vXw, t, r * XROW + (0 if isX else YOFF)))

    I = vIn
    Are, Aim, Bre, Cre = I, I + 1, I + 2, I + 4
    m_, ph = wk[0], wk[0] + 1
    a("v_mul_f32 v%d, v%d, v%d" % (m_, Are, vDtL))
    a("v_mul_f32 v%d, v%d, v%d" % (ph, Aim, vDtP))
    a("v_exp_f32 v%d, v%d" % (m_, m_))
    a("v_rndne_f32 v%d, v%d" % (wk[2], ph))
    a("v_sub_f32 v%d, v%d, v%d" % (ph, ph, wk[2]))
    cmul(a, wk[1], Cre, Bre)
    a("v_cos_f32 v%d, v%d" % (Z1, ph))
    a("v_sin_f32 v%d, v%d" % (Z1 + 1, ph))
    a("v_mul_f32 v%d, v%d, v%d" % (W, wk[1], vDt))
    a("v_mul_f32 v%d, v%d, v%d" % (W + 1, wk[1] + 1, vDt))
    a("v_mul_f32 v%d, v%d, v%d" % (Z1, Z1, m_))
    a("v_mul_f32 v%d, v%d, v%d" % (Z1 + 1, Z1 + 1, m_))
    put(W, XEXP[0], True)
    cmul2(a, [(Z2, Z1, Z1), (wk[1], W, Z1)])
    put(wk[1], XEXP[1], True)
    cmul2(a, [(Z4, Z2, Z2), (wk[2], W, Z2), (wk[3], wk[1], Z2)])
    put(wk[2], XEXP[2], True); put(wk[3], XEXP[3], True)
    cmul2(a, [(Z8, Z4, Z4), (wk[4], W, Z4), (wk[5], wk[1], Z4), (wk[6], wk[2], Z4), (wk[7], wk[3], Z4)])
    for k_, e_ in ((4, 4), (5, 5), (6, 6), (7, 7)):
        put(wk[k_], XEXP[e_], True)
    cmul(a, Z16, Z8, Z8)
    a("v_mov_b32 v%d, 0x00003f80" % tc[0])
    tci[0] = 1
    a("ds_write_b32 v%d, v%d offset:%d" % (vXw, tc[0], YOFF))
    put(Z8, [1], False)
    cmul2(a, [(Z32, Z16, Z16), (wk[3], Z8, Z16)])
    put(Z16, [2], False); put(wk[3], [3], False)
    cmul2(a, [(Z64, Z32, Z32), (wk[1], Z8, Z32), (wk[2], Z16, Z32), (wk[7], wk[3], Z32)])
    put(Z32, [4], False); put(wk[1], [5], False); put(wk[2], [6], False); put(wk[7], [7], False)
    cur = [Z32, wk[1], wk[2], wk[7]]
    setA = [wk[3], wk[4], wk[5], wk[6]]
    setB = [wk[8], wk[9], wk[10], wk[11]]
    nxt = setB
    for j0 in range(8, 32, 4):
        extra = []
        if j0 == 8:
            extra = [(Z128, Z64, Z64)]
        elif j0 == 12:
            extra = [(Z256, Z128, Z128)]
        cmul2(a, [(nxt[k], cur[k], Z32) for k in range(4)] + extra)
        for k in range(4):
            put(nxt[k], [j0 + k], False)
        cur = nxt
        nxt = setA if cur is setB else setB
    G = wk[0]; Gn = wk[1]
    cmul(a, G, W, Z256)
    put(G, XEXP[256], True)
    cmul2(a, [(wk[2], G, Z2), (wk[3], G, Z4), (wk[4], G, Z8), (Gn, G, Z256)])
    put(wk[2], XEXP[258], True); put(wk[3], XEXP[260], True); put(wk[4], XEXP[264], True)
    cmul2(a, [(wk[5], wk[2], Z4), (wk[6], Gn, Z4), (wk[7], Gn, Z8), (G, Gn, Z256)])
    put(wk[5], XEXP[262], True); put(Gn, XEXP[512], True); put(wk[6], XEXP[516], True); put(wk[7], XEXP[520], True)
    cmul2(a, [(wk[2], G, Z4), (wk[3], G, Z8), (Gn, G, Z256)])
    put(G, XEXP[768], True); put(wk[2], XEXP[772], True); put(wk[3], XEXP[776], True)
    cmul2(a, [(wk[4], Gn, Z8), (G, Gn, Z256)])
    put(Gn, XEXP[1024], True); put(wk[4], XEXP[1032], True)
    cmul2(a, [(wk[5], G, Z8), (Gn, G, Z256)])
    put(G, XEXP[1280], True); put(wk[5], XEXP[1288], True)
    cmul2(a, [(wk[6], Gn, Z8), (G, Gn, Z256)])
    put(Gn, XEXP[1536], True); put(wk[6], XEXP[1544], True)
    cmul(a, wk[7], G, Z8)
    put(G, XEXP[1792], True); put(wk[7], XEXP[1800], True)
    kg_lines = a.l
    a = real_a
    for x in kg_lines:
        a(x)
    a("s_waitcnt lgkmcnt(0)")
    for m in range(7):
        a("ds_read_b128 v[%d:%d], v%d offset:%d" % (FA + 4 * m, FA + 4 * m + 3, vXr, 32 * m))
        a("ds_read_b128 v[%d:%d], v%d offset:%d" % (FB + 4 * m, FB + 4 * m + 3, vXr, YOFF + 32 * m))
    for m in range(8):
        if m == 1:
            a("ds_read_b128 v[%d:%d], v%d offset:%d" % (FA + 28, FA + 31, vXr, 32 * 7))
            a("ds_read_b128 v[%d:%d], v%d offset:%d" % (FB + 28, FB + 31, vXr, YOFF + 32 * 7))
        a("s_waitcnt lgkmcnt(%d)" % (12 if m == 0 else 14 - 2 * m))
        c_ = "0" if m == 0 else "v[%d:%d]" % (DK, DK + 15)
        a("v_mfma_f32_32x32x16_bf16 v[%d:%d], v[%d:%d], v[%d:%d], %s" % (DK, DK + 15, FA + 4 * m, FA + 4 * m + 3, FB + 4 * m, FB + 4 * m + 3, c_))
    stamp(a, S, 2)
    stamp(a, S, 3)
    lH1, lJb = a.newlabel("LAh"), a.newlabel("LAh")
    d = DK
    E = 112
    PK = 112
    TT, RR, vM = 128, 132, 144
    vOne, vFa = 253, 254
    cv = lambda dst, lo, hi: a("v_cvt_pk_bf16_f32 v%d, v%d, v%d" % (dst, lo, hi))

    def kwrite(s_, P):
        a("ds_write_b128 v%d, v[%d:%d] offset:%d" % (vKw, P, P + 3, 16 * CB[0] + 1024 * (3 - s_)))
        for k in range(4):
            a("v_cndmask_b32 v%d, v%d, v%d, s[%d:%d]" % (TT + k, P + k, P + ((k + 1) & 3), s_m0, s_m0 + 1))
        R = RR + 4 * (s_ & 1)
        for k in range(4):
            a("v_cndmask_b32 v%d, v%d, v%d, s[%d:%d]" % (R + k, TT + k, TT + ((k + 2) & 3), s_m1, s_m1 + 1))
        for e in range(1, 4):
            for k in range(4):
                a("ds_write_b32 v%d, v%d offset:%d" % (vKr_ + k, R + k, 16 * CB[e] + 4 * e + 1024 * (3 - s_)))

    a("v_mov_b32 v%d, 1" % vOne)
    a("s_lshl_b32 s%d, s%d, 2" % (s_t0, s_c))
    a("s_add_u32 s%d, s%d, %d" % (s_t0, s_t0, FLG))
    a("v_mov_b32 v%d, s%d" % (vFa, s_t0))
    a("s_cmp_eq_u32 s%d, 1" % s_h)
    a("s_cbranch_scc1 %s" % lH1)
    for q in range(4):
        a("ds_write_b128 v%d, v[%d:%d] offset:%d" % (vDX, d + 4 * q, d + 4 * q + 3, 1024 * q))
    a("s_waitcnt lgkmcnt(0)")
    a("ds_write_b32 v%d, v%d" % (vFa, vOne))
    u_loads()
    PU = 112
    a("s_mov_b32 s%d, 0x05040100" % s_t0)
    a("s_mov_b32 s%d, 0x07060302" % s_t1)
    a("v_mov_b32 v%d, %d" % (vT0, FLG + 16))
    lsp = a.newlabel("Lsp")
    a.label(lsp)
    a("ds_read_b128 v[144:147], v%d" % vT0)
    a("s_waitcnt lgkmcnt(0)")
    a("v_and_b32 v144, v144, v145")
    a("v_and_b32 v146, v146, v147")
    a("v_and_b32 v144, v144, v146")
    a("v_readfirstlane_b32 s%d, v144" % s_cnt)
    a("s_cmp_eq_u32 s%d, 1" % s_cnt)
    a("s_cbranch_scc0 %s" % lsp)
    a("v_and_b32 v%d, 7, v%d" % (vT0, vLane))
    a("v_mul_u32_u24 v%d, %d, v%d" % (vT0, UCP, vT0))
    a("v_add_u32 v%d, %d, v%d" % (vT0, UBASE, vT0))
    a("ds_write_b128 v%d, v[240:243]" % vT0)
    a("s_waitcnt vmcnt(0)")
    stamp(a, S, 4)
    for c in range(4):
        for rho in range(2):
            P = PU + 4 * (2 * c + rho)
            sel = s_t0 if (c & 1) == 0 else s_t1
            for j in range(4):
                r = rho + 2 * j
                a("v_perm_b32 v%d, v%d, v%d, s%d" % (P + j, vR + 2 * (r + 1) + (c >> 1), vR + 2 * r + (c >> 1), sel))
            a("ds_write_b128 v%d, v[%d:%d] offset:%d" % (vUw, P, P + 3, c * UCH + rho * UCP))
    a("s_branch %s" % lJb)
    a.label(lH1)
    a("ds_write_b32 v%d, v%d offset:16" % (vFa, vOne))
    lsq = a.newlabel("Lsq")
    a.label(lsq)
    a("ds_read_b32 v144, v%d" % vFa)
    a("s_waitcnt lgkmcnt(0)")
    a("v_readfirstlane_b32 s%d, v144" % s_cnt)
    a("s_cmp_eq_u32 s%d, 1" % s_cnt)
    a("s_cbranch_scc0 %s" % lsq)
    stamp(a, S, 4)
    for q in range(4):
        a("ds_read_b128 v[%d:%d], v%d offset:%d" % (E + 4 * q, E + 4 * q + 3, vDX, 1024 * q))
    a("v_lshlrev_b32 v%d, 2, v%d" % (vT0, vLane))
    a("v_add_u32 v%d, s%d, v%d" % (vT0, s_kb, vT0))
    for e in range(4):
        a("ds_write_b32 v%d, v%d offset:%d" % (vT0, Z0, 16 * CB[e] + 4 * (1024 + e)))
    a("s_waitcnt lgkmcnt(4)")
    for i in range(15):
        a("v_add_f32 v%d, v%d, v%d" % (d + i, d + i, E + i))
    a("v_add_f32 v%d, v%d, v%d" % (d, d, vD0))
    cv(PK + 0, d + 7, d + 6); cv(PK + 1, d + 5, d + 4); cv(PK + 2, d + 3, d + 2); cv(PK + 3, d + 1, d + 0)
    cv(PK + 4, d + 10, d + 10); cv(PK + 5, d + 9, d + 9); cv(PK + 6, d + 9, d + 8); cv(PK + 7, d + 8, d + 8)
    for s_, (v0_, v1_) in ((2, (d + 11, d + 12)), (3, (d + 13, d + 14))):
        P = PK + 4 * s_
        a("v_cndmask_b32 v%d, v%d, v%d, s[58:59]" % (vM, v0_, v1_))
        cv(P + 0, v1_, v1_); cv(P + 1, v1_, vM); cv(P + 2, v0_, v0_); cv(P + 3, v0_, v0_)
    for s_ in range(4):
        kwrite(s_, PK + 4 * s_)
    a.label(lJb)
    stamp(a, S, 5)
    FR = 112
    a("s_waitcnt lgkmcnt(0)")
    a("s_barrier")
    stamp(a, S, 6)
    if S.get("otouch"):
        lo = a.newlabel("Lot")
        a("s_cmp_lt_u32 s%d, 2" % s_w)
        a("s_cbranch_scc0 %s" % lo)
        a("s_lshl_b32 s%d, s%d, 7" % (s_t0, s_i))
        a("s_lshl_b32 s%d, s%d, 6" % (s_t1, s_w))
        a("s_add_u32 s%d, s%d, s%d" % (s_t0, s_t0, s_t1))
        a("v_add_u32 v%d, s%d, v%d" % (vT0, s_t0, vLane))
        a("v_lshlrev_b32 v%d, 11, v%d" % (vT0, vT0))
        a("s_lshl_b32 s%d, s%d, 3" % (s_t0, s_cg))
        a("v_add_u32 v%d, s%d, v%d" % (vT0, s_t0, vT0))
        a("buffer_load_dword v%d, v%d, s[%d:%d], 0 offen" % (vT1, vT0, sOS, sOS + 3))
        a.label(lo)

    def reads(j, buf):
        F = FR + 16 * buf
        a("v_max_i32 v%d, v%d, v%d" % (vBc + (j & 1), vB, vZ + j))
        a("ds_read_b128 v[%d:%d], v%d offset:%d" % (F, F + 3, vA, 2048 + 32 * j))
        a("ds_read_b128 v[%d:%d], v%d offset:%d" % (F + 8, F + 11, vBc + (j & 1), 32 * j))
        a("ds_read_b128 v[%d:%d], v%d offset:%d" % (F + 12, F + 15, vB, 2304 + 32 * j))
        a("ds_read_b128 v[%d:%d], v%d offset:%d" % (F + 4, F + 7, vA, 32 * j))

    if S.get("cprio"):
        lpr = a.newlabel("Lpr")
        a("s_cmp_eq_u32 s%d, 1" % s_h)
        a("s_cbranch_scc0 %s" % lpr)
        a("s_setprio 1")
        a.label(lpr)
    reads(0, 0); reads(1, 1)
    a("s_mov_b32 s%d, 0" % s_cnt)
    lp = a.newlabel("Lconv")
    a.label(lp)
    for j in range(4):
        if j < 2:
            reads(j + 2, j + 2)
        else:
            if j == 2:
                a("v_add_u32 v%d, 128, v%d" % (vA, vA))
                a("v_add_u32 v%d, 144, v%d" % (vB, vB))
            reads(j - 2, j - 2)
        a("s_waitcnt lgkmcnt(8)")
        F = FR + 16 * j
        m0 = "v_mfma_f32_32x32x16_bf16 v[%d:%d], v[%d:%d], v[%d:%d], v[%d:%d]" % (Y0, Y0 + 15, F, F + 3, F + 8, F + 11, Y0, Y0 + 15)
        m1 = "v_mfma_f32_32x32x16_bf16 v[%d:%d], v[%d:%d], v[%d:%d], v[%d:%d]" % (Y1, Y1 + 15, F, F + 3, F + 12, F + 15, Y1, Y1 + 15)
        m2 = "v_mfma_f32_32x32x16_bf16 v[%d:%d], v[%d:%d], v[%d:%d], v[%d:%d]" % (Y1, Y1 + 15, F + 4, F + 7, F + 8, F + 11, Y1, Y1 + 15)
        for x in ((m1, m0, m2) if S.get("cswap") else (m0, m1, m2)):
            a(x)
    a("s_add_u32 s%d, s%d, 1" % (s_cnt, s_cnt))
    if S.get("cprio"):
        lq = a.newlabel("Lq")
        a("s_cmp_eq_u32 s%d, %d" % (s_cnt, S.get("cprio_n", 4)))
        a("s_cbranch_scc0 %s" % lq)
        a("s_setprio 0")
        a.label(lq)
    a("s_cmp_lt_u32 s%d, 8" % s_cnt)
    a("s_cbranch_scc1 %s" % lp)
    a("s_waitcnt lgkmcnt(0)")
    stamp(a, S, 7)
    lX1, lX2, lX3, lX4 = [a.newlabel("LAx") for _ in range(4)]
    a("s_cmp_eq_u32 s%d, 0" % s_h)
    a("s_cbranch_scc0 %s" % lX1)
    for q in range(4):
        a("ds_write_b128 v%d, v[%d:%d] offset:%d" % (vE0, Y1 + 4 * q, Y1 + 4 * q + 3, 1024 * q))
    a("s_branch %s" % lX2)
    a.label(lX1)
    for q in range(4):
        a("ds_write_b128 v%d, v[%d:%d] offset:%d" % (vE0, Y0 + 4 * q, Y0 + 4 * q + 3, 1024 * q))
    a.label(lX2)
    a("s_waitcnt lgkmcnt(0)")
    a("s_barrier")
    E = 112
    for q in range(4):
        a("ds_read_b128 v[%d:%d], v%d offset:%d" % (E + 4 * q, E + 4 * q + 3, vE1, 1024 * q))
    a("s_cmp_eq_u32 s%d, 0" % s_h)
    a("s_cbranch_scc0 %s" % lX3)
    a("s_waitcnt lgkmcnt(0)")
    for i in range(16):
        a("v_add_f32 v%d, v%d, v%d" % (E + i, E + i, Y0 + i))
    a("s_branch %s" % lX4)
    a.label(lX3)
    a("s_waitcnt lgkmcnt(0)")
    for i in range(16):
        a("v_add_f32 v%d, v%d, v%d" % (E + i, E + i, Y1 + i))
    a.label(lX4)
    tq = [128, 129, 130, 131]
    k = 0
    for q in range(4):
        for i in (0, 2):
            t = tq[k % 4]; k += 1
            a("v_cvt_pk_bf16_f32 v%d, v%d, v%d" % (t, E + 4 * q + i, E + 4 * q + i + 1))
            off = 128 * q + 16 * i
            a("ds_write_b16 v%d, v%d offset:%d" % (vYw, t, off))
            a("ds_write_b16_d16_hi v%d, v%d offset:%d" % (vYw, t, off + 16))
    a("s_waitcnt lgkmcnt(0)")
    a("s_barrier")
    stamp(a, S, 8)
    O = 132
    a("ds_read_b128 v[%d:%d], v%d" % (O, O + 3, vRd))
    a("ds_read_b128 v[%d:%d], v%d offset:16" % (O + 4, O + 7, vRd))
    a("s_mov_b32 s%d, 4096" % s_k2)
    for kk in range(4):
        if kk % 2 == 0:
            a("s_waitcnt lgkmcnt(%d)" % (1 - kk // 2))
        so = ["0", "s%d" % s_k2][kk // 2]
        a("buffer_store_dwordx2 v[%d:%d], v%d, s[%d:%d], %s offen offset:%d" % (O + 2 * kk, O + 2 * kk + 1, vOa, sOS, sOS + 3, so, 2048 * (kk & 1)))
    return dict(s_w=s_w)
```

```python
from asmdsl import Asm
from partB import srd

LOG2E = 0x3fb8aa3b
EPS = 0x358637bd
WS_KV = 0
WS_Z = 32768
WS_FLAG = 65536
WS_PQ = 1 << 20
SLOT = 32768
STAMP_BASE = 70
MAGIC = 0x5a17c0de
FLAG_OFFS = [0]


def stamp(a, S, i):
    if S.get("stamps"):
        a("s_memtime s[%d:%d]" % (STAMP_BASE + 2 * i, STAMP_BASE + 2 * i + 1))


class Lines:
    def __init__(self):
        self.l = []
    def __call__(self, t):
        for x in t.split("\n"):
            x = x.strip()
            if x:
                self.l.append(x)


class LTrack:
    def __init__(self, a):
        self.a = a
        self.q = []
    def issue(self, line, tag):
        if len(self.q) >= 15:
            self.a("s_waitcnt lgkmcnt(14)")
            self.q = self.q[-14:]
        self.a(line)
        self.q.append(tag)
    def need(self, tag):
        idx = [i for i, t in enumerate(self.q) if t == tag]
        if not idx:
            return
        n = len(self.q) - 1 - idx[-1]
        self.a("s_waitcnt lgkmcnt(%d)" % n)
        self.q = self.q[idx[-1] + 1:]


USE_PK = [False]


def phi4(a, regs, tmp):
    if USE_PK[0]:
        r0 = regs[0]
        for k in (0, 2):
            a("v_pk_mul_f32 v[%d:%d], v[%d:%d], s[8:9]" % (tmp + k, tmp + k + 1, r0 + k, r0 + k + 1))
        for k, r in enumerate(regs):
            a("v_exp_f32 v%d, v%d clamp" % (tmp + k, tmp + k))
        for k, r in enumerate(regs):
            a("v_max_f32 v%d, 0x%x, v%d" % (r, EPS, r))
        for k in (0, 2):
            a("v_pk_add_f32 v[%d:%d], v[%d:%d], v[%d:%d]" % (r0 + k, r0 + k + 1, r0 + k, r0 + k + 1, tmp + k, tmp + k + 1))
        return
    for k, r in enumerate(regs):
        a("v_mul_f32 v%d, 0x%x, v%d" % (tmp + k, LOG2E, r))
    for k, r in enumerate(regs):
        a("v_exp_f32 v%d, v%d clamp" % (tmp + k, tmp + k))
    for k, r in enumerate(regs):
        a("v_max_f32 v%d, 0x%x, v%d" % (r, EPS, r))
    for k, r in enumerate(regs):
        a("v_add_f32 v%d, v%d, v%d" % (r, r, tmp + k))


def interleave(a, prim, fill, per):
    fi = 0
    for p in prim:
        for x in p:
            a(x)
        for _ in range(per):
            if fi < len(fill):
                a(fill[fi]); fi += 1
    while fi < len(fill):
        a(fill[fi]); fi += 1


def emit_B(a: Asm, S):
    ka, s_rb, s_hq = S["ka"], S["rb"], S["hq"]
    s_w, s_rg, s_ch = 44, 45, 46
    sX, sW, sWS, sDBG = 28, 32, 36, 40
    s_t0, s_t1, s_m0x, s_m0w, s_off, s_rot = 47, 48, 49, 50, 51, 58
    sWO, sOUT = 60, 64
    s_cc, s_xo, s_wo = 59, 68, 69
    vLane = 1
    vT0, vT1, vT2, vT3 = 3, 4, 5, 6
    vXs0, vXs1, vWs, vWOs = 7, 8, 9, 2
    vXr = 10
    vWr = 14
    vXc = 15
    vWc = 19
    WF = 20
    AK, AV, AQ = 52, 68, 84
    TMP = 100
    XF = 128
    USE_PK[0] = bool(S.get("pkphi"))
    stamp(a, S, 0)
    if S.get("pkphi"):
        a("s_mov_b32 s8, 0x%x" % LOG2E); a("s_mov_b32 s9, 0x%x" % LOG2E)
    a("s_load_dwordx8 s[16:23], s[%d:%d], 72" % (ka, ka + 1))
    a("s_load_dwordx4 s[24:27], s[%d:%d], 104" % (ka, ka + 1))
    a("v_and_b32 v1, 63, v0")
    a("v_lshrrev_b32 v2, 6, v0")
    a("v_readfirstlane_b32 s44, v2")
    a("s_and_b32 s45, s44, 3")
    a("s_lshr_b32 s46, s44, 2")
    a("s_add_u32 s%d, s%d, s%d" % (s_rot, s_hq, s_rb))
    a("s_and_b32 s%d, s%d, 3" % (s_rot, s_rot))
    a("s_lshl_b32 s%d, s%d, 1" % (s_rot, s_rot))
    a("v_lshrrev_b32 v%d, 3, v%d" % (vT0, vLane))
    a("v_and_b32 v%d, 7, v%d" % (vT1, vLane))
    a("v_lshrrev_b32 v%d, 1, v%d" % (vT2, vT0))
    a("v_xor_b32 v%d, v%d, v%d" % (vT2, vT2, vT1))
    a("s_lshl_b32 s%d, s%d, 7" % (s_t0, s_rb))
    a("s_lshl_b32 s%d, s%d, 4" % (s_t1, s_w))
    a("s_add_u32 s%d, s%d, s%d" % (s_t0, s_t0, s_t1))
    a("v_add_u32 v%d, s%d, v%d" % (vT3, s_t0, vT0))
    a("v_lshlrev_b32 v%d, 10, v%d" % (vT3, vT3))
    a("v_lshlrev_b32 v%d, 4, v%d" % (vXs0, vT2))
    a("v_add_u32 v%d, v%d, v%d" % (vXs0, vXs0, vT3))
    a("v_xor_b32 v%d, 4, v%d" % (vT2, vT2))
    a("v_lshlrev_b32 v%d, 4, v%d" % (vXs1, vT2))
    a("v_add_u32 v%d, v%d, v%d" % (vXs1, vXs1, vT3))
    a("v_add_u32 v%d, 8192, v%d" % (vXs1, vXs1))
    a("v_bfe_u32 v%d, v%d, 1, 1" % (vT2, vT0))
    a("v_lshlrev_b32 v%d, 2, v%d" % (vT2, vT2))
    a("v_xor_b32 v%d, v%d, v%d" % (vT2, vT2, vT1))
    a("v_lshlrev_b32 v%d, 4, v%d" % (vT2, vT2))
    a("s_lshl_b32 s%d, s%d, 3" % (s_t1, s_w))
    a("v_add_u32 v%d, s%d, v%d" % (vT3, s_t1, vT0))
    a("v_lshlrev_b32 v%d, 10, v%d" % (vWOs, vT3))
    a("v_mul_u32_u24 v%d, 3072, v%d" % (vT3, vT3))
    a("s_lshl_b32 s%d, s%d, 7" % (s_t1, s_hq))
    a("v_add3_u32 v%d, v%d, v%d, s%d" % (vWs, vT3, vT2, s_t1))
    a("v_add3_u32 v%d, v%d, v%d, s%d" % (vWOs, vWOs, vT2, s_t1))
    a("s_lshl_b32 s%d, s%d, 11" % (s_m0x, s_w))
    a("s_lshl_b32 s%d, s%d, 10" % (s_m0w, s_w))
    a("s_waitcnt lgkmcnt(0)")
    srd(a, sX, 16, 17, 2048 * 512 * 2)
    srd(a, sW, 18, 19, 512 * 1536 * 2)

    def chunk_offsets(e, c):
        e("s_add_u32 s%d, s%d, %d" % (s_cc, s_rot, c))
        e("s_and_b32 s%d, s%d, 7" % (s_cc, s_cc))
        e("s_lshl_b32 s%d, s%d, 7" % (s_xo, s_cc))
        e("s_mul_i32 s%d, s%d, 196608" % (s_wo, s_cc))

    def dma(e, m0base, m0off, vaddr, srdreg, so):
        e("s_add_u32 m0, s%d, %d" % (m0base, m0off))
        e("buffer_load_dwordx4 v%d, s[%d:%d], %s offen lds" % (vaddr, srdreg, srdreg + 3, so))

    def fill_op(e, i, j):
        b = (i % 5) * SLOT if i < 11 else 2 * SLOT
        if i < 8:
            if j == 0:
                chunk_offsets(e, i); dma(e, s_m0x, b, vXs0, sX, "s%d" % s_xo)
            elif j == 1:
                dma(e, s_m0x, b + 1024, vXs1, sX, "s%d" % s_xo)
            elif j == 2:
                e("s_add_u32 s%d, s%d, 1024" % (s_off, s_wo)); dma(e, s_m0w, b + 16384, vWs, sW, "s%d" % s_off)
            else:
                e("s_add_u32 s%d, s%d, 2048" % (s_off, s_wo)); dma(e, s_m0w, b + 24576, vWs, sW, "s%d" % s_off)
        elif i < 10:
            chunk_offsets(e, 4 * (i - 8) + j); dma(e, s_m0w, b + 8192 * j, vWs, sW, "s%d" % s_wo)
        else:
            e("s_mov_b32 s%d, %d" % (s_off, (4 * (i - 10) + j) * 65536)); dma(e, s_m0w, b + 8192 * j, vWOs, sWO, "s%d" % s_off)

    NPRO = S.get("npro", 2)
    for i in range(NPRO):
        for j in range(4):
            fill_op(a, i, j)
    srd(a, sWS, 26, 27, 1 << 28)
    srd(a, sDBG, 24, 25, 256)
    srd(a, sWO, 20, 21, 512 * 512 * 2)
    srd(a, sOUT, 22, 23, 2048 * 1024 * 2)
    a("v_and_b32 v%d, 31, v%d" % (vT0, vLane))
    a("v_lshrrev_b32 v%d, 5, v%d" % (vT1, vLane))
    a("v_bfe_u32 v%d, v%d, 1, 3" % (vT2, vLane))
    a("s_lshl_b32 s%d, s%d, 5" % (s_t0, s_rg))
    a("v_add_u32 v%d, s%d, v%d" % (vT3, s_t0, vT0))
    a("v_lshlrev_b32 v%d, 7, v%d" % (vT3, vT3))
    for i in range(4):
        a("v_add_u32 v%d, %d, v%d" % (vXr + i, 2 * i, vT1))
        a("v_xor_b32 v%d, v%d, v%d" % (vXr + i, vXr + i, vT2))
        a("v_lshlrev_b32 v%d, 4, v%d" % (vXr + i, vXr + i))
        a("v_add_u32 v%d, v%d, v%d" % (vXr + i, vXr + i, vT3))
    a("v_bfe_u32 v%d, v%d, 2, 2" % (vT0, vLane))
    a("v_lshlrev_b32 v%d, 3, v%d" % (vT2, vT1))
    a("v_add_u32 v%d, v%d, v%d" % (vT2, vT2, vT0))
    a("v_lshlrev_b32 v%d, 7, v%d" % (vWr, vT2))
    a("v_lshrrev_b32 v%d, 1, v%d" % (vT0, vT0))
    a("v_xor_b32 v%d, s%d, v%d" % (vT0, s_ch, vT0))
    a("v_lshlrev_b32 v%d, 6, v%d" % (vT0, vT0))
    a("v_add_u32 v%d, v%d, v%d" % (vWr, vWr, vT0))
    a("v_bfe_u32 v%d, v%d, 4, 1" % (vT0, vLane))
    a("v_lshlrev_b32 v%d, 5, v%d" % (vT0, vT0))
    a("v_and_b32 v%d, 3, v%d" % (vT2, vLane))
    a("v_lshlrev_b32 v%d, 3, v%d" % (vT2, vT2))
    a("v_add3_u32 v%d, v%d, v%d, v%d" % (vWr, vWr, vT0, vT2))
    for i in range(16):
        a("v_mov_b32 v%d, 0" % (AK + i)); a("v_mov_b32 v%d, 0" % (AV + i)); a("v_mov_b32 v%d, 0" % (AQ + i))

    vRW, vZW, vRR, vZR, vPQa, vKA, vZA, vG = 120, 121, 122, 123, 124, 125, 126, 127
    RED = 1 * SLOT
    ZRED = RED + 16384
    PFOK = RED + 20480
    s_msk, s_hp, s_hf = 52, 54, 55
    a("v_bfe_u32 v%d, v%d, 4, 1" % (vT0, vLane))
    a("v_cmp_eq_u32 s[%d:%d], 1, v%d" % (s_msk, s_msk + 1, vT0))
    a("s_lshl_b32 s%d, s%d, 8" % (s_t0, s_w))
    a("s_add_u32 s%d, s%d, %d" % (s_t0, s_t0, ZRED))
    a("v_lshlrev_b32 v%d, 2, v%d" % (vT1, vLane))
    a("v_add_u32 v%d, s%d, v%d" % (vZW, s_t0, vT1))
    a("s_lshl_b32 s%d, s%d, 11" % (s_t0, s_w))
    a("s_add_u32 s%d, s%d, %d" % (s_t0, s_t0, RED))
    a("v_lshlrev_b32 v%d, 5, v%d" % (vRW, vLane))
    a("v_add_u32 v%d, s%d, v%d" % (vRW, s_t0, vRW))
    a("s_bfe_u32 s%d, s%d, 0x10001" % (s_hp, s_w))
    a("s_and_b32 s%d, s%d, 1" % (s_hf, s_w))
    a("s_lshl_b32 s%d, s%d, 5" % (s_t0, s_hf))
    a("s_lshl_b32 s%d, s%d, 4" % (s_t1, s_hp))
    a("s_add_u32 s%d, s%d, s%d" % (s_t0, s_t0, s_t1))
    a("s_lshl_b32 s%d, s%d, 5" % (s_t0, s_t0))
    a("s_lshl_b32 s%d, s%d, 13" % (s_t1, s_ch))
    a("s_add_u32 s%d, s%d, s%d" % (s_t0, s_t0, s_t1))
    a("s_add_u32 s%d, s%d, %d" % (s_t0, s_t0, RED))
    a("v_add_u32 v%d, s%d, v%d" % (vRR, s_t0, vT1))
    a("v_and_b32 v%d, 31, v%d" % (vZR, vLane))
    a("v_lshlrev_b32 v%d, 2, v%d" % (vZR, vZR))
    a("s_lshl_b32 s%d, s%d, 10" % (s_t1, s_ch))
    a("s_add_u32 s%d, s%d, %d" % (s_t1, s_t1, ZRED))
    a("v_add_u32 v%d, s%d, v%d" % (vZR, s_t1, vZR))
    a("s_lshl_b32 s%d, s%d, 2" % (s_t0, s_hq))
    a("s_lshl_b32 s%d, s%d, 1" % (s_t1, s_ch))
    a("s_add_u32 s%d, s%d, s%d" % (s_t0, s_t0, s_t1))
    a("s_add_u32 s%d, s%d, s%d" % (s_t1, s_t0, s_hp))
    a("s_lshl_b32 s%d, s%d, 10" % (s_t1, s_t1))
    a("s_lshl_b32 s%d, s%d, 9" % (s_off, s_hf))
    a("s_add_u32 s%d, s%d, s%d" % (s_t1, s_t1, s_off))
    a("v_add_u32 v%d, s%d, v%d" % (vKA, s_t1, vT1))
    a("v_bfe_u32 v%d, v%d, 4, 1" % (vZA, vLane))
    a("v_add_u32 v%d, s%d, v%d" % (vZA, s_t0, vZA))
    a("v_lshlrev_b32 v%d, 6, v%d" % (vZA, vZA))
    a("v_bfe_u32 v%d, v%d, 2, 1" % (vT2, vLane))
    a("v_lshlrev_b32 v%d, 5, v%d" % (vT2, vT2))
    a("v_add_u32 v%d, v%d, v%d" % (vZA, vZA, vT2))
    a("v_and_b32 v%d, 3, v%d" % (vT2, vLane))
    a("v_bfe_u32 v%d, v%d, 3, 1" % (vT3, vLane))
    a("v_lshlrev_b32 v%d, 2, v%d" % (vT3, vT3))
    a("v_add_u32 v%d, v%d, v%d" % (vT2, vT2, vT3))
    a("v_lshlrev_b32 v%d, 2, v%d" % (vT2, vT2))
    a("v_add_u32 v%d, v%d, v%d" % (vZA, vZA, vT2))
    a("v_add_u32 v%d, %d, v%d" % (vZA, WS_Z, vZA))
    a("s_lshl_b32 s%d, s%d, 6" % (s_t0, s_t0))
    a("s_lshl_b32 s%d, s%d, 2" % (s_t1, s_rb))
    a("s_add_u32 s%d, s%d, s%d" % (s_t0, s_t0, s_t1))
    a("s_add_u32 s%d, s%d, s%d" % (s_t0, s_t0, s_rg))
    a("s_lshl_b32 s%d, s%d, 10" % (s_t0, s_t0))
    a("s_add_u32 s%d, s%d, %d" % (s_t0, s_t0, WS_PQ))
    a("v_lshlrev_b32 v%d, 4, v%d" % (vPQa, vLane))
    a("v_add_u32 v%d, s%d, v%d" % (vPQa, s_t0, vPQa))

    def mf(e, D, A_, B_):
        e("v_mfma_f32_32x32x16_bf16 v[%d:%d], v[%d:%d], v[%d:%d], v[%d:%d]" % (D, D + 15, A_, A_ + 3, B_, B_ + 3, D, D + 15))

    def set_slot(slot):
        for i in range(4):
            a("v_add_u32 v%d, %d, v%d" % (vXc + i, slot * SLOT, vXr + i))
        a("v_add_u32 v%d, %d, v%d" % (vWc, slot * SLOT, vWr))

    def rd(c, i):
        X = XF + 16 * c + 4 * i
        F = WF + 8 * i
        a("ds_read_b128 v[%d:%d], v%d" % (X, X + 3, vXc + i))
        for mat, base in ((0, 16384), (1, 24576)):
            for j in range(2):
                a("ds_read_b64_tr_b16 v[%d:%d], v%d offset:%d" % (F + 4 * mat + 2 * j, F + 4 * mat + 2 * j + 1, vWc, base + (16 * i + 4 * j) * 128))

    def rdq(st):
        F = WF + 4 * (st % 8)
        j4, i = (st % 16) >> 2, st & 3
        for j in range(2):
            a("ds_read_b64_tr_b16 v[%d:%d], v%d offset:%d" % (F + 2 * j, F + 2 * j + 1, vWc, 8192 * j4 + (16 * i + 4 * j) * 128))

    def kvstep(c, i):
        X = XF + 16 * c + 4 * i
        F = WF + 8 * i
        mf(a, AK, X, F)
        mf(a, AV, X, F + 4)

    a("s_waitcnt vmcnt(%d)" % (4 * (NPRO - 1)))
    a("s_barrier")
    stamp(a, S, 1)
    FAST0 = S.get("fast0") and NPRO == 1
    for i in range(NPRO, 2 if FAST0 else 3):
        for j in range(4):
            fill_op(a, i, j)
    set_slot(0)
    rd(0, 0); rd(0, 1)
    mode = S.get("fillmode", "spread")
    if S.get("x_pre"): mode = "pre"
    if S.get("x_post"): mode = "post"
    if S.get("x_nofill"): mode = "none"
    waits = {"spread": 6, "pre": 8, "post": 4, "none": 63}

    def fills(i, where):
        if mode == "spread" and FAST0 and i == 3:
            f_, j0 = (2, 2 * where) if where < 2 else (3, 2 * (where - 2))
            fill_op(a, f_, j0); fill_op(a, f_, j0 + 1)
        elif mode == "spread":
            fill_op(a, i, where)
        elif mode == "pre" and where == 1:
            for j in range(4):
                fill_op(a, i, j)
        elif mode == "post" and where == 2:
            for j in range(4):
                fill_op(a, i, j)

    if S.get("pairbar"):
        assert NPRO == 1
        plan = {
            (0, 0): [(3, 0)], (0, 1): [(3, 1)], (0, 2): [(3, 2)], (0, 3): [(3, 3)],
            (1, 0): [(4, 0), (4, 1)], (1, 1): [(4, 2), (4, 3)], (1, 2): [(5, 0), (5, 1)], (1, 3): [(5, 2), (5, 3)],
            (3, 2): [(6, 0), (6, 1)], (3, 3): [(6, 2), (6, 3)], (4, 0): [(7, 0), (7, 1)], (4, 1): [(7, 2), (7, 3)],
            (5, 2): [(8, 0), (8, 1)], (5, 3): [(8, 2), (8, 3)], (6, 0): [(9, 0), (9, 1)], (6, 1): [(9, 2), (9, 3)],
            (7, 2): [(10, 0), (10, 1)], (7, 3): [(10, 2), (10, 3)],
        }
        bar = {0: 6, 1: 4, 3: 0, 5: 0, 7: 0}

        def pf(c, p):
            for (i, j) in plan.get((c, p), []):
                fill_op(a, i, j)
        for c in range(8):
            a("s_waitcnt lgkmcnt(5)")
            kvstep(c, 0); rd(c, 2); pf(c, 0)
            a("s_waitcnt lgkmcnt(5)")
            mf(a, AK, XF + 16 * c + 4, WF + 8)
            rd(c, 3); pf(c, 1)
            if c in bar:
                a("s_waitcnt vmcnt(%d) lgkmcnt(5)" % bar[c])
            else:
                a("s_waitcnt lgkmcnt(5)")
            mf(a, AV, XF + 16 * c + 4, WF + 8 + 4)
            if c in bar:
                a("s_barrier")
            kvstep(c, 2)
            if c < 7:
                set_slot((c + 1) % 5)
                rd(c + 1, 0)
                pf(c, 2)
                a("s_waitcnt lgkmcnt(5)")
                kvstep(c, 3)
                rd(c + 1, 1)
                pf(c, 3)
            else:
                a("v_add_u32 v%d, %d, v%d" % (vWc, 3 * SLOT, vWr))
                rdq(0); rdq(1)
                pf(c, 2)
                a("s_waitcnt lgkmcnt(4)")
                kvstep(c, 3)
                rdq(2); rdq(3)
                pf(c, 3)
    elif S.get("lateq"):
        def lf(c, p):
            if c <= 4:
                fill_op(a, c + 3, p)
            elif c == 7:
                fill_op(a, 8, p)
        vm = {0: 6, 1: 6, 2: 6, 3: 6, 4: 6, 5: 4, 6: 0}
        for c in range(8):
            a("s_waitcnt lgkmcnt(5)")
            kvstep(c, 0); rd(c, 2); lf(c, 0)
            a("s_waitcnt lgkmcnt(5)")
            mf(a, AK, XF + 16 * c + 4, WF + 8)
            rd(c, 3); lf(c, 1)
            if c < 7:
                a("s_waitcnt vmcnt(%d) lgkmcnt(5)" % vm[c])
            else:
                a("s_waitcnt lgkmcnt(5)")
            mf(a, AV, XF + 16 * c + 4, WF + 8 + 4)
            if c < 7:
                a("s_barrier")
            kvstep(c, 2)
            if c < 7:
                set_slot((c + 1) % 5)
                rd(c + 1, 0)
                lf(c, 2)
                a("s_waitcnt lgkmcnt(5)")
                kvstep(c, 3)
                rd(c + 1, 1)
                lf(c, 3)
            else:
                lf(c, 2)
                a("s_waitcnt lgkmcnt(0)")
                kvstep(c, 3)
                lf(c, 3)
        for j in range(4):
            fill_op(a, 9, j)
    else:
        for c in range(8):
            a("s_waitcnt lgkmcnt(5)")
            kvstep(c, 0); rd(c, 2); fills(c + 3, 0)
            a("s_waitcnt lgkmcnt(5)")
            mf(a, AK, XF + 16 * c + 4, WF + 8)
            rd(c, 3); fills(c + 3, 1)
            if S.get("chunkstamps"):
                a("s_memtime s[%d:%d]" % (76 + 2 * 0, 77 + 2 * 0)) if False else None
            a("s_waitcnt vmcnt(%d) lgkmcnt(5)" % (4 if (FAST0 and c == 0) else waits[mode]))
            mf(a, AV, XF + 16 * c + 4, WF + 8 + 4)
            if not S.get("x_nobar"):
                a("s_barrier")
            if S.get("chunkstamps"):
                a("s_memtime s[%d:%d]" % (76 + 2 * c, 77 + 2 * c))
            kvstep(c, 2)
            if c < 7:
                set_slot((c + 1) % 5)
                rd(c + 1, 0)
                fills(c + 3, 2)
                a("s_waitcnt lgkmcnt(5)")
                kvstep(c, 3)
                rd(c + 1, 1)
                fills(c + 3, 3)
            else:
                a("v_add_u32 v%d, %d, v%d" % (vWc, 3 * SLOT, vWr))
                rdq(0); rdq(1)
                fills(c + 3, 2)
                a("s_waitcnt lgkmcnt(4)")
                kvstep(c, 3)
                rdq(2); rdq(3)
                fills(c + 3, 3)
    stamp(a, S, 2)
    if S.get("x_stop") or S.get("chunkstamps"):
        return
    a("v_and_b32 v%d, 7, v%d" % (vT2, vLane))
    a("v_lshlrev_b32 v%d, 2, v%d" % (vT2, vT2))
    a("buffer_load_dword v%d, v%d, s[%d:%d], 0 offen sc1" % (vG, vT2, sDBG, sDBG + 3))
    PKp, PVp = TMP, TMP + 8
    t4 = TMP + 16
    vZ, vOne = vT0, vT1
    vWc2 = vXc
    a("v_add_u32 v%d, %d, v%d" % (vWc2, 4 * SLOT, vWr))
    LQ = S.get("lateq")
    T = LTrack(a)
    T.q = [] if LQ else [("q", st) for st in range(4) for _ in range(2)]

    def rdqT(st):
        F = WF + 4 * (st % 8)
        j4, i = (st % 16) >> 2, st & 3
        vb = vWc if st < 16 else vWc2
        for j in range(2):
            T.issue("ds_read_b64_tr_b16 v[%d:%d], v%d offset:%d" % (F + 2 * j, F + 2 * j + 1, vb, 8192 * j4 + (16 * i + 4 * j) * 128), ("q", st))

    def qslot(st, fill, per, prefetch=True):
        T.need(("q", st))
        mf(a, AQ, WF + 4 * (st % 8), XF + 4 * st)
        if prefetch and st + 4 < 32:
            rdqT(st + 4)
        for _ in range(per):
            if fill:
                a(fill.pop(0))

    f = Lines()
    f("v_mov_b32 v%d, 0" % vZ)
    f("v_mov_b32 v%d, 0x3f803f80" % vOne)
    for i in range(8):
        f("v_cvt_pk_bf16_f32 v%d, v%d, v%d" % (PVp + i, AV + 2 * i, AV + 2 * i + 1))
    for g in range(4):
        phi4(f, [AK + 4 * g + k for k in range(4)], t4)
        for i in (2 * g, 2 * g + 1):
            f("v_cvt_pk_bf16_f32 v%d, v%d, v%d" % (PKp + i, AK + 2 * i, AK + 2 * i + 1))
    fill = list(f.l)
    st = 0
    DKV = AK
    SEL = PVp
    if LQ:
        a("v_add_u32 v%d, %d, v%d" % (vWc, 3 * SLOT, vWr))
        for x in fill:
            a(x)
        a("v_mfma_f32_32x32x16_bf16 v[%d:%d], v[%d:%d], v[%d:%d], 0" % (DKV, DKV + 15, PKp, PKp + 3, PVp, PVp + 3))
        a("v_mfma_f32_32x32x16_bf16 v[%d:%d], v[%d:%d], v[%d:%d], v[%d:%d]" % (DKV, DKV + 15, PKp + 4, PKp + 7, PVp + 4, PVp + 7, DKV, DKV + 15))
        for i in range(8):
            a("v_dot2c_f32_bf16 v%d, v%d, v%d" % (vZ, PKp + i, vOne))
        a("ds_write_b32 v%d, v%d" % (vZW, vZ))
        for i in range(8):
            a("v_cndmask_b32 v%d, v%d, v%d, s[%d:%d]" % (SEL + i, DKV + i, DKV + 8 + i, s_msk, s_msk + 1))
        a("ds_write_b128 v%d, v[%d:%d]" % (vRW, SEL, SEL + 3))
        a("ds_write_b128 v%d, v[%d:%d] offset:16" % (vRW, SEL + 4, SEL + 7))
        a("s_waitcnt vmcnt(0) lgkmcnt(0)")
        a("s_barrier")
        stamp(a, S, 3)
        for st_ in range(4):
            rdqT(st_)
        fo10 = Lines()
        for j in range(4):
            fill_op(fo10, 10, j)
        extra_fill = list(fo10.l)
    else:
        KP = S.get("kpost_per", 11)
        while fill and st < 8:
            qslot(st, fill, KP); st += 1
        while fill:
            a(fill.pop(0))
        a("v_mfma_f32_32x32x16_bf16 v[%d:%d], v[%d:%d], v[%d:%d], 0" % (DKV, DKV + 15, PKp, PKp + 3, PVp, PVp + 3))
        a("v_mfma_f32_32x32x16_bf16 v[%d:%d], v[%d:%d], v[%d:%d], v[%d:%d]" % (DKV, DKV + 15, PKp + 4, PKp + 7, PVp + 4, PVp + 7, DKV, DKV + 15))
        fill = ["v_dot2c_f32_bf16 v%d, v%d, v%d" % (vZ, PKp + i, vOne) for i in range(8)]
        while st < 11:
            qslot(st, fill, 4); st += 1
        while fill:
            a(fill.pop(0))
        T.issue("ds_write_b32 v%d, v%d" % (vZW, vZ), "w")
        for i in range(8):
            a("v_cndmask_b32 v%d, v%d, v%d, s[%d:%d]" % (SEL + i, DKV + i, DKV + 8 + i, s_msk, s_msk + 1))
        T.issue("ds_write_b128 v%d, v[%d:%d]" % (vRW, SEL, SEL + 3), "w")
        T.issue("ds_write_b128 v%d, v[%d:%d] offset:16" % (vRW, SEL + 4, SEL + 7), "w")
        qslot(st, [], 0, prefetch=False); st += 1
        a("s_waitcnt vmcnt(0) lgkmcnt(0)")
        T.q = []
        a("s_barrier")
        stamp(a, S, 3)
        rdqT(15)
        extra_fill = []
    lg, lgo = a.newlabel("Lg"), a.newlabel("Lgo")
    a("v_cmp_ne_u32 vcc, 1, v%d" % vG)
    a("s_cbranch_vccz %s" % lgo)
    a.label(lg)
    a("buffer_load_dword v%d, v%d, s[%d:%d], 0 offen sc1" % (vG, vT2, sDBG, sDBG + 3))
    a("s_waitcnt vmcnt(0)")
    a("v_cmp_ne_u32 vcc, 1, v%d" % vG)
    a("s_cbranch_vccnz %s" % lg)
    a.label(lgo)
    R_ = TMP
    for row in range(2):
        for g in range(4):
            T.issue("ds_read_b32 v%d, v%d offset:%d" % (R_ + 4 * row + g, vRR, 2048 * g + 256 * row), "kvr")
    qslot(st, [], 0); st += 1
    for g in range(4):
        for hf in range(2):
            T.issue("ds_read_b32 v%d, v%d offset:%d" % (R_ + 8 + 2 * g + hf, vZR, 256 * g + 128 * hf), "zr")
    T.need("kvr")
    for row in range(2):
        b = R_ + 4 * row
        a("v_add_f32 v%d, v%d, v%d" % (b, b, b + 1))
        a("v_add_f32 v%d, v%d, v%d" % (b + 2, b + 2, b + 3))
        a("v_add_f32 v%d, v%d, v%d" % (b, b, b + 2))
    for row in range(2):
        a("buffer_atomic_add_f32 v%d, v%d, s[%d:%d], 0 offen offset:%d" % (R_ + 4 * row, vKA, sWS, sWS + 3, WS_KV + 256 * row))
    qslot(st, [], 0); st += 1
    T.need("zr")
    b = R_ + 8
    for stp in (1, 2, 4):
        for k in range(0, 8, 2 * stp):
            a("v_add_f32 v%d, v%d, v%d" % (b + k, b + k, b + k + stp))
    lz = a.newlabel("Lz")
    a("s_and_b32 s%d, s%d, 3" % (s_t0, s_w))
    a("s_cmp_eq_u32 s%d, 0" % s_t0)
    a("s_cbranch_scc0 %s" % lz)
    a("s_mov_b64 s[56:57], exec")
    a("s_mov_b32 exec_lo, -1")
    a("s_mov_b32 exec_hi, 0")
    a("buffer_atomic_add_f32 v%d, v%d, s[%d:%d], 0 offen" % (b, vZA, sWS, sWS + 3))
    a("s_mov_b64 exec, s[56:57]")
    a.label(lz)
    fo = Lines()
    for j in range(4):
        fill_op(fo, 11, j)
    fill = extra_fill + list(fo.l)
    while st < 32:
        qslot(st, fill, 3); st += 1
    while fill:
        a(fill.pop(0))
    a("s_waitcnt vmcnt(0)")
    a("s_barrier")
    stamp(a, S, 9)
    lkf = a.newlabel("Lkf")
    a("s_cmp_eq_u32 s%d, 6" % s_w)
    a("s_cbranch_scc0 %s" % lkf)
    a("s_lshl_b32 s%d, s%d, 7" % (s_t0, s_hq))
    a("s_add_u32 s%d, s%d, %d" % (s_t0, s_t0, WS_FLAG))
    a("v_lshlrev_b32 v%d, 10, v%d" % (vT0, vLane))
    a("v_add_u32 v%d, s%d, v%d" % (vT0, s_t0, vT0))
    a("v_mov_b32 v%d, 1" % vT1)
    a("s_mov_b64 s[56:57], exec")
    a("s_mov_b64 exec, 0xff")
    a("buffer_atomic_add v%d, v%d, s[%d:%d], 0 offen" % (vT1, vT0, sWS, sWS + 3))
    a("s_mov_b64 exec, s[56:57]")
    a.label(lkf)
    PQ = TMP
    for g in range(4):
        phi4(a, [AQ + 4 * g + k for k in range(4)], t4)
        for i in (2 * g, 2 * g + 1):
            a("v_cvt_pk_bf16_f32 v%d, v%d, v%d" % (PQ + i, AQ + 2 * i, AQ + 2 * i + 1))
        if g == 1:
            a("buffer_store_dwordx4 v[%d:%d], v%d, s[%d:%d], 0 offen sc1" % (PQ, PQ + 3, vPQa, sWS, sWS + 3))
    a("s_mov_b32 s%d, 65536" % s_off)
    a("buffer_store_dwordx4 v[%d:%d], v%d, s[%d:%d], s%d offen sc1" % (PQ + 4, PQ + 7, vPQa, sWS, sWS + 3, s_off))
    stamp(a, S, 4)
    s_hh = 46
    WO = 0
    KVF = 3 * SLOT
    OST = 4 * SLOT
    PQF = 128
    vKVa, vZa, vPQl, vKFw, vZFw = 11, 12, 13, 14, 15
    vKr, vWr2, vWr1 = 8, 9, 10
    a("v_lshlrev_b32 v%d, 4, v%d" % (vT0, vLane))
    a("s_lshl_b32 s%d, s%d, 12" % (s_t1, s_w))
    a("v_add_u32 v%d, s%d, v%d" % (vKVa, s_t1, vT0))
    a("s_and_b32 s%d, s%d, 1" % (s_t1, s_w))
    a("s_lshl_b32 s%d, s%d, 10" % (s_t1, s_t1))
    a("s_add_u32 s%d, s%d, %d" % (s_t1, s_t1, WS_Z))
    a("v_add_u32 v%d, s%d, v%d" % (vZa, s_t1, vT0))
    a("s_lshl_b32 s%d, s%d, 10" % (s_t0, s_hh))
    a("s_lshl_b32 s%d, s%d, 2" % (s_t1, s_rb))
    a("s_add_u32 s%d, s%d, s%d" % (s_t0, s_t0, s_t1))
    a("s_add_u32 s%d, s%d, s%d" % (s_t0, s_t0, s_rg))
    a("s_lshl_b32 s%d, s%d, 10" % (s_t0, s_t0))
    a("s_add_u32 s%d, s%d, %d" % (s_t0, s_t0, WS_PQ))
    a("v_add_u32 v%d, s%d, v%d" % (vPQl, s_t0, vT0))
    a("v_lshrrev_b32 v%d, 5, v%d" % (vT1, vLane))
    a("v_lshlrev_b32 v%d, 9, v%d" % (vT1, vT1))
    a("v_bfe_u32 v%d, v%d, 1, 4" % (vT2, vLane))
    a("v_lshlrev_b32 v%d, 4, v%d" % (vT2, vT2))
    a("v_and_b32 v%d, 1, v%d" % (vT3, vLane))
    a("v_lshlrev_b32 v%d, 3, v%d" % (vT3, vT3))
    a("v_add3_u32 v%d, v%d, v%d, v%d" % (vKFw, vT1, vT2, vT3))
    a("s_lshl_b32 s%d, s%d, 12" % (s_t1, s_w))
    a("s_add_u32 s%d, s%d, %d" % (s_t1, s_t1, KVF))
    a("v_add_u32 v%d, s%d, v%d" % (vKFw, s_t1, vKFw))
    a("s_and_b32 s%d, s%d, 1" % (s_t1, s_w))
    a("s_lshl_b32 s%d, s%d, 14" % (s_t1, s_t1))
    a("s_add_u32 s%d, s%d, %d" % (s_t1, s_t1, KVF + 256))
    a("v_lshrrev_b32 v%d, 2, v%d" % (vT2, vLane))
    a("v_lshlrev_b32 v%d, 10, v%d" % (vT2, vT2))
    a("v_bfe_u32 v%d, v%d, 1, 1" % (vT3, vLane))
    a("v_lshlrev_b32 v%d, 9, v%d" % (vT3, vT3))
    a("v_add3_u32 v%d, v%d, v%d, s%d" % (vZFw, vT2, vT3, s_t1))
    a("v_and_b32 v%d, 1, v%d" % (vT3, vLane))
    a("v_lshlrev_b32 v%d, 3, v%d" % (vT3, vT3))
    a("v_add_u32 v%d, v%d, v%d" % (vZFw, vZFw, vT3))
    a("v_lshlrev_b32 v%d, 4, v%d" % (vKr, vLane))
    a("s_lshl_b32 s%d, s%d, 14" % (s_t0, s_hh))
    a("s_add_u32 s%d, s%d, %d" % (s_t0, s_t0, KVF))
    a("v_add_u32 v%d, s%d, v%d" % (vKr, s_t0, vKr))
    a("v_lshrrev_b32 v%d, 5, v%d" % (vT1, vLane))
    a("v_bfe_u32 v%d, v%d, 2, 2" % (vT0, vLane))
    a("v_lshlrev_b32 v%d, 2, v%d" % (vT2, vT1))
    a("v_add_u32 v%d, v%d, v%d" % (vT2, vT2, vT0))
    a("v_lshlrev_b32 v%d, 7, v%d" % (vWr2, vT2))
    a("v_lshrrev_b32 v%d, 1, v%d" % (vT0, vT0))
    a("v_lshlrev_b32 v%d, 6, v%d" % (vT3, vT0))
    a("v_bfe_u32 v%d, v%d, 4, 1" % (vT2, vLane))
    a("v_lshlrev_b32 v%d, 5, v%d" % (vT2, vT2))
    a("v_add_u32 v%d, v%d, v%d" % (vWr2, vWr2, vT2))
    a("v_and_b32 v%d, 3, v%d" % (vT2, vLane))
    a("v_lshlrev_b32 v%d, 3, v%d" % (vT2, vT2))
    a("v_add_u32 v%d, v%d, v%d" % (vWr2, vWr2, vT2))
    a("s_lshl_b32 s%d, s%d, 16" % (s_t0, s_hh))
    a("v_add_u32 v%d, s%d, v%d" % (vWr2, s_t0, vWr2))
    a("v_xor_b32 v%d, 64, v%d" % (vWr1, vT3))
    a("v_add_u32 v%d, v%d, v%d" % (vWr1, vWr1, vWr2))
    a("v_add_u32 v%d, v%d, v%d" % (vWr2, vWr2, vT3))
    vE0, vE1, vSt, vRd, vOa = 192, 193, 194, 195, 196
    a("s_lshl_b32 s%d, s%d, 12" % (s_t0, s_w))
    a("s_add_u32 s%d, s%d, %d" % (s_t0, s_t0, OST))
    a("v_lshlrev_b32 v%d, 4, v%d" % (vE0, vLane))
    a("v_add_u32 v%d, s%d, v%d" % (vE0, s_t0, vE0))
    a("s_xor_b32 s%d, s%d, 4" % (s_t0, s_w))
    a("s_lshl_b32 s%d, s%d, 12" % (s_t0, s_t0))
    a("s_add_u32 s%d, s%d, %d" % (s_t0, s_t0, OST))
    a("v_lshlrev_b32 v%d, 4, v%d" % (vE1, vLane))
    a("v_add_u32 v%d, s%d, v%d" % (vE1, s_t0, vE1))
    a("v_and_b32 v%d, 31, v%d" % (vSt, vLane))
    a("s_lshl_b32 s%d, s%d, 5" % (s_t0, s_rg))
    a("v_add_u32 v%d, s%d, v%d" % (vSt, s_t0, vSt))
    a("v_mul_u32_u24 v%d, 144, v%d" % (vSt, vSt))
    a("v_lshrrev_b32 v%d, 5, v%d" % (vT3, vLane))
    a("v_lshlrev_b32 v%d, 3, v%d" % (vT3, vT3))
    a("s_lshl_b32 s%d, s%d, 6" % (s_t0, s_hh))
    a("v_add3_u32 v%d, v%d, v%d, s%d" % (vSt, vSt, vT3, s_t0))
    a("v_lshrrev_b32 v%d, 3, v%d" % (vOa, vLane))
    a("s_lshl_b32 s%d, s%d, 4" % (s_t0, s_w))
    a("v_add_u32 v%d, s%d, v%d" % (vOa, s_t0, vOa))
    a("v_and_b32 v%d, 7, v%d" % (vT3, vLane))
    a("v_lshlrev_b32 v%d, 4, v%d" % (vT3, vT3))
    a("v_mul_u32_u24 v%d, 144, v%d" % (vRd, vOa))
    a("v_add_u32 v%d, v%d, v%d" % (vRd, vRd, vT3))
    a("s_lshl_b32 s%d, s%d, 7" % (s_t0, s_rb))
    a("v_add_u32 v%d, s%d, v%d" % (vOa, s_t0, vOa))
    a("v_lshlrev_b32 v%d, 11, v%d" % (vOa, vOa))
    a("s_lshl_b32 s%d, s%d, 7" % (s_t0, s_hq))
    a("s_add_u32 s%d, s%d, 1024" % (s_t0, s_t0))
    a("v_add3_u32 v%d, v%d, v%d, s%d" % (vOa, vOa, vT3, s_t0))
    O0, O1 = 16, 32
    D1 = [48, 96]
    KA = [64, 112]
    WA = [68, 76]
    OB = [84, 88]
    vR = 92
    KL, ZL = 96, 116
    for i in range(16):
        a("v_mov_b32 v%d, 0" % (O0 + i)); a("v_mov_b32 v%d, 0" % (O1 + i))
    a("s_waitcnt vmcnt(0)")
    stamp(a, S, 10)
    a("s_barrier")
    lpf = a.newlabel("Lpf")
    a("s_cmp_eq_u32 s%d, 7" % s_w)
    a("s_cbranch_scc0 %s" % lpf)
    a("s_lshl_b32 s%d, s%d, 7" % (s_t0, s_rb))
    a("s_add_u32 s%d, s%d, %d" % (s_t0, s_t0, WS_FLAG + 8192))
    a("v_mov_b32 v%d, s%d" % (vT0, s_t0))
    a("v_mov_b32 v%d, 1" % vT1)
    a("s_mov_b64 s[56:57], exec")
    a("s_mov_b64 exec, 1")
    a("buffer_atomic_add v%d, v%d, s[%d:%d], 0 offen" % (vT1, vT0, sWS, sWS + 3))
    a("s_mov_b64 exec, s[56:57]")
    a.label(lpf)
    vPa, vPt = 3, 4
    P0 = 120
    lw = a.newlabel("Lw")
    a("s_cmp_eq_u32 s%d, 0" % s_w)
    a("s_cbranch_scc0 %s" % lw)
    a("s_lshl_b32 s%d, s%d, 7" % (s_t0, s_rb))
    a("s_add_u32 s%d, s%d, %d" % (s_t0, s_t0, WS_FLAG + 8192))
    a("s_and_b32 s%d, s%d, 7" % (s_t1, s_rb))
    a("s_lshl_b32 s%d, s%d, 10" % (s_t1, s_t1))
    a("s_add_u32 s%d, s%d, %d" % (s_t1, s_t1, WS_FLAG))
    a("v_lshlrev_b32 v%d, 7, v%d" % (vPa, vLane))
    a("v_add_u32 v%d, s%d, v%d" % (vPa, s_t1, vPa))
    a("v_mov_b32 v%d, s%d" % (vT2, s_t0))
    a("v_cmp_gt_u32 s[56:57], 8, v%d" % vLane)
    a("v_cndmask_b32 v%d, v%d, v%d, s[56:57]" % (vPa, vT2, vPa))
    a("v_mov_b32 v%d, 8" % vPt)
    a("v_mov_b32 v%d, 16" % vT2)
    a("v_cndmask_b32 v%d, v%d, v%d, s[56:57]" % (vPt, vPt, vT2))
    a("s_mov_b64 s[54:55], exec")
    a("s_mov_b64 exec, 0x1ff")
    a("buffer_load_dword v%d, v%d, s[%d:%d], 0 offen sc1" % (P0, vPa, sWS, sWS + 3))
    lp, lpd = a.newlabel("Lp"), a.newlabel("Lpd")
    a.label(lp)
    a("s_waitcnt vmcnt(0)")
    a("v_cmp_ne_u32 vcc, v%d, v%d" % (P0, vPt))
    a("s_and_b32 s%d, vcc_lo, 0xff" % s_t1)
    a("s_cbranch_scc0 %s" % lpd)
    if S.get("psleep"):
        a("s_sleep %d" % S["psleep"])
    a("buffer_load_dword v%d, v%d, s[%d:%d], 0 offen sc1" % (P0, vPa, sWS, sWS + 3))
    a("s_branch %s" % lp)
    a.label(lpd)
    a("s_and_b32 s53, vcc_lo, 0x100")
    a("s_mov_b64 exec, s[54:55]")
    a("v_mov_b32 v%d, s53" % vT2)
    a("v_mov_b32 v%d, %d" % (vT3, PFOK))
    a("ds_write_b32 v%d, v%d" % (vT3, vT2))
    a("s_waitcnt lgkmcnt(0)")
    a.label(lw)
    a("s_barrier")
    stamp(a, S, 11)
    def ld_pq(i):
        if i == 0:
            so = "0"
        else:
            a("s_mov_b32 s%d, %d" % (s_off, i * 65536)); so = "s%d" % s_off
        a("buffer_load_dwordx4 v[%d:%d], v%d, s[%d:%d], %s offen sc1" % (PQF + 4 * i, PQF + 4 * i + 3, vPQl, sWS, sWS + 3, so))
    NPRE = S.get("npre", 8)
    a("v_mov_b32 v%d, %d" % (vT3, PFOK))
    a("ds_read_b32 v%d, v%d" % (vT2, vT3))
    for i in range(4):
        a("buffer_load_dwordx4 v[%d:%d], v%d, s[%d:%d], 0 offen offset:%d sc1" % (KL + 4 * i, KL + 4 * i + 3, vKVa, sWS, sWS + 3, WS_KV + 1024 * i))
    a("buffer_load_dwordx4 v[%d:%d], v%d, s[%d:%d], 0 offen sc1" % (ZL, ZL + 3, vZa, sWS, sWS + 3))
    a("s_waitcnt lgkmcnt(0)")
    a("v_readfirstlane_b32 s53, v%d" % vT2)
    C_ = 120

    def conv_kv(younger):
        for i in range(4):
            a("s_waitcnt vmcnt(%d)" % (younger + 4 - i))
            a("v_cvt_pk_bf16_f32 v%d, v%d, v%d" % (C_ + 2 * i, KL + 4 * i, KL + 4 * i + 1))
            a("v_cvt_pk_bf16_f32 v%d, v%d, v%d" % (C_ + 2 * i + 1, KL + 4 * i + 2, KL + 4 * i + 3))
            a("ds_write_b64 v%d, v[%d:%d] offset:%d" % (vKFw, C_ + 2 * i, C_ + 2 * i + 1, 1024 * i))
        a("s_waitcnt vmcnt(%d)" % younger)
        lzz = a.newlabel("Lzz")
        a("s_cmp_lt_u32 s%d, 2" % s_w)
        a("s_cbranch_scc0 %s" % lzz)
        a("v_cvt_pk_bf16_f32 v94, v%d, v%d" % (ZL, ZL + 1))
        a("v_cvt_pk_bf16_f32 v95, v%d, v%d" % (ZL + 2, ZL + 3))
        a("ds_write_b64 v%d, v[94:95]" % vZFw)
        a("ds_write_b64 v%d, v[94:95] offset:64" % vZFw)
        a.label(lzz)

    lslow, ljoin = a.newlabel("Lslow"), a.newlabel("Ljoin")
    a("s_cmp_eq_u32 s53, 0")
    a("s_cbranch_scc0 %s" % lslow)
    for i in range(NPRE):
        ld_pq(i)
    conv_kv(NPRE)
    a("s_waitcnt lgkmcnt(0)")
    a("s_barrier")
    a("s_branch %s" % ljoin)
    a.label(lslow)
    conv_kv(0)
    lw2, lp2, lpd2 = a.newlabel("Lw2"), a.newlabel("Lp"), a.newlabel("Lpd")
    a("s_cmp_eq_u32 s%d, 0" % s_w)
    a("s_cbranch_scc0 %s" % lw2)
    a("s_mov_b64 exec, 0x100")
    a.label(lp2)
    a("buffer_load_dword v%d, v%d, s[%d:%d], 0 offen sc1" % (93, vPa, sWS, sWS + 3))
    a("s_waitcnt vmcnt(0)")
    a("v_cmp_ne_u32 vcc, v93, v%d" % vPt)
    a("s_cbranch_vccnz %s" % lp2)
    a("s_mov_b64 exec, s[54:55]")
    a.label(lw2)
    a("s_waitcnt lgkmcnt(0)")
    a("s_barrier")
    for i in range(NPRE):
        ld_pq(i)
    a.label(ljoin)
    stamp(a, S, 6)

    def rd_kv(h):
        a("ds_read_b128 v[%d:%d], v%d offset:%d" % (KA[h & 1], KA[h & 1] + 3, vKr, 1024 * h))

    def rd_wo(h):
        W_ = WA[h & 1]
        for jt, vb in ((0, vWr2), (1, vWr1)):
            for j in range(2):
                a("ds_read_b64_tr_b16 v[%d:%d], v%d offset:%d" % (W_ + 4 * jt + 2 * j, W_ + 4 * jt + 2 * j + 1, vb, WO + (16 * h + 8 * j) * 128))

    issued = [NPRE]

    def num(h):
        a("s_waitcnt vmcnt(%d)" % (issued[0] - 1 - h))
        a("v_mfma_f32_32x32x16_bf16 v[%d:%d], v[%d:%d], v[%d:%d], 0" % (D1[h & 1], D1[h & 1] + 15, KA[h & 1], KA[h & 1] + 3, PQF + 4 * h, PQF + 4 * h + 3))
        if issued[0] < 16:
            ld_pq(issued[0]); issued[0] += 1

    rd_kv(0)
    a("s_waitcnt lgkmcnt(0)")
    num(0)
    rd_kv(1); rd_wo(0)
    for h in range(16):
        if h + 1 < 16:
            a("s_waitcnt lgkmcnt(4)")
            num(h + 1)
        D = D1[h & 1]
        a("v_add_f32 v%d, 0x%x, v%d" % (vR, EPS, D + 8))
        a("v_rcp_f32 v%d, v%d" % (vR, vR))
        for i in range(8):
            a("v_mul_f32 v%d, v%d, v%d" % (D + i, D + i, vR))
        B_ = OB[h & 1]
        for i in range(4):
            a("v_cvt_pk_bf16_f32 v%d, v%d, v%d" % (B_ + i, D + 2 * i, D + 2 * i + 1))
        a("s_waitcnt lgkmcnt(0)")
        if h + 2 < 16:
            rd_kv(h + 2)
        W_ = WA[h & 1]
        a("v_mfma_f32_32x32x16_bf16 v[%d:%d], v[%d:%d], v[%d:%d], v[%d:%d]" % (O0, O0 + 15, W_, W_ + 3, B_, B_ + 3, O0, O0 + 15))
        a("v_mfma_f32_32x32x16_bf16 v[%d:%d], v[%d:%d], v[%d:%d], v[%d:%d]" % (O1, O1 + 15, W_ + 4, W_ + 7, B_, B_ + 3, O1, O1 + 15))
        if h + 1 < 16:
            rd_wo(h + 1)
    stamp(a, S, 7)
    lA, lB, lC, lD = [a.newlabel("Lx") for _ in range(4)]
    a("s_cmp_eq_u32 s%d, 0" % s_hh)
    a("s_cbranch_scc0 %s" % lA)
    for q in range(4):
        a("ds_write_b128 v%d, v[%d:%d] offset:%d" % (vE0, O1 + 4 * q, O1 + 4 * q + 3, 1024 * q))
    a("s_branch %s" % lB)
    a.label(lA)
    for q in range(4):
        a("ds_write_b128 v%d, v[%d:%d] offset:%d" % (vE0, O0 + 4 * q, O0 + 4 * q + 3, 1024 * q))
    a.label(lB)
    a("s_waitcnt lgkmcnt(0)")
    a("s_barrier")
    E = 48
    for q in range(4):
        a("ds_read_b128 v[%d:%d], v%d offset:%d" % (E + 4 * q, E + 4 * q + 3, vE1, 1024 * q))
    a("s_cmp_eq_u32 s%d, 0" % s_hh)
    a("s_cbranch_scc0 %s" % lC)
    a("s_waitcnt lgkmcnt(0)")
    for i in range(16):
        a("v_add_f32 v%d, v%d, v%d" % (E + i, E + i, O0 + i))
    a("s_branch %s" % lD)
    a.label(lC)
    a("s_waitcnt lgkmcnt(0)")
    for i in range(16):
        a("v_add_f32 v%d, v%d, v%d" % (E + i, E + i, O1 + i))
    a.label(lD)
    for q in range(4):
        a("v_cvt_pk_bf16_f32 v%d, v%d, v%d" % (64 + 2 * q, E + 4 * q, E + 4 * q + 1))
        a("v_cvt_pk_bf16_f32 v%d, v%d, v%d" % (65 + 2 * q, E + 4 * q + 2, E + 4 * q + 3))
        a("ds_write_b64 v%d, v[%d:%d] offset:%d" % (vSt, 64 + 2 * q, 65 + 2 * q, 16 * q))
    a("s_waitcnt lgkmcnt(0)")
    a("s_barrier")
    a("ds_read_b128 v[76:79], v%d" % vRd)
    a("ds_read_b128 v[80:83], v%d offset:%d" % (vRd, 8 * 144))
    a("s_mov_b32 s%d, 16384" % s_off)
    a("s_waitcnt lgkmcnt(1)")
    a("buffer_store_dwordx4 v[76:79], v%d, s[%d:%d], 0 offen" % (vOa, sOUT, sOUT + 3))
    a("s_waitcnt lgkmcnt(0)")
    a("buffer_store_dwordx4 v[80:83], v%d, s[%d:%d], s%d offen" % (vOa, sOUT, sOUT + 3, s_off))
    stamp(a, S, 8)


def zero_pre(s_idx):
    def f(a, s_w):
        l = a.newlabel("Lzp")
        a("s_cmp_lt_u32 s%d, 8" % s_idx)
        a("s_cbranch_scc0 %s" % l)
        a("s_cmp_eq_u32 s%d, 3" % s_w)
        a("s_cbranch_scc0 %s" % l)
        a("s_load_dwordx4 s[88:91], s[0:1], 104")
        for r in range(4):
            a("v_mov_b32 v%d, 0" % (200 + r))
        a("s_waitcnt lgkmcnt(0)")
        srd(a, 92, 90, 91, 1 << 28)
        a("v_lshlrev_b32 v204, 4, v1")
        a("s_lshl_b32 s64, s%d, 12" % s_idx)
        a("v_add_u32 v205, s64, v204")
        for r in range(4):
            a("buffer_store_dwordx4 v[200:203], v205, s[92:95], 0 offen offset:%d sc1" % (WS_KV + 1024 * r))
        a("s_lshl_b32 s64, s%d, 8" % s_idx)
        a("s_add_u32 s64, s64, %d" % WS_Z)
        a("v_and_b32 v206, 15, v1")
        a("v_lshlrev_b32 v205, 4, v206")
        a("v_add_u32 v205, s64, v205")
        a("buffer_store_dwordx4 v[200:203], v205, s[92:95], 0 offen sc1")
        a("s_lshl_b32 s64, s%d, 7" % s_idx)
        a("s_add_u32 s64, s64, %d" % WS_FLAG)
        a("v_and_b32 v206, 7, v1")
        a("v_lshlrev_b32 v206, 10, v206")
        a("v_add_u32 v206, s64, v206")
        a("s_lshl_b32 s65, s%d, 8" % s_idx)
        a("s_add_u32 s65, s65, %d" % (WS_FLAG + 8192 - 1024))
        a("v_lshlrev_b32 v205, 7, v1")
        a("v_add_u32 v205, s65, v205")
        a("v_add_u32 v207, -8, v1")
        a("v_cmp_gt_u32 s[66:67], 2, v207")
        a("v_cndmask_b32 v206, v206, v205, s[66:67]")
        a("buffer_store_dword v200, v206, s[92:95], 0 offen sc1")
        a("s_lshl_b32 s64, s%d, 7" % s_idx)
        a("s_add_u32 s64, s64, %d" % (WS_FLAG + 12288))
        a("v_mov_b32 v206, s64")
        a("buffer_store_dword v200, v206, s[92:95], 0 offen sc1")
        a.label(l)
    return f


def zero_post(s_idx):
    def f(a, s_w):
        l = a.newlabel("Lzq")
        a("s_cmp_lt_u32 s%d, 8" % s_idx)
        a("s_cbranch_scc0 %s" % l)
        a("s_cmp_eq_u32 s%d, 3" % s_w)
        a("s_cbranch_scc0 %s" % l)
        a("s_waitcnt vmcnt(0)")
        a("s_load_dwordx2 s[88:89], s[0:1], 104")
        a("s_waitcnt lgkmcnt(0)")
        srd(a, 60, 88, 89, 256)
        a("s_lshl_b32 s64, s%d, 2" % s_idx)
        a("v_mov_b32 v245, s64")
        a("v_mov_b32 v244, 1")
        a("s_mov_b64 s[66:67], exec")
        a("s_mov_b64 exec, 1")
        a("buffer_store_dword v244, v245, s[60:63], 0 offen sc1")
        a("s_mov_b64 exec, s[66:67]")
        a.label(l)
    return f
```

```python
import sys
from asmdsl import Asm
import partA, partB, partB2, partB3, partA2

NAME = "concat_heads__ssm_conv_s4__linear_attn_block__prompt_kernel"

HEADER = """; Kernarg layout (120 bytes): d_in[0..11], d_out (96), d_debug (104), d_ws (112)
"""

def kernel_text(name, body, nvgpr, accum, nsgpr=102):
    return """.globl {n}
.p2align 8
.type {n},@function
{n}:
{body}""".format(n=name, body=body), """.amdhsa_kernel {n}
  .amdhsa_next_free_vgpr {v}
  .amdhsa_next_free_sgpr {s}
  .amdhsa_accum_offset {acc}
  .amdhsa_group_segment_fixed_size 0
  .amdhsa_kernarg_size 120
  .amdhsa_user_sgpr_count 2
  .amdhsa_user_sgpr_kernarg_segment_ptr 1
  .amdhsa_system_sgpr_workgroup_id_x 1
.end_amdhsa_kernel
""".format(n=name, v=nvgpr, s=nsgpr, acc=accum)

def assemble(launches, kernels):
    out = [HEADER.rstrip()]
    if len(launches) == 1 and launches[0][0] == NAME:
        k, g, b, l = launches[0]
        out.append("; @launch grid=(%d,1,1) block=(%d,1,1) lds=%d" % (g, b, l))
    else:
        for k, g, b, l in launches:
            out.append("; @launch kernel=%s grid=(%d,1,1) block=(%d,1,1) lds=%d" % (k, g, b, l))
    out.append('.amdgcn_target "amdgcn-amd-amdhsa--gfx950"')
    out.append(".text")
    desc = []
    for name, body, nv, acc in kernels:
        t, d = kernel_text(name, body, nv, acc)
        out.append(t)
        desc.append(d)
    out.append('.section .rodata,"a"')
    for d in desc:
        out.append(".p2align 6")
        out.append(d.rstrip())
    return "\n".join(out) + "\n"

def emit_stamps(a, n, s_wg, s_w, nw=4):
    a("s_waitcnt vmcnt(0)")
    a("s_memtime s[%d:%d]" % (70 + 2 * n, 71 + 2 * n))
    a("s_load_dwordx2 s[60:61], s[0:1], 112")
    a("s_waitcnt lgkmcnt(0)")
    a("s_mov_b32 s62, 0x10000000"); a("s_mov_b32 s63, 0x20000"); a("s_and_b32 s61, s61, 0xffff")
    a("s_mul_i32 s64, s%d, %d" % (s_wg, nw)); a("s_add_u32 s64, s64, s%d" % s_w); a("s_lshl_b32 s64, s64, 6")
    a("s_add_u32 s64, s64, 0x8000000")
    a("v_mov_b32 v5, s64")
    for i in range(n + 1):
        a("s_sub_u32 s65, s%d, s70" % (70 + 2 * i))
        a("v_mov_b32 v4, s65")
        a("buffer_store_dword v4, v5, s[60:63], 0 offen offset:%d" % (4 * i))
    a("s_getreg_b32 s65, hwreg(HW_REG_XCC_ID)")
    a("v_mov_b32 v4, s65")
    a("buffer_store_dword v4, v5, s[60:63], 0 offen offset:60")
    a("s_memrealtime s[66:67]")
    a("s_waitcnt lgkmcnt(0)")
    a("v_mov_b32 v4, s66")
    a("buffer_store_dword v4, v5, s[60:63], 0 offen offset:56")
    a("v_mov_b32 v4, s98")
    a("buffer_store_dword v4, v5, s[60:63], 0 offen offset:52")

def kernelA(dbg=None, stamps=False, zero=False):
    a = Asm()
    a("s_cmp_ge_u32 s2, 128")
    a("s_cbranch_scc1 LA_end")
    if zero:
        zero_kvz(a)
    a("s_and_b32 s3, s2, 7")
    a("s_lshl_b32 s3, s3, 4")
    a("s_lshr_b32 s4, s2, 3")
    a("s_add_u32 s3, s3, s4")
    r = partA.emit_partA(a, dict(ka=0, cg=3, stamps=stamps), dbg)
    if stamps:
        emit_stamps(a, 7, 2, r["s_w"])
    if dbg == "lds":
        a("s_load_dwordx2 s[60:61], s[0:1], 112")
        a("s_waitcnt lgkmcnt(0)")
        a("s_mov_b32 s62, 0x10000000"); a("s_mov_b32 s63, 0x20000"); a("s_and_b32 s61, s61, 0xffff")
        a("s_mul_i32 s64, s3, %d" % 131072)
        a("v_lshlrev_b32 v3, 2, v0")
        a("s_mov_b32 s65, 0")
        a.label("Ldump")
        a("ds_read_b32 v4, v3")
        a("v_add_u32 v5, s64, v3")
        a("s_waitcnt lgkmcnt(0)")
        a("buffer_store_dword v4, v5, s[60:63], 0 offen")
        a("v_add_u32 v3, 1024, v3")
        a("s_add_u32 s65, s65, 1024")
        a("s_cmp_lt_u32 s65, %d" % partA.A_LDS)
        a("s_cbranch_scc1 Ldump")
    a("s_waitcnt vmcnt(0)")
    a.label("LA_end")
    a("s_endpgm")
    return a.finish()

def map_B(a):
    a("s_and_b32 s3, s2, 3"); a("s_lshl_b32 s3, s3, 2")
    a("s_bfe_u32 s4, s2, 0x20003"); a("s_add_u32 s3, s3, s4")
    a("s_bfe_u32 s4, s2, 0x10002"); a("s_lshl_b32 s4, s4, 2")
    a("s_bfe_u32 s5, s2, 0x20005"); a("s_add_u32 s4, s4, s5")

def kernelB1(stamps=False, touch=False):
    a = Asm()
    a("s_cmp_ge_u32 s2, 128")
    a("s_cbranch_scc1 LB1_end")
    map_B(a)
    partB.emit_B1(a, dict(ka=0, rb=3, hq=4, stamps=stamps, touch=touch))
    if stamps:
        emit_stamps(a, 5, 2, 44, 8)
    a("s_waitcnt vmcnt(0)")
    a.label("LB1_end")
    a("s_endpgm")
    return a.finish()

def kernelB2(stamps=False):
    a = Asm()
    a("s_cmp_ge_u32 s2, 128")
    a("s_cbranch_scc1 LB2_end")
    map_B(a)
    partB.emit_B2(a, dict(ka=0, rb=3, jb=4, stamps=stamps))
    if stamps:
        emit_stamps(a, 4, 2, 44, 8)
    a("s_waitcnt vmcnt(0)")
    a.label("LB2_end")
    a("s_endpgm")
    return a.finish()

def zero_kvz(a):
    a("s_load_dwordx2 s[60:61], s[0:1], 112")
    a("s_waitcnt lgkmcnt(0)")
    a("s_mov_b32 s62, %d" % partB.KVZ_BYTES); a("s_mov_b32 s63, 0x20000"); a("s_and_b32 s61, s61, 0xffff")
    a("s_mul_i32 s64, s2, 272")
    a("v_lshlrev_b32 v3, 2, v0")
    a("v_add_u32 v3, s64, v3")
    a("v_mov_b32 v4, 0")
    a("v_cmp_gt_u32 vcc, 68, v0")
    a("s_and_saveexec_b64 s[66:67], vcc")
    a("s_cbranch_execz Lzk")
    a("buffer_store_dword v4, v3, s[60:63], 0 offen")
    a.label("Lzk")
    a("s_mov_b64 exec, s[66:67]")

def kernelF(stamps=False, Bmod=None, Amod=None):
    Bmod = Bmod or partB2
    a = Asm()
    if stamps:
        a("s_memrealtime s[98:99]")
    a("s_cmp_ge_u32 s2, 256")
    a("s_cbranch_scc1 LF_end")
    a("s_lshr_b32 s6, s2, 4"); a("s_lshl_b32 s6, s6, 3"); a("s_and_b32 s7, s2, 7"); a("s_add_u32 s6, s6, s7")
    a("s_bitcmp1_b32 s2, 3")
    a("s_cbranch_scc1 LF_B")
    a("v_lshrrev_b32 v2, 6, v0")
    a("v_readfirstlane_b32 s7, v2")
    a("s_cmp_ge_u32 s7, 4")
    a("s_cbranch_scc0 LF_A")
    a("s_cmp_eq_u32 s7, 4")
    a("s_cbranch_scc0 LF_end")
    a("s_cmp_lt_u32 s6, 8")
    a("s_cbranch_scc0 LF_end")
    partB2.emit_zero_init(a, 0, 6)
    a("s_endpgm")
    a.label("LF_A")
    a("s_and_b32 s3, s6, 7"); a("s_lshl_b32 s3, s3, 4"); a("s_lshr_b32 s4, s6, 3"); a("s_add_u32 s3, s3, s4")
    r = partA.emit_partA(a, dict(ka=0, cg=3, stamps=stamps))
    if stamps:
        emit_stamps(a, 7, 2, r["s_w"], 8)
    a("s_waitcnt vmcnt(0)")
    a("s_endpgm")
    a.label("LF_B")
    a("s_and_b32 s3, s6, 3"); a("s_lshl_b32 s3, s3, 2")
    a("s_bfe_u32 s4, s6, 0x20003"); a("s_add_u32 s3, s3, s4")
    a("s_bfe_u32 s4, s6, 0x10002"); a("s_lshl_b32 s4, s4, 2")
    a("s_bfe_u32 s5, s6, 0x20005"); a("s_add_u32 s4, s4, s5")
    Bmod.emit_B(a, dict(ka=0, rb=3, hq=4, idx=6, stamps=stamps))
    if stamps:
        emit_stamps2(a, 9, 2, 44, 8)
    a("s_waitcnt vmcnt(0)")
    a.label("LF_end")
    a("s_endpgm")
    return a.finish()

def kernelG(stamps=False, Bmod=None, Aopts=None, Bopts=None, dbg=False):
    a = Asm()
    if dbg:
        stamps = True
    if stamps:
        a("s_memrealtime s[98:99]")
    a("s_cmp_ge_u32 s2, 256")
    a("s_cbranch_scc1 LF_end")
    a("s_lshr_b32 s6, s2, 4"); a("s_lshl_b32 s6, s6, 3"); a("s_and_b32 s7, s2, 7"); a("s_add_u32 s6, s6, s7")
    a("s_bitcmp1_b32 s2, 3")
    a("s_cbranch_scc1 LF_B")
    a("s_and_b32 s3, s6, 7"); a("s_lshl_b32 s3, s3, 4"); a("s_lshr_b32 s4, s6, 3"); a("s_add_u32 s3, s3, s4")
    S = dict(ka=0, cg=3, i16=4, stamps=stamps, zero_pre=Bmod.zero_pre(6), zero_post=Bmod.zero_post(6))
    S.update(Aopts or {})
    r = partA2.emit_partA(a, S)
    if stamps and not dbg:
        emit_stamps(a, 9, 2, r["s_w"], 8)
    a("s_waitcnt vmcnt(0)")
    a("s_endpgm")
    a.label("LF_B")
    a("s_and_b32 s3, s6, 3"); a("s_lshl_b32 s3, s3, 2")
    a("s_bfe_u32 s4, s6, 0x20003"); a("s_add_u32 s3, s3, s4")
    a("s_bfe_u32 s4, s6, 0x10002"); a("s_lshl_b32 s4, s4, 2")
    a("s_bfe_u32 s5, s6, 0x20005"); a("s_add_u32 s4, s4, s5")
    SB = dict(ka=0, rb=3, hq=4, idx=6, stamps=stamps)
    SB.update(Bopts or {})
    Bmod.emit_B(a, SB)
    if stamps and not dbg:
        emit_stamps(a, 12, 2, 44, 8)
    if dbg:
        emit_dbg(a, [1, 2, 4, 5, 6, 8], 6, 37, 44, 8)
    a("s_waitcnt vmcnt(0)")
    a.label("LF_end")
    a("s_endpgm")
    return a.finish()

def emit_dbg(a, idxs, s_sel, sel_val, s_w, base):
    l = a.newlabel("Ldbg")
    a("s_waitcnt vmcnt(0)")
    a("s_memtime s[96:97]")
    a("s_memrealtime s[66:67]")
    a("s_load_dwordx2 s[60:61], s[0:1], 104")
    a("s_waitcnt lgkmcnt(0)")
    a("s_cmp_eq_u32 s%d, %d" % (s_sel, sel_val))
    a("s_cbranch_scc0 %s" % l)
    a("s_cmp_eq_u32 s%d, 0" % s_w)
    a("s_cbranch_scc0 %s" % l)
    a("s_mov_b32 s62, 256"); a("s_mov_b32 s63, 0x20000"); a("s_and_b32 s61, s61, 0xffff")
    a("v_mov_b32 v5, 0")
    k = 0
    for i in idxs:
        a("s_sub_u32 s65, s%d, s70" % (70 + 2 * i))
        a("v_mov_b32 v4, s65")
        a("buffer_store_dword v4, v5, s[60:63], 0 offen offset:%d" % (4 * (base + k))); k += 1
    a("s_sub_u32 s65, s96, s70"); a("v_mov_b32 v4, s65")
    a("buffer_store_dword v4, v5, s[60:63], 0 offen offset:%d" % (4 * (base + k))); k += 1
    a("s_sub_u32 s65, s66, s98"); a("v_mov_b32 v4, s65")
    a("buffer_store_dword v4, v5, s[60:63], 0 offen offset:%d" % (4 * (base + k))); k += 1
    a.label(l)

def emit_stamps2(a, n, s_wg, s_w, nw):
    emit_stamps(a, n, s_wg, s_w, nw)

def kernelBx(Bmod=None, **kw):
    Bmod = Bmod or partB2
    a = Asm()
    a("s_memrealtime s[98:99]")
    a("s_cmp_ge_u32 s2, 128")
    a("s_cbranch_scc1 LF_end")
    a("s_mov_b32 s6, s2")
    a("s_and_b32 s3, s6, 3"); a("s_lshl_b32 s3, s3, 2")
    a("s_bfe_u32 s4, s6, 0x20003"); a("s_add_u32 s3, s3, s4")
    a("s_bfe_u32 s4, s6, 0x10002"); a("s_lshl_b32 s4, s4, 2")
    a("s_bfe_u32 s5, s6, 0x20005"); a("s_add_u32 s4, s4, s5")
    Bmod.emit_B(a, dict(ka=0, rb=3, hq=4, idx=6, stamps=True, x_stop=True, **kw))
    emit_stamps(a, 3, 2, 44, 8)
    a("s_waitcnt vmcnt(0)")
    a.label("LF_end")
    a("s_endpgm")
    return a.finish()

if __name__ == "__main__":
    mode = sys.argv[1]
    if mode == "A":
        txt = assemble([(NAME, 128, 256, partA.A_LDS)], [(NAME, kernelA(), 256, 256)])
    elif mode == "Astamp":
        txt = assemble([(NAME, 128, 256, partA.A_LDS)], [(NAME, kernelA(stamps=True), 256, 256)])
    elif mode == "v1" or mode == "v1st":
        st = mode == "v1st"
        txt = assemble([("ka_kernel", 128, 256, partA.A_LDS), ("kb1_kernel", 128, 512, 163840), ("kb2_kernel", 128, 512, 131072)],
                       [("ka_kernel", kernelA(zero=True), 256, 256), ("kb1_kernel", kernelB1(st), 256, 256), ("kb2_kernel", kernelB2(), 256, 256)])
    elif mode == "B1st":
        txt = assemble([(NAME, 128, 512, 163840)], [(NAME, kernelB1(True), 256, 256)])
    elif mode == "B1stT":
        txt = assemble([(NAME, 128, 512, 163840)], [(NAME, kernelB1(True, True), 256, 256)])
    elif mode == "B2st":
        txt = assemble([(NAME, 128, 512, 131072)], [(NAME, kernelB2(True), 256, 256)])
    elif mode == "v2" or mode == "v2st":
        txt = assemble([(NAME, 256, 512, 163840)], [(NAME, kernelF(mode == "v2st"), 256, 256)])
    elif mode.startswith("By"):
        kw = {}
        for f in mode.split("_")[1:]:
            if f.startswith("np"): kw["npro"] = int(f[2:])
            else: kw["x_" + f] = True
        txt = assemble([(NAME, 128, 512, 163840)], [(NAME, kernelBx(partB3, **kw), 256, 256)])
    elif mode.startswith("Bx"):
        kw = {}
        for f in mode.split("_")[1:]:
            kw["x_" + f] = True
        txt = assemble([(NAME, 128, 512, 163840)], [(NAME, kernelBx(**kw), 256, 256)])
    elif mode == "v3" or mode == "v3st":
        txt = assemble([(NAME, 256, 512, 163840)], [(NAME, kernelF(mode == "v3st", partB3), 256, 256)])
    elif mode.startswith("v4"):
        st = "st" in mode
        ao = {}
        if "late" in mode: ao["u_late"] = True
        if "spread" in mode: ao["u_spread"] = True
        if "tl" in mode: ao["touch_late"] = True
        if "bt" in mode: ao["btouch"] = True; ao["xcd"] = 7
        if "b2" in mode: ao["btouch2"] = True
        if "ue" in mode: ao["u_early"] = True
        if "ot" in mode: ao["otouch"] = True
        if "or" in mode: ao["orot"] = True
        if "cs" in mode: ao["cswap"] = True
        if "ts" in mode: ao["tstage"] = True; ao["xcd"] = 7
        if "cp" in mode:
            ao["cprio"] = True
            import re as _r2
            mm = _r2.search(r"cp(\d)", mode)
            if mm: ao["cprio_n"] = int(mm.group(1))
        bo = {}
        import re as _re
        m_ = _re.search(r"np(\d)", mode)
        if m_: bo["npro"] = int(m_.group(1))
        if "pb" in mode: bo["pairbar"] = True
        if "pk" in mode: bo["pkphi"] = True
        if "f0" in mode: bo["fast0"] = True
        if "ck" in mode: bo["chunkstamps"] = True
        if "lq" in mode: bo["lateq"] = True
        m_ = _re.search(r"pol(\d)", mode)
        if m_: bo["npoll"] = int(m_.group(1))
        m_ = _re.search(r"slp(\d+)", mode)
        if m_: bo["psleep"] = int(m_.group(1))
        m_ = _re.search(r"pre(\d+)", mode)
        if m_: bo["npre"] = int(m_.group(1))
        m_ = _re.search(r"kp(\d+)", mode)
        if m_: bo["kpost_per"] = int(m_.group(1))
        txt = assemble([(NAME, 256, 512, 163840)], [(NAME, kernelG(st, partB3, ao, bo, dbg=("dbg" in mode)), 256, 256)])
    elif mode == "Adbg":
        txt = assemble([(NAME, 128, 256, partA.A_LDS)], [(NAME, kernelA("lds"), 256, 256)])
    open(sys.argv[2], "w").write(txt)
```

```python
from asmdsl import Asm
from partB import srd

LOG2E = 0x3fb8aa3b
EPS = 0x358637bd
WS_KV = 0
WS_Z = 32768
WS_FLAG = 65536
WS_PQ = 1 << 20
SLOT = 32768
STAMP_BASE = 70
MAGIC = 0x5a17c0de
FLAG_OFFS = [0]


def stamp(a, S, i):
    if S.get("stamps"):
        a("s_memtime s[%d:%d]" % (STAMP_BASE + 2 * i, STAMP_BASE + 2 * i + 1))


class Lines:
    def __init__(self):
        self.l = []
    def __call__(self, t):
        for x in t.split("\n"):
            x = x.strip()
            if x:
                self.l.append(x)


class LTrack:
    def __init__(self, a):
        self.a = a
        self.q = []
    def issue(self, line, tag):
        if len(self.q) >= 15:
            self.a("s_waitcnt lgkmcnt(14)")
            self.q = self.q[-14:]
        self.a(line)
        self.q.append(tag)
    def need(self, tag):
        idx = [i for i, t in enumerate(self.q) if t == tag]
        if not idx:
            return
        n = len(self.q) - 1 - idx[-1]
        self.a("s_waitcnt lgkmcnt(%d)" % n)
        self.q = self.q[idx[-1] + 1:]


USE_PK = [False]


def phi4(a, regs, tmp):
    if USE_PK[0]:
        r0 = regs[0]
        for k in (0, 2):
            a("v_pk_mul_f32 v[%d:%d], v[%d:%d], s[8:9]" % (tmp + k, tmp + k + 1, r0 + k, r0 + k + 1))
        for k, r in enumerate(regs):
            a("v_exp_f32 v%d, v%d clamp" % (tmp + k, tmp + k))
        for k, r in enumerate(regs):
            a("v_max_f32 v%d, 0x%x, v%d" % (r, EPS, r))
        for k in (0, 2):
            a("v_pk_add_f32 v[%d:%d], v[%d:%d], v[%d:%d]" % (r0 + k, r0 + k + 1, r0 + k, r0 + k + 1, tmp + k, tmp + k + 1))
        return
    for k, r in enumerate(regs):
        a("v_mul_f32 v%d, 0x%x, v%d" % (tmp + k, LOG2E, r))
    for k, r in enumerate(regs):
        a("v_exp_f32 v%d, v%d clamp" % (tmp + k, tmp + k))
    for k, r in enumerate(regs):
        a("v_max_f32 v%d, 0x%x, v%d" % (r, EPS, r))
    for k, r in enumerate(regs):
        a("v_add_f32 v%d, v%d, v%d" % (r, r, tmp + k))


def interleave(a, prim, fill, per):
    fi = 0
    for p in prim:
        for x in p:
            a(x)
        for _ in range(per):
            if fi < len(fill):
                a(fill[fi]); fi += 1
    while fi < len(fill):
        a(fill[fi]); fi += 1


def emit_B(a: Asm, S):
    ka, s_rb, s_hq = S["ka"], S["rb"], S["hq"]
    s_w, s_rg, s_ch = 44, 45, 46
    sX, sW, sWS, sDBG = 28, 32, 36, 40
    s_t0, s_t1, s_m0x, s_m0w, s_off, s_rot = 47, 48, 49, 50, 51, 58
    sWO, sOUT = 60, 64
    s_cc, s_xo, s_wo = 59, 68, 69
    vLane = 1
    vT0, vT1, vT2, vT3 = 3, 4, 5, 6
    vXs0, vXs1, vWs, vWOs = 7, 8, 9, 2
    vXr = 10
    vWr = 14
    vXc = 15
    vWc = 19
    WF = 20
    AK, AV, AQ = 52, 68, 84
    TMP = 100
    XF = 128
    USE_PK[0] = bool(S.get("pkphi"))
    stamp(a, S, 0)
    if S.get("pkphi"):
        a("s_mov_b32 s8, 0x%x" % LOG2E); a("s_mov_b32 s9, 0x%x" % LOG2E)
    a("s_load_dwordx8 s[16:23], s[%d:%d], 72" % (ka, ka + 1))
    a("s_load_dwordx4 s[24:27], s[%d:%d], 104" % (ka, ka + 1))
    a("v_and_b32 v1, 63, v0")
    a("v_lshrrev_b32 v2, 6, v0")
    a("v_readfirstlane_b32 s44, v2")
    a("s_and_b32 s45, s44, 3")
    a("s_lshr_b32 s46, s44, 2")
    a("s_add_u32 s%d, s%d, s%d" % (s_rot, s_hq, s_rb))
    a("s_and_b32 s%d, s%d, 3" % (s_rot, s_rot))
    a("s_lshl_b32 s%d, s%d, 1" % (s_rot, s_rot))
    a("v_lshrrev_b32 v%d, 3, v%d" % (vT0, vLane))
    a("v_and_b32 v%d, 7, v%d" % (vT1, vLane))
    a("v_lshrrev_b32 v%d, 1, v%d" % (vT2, vT0))
    a("v_xor_b32 v%d, v%d, v%d" % (vT2, vT2, vT1))
    a("s_lshl_b32 s%d, s%d, 7" % (s_t0, s_rb))
    a("s_lshl_b32 s%d, s%d, 4" % (s_t1, s_w))
    a("s_add_u32 s%d, s%d, s%d" % (s_t0, s_t0, s_t1))
    a("v_add_u32 v%d, s%d, v%d" % (vT3, s_t0, vT0))
    a("v_lshlrev_b32 v%d, 10, v%d" % (vT3, vT3))
    a("v_lshlrev_b32 v%d, 4, v%d" % (vXs0, vT2))
    a("v_add_u32 v%d, v%d, v%d" % (vXs0, vXs0, vT3))
    a("v_xor_b32 v%d, 4, v%d" % (vT2, vT2))
    a("v_lshlrev_b32 v%d, 4, v%d" % (vXs1, vT2))
    a("v_add_u32 v%d, v%d, v%d" % (vXs1, vXs1, vT3))
    a("v_add_u32 v%d, 8192, v%d" % (vXs1, vXs1))
    a("v_bfe_u32 v%d, v%d, 1, 1" % (vT2, vT0))
    a("v_lshlrev_b32 v%d, 2, v%d" % (vT2, vT2))
    a("v_xor_b32 v%d, v%d, v%d" % (vT2, vT2, vT1))
    a("v_lshlrev_b32 v%d, 4, v%d" % (vT2, vT2))
    a("s_lshl_b32 s%d, s%d, 3" % (s_t1, s_w))
    a("v_add_u32 v%d, s%d, v%d" % (vT3, s_t1, vT0))
    a("v_lshlrev_b32 v%d, 10, v%d" % (vWOs, vT3))
    a("v_mul_u32_u24 v%d, 3072, v%d" % (vT3, vT3))
    a("s_lshl_b32 s%d, s%d, 7" % (s_t1, s_hq))
    a("v_add3_u32 v%d, v%d, v%d, s%d" % (vWs, vT3, vT2, s_t1))
    a("v_add3_u32 v%d, v%d, v%d, s%d" % (vWOs, vWOs, vT2, s_t1))
    a("s_lshl_b32 s%d, s%d, 11" % (s_m0x, s_w))
    a("s_lshl_b32 s%d, s%d, 10" % (s_m0w, s_w))
    a("s_waitcnt lgkmcnt(0)")
    srd(a, sX, 16, 17, 2048 * 512 * 2)
    srd(a, sW, 18, 19, 512 * 1536 * 2)

    def chunk_offsets(e, c):
        e("s_add_u32 s%d, s%d, %d" % (s_cc, s_rot, c))
        e("s_and_b32 s%d, s%d, 7" % (s_cc, s_cc))
        e("s_lshl_b32 s%d, s%d, 7" % (s_xo, s_cc))
        e("s_mul_i32 s%d, s%d, 196608" % (s_wo, s_cc))

    def dma(e, m0base, m0off, vaddr, srdreg, so):
        e("s_add_u32 m0, s%d, %d" % (m0base, m0off))
        e("buffer_load_dwordx4 v%d, s[%d:%d], %s offen lds" % (vaddr, srdreg, srdreg + 3, so))

    def fill_op(e, i, j):
        b = (i % 5) * SLOT if i < 11 else 2 * SLOT
        if i < 8:
            if j == 0:
                chunk_offsets(e, i); dma(e, s_m0x, b, vXs0, sX, "s%d" % s_xo)
            elif j == 1:
                dma(e, s_m0x, b + 1024, vXs1, sX, "s%d" % s_xo)
            elif j == 2:
                e("s_add_u32 s%d, s%d, 1024" % (s_off, s_wo)); dma(e, s_m0w, b + 16384, vWs, sW, "s%d" % s_off)
            else:
                e("s_add_u32 s%d, s%d, 2048" % (s_off, s_wo)); dma(e, s_m0w, b + 24576, vWs, sW, "s%d" % s_off)
        elif i < 10:
            chunk_offsets(e, 4 * (i - 8) + j); dma(e, s_m0w, b + 8192 * j, vWs, sW, "s%d" % s_wo)
        else:
            e("s_mov_b32 s%d, %d" % (s_off, (4 * (i - 10) + j) * 65536)); dma(e, s_m0w, b + 8192 * j, vWOs, sWO, "s%d" % s_off)

    NPRO = S.get("npro", 2)
    for i in range(NPRO):
        for j in range(4):
            fill_op(a, i, j)
    srd(a, sWS, 26, 27, 1 << 28)
    srd(a, sDBG, 24, 25, 256)
    srd(a, sWO, 20, 21, 512 * 512 * 2)
    srd(a, sOUT, 22, 23, 2048 * 1024 * 2)
    a("v_and_b32 v%d, 31, v%d" % (vT0, vLane))
    a("v_lshrrev_b32 v%d, 5, v%d" % (vT1, vLane))
    a("v_bfe_u32 v%d, v%d, 1, 3" % (vT2, vLane))
    a("s_lshl_b32 s%d, s%d, 5" % (s_t0, s_rg))
    a("v_add_u32 v%d, s%d, v%d" % (vT3, s_t0, vT0))
    a("v_lshlrev_b32 v%d, 7, v%d" % (vT3, vT3))
    for i in range(4):
        a("v_add_u32 v%d, %d, v%d" % (vXr + i, 2 * i, vT1))
        a("v_xor_b32 v%d, v%d, v%d" % (vXr + i, vXr + i, vT2))
        a("v_lshlrev_b32 v%d, 4, v%d" % (vXr + i, vXr + i))
        a("v_add_u32 v%d, v%d, v%d" % (vXr + i, vXr + i, vT3))
    a("v_bfe_u32 v%d, v%d, 2, 2" % (vT0, vLane))
    a("v_lshlrev_b32 v%d, 3, v%d" % (vT2, vT1))
    a("v_add_u32 v%d, v%d, v%d" % (vT2, vT2, vT0))
    a("v_lshlrev_b32 v%d, 7, v%d" % (vWr, vT2))
    a("v_lshrrev_b32 v%d, 1, v%d" % (vT0, vT0))
    a("v_xor_b32 v%d, s%d, v%d" % (vT0, s_ch, vT0))
    a("v_lshlrev_b32 v%d, 6, v%d" % (vT0, vT0))
    a("v_add_u32 v%d, v%d, v%d" % (vWr, vWr, vT0))
    a("v_bfe_u32 v%d, v%d, 4, 1" % (vT0, vLane))
    a("v_lshlrev_b32 v%d, 5, v%d" % (vT0, vT0))
    a("v_and_b32 v%d, 3, v%d" % (vT2, vLane))
    a("v_lshlrev_b32 v%d, 3, v%d" % (vT2, vT2))
    a("v_add3_u32 v%d, v%d, v%d, v%d" % (vWr, vWr, vT0, vT2))
    for i in range(16):
        a("v_mov_b32 v%d, 0" % (AK + i)); a("v_mov_b32 v%d, 0" % (AV + i)); a("v_mov_b32 v%d, 0" % (AQ + i))

    vRW, vZW, vRR, vZR, vPQa, vKA, vZA, vG = 120, 121, 122, 123, 124, 125, 126, 127
    RED = 1 * SLOT
    ZRED = RED + 16384
    PFOK = RED + 20480
    s_msk, s_hp, s_hf = 52, 54, 55
    a("v_bfe_u32 v%d, v%d, 4, 1" % (vT0, vLane))
    a("v_cmp_eq_u32 s[%d:%d], 1, v%d" % (s_msk, s_msk + 1, vT0))
    a("s_lshl_b32 s%d, s%d, 8" % (s_t0, s_w))
    a("s_add_u32 s%d, s%d, %d" % (s_t0, s_t0, ZRED))
    a("v_lshlrev_b32 v%d, 2, v%d" % (vT1, vLane))
    a("v_add_u32 v%d, s%d, v%d" % (vZW, s_t0, vT1))
    a("s_lshl_b32 s%d, s%d, 11" % (s_t0, s_w))
    a("s_add_u32 s%d, s%d, %d" % (s_t0, s_t0, RED))
    a("v_lshlrev_b32 v%d, 5, v%d" % (vRW, vLane))
    a("v_add_u32 v%d, s%d, v%d" % (vRW, s_t0, vRW))
    a("s_bfe_u32 s%d, s%d, 0x10001" % (s_hp, s_w))
    a("s_and_b32 s%d, s%d, 1" % (s_hf, s_w))
    a("s_lshl_b32 s%d, s%d, 5" % (s_t0, s_hf))
    a("s_lshl_b32 s%d, s%d, 4" % (s_t1, s_hp))
    a("s_add_u32 s%d, s%d, s%d" % (s_t0, s_t0, s_t1))
    a("s_lshl_b32 s%d, s%d, 5" % (s_t0, s_t0))
    a("s_lshl_b32 s%d, s%d, 13" % (s_t1, s_ch))
    a("s_add_u32 s%d, s%d, s%d" % (s_t0, s_t0, s_t1))
    a("s_add_u32 s%d, s%d, %d" % (s_t0, s_t0, RED))
    a("v_add_u32 v%d, s%d, v%d" % (vRR, s_t0, vT1))
    a("v_and_b32 v%d, 31, v%d" % (vZR, vLane))
    a("v_lshlrev_b32 v%d, 2, v%d" % (vZR, vZR))
    a("s_lshl_b32 s%d, s%d, 10" % (s_t1, s_ch))
    a("s_add_u32 s%d, s%d, %d" % (s_t1, s_t1, ZRED))
    a("v_add_u32 v%d, s%d, v%d" % (vZR, s_t1, vZR))
    a("s_lshl_b32 s%d, s%d, 2" % (s_t0, s_hq))
    a("s_lshl_b32 s%d, s%d, 1" % (s_t1, s_ch))
    a("s_add_u32 s%d, s%d, s%d" % (s_t0, s_t0, s_t1))
    a("s_add_u32 s%d, s%d, s%d" % (s_t1, s_t0, s_hp))
    a("s_lshl_b32 s%d, s%d, 10" % (s_t1, s_t1))
    a("s_lshl_b32 s%d, s%d, 9" % (s_off, s_hf))
    a("s_add_u32 s%d, s%d, s%d" % (s_t1, s_t1, s_off))
    a("v_add_u32 v%d, s%d, v%d" % (vKA, s_t1, vT1))
    a("v_bfe_u32 v%d, v%d, 4, 1" % (vZA, vLane))
    a("v_add_u32 v%d, s%d, v%d" % (vZA, s_t0, vZA))
    a("v_lshlrev_b32 v%d, 6, v%d" % (vZA, vZA))
    a("v_bfe_u32 v%d, v%d, 2, 1" % (vT2, vLane))
    a("v_lshlrev_b32 v%d, 5, v%d" % (vT2, vT2))
    a("v_add_u32 v%d, v%d, v%d" % (vZA, vZA, vT2))
    a("v_and_b32 v%d, 3, v%d" % (vT2, vLane))
    a("v_bfe_u32 v%d, v%d, 3, 1" % (vT3, vLane))
    a("v_lshlrev_b32 v%d, 2, v%d" % (vT3, vT3))
    a("v_add_u32 v%d, v%d, v%d" % (vT2, vT2, vT3))
    a("v_lshlrev_b32 v%d, 2, v%d" % (vT2, vT2))
    a("v_add_u32 v%d, v%d, v%d" % (vZA, vZA, vT2))
    a("v_add_u32 v%d, %d, v%d" % (vZA, WS_Z, vZA))
    a("s_lshl_b32 s%d, s%d, 6" % (s_t0, s_t0))
    a("s_lshl_b32 s%d, s%d, 2" % (s_t1, s_rb))
    a("s_add_u32 s%d, s%d, s%d" % (s_t0, s_t0, s_t1))
    a("s_add_u32 s%d, s%d, s%d" % (s_t0, s_t0, s_rg))
    a("s_lshl_b32 s%d, s%d, 10" % (s_t0, s_t0))
    a("s_add_u32 s%d, s%d, %d" % (s_t0, s_t0, WS_PQ))
    a("v_lshlrev_b32 v%d, 4, v%d" % (vPQa, vLane))
    a("v_add_u32 v%d, s%d, v%d" % (vPQa, s_t0, vPQa))

    def mf(e, D, A_, B_):
        e("v_mfma_f32_32x32x16_bf16 v[%d:%d], v[%d:%d], v[%d:%d], v[%d:%d]" % (D, D + 15, A_, A_ + 3, B_, B_ + 3, D, D + 15))

    def set_slot(slot):
        for i in range(4):
            a("v_add_u32 v%d, %d, v%d" % (vXc + i, slot * SLOT, vXr + i))
        a("v_add_u32 v%d, %d, v%d" % (vWc, slot * SLOT, vWr))

    def rd(c, i):
        X = XF + 16 * c + 4 * i
        F = WF + 8 * i
        a("ds_read_b128 v[%d:%d], v%d" % (X, X + 3, vXc + i))
        for mat, base in ((0, 16384), (1, 24576)):
            for j in range(2):
                a("ds_read_b64_tr_b16 v[%d:%d], v%d offset:%d" % (F + 4 * mat + 2 * j, F + 4 * mat + 2 * j + 1, vWc, base + (16 * i + 4 * j) * 128))

    def rdq(st):
        F = WF + 4 * (st % 8)
        j4, i = (st % 16) >> 2, st & 3
        for j in range(2):
            a("ds_read_b64_tr_b16 v[%d:%d], v%d offset:%d" % (F + 2 * j, F + 2 * j + 1, vWc, 8192 * j4 + (16 * i + 4 * j) * 128))

    def kvstep(c, i):
        X = XF + 16 * c + 4 * i
        F = WF + 8 * i
        if S.get("x_prio"):
            a("s_setprio 1")
        mf(a, AK, X, F)
        mf(a, AV, X, F + 4)
        if S.get("x_prio"):
            a("s_setprio 0")

    if S.get("x_young"):
        ly = a.newlabel("Ly")
        a("s_cmp_ge_u32 s%d, 4" % s_w)
        a("s_cbranch_scc0 %s" % ly)
        a("s_setprio 1")
        a.label(ly)
    a("s_waitcnt vmcnt(%d)" % (4 * (NPRO - 1)))
    a("s_barrier")
    stamp(a, S, 1)
    FAST0 = S.get("fast0") and NPRO == 1
    for i in range(NPRO, 2 if FAST0 else 3):
        for j in range(4):
            fill_op(a, i, j)
    set_slot(0)
    rd(0, 0); rd(0, 1)
    mode = S.get("fillmode", "spread")
    if S.get("x_pre"): mode = "pre"
    if S.get("x_post"): mode = "post"
    if S.get("x_nofill"): mode = "none"
    waits = {"spread": 6, "pre": 8, "post": 4, "none": 63}

    def fills(i, where):
        if mode == "spread" and FAST0 and i == 3:
            f_, j0 = (2, 2 * where) if where < 2 else (3, 2 * (where - 2))
            fill_op(a, f_, j0); fill_op(a, f_, j0 + 1)
        elif mode == "spread":
            fill_op(a, i, where)
        elif mode == "pre" and where == 1:
            for j in range(4):
                fill_op(a, i, j)
        elif mode == "post" and where == 2:
            for j in range(4):
                fill_op(a, i, j)

    if S.get("pairbar"):
        assert NPRO == 1
        plan = {
            (0, 0): [(3, 0)], (0, 1): [(3, 1)], (0, 2): [(3, 2)], (0, 3): [(3, 3)],
            (1, 0): [(4, 0), (4, 1)], (1, 1): [(4, 2), (4, 3)], (1, 2): [(5, 0), (5, 1)], (1, 3): [(5, 2), (5, 3)],
            (3, 2): [(6, 0), (6, 1)], (3, 3): [(6, 2), (6, 3)], (4, 0): [(7, 0), (7, 1)], (4, 1): [(7, 2), (7, 3)],
            (5, 2): [(8, 0), (8, 1)], (5, 3): [(8, 2), (8, 3)], (6, 0): [(9, 0), (9, 1)], (6, 1): [(9, 2), (9, 3)],
            (7, 2): [(10, 0), (10, 1)], (7, 3): [(10, 2), (10, 3)],
        }
        bar = {0: 6, 1: 4, 3: 0, 5: 0, 7: 0}

        def pf(c, p):
            for (i, j) in plan.get((c, p), []):
                fill_op(a, i, j)
        for c in range(8):
            a("s_waitcnt lgkmcnt(5)")
            kvstep(c, 0); rd(c, 2); pf(c, 0)
            a("s_waitcnt lgkmcnt(5)")
            mf(a, AK, XF + 16 * c + 4, WF + 8)
            rd(c, 3); pf(c, 1)
            if c in bar:
                a("s_waitcnt vmcnt(%d) lgkmcnt(5)" % bar[c])
            else:
                a("s_waitcnt lgkmcnt(5)")
            mf(a, AV, XF + 16 * c + 4, WF + 8 + 4)
            if c in bar:
                a("s_barrier")
            kvstep(c, 2)
            if c < 7:
                set_slot((c + 1) % 5)
                rd(c + 1, 0)
                pf(c, 2)
                a("s_waitcnt lgkmcnt(5)")
                kvstep(c, 3)
                rd(c + 1, 1)
                pf(c, 3)
            else:
                a("v_add_u32 v%d, %d, v%d" % (vWc, 3 * SLOT, vWr))
                rdq(0); rdq(1)
                pf(c, 2)
                a("s_waitcnt lgkmcnt(4)")
                kvstep(c, 3)
                rdq(2); rdq(3)
                pf(c, 3)
    elif S.get("lateq"):
        def lf(c, p):
            if c <= 4:
                fill_op(a, c + 3, p)
            elif c == 7:
                fill_op(a, 8, p)
        vm = {0: 6, 1: 6, 2: 6, 3: 6, 4: 6, 5: 4, 6: 0}
        for c in range(8):
            a("s_waitcnt lgkmcnt(5)")
            kvstep(c, 0); rd(c, 2); lf(c, 0)
            a("s_waitcnt lgkmcnt(5)")
            mf(a, AK, XF + 16 * c + 4, WF + 8)
            rd(c, 3); lf(c, 1)
            if c < 7:
                a("s_waitcnt vmcnt(%d) lgkmcnt(5)" % vm[c])
            else:
                a("s_waitcnt lgkmcnt(5)")
            mf(a, AV, XF + 16 * c + 4, WF + 8 + 4)
            if c < 7:
                a("s_barrier")
            kvstep(c, 2)
            if c < 7:
                set_slot((c + 1) % 5)
                rd(c + 1, 0)
                lf(c, 2)
                a("s_waitcnt lgkmcnt(5)")
                kvstep(c, 3)
                rd(c + 1, 1)
                lf(c, 3)
            else:
                lf(c, 2)
                a("s_waitcnt lgkmcnt(0)")
                kvstep(c, 3)
                lf(c, 3)
        for j in range(4):
            fill_op(a, 9, j)
    else:
        for c in range(8):
            a("s_waitcnt lgkmcnt(5)")
            kvstep(c, 0); rd(c, 2); fills(c + 3, 0)
            a("s_waitcnt lgkmcnt(5)")
            mf(a, AK, XF + 16 * c + 4, WF + 8)
            rd(c, 3); fills(c + 3, 1)
            if S.get("chunkstamps"):
                a("s_memtime s[%d:%d]" % (76 + 2 * 0, 77 + 2 * 0)) if False else None
            a("s_waitcnt vmcnt(%d) lgkmcnt(5)" % (4 if (FAST0 and c == 0) else waits[mode]))
            mf(a, AV, XF + 16 * c + 4, WF + 8 + 4)
            if not S.get("x_nobar"):
                a("s_barrier")
            if S.get("chunkstamps"):
                a("s_memtime s[%d:%d]" % (76 + 2 * c, 77 + 2 * c))
            kvstep(c, 2)
            if c < 7:
                set_slot((c + 1) % 5)
                rd(c + 1, 0)
                fills(c + 3, 2)
                a("s_waitcnt lgkmcnt(5)")
                kvstep(c, 3)
                rd(c + 1, 1)
                fills(c + 3, 3)
            else:
                a("v_add_u32 v%d, %d, v%d" % (vWc, 3 * SLOT, vWr))
                rdq(0); rdq(1)
                fills(c + 3, 2)
                a("s_waitcnt lgkmcnt(4)")
                kvstep(c, 3)
                rdq(2); rdq(3)
                fills(c + 3, 3)
    stamp(a, S, 2)
    if S.get("x_stop") or S.get("chunkstamps"):
        return
    a("v_and_b32 v%d, 7, v%d" % (vT2, vLane))
    a("v_lshlrev_b32 v%d, 2, v%d" % (vT2, vT2))
    a("buffer_load_dword v%d, v%d, s[%d:%d], 0 offen sc1" % (vG, vT2, sDBG, sDBG + 3))
    PKp, PVp = TMP, TMP + 8
    t4 = TMP + 16
    vZ, vOne = vT0, vT1
    vWc2 = vXc
    a("v_add_u32 v%d, %d, v%d" % (vWc2, 4 * SLOT, vWr))
    LQ = S.get("lateq")
    T = LTrack(a)
    T.q = [] if LQ else [("q", st) for st in range(4) for _ in range(2)]

    def rdqT(st):
        F = WF + 4 * (st % 8)
        j4, i = (st % 16) >> 2, st & 3
        vb = vWc if st < 16 else vWc2
        for j in range(2):
            T.issue("ds_read_b64_tr_b16 v[%d:%d], v%d offset:%d" % (F + 2 * j, F + 2 * j + 1, vb, 8192 * j4 + (16 * i + 4 * j) * 128), ("q", st))

    def qslot(st, fill, per, prefetch=True):
        T.need(("q", st))
        mf(a, AQ, WF + 4 * (st % 8), XF + 4 * st)
        if prefetch and st + 4 < 32:
            rdqT(st + 4)
        for _ in range(per):
            if fill:
                a(fill.pop(0))

    f = Lines()
    f("v_mov_b32 v%d, 0" % vZ)
    f("v_mov_b32 v%d, 0x3f803f80" % vOne)
    for i in range(8):
        f("v_cvt_pk_bf16_f32 v%d, v%d, v%d" % (PVp + i, AV + 2 * i, AV + 2 * i + 1))
    for g in range(4):
        phi4(f, [AK + 4 * g + k for k in range(4)], t4)
        for i in (2 * g, 2 * g + 1):
            f("v_cvt_pk_bf16_f32 v%d, v%d, v%d" % (PKp + i, AK + 2 * i, AK + 2 * i + 1))
    fill = list(f.l)
    st = 0
    DKV = AK
    SEL = PVp
    if LQ:
        a("v_add_u32 v%d, %d, v%d" % (vWc, 3 * SLOT, vWr))
        for x in fill:
            a(x)
        a("v_mfma_f32_32x32x16_bf16 v[%d:%d], v[%d:%d], v[%d:%d], 0" % (DKV, DKV + 15, PKp, PKp + 3, PVp, PVp + 3))
        a("v_mfma_f32_32x32x16_bf16 v[%d:%d], v[%d:%d], v[%d:%d], v[%d:%d]" % (DKV, DKV + 15, PKp + 4, PKp + 7, PVp + 4, PVp + 7, DKV, DKV + 15))
        for i in range(8):
            a("v_dot2c_f32_bf16 v%d, v%d, v%d" % (vZ, PKp + i, vOne))
        a("ds_write_b32 v%d, v%d" % (vZW, vZ))
        for i in range(8):
            a("v_cndmask_b32 v%d, v%d, v%d, s[%d:%d]" % (SEL + i, DKV + i, DKV + 8 + i, s_msk, s_msk + 1))
        a("ds_write_b128 v%d, v[%d:%d]" % (vRW, SEL, SEL + 3))
        a("ds_write_b128 v%d, v[%d:%d] offset:16" % (vRW, SEL + 4, SEL + 7))
        a("s_waitcnt vmcnt(0) lgkmcnt(0)")
        a("s_barrier")
        stamp(a, S, 3)
        for st_ in range(4):
            rdqT(st_)
        fo10 = Lines()
        for j in range(4):
            fill_op(fo10, 10, j)
        extra_fill = list(fo10.l)
    else:
        KP = S.get("kpost_per", 11)
        while fill and st < 8:
            qslot(st, fill, KP); st += 1
        while fill:
            a(fill.pop(0))
        a("v_mfma_f32_32x32x16_bf16 v[%d:%d], v[%d:%d], v[%d:%d], 0" % (DKV, DKV + 15, PKp, PKp + 3, PVp, PVp + 3))
        a("v_mfma_f32_32x32x16_bf16 v[%d:%d], v[%d:%d], v[%d:%d], v[%d:%d]" % (DKV, DKV + 15, PKp + 4, PKp + 7, PVp + 4, PVp + 7, DKV, DKV + 15))
        fill = ["v_dot2c_f32_bf16 v%d, v%d, v%d" % (vZ, PKp + i, vOne) for i in range(8)]
        while st < 11:
            qslot(st, fill, 4); st += 1
        while fill:
            a(fill.pop(0))
        T.issue("ds_write_b32 v%d, v%d" % (vZW, vZ), "w")
        for i in range(8):
            a("v_cndmask_b32 v%d, v%d, v%d, s[%d:%d]" % (SEL + i, DKV + i, DKV + 8 + i, s_msk, s_msk + 1))
        T.issue("ds_write_b128 v%d, v[%d:%d]" % (vRW, SEL, SEL + 3), "w")
        T.issue("ds_write_b128 v%d, v[%d:%d] offset:16" % (vRW, SEL + 4, SEL + 7), "w")
        qslot(st, [], 0, prefetch=False); st += 1
        a("s_waitcnt vmcnt(0) lgkmcnt(0)")
        T.q = []
        a("s_barrier")
        stamp(a, S, 3)
        rdqT(15)
        extra_fill = []
    lg, lgo = a.newlabel("Lg"), a.newlabel("Lgo")
    a("v_cmp_ne_u32 vcc, 1, v%d" % vG)
    a("s_cbranch_vccz %s" % lgo)
    a.label(lg)
    a("buffer_load_dword v%d, v%d, s[%d:%d], 0 offen sc1" % (vG, vT2, sDBG, sDBG + 3))
    a("s_waitcnt vmcnt(0)")
    a("v_cmp_ne_u32 vcc, 1, v%d" % vG)
    a("s_cbranch_vccnz %s" % lg)
    a.label(lgo)
    R_ = TMP
    for row in range(2):
        for g in range(4):
            T.issue("ds_read_b32 v%d, v%d offset:%d" % (R_ + 4 * row + g, vRR, 2048 * g + 256 * row), "kvr")
    qslot(st, [], 0); st += 1
    for g in range(4):
        for hf in range(2):
            T.issue("ds_read_b32 v%d, v%d offset:%d" % (R_ + 8 + 2 * g + hf, vZR, 256 * g + 128 * hf), "zr")
    T.need("kvr")
    for row in range(2):
        b = R_ + 4 * row
        a("v_add_f32 v%d, v%d, v%d" % (b, b, b + 1))
        a("v_add_f32 v%d, v%d, v%d" % (b + 2, b + 2, b + 3))
        a("v_add_f32 v%d, v%d, v%d" % (b, b, b + 2))
    for row in range(2):
        a("buffer_atomic_add_f32 v%d, v%d, s[%d:%d], 0 offen offset:%d" % (R_ + 4 * row, vKA, sWS, sWS + 3, WS_KV + 256 * row))
    qslot(st, [], 0); st += 1
    T.need("zr")
    b = R_ + 8
    for stp in (1, 2, 4):
        for k in range(0, 8, 2 * stp):
            a("v_add_f32 v%d, v%d, v%d" % (b + k, b + k, b + k + stp))
    lz = a.newlabel("Lz")
    a("s_and_b32 s%d, s%d, 3" % (s_t0, s_w))
    a("s_cmp_eq_u32 s%d, 0" % s_t0)
    a("s_cbranch_scc0 %s" % lz)
    a("s_mov_b64 s[56:57], exec")
    a("s_mov_b32 exec_lo, -1")
    a("s_mov_b32 exec_hi, 0")
    a("buffer_atomic_add_f32 v%d, v%d, s[%d:%d], 0 offen" % (b, vZA, sWS, sWS + 3))
    a("s_mov_b64 exec, s[56:57]")
    a.label(lz)
    fo = Lines()
    for j in range(4):
        fill_op(fo, 11, j)
    fill = extra_fill + list(fo.l)
    while st < 32:
        qslot(st, fill, 3); st += 1
    while fill:
        a(fill.pop(0))
    a("s_waitcnt vmcnt(0)")
    a("s_barrier")
    stamp(a, S, 9)
    lkf = a.newlabel("Lkf")
    a("s_cmp_eq_u32 s%d, 6" % s_w)
    a("s_cbranch_scc0 %s" % lkf)
    a("s_lshl_b32 s%d, s%d, 7" % (s_t0, s_hq))
    a("s_add_u32 s%d, s%d, %d" % (s_t0, s_t0, WS_FLAG))
    a("v_lshlrev_b32 v%d, 10, v%d" % (vT0, vLane))
    a("v_add_u32 v%d, s%d, v%d" % (vT0, s_t0, vT0))
    a("v_mov_b32 v%d, 1" % vT1)
    a("s_mov_b64 s[56:57], exec")
    a("s_mov_b64 exec, 0xff")
    a("buffer_atomic_add v%d, v%d, s[%d:%d], 0 offen" % (vT1, vT0, sWS, sWS + 3))
    a("s_mov_b64 exec, s[56:57]")
    a.label(lkf)
    PQ = TMP
    for g in range(4):
        phi4(a, [AQ + 4 * g + k for k in range(4)], t4)
        for i in (2 * g, 2 * g + 1):
            a("v_cvt_pk_bf16_f32 v%d, v%d, v%d" % (PQ + i, AQ + 2 * i, AQ + 2 * i + 1))
        if g == 1:
            a("buffer_store_dwordx4 v[%d:%d], v%d, s[%d:%d], 0 offen sc1" % (PQ, PQ + 3, vPQa, sWS, sWS + 3))
    a("s_mov_b32 s%d, 65536" % s_off)
    a("buffer_store_dwordx4 v[%d:%d], v%d, s[%d:%d], s%d offen sc1" % (PQ + 4, PQ + 7, vPQa, sWS, sWS + 3, s_off))
    stamp(a, S, 4)
    s_hh = 46
    WO = 0
    KVF = 3 * SLOT
    OST = 4 * SLOT
    PQF = 128
    vKVa, vZa, vPQl, vKFw, vZFw = 11, 12, 13, 14, 15
    vKr, vWr2, vWr1 = 8, 9, 10
    a("v_lshlrev_b32 v%d, 4, v%d" % (vT0, vLane))
    a("s_lshl_b32 s%d, s%d, 12" % (s_t1, s_w))
    a("v_add_u32 v%d, s%d, v%d" % (vKVa, s_t1, vT0))
    a("s_and_b32 s%d, s%d, 1" % (s_t1, s_w))
    a("s_lshl_b32 s%d, s%d, 10" % (s_t1, s_t1))
    a("s_add_u32 s%d, s%d, %d" % (s_t1, s_t1, WS_Z))
    a("v_add_u32 v%d, s%d, v%d" % (vZa, s_t1, vT0))
    a("s_lshl_b32 s%d, s%d, 10" % (s_t0, s_hh))
    a("s_lshl_b32 s%d, s%d, 2" % (s_t1, s_rb))
    a("s_add_u32 s%d, s%d, s%d" % (s_t0, s_t0, s_t1))
    a("s_add_u32 s%d, s%d, s%d" % (s_t0, s_t0, s_rg))
    a("s_lshl_b32 s%d, s%d, 10" % (s_t0, s_t0))
    a("s_add_u32 s%d, s%d, %d" % (s_t0, s_t0, WS_PQ))
    a("v_add_u32 v%d, s%d, v%d" % (vPQl, s_t0, vT0))
    a("v_lshrrev_b32 v%d, 5, v%d" % (vT1, vLane))
    a("v_lshlrev_b32 v%d, 9, v%d" % (vT1, vT1))
    a("v_bfe_u32 v%d, v%d, 1, 4" % (vT2, vLane))
    a("v_lshlrev_b32 v%d, 4, v%d" % (vT2, vT2))
    a("v_and_b32 v%d, 1, v%d" % (vT3, vLane))
    a("v_lshlrev_b32 v%d, 3, v%d" % (vT3, vT3))
    a("v_add3_u32 v%d, v%d, v%d, v%d" % (vKFw, vT1, vT2, vT3))
    a("s_lshl_b32 s%d, s%d, 12" % (s_t1, s_w))
    a("s_add_u32 s%d, s%d, %d" % (s_t1, s_t1, KVF))
    a("v_add_u32 v%d, s%d, v%d" % (vKFw, s_t1, vKFw))
    a("s_and_b32 s%d, s%d, 1" % (s_t1, s_w))
    a("s_lshl_b32 s%d, s%d, 14" % (s_t1, s_t1))
    a("s_add_u32 s%d, s%d, %d" % (s_t1, s_t1, KVF + 256))
    a("v_lshrrev_b32 v%d, 2, v%d" % (vT2, vLane))
    a("v_lshlrev_b32 v%d, 10, v%d" % (vT2, vT2))
    a("v_bfe_u32 v%d, v%d, 1, 1" % (vT3, vLane))
    a("v_lshlrev_b32 v%d, 9, v%d" % (vT3, vT3))
    a("v_add3_u32 v%d, v%d, v%d, s%d" % (vZFw, vT2, vT3, s_t1))
    a("v_and_b32 v%d, 1, v%d" % (vT3, vLane))
    a("v_lshlrev_b32 v%d, 3, v%d" % (vT3, vT3))
    a("v_add_u32 v%d, v%d, v%d" % (vZFw, vZFw, vT3))
    a("v_lshlrev_b32 v%d, 4, v%d" % (vKr, vLane))
    a("s_lshl_b32 s%d, s%d, 14" % (s_t0, s_hh))
    a("s_add_u32 s%d, s%d, %d" % (s_t0, s_t0, KVF))
    a("v_add_u32 v%d, s%d, v%d" % (vKr, s_t0, vKr))
    a("v_lshrrev_b32 v%d, 5, v%d" % (vT1, vLane))
    a("v_bfe_u32 v%d, v%d, 2, 2" % (vT0, vLane))
    a("v_lshlrev_b32 v%d, 2, v%d" % (vT2, vT1))
    a("v_add_u32 v%d, v%d, v%d" % (vT2, vT2, vT0))
    a("v_lshlrev_b32 v%d, 7, v%d" % (vWr2, vT2))
    a("v_lshrrev_b32 v%d, 1, v%d" % (vT0, vT0))
    a("v_lshlrev_b32 v%d, 6, v%d" % (vT3, vT0))
    a("v_bfe_u32 v%d, v%d, 4, 1" % (vT2, vLane))
    a("v_lshlrev_b32 v%d, 5, v%d" % (vT2, vT2))
    a("v_add_u32 v%d, v%d, v%d" % (vWr2, vWr2, vT2))
    a("v_and_b32 v%d, 3, v%d" % (vT2, vLane))
    a("v_lshlrev_b32 v%d, 3, v%d" % (vT2, vT2))
    a("v_add_u32 v%d, v%d, v%d" % (vWr2, vWr2, vT2))
    a("s_lshl_b32 s%d, s%d, 16" % (s_t0, s_hh))
    a("v_add_u32 v%d, s%d, v%d" % (vWr2, s_t0, vWr2))
    a("v_xor_b32 v%d, 64, v%d" % (vWr1, vT3))
    a("v_add_u32 v%d, v%d, v%d" % (vWr1, vWr1, vWr2))
    a("v_add_u32 v%d, v%d, v%d" % (vWr2, vWr2, vT3))
    vE0, vE1, vSt, vRd, vOa = 192, 193, 194, 195, 196
    a("s_lshl_b32 s%d, s%d, 12" % (s_t0, s_w))
    a("s_add_u32 s%d, s%d, %d" % (s_t0, s_t0, OST))
    a("v_lshlrev_b32 v%d, 4, v%d" % (vE0, vLane))
    a("v_add_u32 v%d, s%d, v%d" % (vE0, s_t0, vE0))
    a("s_xor_b32 s%d, s%d, 4" % (s_t0, s_w))
    a("s_lshl_b32 s%d, s%d, 12" % (s_t0, s_t0))
    a("s_add_u32 s%d, s%d, %d" % (s_t0, s_t0, OST))
    a("v_lshlrev_b32 v%d, 4, v%d" % (vE1, vLane))
    a("v_add_u32 v%d, s%d, v%d" % (vE1, s_t0, vE1))
    a("v_and_b32 v%d, 31, v%d" % (vSt, vLane))
    a("s_lshl_b32 s%d, s%d, 5" % (s_t0, s_rg))
    a("v_add_u32 v%d, s%d, v%d" % (vSt, s_t0, vSt))
    a("v_mul_u32_u24 v%d, 144, v%d" % (vSt, vSt))
    a("v_lshrrev_b32 v%d, 5, v%d" % (vT3, vLane))
    a("v_lshlrev_b32 v%d, 3, v%d" % (vT3, vT3))
    a("s_lshl_b32 s%d, s%d, 6" % (s_t0, s_hh))
    a("v_add3_u32 v%d, v%d, v%d, s%d" % (vSt, vSt, vT3, s_t0))
    a("v_lshrrev_b32 v%d, 3, v%d" % (vOa, vLane))
    a("s_lshl_b32 s%d, s%d, 4" % (s_t0, s_w))
    a("v_add_u32 v%d, s%d, v%d" % (vOa, s_t0, vOa))
    a("v_and_b32 v%d, 7, v%d" % (vT3, vLane))
    a("v_lshlrev_b32 v%d, 4, v%d" % (vT3, vT3))
    a("v_mul_u32_u24 v%d, 144, v%d" % (vRd, vOa))
    a("v_add_u32 v%d, v%d, v%d" % (vRd, vRd, vT3))
    a("s_lshl_b32 s%d, s%d, 7" % (s_t0, s_rb))
    a("v_add_u32 v%d, s%d, v%d" % (vOa, s_t0, vOa))
    a("v_lshlrev_b32 v%d, 11, v%d" % (vOa, vOa))
    a("s_lshl_b32 s%d, s%d, 7" % (s_t0, s_hq))
    a("s_add_u32 s%d, s%d, 1024" % (s_t0, s_t0))
    a("v_add3_u32 v%d, v%d, v%d, s%d" % (vOa, vOa, vT3, s_t0))
    O0, O1 = 16, 32
    D1 = [48, 96]
    KA = [64, 112]
    WA = [68, 76]
    OB = [84, 88]
    vR = 92
    KL, ZL = 96, 116
    for i in range(16):
        a("v_mov_b32 v%d, 0" % (O0 + i)); a("v_mov_b32 v%d, 0" % (O1 + i))
    a("s_waitcnt vmcnt(0)")
    stamp(a, S, 10)
    a("s_barrier")
    lpf = a.newlabel("Lpf")
    a("s_cmp_eq_u32 s%d, 7" % s_w)
    a("s_cbranch_scc0 %s" % lpf)
    a("s_lshl_b32 s%d, s%d, 7" % (s_t0, s_rb))
    a("s_add_u32 s%d, s%d, %d" % (s_t0, s_t0, WS_FLAG + 8192))
    a("v_mov_b32 v%d, s%d" % (vT0, s_t0))
    a("v_mov_b32 v%d, 1" % vT1)
    a("s_mov_b64 s[56:57], exec")
    a("s_mov_b64 exec, 1")
    a("buffer_atomic_add v%d, v%d, s[%d:%d], 0 offen" % (vT1, vT0, sWS, sWS + 3))
    a("s_mov_b64 exec, s[56:57]")
    a.label(lpf)
    vPa, vPt = 3, 4
    P0 = 120
    lw = a.newlabel("Lw")
    a("s_cmp_eq_u32 s%d, 0" % s_w)
    a("s_cbranch_scc0 %s" % lw)
    a("s_lshl_b32 s%d, s%d, 7" % (s_t0, s_rb))
    a("s_add_u32 s%d, s%d, %d" % (s_t0, s_t0, WS_FLAG + 8192))
    a("s_and_b32 s%d, s%d, 7" % (s_t1, s_rb))
    a("s_lshl_b32 s%d, s%d, 10" % (s_t1, s_t1))
    a("s_add_u32 s%d, s%d, %d" % (s_t1, s_t1, WS_FLAG))
    a("v_lshlrev_b32 v%d, 7, v%d" % (vPa, vLane))
    a("v_add_u32 v%d, s%d, v%d" % (vPa, s_t1, vPa))
    a("v_mov_b32 v%d, s%d" % (vT2, s_t0))
    a("v_cmp_gt_u32 s[56:57], 8, v%d" % vLane)
    a("v_cndmask_b32 v%d, v%d, v%d, s[56:57]" % (vPa, vT2, vPa))
    a("v_mov_b32 v%d, 8" % vPt)
    a("v_mov_b32 v%d, 16" % vT2)
    a("v_cndmask_b32 v%d, v%d, v%d, s[56:57]" % (vPt, vPt, vT2))
    a("s_mov_b64 s[54:55], exec")
    a("s_mov_b64 exec, 0x1ff")
    a("buffer_load_dword v%d, v%d, s[%d:%d], 0 offen sc1" % (P0, vPa, sWS, sWS + 3))
    lp, lpd = a.newlabel("Lp"), a.newlabel("Lpd")
    a.label(lp)
    a("s_waitcnt vmcnt(0)")
    a("v_cmp_ne_u32 vcc, v%d, v%d" % (P0, vPt))
    a("s_and_b32 s%d, vcc_lo, 0xff" % s_t1)
    a("s_cbranch_scc0 %s" % lpd)
    if S.get("psleep"):
        a("s_sleep %d" % S["psleep"])
    a("buffer_load_dword v%d, v%d, s[%d:%d], 0 offen sc1" % (P0, vPa, sWS, sWS + 3))
    a("s_branch %s" % lp)
    a.label(lpd)
    a("s_and_b32 s53, vcc_lo, 0x100")
    a("s_mov_b64 exec, s[54:55]")
    a("v_mov_b32 v%d, s53" % vT2)
    a("v_mov_b32 v%d, %d" % (vT3, PFOK))
    a("ds_write_b32 v%d, v%d" % (vT3, vT2))
    a("s_waitcnt lgkmcnt(0)")
    a.label(lw)
    a("s_barrier")
    stamp(a, S, 11)
    def ld_pq(i):
        if i == 0:
            so = "0"
        else:
            a("s_mov_b32 s%d, %d" % (s_off, i * 65536)); so = "s%d" % s_off
        a("buffer_load_dwordx4 v[%d:%d], v%d, s[%d:%d], %s offen sc1" % (PQF + 4 * i, PQF + 4 * i + 3, vPQl, sWS, sWS + 3, so))
    NPRE = S.get("npre", 8)
    a("v_mov_b32 v%d, %d" % (vT3, PFOK))
    a("ds_read_b32 v%d, v%d" % (vT2, vT3))
    for i in range(4):
        a("buffer_load_dwordx4 v[%d:%d], v%d, s[%d:%d], 0 offen offset:%d sc1" % (KL + 4 * i, KL + 4 * i + 3, vKVa, sWS, sWS + 3, WS_KV + 1024 * i))
    a("buffer_load_dwordx4 v[%d:%d], v%d, s[%d:%d], 0 offen sc1" % (ZL, ZL + 3, vZa, sWS, sWS + 3))
    a("s_waitcnt lgkmcnt(0)")
    a("v_readfirstlane_b32 s53, v%d" % vT2)
    C_ = 120

    def conv_kv(younger):
        for i in range(4):
            a("s_waitcnt vmcnt(%d)" % (younger + 4 - i))
            a("v_cvt_pk_bf16_f32 v%d, v%d, v%d" % (C_ + 2 * i, KL + 4 * i, KL + 4 * i + 1))
            a("v_cvt_pk_bf16_f32 v%d, v%d, v%d" % (C_ + 2 * i + 1, KL + 4 * i + 2, KL + 4 * i + 3))
            a("ds_write_b64 v%d, v[%d:%d] offset:%d" % (vKFw, C_ + 2 * i, C_ + 2 * i + 1, 1024 * i))
        a("s_waitcnt vmcnt(%d)" % younger)
        lzz = a.newlabel("Lzz")
        a("s_cmp_lt_u32 s%d, 2" % s_w)
        a("s_cbranch_scc0 %s" % lzz)
        a("v_cvt_pk_bf16_f32 v94, v%d, v%d" % (ZL, ZL + 1))
        a("v_cvt_pk_bf16_f32 v95, v%d, v%d" % (ZL + 2, ZL + 3))
        a("ds_write_b64 v%d, v[94:95]" % vZFw)
        a("ds_write_b64 v%d, v[94:95] offset:64" % vZFw)
        a.label(lzz)

    lslow, ljoin = a.newlabel("Lslow"), a.newlabel("Ljoin")
    a("s_cmp_eq_u32 s53, 0")
    a("s_cbranch_scc0 %s" % lslow)
    for i in range(NPRE):
        ld_pq(i)
    conv_kv(NPRE)
    a("s_waitcnt lgkmcnt(0)")
    a("s_barrier")
    a("s_branch %s" % ljoin)
    a.label(lslow)
    conv_kv(0)
    lw2, lp2, lpd2 = a.newlabel("Lw2"), a.newlabel("Lp"), a.newlabel("Lpd")
    a("s_cmp_eq_u32 s%d, 0" % s_w)
    a("s_cbranch_scc0 %s" % lw2)
    a("s_mov_b64 exec, 0x100")
    a.label(lp2)
    a("buffer_load_dword v%d, v%d, s[%d:%d], 0 offen sc1" % (93, vPa, sWS, sWS + 3))
    a("s_waitcnt vmcnt(0)")
    a("v_cmp_ne_u32 vcc, v93, v%d" % vPt)
    a("s_cbranch_vccnz %s" % lp2)
    a("s_mov_b64 exec, s[54:55]")
    a.label(lw2)
    a("s_waitcnt lgkmcnt(0)")
    a("s_barrier")
    for i in range(NPRE):
        ld_pq(i)
    a.label(ljoin)
    stamp(a, S, 6)

    def rd_kv(h):
        a("ds_read_b128 v[%d:%d], v%d offset:%d" % (KA[h & 1], KA[h & 1] + 3, vKr, 1024 * h))

    def rd_wo(h):
        W_ = WA[h & 1]
        for jt, vb in ((0, vWr2), (1, vWr1)):
            for j in range(2):
                a("ds_read_b64_tr_b16 v[%d:%d], v%d offset:%d" % (W_ + 4 * jt + 2 * j, W_ + 4 * jt + 2 * j + 1, vb, WO + (16 * h + 8 * j) * 128))

    issued = [NPRE]

    def num(h):
        a("s_waitcnt vmcnt(%d)" % (issued[0] - 1 - h))
        a("v_mfma_f32_32x32x16_bf16 v[%d:%d], v[%d:%d], v[%d:%d], 0" % (D1[h & 1], D1[h & 1] + 15, KA[h & 1], KA[h & 1] + 3, PQF + 4 * h, PQF + 4 * h + 3))
        if issued[0] < 16:
            ld_pq(issued[0]); issued[0] += 1

    rd_kv(0)
    a("s_waitcnt lgkmcnt(0)")
    num(0)
    rd_kv(1); rd_wo(0)
    for h in range(16):
        if h + 1 < 16:
            a("s_waitcnt lgkmcnt(4)")
            num(h + 1)
        D = D1[h & 1]
        a("v_add_f32 v%d, 0x%x, v%d" % (vR, EPS, D + 8))
        a("v_rcp_f32 v%d, v%d" % (vR, vR))
        for i in range(8):
            a("v_mul_f32 v%d, v%d, v%d" % (D + i, D + i, vR))
        B_ = OB[h & 1]
        for i in range(4):
            a("v_cvt_pk_bf16_f32 v%d, v%d, v%d" % (B_ + i, D + 2 * i, D + 2 * i + 1))
        a("s_waitcnt lgkmcnt(0)")
        if h + 2 < 16:
            rd_kv(h + 2)
        W_ = WA[h & 1]
        a("v_mfma_f32_32x32x16_bf16 v[%d:%d], v[%d:%d], v[%d:%d], v[%d:%d]" % (O0, O0 + 15, W_, W_ + 3, B_, B_ + 3, O0, O0 + 15))
        a("v_mfma_f32_32x32x16_bf16 v[%d:%d], v[%d:%d], v[%d:%d], v[%d:%d]" % (O1, O1 + 15, W_ + 4, W_ + 7, B_, B_ + 3, O1, O1 + 15))
        if h + 1 < 16:
            rd_wo(h + 1)
    stamp(a, S, 7)
    lA, lB, lC, lD = [a.newlabel("Lx") for _ in range(4)]
    a("s_cmp_eq_u32 s%d, 0" % s_hh)
    a("s_cbranch_scc0 %s" % lA)
    for q in range(4):
        a("ds_write_b128 v%d, v[%d:%d] offset:%d" % (vE0, O1 + 4 * q, O1 + 4 * q + 3, 1024 * q))
    a("s_branch %s" % lB)
    a.label(lA)
    for q in range(4):
        a("ds_write_b128 v%d, v[%d:%d] offset:%d" % (vE0, O0 + 4 * q, O0 + 4 * q + 3, 1024 * q))
    a.label(lB)
    a("s_waitcnt lgkmcnt(0)")
    a("s_barrier")
    E = 48
    for q in range(4):
        a("ds_read_b128 v[%d:%d], v%d offset:%d" % (E + 4 * q, E + 4 * q + 3, vE1, 1024 * q))
    a("s_cmp_eq_u32 s%d, 0" % s_hh)
    a("s_cbranch_scc0 %s" % lC)
    a("s_waitcnt lgkmcnt(0)")
    for i in range(16):
        a("v_add_f32 v%d, v%d, v%d" % (E + i, E + i, O0 + i))
    a("s_branch %s" % lD)
    a.label(lC)
    a("s_waitcnt lgkmcnt(0)")
    for i in range(16):
        a("v_add_f32 v%d, v%d, v%d" % (E + i, E + i, O1 + i))
    a.label(lD)
    for q in range(4):
        a("v_cvt_pk_bf16_f32 v%d, v%d, v%d" % (64 + 2 * q, E + 4 * q, E + 4 * q + 1))
        a("v_cvt_pk_bf16_f32 v%d, v%d, v%d" % (65 + 2 * q, E + 4 * q + 2, E + 4 * q + 3))
        a("ds_write_b64 v%d, v[%d:%d] offset:%d" % (vSt, 64 + 2 * q, 65 + 2 * q, 16 * q))
    a("s_waitcnt lgkmcnt(0)")
    a("s_barrier")
    a("ds_read_b128 v[76:79], v%d" % vRd)
    a("ds_read_b128 v[80:83], v%d offset:%d" % (vRd, 8 * 144))
    a("s_mov_b32 s%d, 16384" % s_off)
    a("s_waitcnt lgkmcnt(1)")
    a("buffer_store_dwordx4 v[76:79], v%d, s[%d:%d], 0 offen" % (vOa, sOUT, sOUT + 3))
    a("s_waitcnt lgkmcnt(0)")
    a("buffer_store_dwordx4 v[80:83], v%d, s[%d:%d], s%d offen" % (vOa, sOUT, sOUT + 3, s_off))
    stamp(a, S, 8)


def zero_pre(s_idx):
    def f(a, s_w):
        l = a.newlabel("Lzp")
        a("s_cmp_lt_u32 s%d, 8" % s_idx)
        a("s_cbranch_scc0 %s" % l)
        a("s_cmp_eq_u32 s%d, 3" % s_w)
        a("s_cbranch_scc0 %s" % l)
        a("s_load_dwordx4 s[88:91], s[0:1], 104")
        for r in range(4):
            a("v_mov_b32 v%d, 0" % (200 + r))
        a("s_waitcnt lgkmcnt(0)")
        srd(a, 92, 90, 91, 1 << 28)
        a("v_lshlrev_b32 v204, 4, v1")
        a("s_lshl_b32 s64, s%d, 12" % s_idx)
        a("v_add_u32 v205, s64, v204")
        for r in range(4):
            a("buffer_store_dwordx4 v[200:203], v205, s[92:95], 0 offen offset:%d sc1" % (WS_KV + 1024 * r))
        a("s_lshl_b32 s64, s%d, 8" % s_idx)
        a("s_add_u32 s64, s64, %d" % WS_Z)
        a("v_and_b32 v206, 15, v1")
        a("v_lshlrev_b32 v205, 4, v206")
        a("v_add_u32 v205, s64, v205")
        a("buffer_store_dwordx4 v[200:203], v205, s[92:95], 0 offen sc1")
        a("s_lshl_b32 s64, s%d, 7" % s_idx)
        a("s_add_u32 s64, s64, %d" % WS_FLAG)
        a("v_and_b32 v206, 7, v1")
        a("v_lshlrev_b32 v206, 10, v206")
        a("v_add_u32 v206, s64, v206")
        a("s_lshl_b32 s65, s%d, 8" % s_idx)
        a("s_add_u32 s65, s65, %d" % (WS_FLAG + 8192 - 1024))
        a("v_lshlrev_b32 v205, 7, v1")
        a("v_add_u32 v205, s65, v205")
        a("v_add_u32 v207, -8, v1")
        a("v_cmp_gt_u32 s[66:67], 2, v207")
        a("v_cndmask_b32 v206, v206, v205, s[66:67]")
        a("buffer_store_dword v200, v206, s[92:95], 0 offen sc1")
        a("s_lshl_b32 s64, s%d, 7" % s_idx)
        a("s_add_u32 s64, s64, %d" % (WS_FLAG + 12288))
        a("v_mov_b32 v206, s64")
        a("buffer_store_dword v200, v206, s[92:95], 0 offen sc1")
        a.label(l)
    return f


def zero_post(s_idx):
    def f(a, s_w):
        l = a.newlabel("Lzq")
        a("s_cmp_lt_u32 s%d, 8" % s_idx)
        a("s_cbranch_scc0 %s" % l)
        a("s_cmp_eq_u32 s%d, 3" % s_w)
        a("s_cbranch_scc0 %s" % l)
        a("s_waitcnt vmcnt(0)")
        a("s_load_dwordx2 s[88:89], s[0:1], 104")
        a("s_waitcnt lgkmcnt(0)")
        srd(a, 60, 88, 89, 256)
        a("s_lshl_b32 s64, s%d, 2" % s_idx)
        a("v_mov_b32 v245, s64")
        a("v_mov_b32 v244, 1")
        a("s_mov_b64 s[66:67], exec")
        a("s_mov_b64 exec, 1")
        a("buffer_store_dword v244, v245, s[60:63], 0 offen sc1")
        a("s_mov_b64 exec, s[66:67]")
        a.label(l)
    return f
```

```python
import sys
from asmdsl import Asm
import partA, partB, partB2, partB3, partA2

NAME = "concat_heads__ssm_conv_s4__linear_attn_block__prompt_kernel"

HEADER = """; concat( S4 SSM conv , linear-attention block ) -- one fused launch, 256 workgroups x 8 waves, 1 per CU.
; Workgroup role = bit 3 of the workgroup id (so every XCD gets 16 of each under round-robin placement; speed only):
;                     (4 dword-shifted K copies x 2 shifted u copies in LDS); output rows are gathered in LDS.
;   role B (128 WGs): 128 rows x 4 heads of q,k,v (LDS-DMA ring), phi, kv/z partials -> fp32 atomics in d_ws,
;                     pq fragments -> d_ws, counters in d_ws (zeroed in-kernel, guarded by d_debug flags),
;                     then num/den, normalisation and the output projection for a 128 x 64 tile.
; Generated by my own script (gen/build.py); wait states are inserted by its hazard pass.
"""

def kernel_text(name, body, nvgpr, accum, nsgpr=102):
    return """.globl {n}
.p2align 8
.type {n},@function
{n}:
{body}""".format(n=name, body=body), """.amdhsa_kernel {n}
  .amdhsa_next_free_vgpr {v}
  .amdhsa_next_free_sgpr {s}
  .amdhsa_accum_offset {acc}
  .amdhsa_group_segment_fixed_size 0
  .amdhsa_kernarg_size 120
  .amdhsa_user_sgpr_count 2
  .amdhsa_user_sgpr_kernarg_segment_ptr 1
  .amdhsa_system_sgpr_workgroup_id_x 1
.end_amdhsa_kernel
""".format(n=name, v=nvgpr, s=nsgpr, acc=accum)

def assemble(launches, kernels):
    out = [HEADER.rstrip()]
    if len(launches) == 1 and launches[0][0] == NAME:
        k, g, b, l = launches[0]
        out.append("; @launch grid=(%d,1,1) block=(%d,1,1) lds=%d" % (g, b, l))
    else:
        for k, g, b, l in launches:
            out.append("; @launch kernel=%s grid=(%d,1,1) block=(%d,1,1) lds=%d" % (k, g, b, l))
    out.append('.amdgcn_target "amdgcn-amd-amdhsa--gfx950"')
    out.append(".text")
    desc = []
    for name, body, nv, acc in kernels:
        t, d = kernel_text(name, body, nv, acc)
        out.append(t)
        desc.append(d)
    out.append('.section .rodata,"a"')
    for d in desc:
        out.append(".p2align 6")
        out.append(d.rstrip())
    return "\n".join(out) + "\n"

def emit_stamps(a, n, s_wg, s_w, nw=4):
    a("s_waitcnt vmcnt(0)")
    a("s_memtime s[%d:%d]" % (70 + 2 * n, 71 + 2 * n))
    a("s_load_dwordx2 s[60:61], s[0:1], 112")
    a("s_waitcnt lgkmcnt(0)")
    a("s_mov_b32 s62, 0x10000000"); a("s_mov_b32 s63, 0x20000"); a("s_and_b32 s61, s61, 0xffff")
    a("s_mul_i32 s64, s%d, %d" % (s_wg, nw)); a("s_add_u32 s64, s64, s%d" % s_w); a("s_lshl_b32 s64, s64, 6")
    a("s_add_u32 s64, s64, 0x8000000")
    a("v_mov_b32 v5, s64")
    for i in range(n + 1):
        a("s_sub_u32 s65, s%d, s70" % (70 + 2 * i))
        a("v_mov_b32 v4, s65")
        a("buffer_store_dword v4, v5, s[60:63], 0 offen offset:%d" % (4 * i))
    a("s_getreg_b32 s65, hwreg(HW_REG_XCC_ID)")
    a("v_mov_b32 v4, s65")
    a("buffer_store_dword v4, v5, s[60:63], 0 offen offset:60")
    a("s_memrealtime s[66:67]")
    a("s_waitcnt lgkmcnt(0)")
    a("v_mov_b32 v4, s66")
    a("buffer_store_dword v4, v5, s[60:63], 0 offen offset:56")
    a("v_mov_b32 v4, s98")
    a("buffer_store_dword v4, v5, s[60:63], 0 offen offset:52")

def kernelA(dbg=None, stamps=False, zero=False):
    a = Asm()
    a("s_cmp_ge_u32 s2, 128")
    a("s_cbranch_scc1 LA_end")
    if zero:
        zero_kvz(a)
    a("s_and_b32 s3, s2, 7")
    a("s_lshl_b32 s3, s3, 4")
    a("s_lshr_b32 s4, s2, 3")
    a("s_add_u32 s3, s3, s4")
    r = partA.emit_partA(a, dict(ka=0, cg=3, stamps=stamps), dbg)
    if stamps:
        emit_stamps(a, 7, 2, r["s_w"])
    if dbg == "lds":
        a("s_load_dwordx2 s[60:61], s[0:1], 112")
        a("s_waitcnt lgkmcnt(0)")
        a("s_mov_b32 s62, 0x10000000"); a("s_mov_b32 s63, 0x20000"); a("s_and_b32 s61, s61, 0xffff")
        a("s_mul_i32 s64, s3, %d" % 131072)
        a("v_lshlrev_b32 v3, 2, v0")
        a("s_mov_b32 s65, 0")
        a.label("Ldump")
        a("ds_read_b32 v4, v3")
        a("v_add_u32 v5, s64, v3")
        a("s_waitcnt lgkmcnt(0)")
        a("buffer_store_dword v4, v5, s[60:63], 0 offen")
        a("v_add_u32 v3, 1024, v3")
        a("s_add_u32 s65, s65, 1024")
        a("s_cmp_lt_u32 s65, %d" % partA.A_LDS)
        a("s_cbranch_scc1 Ldump")
    a("s_waitcnt vmcnt(0)")
    a.label("LA_end")
    a("s_endpgm")
    return a.finish()

def map_B(a):
    a("s_and_b32 s3, s2, 3"); a("s_lshl_b32 s3, s3, 2")
    a("s_bfe_u32 s4, s2, 0x20003"); a("s_add_u32 s3, s3, s4")
    a("s_bfe_u32 s4, s2, 0x10002"); a("s_lshl_b32 s4, s4, 2")
    a("s_bfe_u32 s5, s2, 0x20005"); a("s_add_u32 s4, s4, s5")

def kernelB1(stamps=False, touch=False):
    a = Asm()
    a("s_cmp_ge_u32 s2, 128")
    a("s_cbranch_scc1 LB1_end")
    map_B(a)
    partB.emit_B1(a, dict(ka=0, rb=3, hq=4, stamps=stamps, touch=touch))
    if stamps:
        emit_stamps(a, 5, 2, 44, 8)
    a("s_waitcnt vmcnt(0)")
    a.label("LB1_end")
    a("s_endpgm")
    return a.finish()

def kernelB2(stamps=False):
    a = Asm()
    a("s_cmp_ge_u32 s2, 128")
    a("s_cbranch_scc1 LB2_end")
    map_B(a)
    partB.emit_B2(a, dict(ka=0, rb=3, jb=4, stamps=stamps))
    if stamps:
        emit_stamps(a, 4, 2, 44, 8)
    a("s_waitcnt vmcnt(0)")
    a.label("LB2_end")
    a("s_endpgm")
    return a.finish()

def zero_kvz(a):
    a("s_load_dwordx2 s[60:61], s[0:1], 112")
    a("s_waitcnt lgkmcnt(0)")
    a("s_mov_b32 s62, %d" % partB.KVZ_BYTES); a("s_mov_b32 s63, 0x20000"); a("s_and_b32 s61, s61, 0xffff")
    a("s_mul_i32 s64, s2, 272")
    a("v_lshlrev_b32 v3, 2, v0")
    a("v_add_u32 v3, s64, v3")
    a("v_mov_b32 v4, 0")
    a("v_cmp_gt_u32 vcc, 68, v0")
    a("s_and_saveexec_b64 s[66:67], vcc")
    a("s_cbranch_execz Lzk")
    a("buffer_store_dword v4, v3, s[60:63], 0 offen")
    a.label("Lzk")
    a("s_mov_b64 exec, s[66:67]")

def kernelF(stamps=False, Bmod=None, Amod=None):
    Bmod = Bmod or partB2
    a = Asm()
    if stamps:
        a("s_memrealtime s[98:99]")
    a("s_cmp_ge_u32 s2, 256")
    a("s_cbranch_scc1 LF_end")
    a("s_lshr_b32 s6, s2, 4"); a("s_lshl_b32 s6, s6, 3"); a("s_and_b32 s7, s2, 7"); a("s_add_u32 s6, s6, s7")
    a("s_bitcmp1_b32 s2, 3")
    a("s_cbranch_scc1 LF_B")
    a("v_lshrrev_b32 v2, 6, v0")
    a("v_readfirstlane_b32 s7, v2")
    a("s_cmp_ge_u32 s7, 4")
    a("s_cbranch_scc0 LF_A")
    a("s_cmp_eq_u32 s7, 4")
    a("s_cbranch_scc0 LF_end")
    a("s_cmp_lt_u32 s6, 8")
    a("s_cbranch_scc0 LF_end")
    partB2.emit_zero_init(a, 0, 6)
    a("s_endpgm")
    a.label("LF_A")
    a("s_and_b32 s3, s6, 7"); a("s_lshl_b32 s3, s3, 4"); a("s_lshr_b32 s4, s6, 3"); a("s_add_u32 s3, s3, s4")
    r = partA.emit_partA(a, dict(ka=0, cg=3, stamps=stamps))
    if stamps:
        emit_stamps(a, 7, 2, r["s_w"], 8)
    a("s_waitcnt vmcnt(0)")
    a("s_endpgm")
    a.label("LF_B")
    a("s_and_b32 s3, s6, 3"); a("s_lshl_b32 s3, s3, 2")
    a("s_bfe_u32 s4, s6, 0x20003"); a("s_add_u32 s3, s3, s4")
    a("s_bfe_u32 s4, s6, 0x10002"); a("s_lshl_b32 s4, s4, 2")
    a("s_bfe_u32 s5, s6, 0x20005"); a("s_add_u32 s4, s4, s5")
    Bmod.emit_B(a, dict(ka=0, rb=3, hq=4, idx=6, stamps=stamps))
    if stamps:
        emit_stamps2(a, 9, 2, 44, 8)
    a("s_waitcnt vmcnt(0)")
    a.label("LF_end")
    a("s_endpgm")
    return a.finish()

def kernelG(stamps=False, Bmod=None, Aopts=None, Bopts=None, dbg=False):
    a = Asm()
    if dbg:
        stamps = True
    if stamps:
        a("s_memrealtime s[98:99]")
    a("s_cmp_ge_u32 s2, 256")
    a("s_cbranch_scc1 LF_end")
    a("s_lshr_b32 s6, s2, 4"); a("s_lshl_b32 s6, s6, 3"); a("s_and_b32 s7, s2, 7"); a("s_add_u32 s6, s6, s7")
    a("s_bitcmp1_b32 s2, 3")
    a("s_cbranch_scc1 LF_B")
    a("s_and_b32 s3, s6, 7"); a("s_lshl_b32 s3, s3, 4"); a("s_lshr_b32 s4, s6, 3"); a("s_add_u32 s3, s3, s4")
    S = dict(ka=0, cg=3, i16=4, stamps=stamps, zero_pre=Bmod.zero_pre(6), zero_post=Bmod.zero_post(6))
    S.update(Aopts or {})
    r = partA2.emit_partA(a, S)
    if stamps and not dbg:
        emit_stamps(a, 9, 2, r["s_w"], 8)
    a("s_waitcnt vmcnt(0)")
    a("s_endpgm")
    a.label("LF_B")
    a("s_and_b32 s3, s6, 3"); a("s_lshl_b32 s3, s3, 2")
    a("s_bfe_u32 s4, s6, 0x20003"); a("s_add_u32 s3, s3, s4")
    a("s_bfe_u32 s4, s6, 0x10002"); a("s_lshl_b32 s4, s4, 2")
    a("s_bfe_u32 s5, s6, 0x20005"); a("s_add_u32 s4, s4, s5")
    SB = dict(ka=0, rb=3, hq=4, idx=6, stamps=stamps)
    SB.update(Bopts or {})
    Bmod.emit_B(a, SB)
    if stamps and not dbg:
        emit_stamps(a, 12, 2, 44, 8)
    if dbg:
        emit_dbg(a, [1, 2, 4, 5, 6, 8], 6, 37, 44, 8)
    a("s_waitcnt vmcnt(0)")
    a.label("LF_end")
    a("s_endpgm")
    return a.finish()

def emit_dbg(a, idxs, s_sel, sel_val, s_w, base):
    l = a.newlabel("Ldbg")
    a("s_waitcnt vmcnt(0)")
    a("s_memtime s[96:97]")
    a("s_memrealtime s[66:67]")
    a("s_load_dwordx2 s[60:61], s[0:1], 104")
    a("s_waitcnt lgkmcnt(0)")
    a("s_cmp_eq_u32 s%d, %d" % (s_sel, sel_val))
    a("s_cbranch_scc0 %s" % l)
    a("s_cmp_eq_u32 s%d, 0" % s_w)
    a("s_cbranch_scc0 %s" % l)
    a("s_mov_b32 s62, 256"); a("s_mov_b32 s63, 0x20000"); a("s_and_b32 s61, s61, 0xffff")
    a("v_mov_b32 v5, 0")
    k = 0
    for i in idxs:
        a("s_sub_u32 s65, s%d, s70" % (70 + 2 * i))
        a("v_mov_b32 v4, s65")
        a("buffer_store_dword v4, v5, s[60:63], 0 offen offset:%d" % (4 * (base + k))); k += 1
    a("s_sub_u32 s65, s96, s70"); a("v_mov_b32 v4, s65")
    a("buffer_store_dword v4, v5, s[60:63], 0 offen offset:%d" % (4 * (base + k))); k += 1
    a("s_sub_u32 s65, s66, s98"); a("v_mov_b32 v4, s65")
    a("buffer_store_dword v4, v5, s[60:63], 0 offen offset:%d" % (4 * (base + k))); k += 1
    a.label(l)

def emit_stamps2(a, n, s_wg, s_w, nw):
    emit_stamps(a, n, s_wg, s_w, nw)

def kernelBx(Bmod=None, **kw):
    Bmod = Bmod or partB2
    a = Asm()
    a("s_memrealtime s[98:99]")
    a("s_cmp_ge_u32 s2, 128")
    a("s_cbranch_scc1 LF_end")
    a("s_mov_b32 s6, s2")
    a("s_and_b32 s3, s6, 3"); a("s_lshl_b32 s3, s3, 2")
    a("s_bfe_u32 s4, s6, 0x20003"); a("s_add_u32 s3, s3, s4")
    a("s_bfe_u32 s4, s6, 0x10002"); a("s_lshl_b32 s4, s4, 2")
    a("s_bfe_u32 s5, s6, 0x20005"); a("s_add_u32 s4, s4, s5")
    Bmod.emit_B(a, dict(ka=0, rb=3, hq=4, idx=6, stamps=True, x_stop=True, **kw))
    emit_stamps(a, 3, 2, 44, 8)
    a("s_waitcnt vmcnt(0)")
    a.label("LF_end")
    a("s_endpgm")
    return a.finish()

if __name__ == "__main__":
    mode = sys.argv[1]
    if mode == "A":
        txt = assemble([(NAME, 128, 256, partA.A_LDS)], [(NAME, kernelA(), 256, 256)])
    elif mode == "Astamp":
        txt = assemble([(NAME, 128, 256, partA.A_LDS)], [(NAME, kernelA(stamps=True), 256, 256)])
    elif mode == "v1" or mode == "v1st":
        st = mode == "v1st"
        txt = assemble([("ka_kernel", 128, 256, partA.A_LDS), ("kb1_kernel", 128, 512, 163840), ("kb2_kernel", 128, 512, 131072)],
                       [("ka_kernel", kernelA(zero=True), 256, 256), ("kb1_kernel", kernelB1(st), 256, 256), ("kb2_kernel", kernelB2(), 256, 256)])
    elif mode == "B1st":
        txt = assemble([(NAME, 128, 512, 163840)], [(NAME, kernelB1(True), 256, 256)])
    elif mode == "B1stT":
        txt = assemble([(NAME, 128, 512, 163840)], [(NAME, kernelB1(True, True), 256, 256)])
    elif mode == "B2st":
        txt = assemble([(NAME, 128, 512, 131072)], [(NAME, kernelB2(True), 256, 256)])
    elif mode == "v2" or mode == "v2st":
        txt = assemble([(NAME, 256, 512, 163840)], [(NAME, kernelF(mode == "v2st"), 256, 256)])
    elif mode.startswith("By"):
        kw = {}
        for f in mode.split("_")[1:]:
            if f.startswith("np"): kw["npro"] = int(f[2:])
            else: kw["x_" + f] = True
        txt = assemble([(NAME, 128, 512, 163840)], [(NAME, kernelBx(partB3, **kw), 256, 256)])
    elif mode.startswith("Bx"):
        kw = {}
        for f in mode.split("_")[1:]:
            kw["x_" + f] = True
        txt = assemble([(NAME, 128, 512, 163840)], [(NAME, kernelBx(**kw), 256, 256)])
    elif mode == "v3" or mode == "v3st":
        txt = assemble([(NAME, 256, 512, 163840)], [(NAME, kernelF(mode == "v3st", partB3), 256, 256)])
    elif mode.startswith("v4"):
        st = "st" in mode
        ao = {}
        if "late" in mode: ao["u_late"] = True
        if "spread" in mode: ao["u_spread"] = True
        if "tl" in mode: ao["touch_late"] = True
        if "bt" in mode: ao["btouch"] = True; ao["xcd"] = 7
        if "b2" in mode: ao["btouch2"] = True
        if "ue" in mode: ao["u_early"] = True
        if "ot" in mode: ao["otouch"] = True
        if "or" in mode: ao["orot"] = True
        if "cs" in mode: ao["cswap"] = True
        if "ts" in mode: ao["tstage"] = True; ao["xcd"] = 7
        if "cp" in mode:
            ao["cprio"] = True
            import re as _r2
            mm = _r2.search(r"cp(\d)", mode)
            if mm: ao["cprio_n"] = int(mm.group(1))
        bo = {}
        import re as _re
        m_ = _re.search(r"np(\d)", mode)
        if m_: bo["npro"] = int(m_.group(1))
        if "pb" in mode: bo["pairbar"] = True
        if "xp" in mode: bo["x_prio"] = True
        if "pk" in mode: bo["pkphi"] = True
        if "f0" in mode: bo["fast0"] = True
        if "ck" in mode: bo["chunkstamps"] = True
        if "lq" in mode: bo["lateq"] = True
        m_ = _re.search(r"pol(\d)", mode)
        if m_: bo["npoll"] = int(m_.group(1))
        m_ = _re.search(r"slp(\d+)", mode)
        if m_: bo["psleep"] = int(m_.group(1))
        m_ = _re.search(r"pre(\d+)", mode)
        if m_: bo["npre"] = int(m_.group(1))
        m_ = _re.search(r"kp(\d+)", mode)
        if m_: bo["kpost_per"] = int(m_.group(1))
        txt = assemble([(NAME, 256, 512, 163840)], [(NAME, kernelG(st, partB3, ao, bo, dbg=("dbg" in mode)), 256, 256)])
    elif mode == "Adbg":
        txt = assemble([(NAME, 128, 256, partA.A_LDS)], [(NAME, kernelA("lds"), 256, 256)])
    open(sys.argv[2], "w").write(txt)
```
